```python
import torch

def _softmax(x, axis=-1):
    return torch.softmax(x, dim=axis)
def _gelu(x):
    return torch.nn.functional.gelu(x, approximate="tanh")
def _silu(x):
    return torch.nn.functional.silu(x)
def _sigmoid(x):
    return torch.sigmoid(x)
def _layernorm(x, axis=-1, eps=1e-5):
    m = x.mean(dim=axis, keepdim=True)
    v = x.var(dim=axis, keepdim=True, unbiased=False)
    return (x - m) / torch.sqrt(v + eps)
def _scatter_add(tgt, idx, src, axis=0):
    return tgt.clone().index_add_(axis, idx, src)
def _segment_sum(src, seg, n):
    out = torch.zeros((n,) + src.shape[1:], dtype=src.dtype)
    return out.index_add_(0, seg, src)
def _pad(x, pw):
    flat = tuple(v for pair in reversed(pw) for v in pair)
    return torch.nn.functional.pad(x, flat)

kernel_name = 'recurrent_scan__ssm_conv_s4d__mixer_channel_mlp__prompt'

def setup_inputs():

    _w = (lambda a: (lambda t: t.to(torch.bfloat16) if t.is_floating_point() else t)(torch.as_tensor(a)))
    def _A_setup():
        Bsz, L, D, N = 1, 2048, 448, 256
        return {
            "u": _w((lambda *s: torch.randn(*s, dtype=torch.bfloat16) * 0.05)(Bsz, L, D)),
            "log_A_real": _w((lambda *s: torch.randn(*s, dtype=torch.bfloat16) * 3.2)(D, N) * 0.5),
            "A_imag": _w((lambda *s: torch.randn(*s, dtype=torch.bfloat16) * 0.2)(D, N) * 3.14),
            "C_real": _w((lambda *s: torch.randn(*s, dtype=torch.bfloat16) * 0.8)(D, N) / N ** 0.5),
            "C_imag": _w((lambda *s: torch.randn(*s, dtype=torch.bfloat16) * 0.8)(D, N) / N ** 0.5),
            "log_dt": _w((lambda *s: torch.randn(*s, dtype=torch.bfloat16) * 0.2)(D) * 0.5 - 4.0),
            "D_skip": _w((lambda *s: torch.randn(*s, dtype=torch.bfloat16) * 0.2)(D)),
        }
    _A_in = _A_setup()

    def _B_setup():
        B, S, D, F = 1, 2048, 448, 1792
        return {
            "x": _w((lambda *s: torch.randn(*s, dtype=torch.bfloat16) * 0.05)(B, S, D)),
            "w1": _w((lambda *s: torch.randn(*s, dtype=torch.bfloat16) * 1.6)(D, F) * (D ** -0.5)),
            "b1": _w((lambda *s: torch.randn(*s, dtype=torch.bfloat16) * 0.8)(F)),
            "w2": _w((lambda *s: torch.randn(*s, dtype=torch.bfloat16) * 0.1)(F, D) * (F ** -0.5)),
            "b2": _w((lambda *s: torch.randn(*s, dtype=torch.bfloat16) * 0.1)(D)),
        }
    _B_in = _B_setup()

    return {
        "A_u": _A_in["u"],
        "A_log_A_real": _A_in["log_A_real"],
        "A_A_imag": _A_in["A_imag"],
        "A_C_real": _A_in["C_real"],
        "A_C_imag": _A_in["C_imag"],
        "A_log_dt": _A_in["log_dt"],
        "A_D_skip": _A_in["D_skip"],
        "B_x": _B_in["x"],
        "B_w1": _B_in["w1"],
        "B_b1": _B_in["b1"],
        "B_w2": _B_in["w2"],
        "B_b2": _B_in["b2"],
    }

def reference(A_u, A_log_A_real, A_A_imag, A_C_real, A_C_imag, A_log_dt, A_D_skip, B_x, B_w1, B_b1, B_w2, B_b2):
    def _A_ref(u, log_A_real, A_imag, C_real, C_imag, log_dt, D_skip):
        L = u.shape[1]
        dt = torch.exp(log_dt)
        A = -torch.exp(log_A_real) + 1j * A_imag
        C = (C_real + 1j * C_imag) * dt[:, None]
        pos = (lambda x, dt: x.to(dt))(torch.arange(L), log_dt.dtype)
        P = torch.exp((A * dt[:, None])[:, :, None] * pos[None, None, :])
        K = 2.0 * torch.einsum("dn,dnl->dl", C, P).real
        L2 = 2 * L
        u_t = (lambda x, *d: x.permute(*d))(u, 0, 2, 1)
        Kf = (lambda x, *a, **k: torch.fft.rfft(x.float(), *a, **k))(K, L2)
        Uf = (lambda x, *a, **k: torch.fft.rfft(x.float(), *a, **k))(u_t, L2)
        y = (lambda x, *a, **k: torch.fft.irfft(x, *a, **k).to(torch.bfloat16))(Uf * Kf[None, :, :], L2)[:, :, :L]
        y = (lambda x, *d: x.permute(*d))(y, 0, 2, 1)
        return y + u * D_skip[None, None, :]

    def _B_ref(x, w1, b1, w2, b2):
        y = _layernorm(x, axis=-1)
        h = _gelu(torch.einsum("bsd,df->bsf", y, w1) + b1)
        return torch.einsum("bsf,fd->bsd", h, w2) + b2

    x = A_u
    xn = _layernorm(x, axis=-1)
    s = _A_ref(xn, A_log_A_real, A_A_imag, A_C_real, A_C_imag, A_log_dt, A_D_skip)
    g = _silu(_B_ref(xn, B_w1, B_b1, B_w2, B_b2))
    return x + s * g
```

```python
import re

class Asm:
    def __init__(self):
        self.lines = []
        self._lab = 0
    def __call__(self, text):
        for ln in text.strip("\n").split("\n"):
            ln = ln.strip()
            if ln:
                self.lines.append(ln)
    def label(self, name):
        self.lines.append(name + ":")
    def newlabel(self, base="L"):
        self._lab += 1
        return f"{base}_{self._lab}"
    def c(self, text):
        self.lines.append("; " + text)

REG_RE = re.compile(r"\b([vas])(\d+)\b|\b([vas])\[(\d+):(\d+)\]|\b(vcc_lo|vcc_hi|vcc|exec_lo|exec_hi|exec|m0|scc)\b")

def regs_of(tok):
    out = set()
    for m in REG_RE.finditer(tok):
        if m.group(1):
            out.add((m.group(1), int(m.group(2))))
        elif m.group(3):
            for i in range(int(m.group(4)), int(m.group(5)) + 1):
                out.add((m.group(3), i))
        else:
            n = m.group(6)
            if n.startswith("vcc"): out.add(("x", "vcc"))
            elif n.startswith("exec"): out.add(("x", "exec"))
            else: out.add(("x", n))
    return out

TRANS = ("v_exp_f32", "v_log_f32", "v_rcp_f32", "v_rsq_f32", "v_sqrt_f32", "v_sin_f32", "v_cos_f32")

class Ins:
    __slots__ = ("text", "op", "kind", "wr", "rd", "passes", "srcC", "srcAB", "nop", "dpp", "label", "target", "sdata")
    def __init__(self, text):
        self.text = text
        self.label = None; self.target = None; self.nop = 1; self.passes = 0
        self.srcC = set(); self.srcAB = set(); self.wr = set(); self.rd = set(); self.dpp = False; self.sdata = set()
        t = text.split(";")[0].strip()
        if not t:
            self.kind = "none"; self.op = ""; self.nop = 0; return
        if t.endswith(":"):
            self.kind = "label"; self.label = t[:-1]; self.op = ""; self.nop = 0; return
        if t.startswith("."):
            self.kind = "none"; self.op = ""; self.nop = 0; return
        parts = t.split(None, 1)
        op = parts[0]; self.op = op
        rest = parts[1] if len(parts) > 1 else ""
        ops = []; cur = ""; depth = 0
        for ch in rest:
            if ch == "[": depth += 1
            if ch == "]": depth -= 1
            if ch == "," and depth == 0:
                ops.append(cur.strip()); cur = ""
            else:
                cur += ch
        if cur.strip(): ops.append(cur.strip())
        opnds = []
        for o in ops:
            o2 = o.split(" ")[0] if not o.startswith("neg(") else o
            opnds.append(o2)
        mods = rest
        R = [regs_of(o) for o in opnds]
        if op == "s_nop":
            self.kind = "salu"; self.nop = int(rest.strip(), 0) + 1; return
        if op.startswith("s_cbranch") or op == "s_branch":
            self.kind = "branch"; self.target = rest.strip(); return
        if op.startswith("v_mfma"):
            self.kind = "mfma"
            self.passes = 8 if "32x32x16" in op else (4 if "16x16x32" in op else 16)
            self.wr = R[0]; self.srcAB = R[1] | R[2]; self.srcC = R[3] if len(R) > 3 else set()
            self.rd = self.srcAB | self.srcC
            return
        if op.startswith("v_"):
            self.kind = "valu"
            if any(op.startswith(x) for x in TRANS): self.kind = "trans"
            if op.startswith("v_dot"): self.kind = "dot"
            if "permlane" in op and "swap" in op:
                self.kind = "permlane"; self.wr = R[0] | R[1]; self.rd = R[0] | R[1]; return
            if op.startswith("v_readlane") or op.startswith("v_readfirstlane"):
                self.kind = "readlane"
            self.dpp = any(k in mods for k in ("row_shr", "row_shl", "row_ror", "quad_perm", "wave_shr", "wave_shl", "wave_ror", "wave_rol", "row_bcast", "row_mirror", "row_half_mirror", "row_newbcast"))
            if op.startswith("v_cmp"):
                self.wr = R[0]
                for r in R[1:]: self.rd |= r
                if op.startswith("v_cmpx"): self.wr = self.wr | {("x", "exec")}
                return
            self.wr = set(R[0])
            start = 1
            if op.startswith(("v_add_co", "v_sub_co", "v_addc_co", "v_subb_co", "v_subrev_co", "v_div_scale")):
                self.wr |= R[1]; start = 2
            for r in R[start:]: self.rd |= r
            if op.startswith("v_cndmask") and len(R) == 3: self.rd.add(("x", "vcc"))
            if op.startswith(("v_fmac", "v_mac", "v_dot2c", "v_pk_fmac", "v_writelane")) or self.dpp or "d16" in op:
                self.rd |= R[0]
            if op.startswith("v_swap"): self.wr |= R[1]; self.rd |= R[0]
            return
        if op.startswith("ds_"):
            self.kind = "ds"
            if op.startswith(("ds_read", "ds_bpermute", "ds_permute", "ds_swizzle")) or "_rtn" in op:
                self.wr = R[0]
                for r in R[1:]: self.rd |= r
                if "d16" in op: self.rd |= R[0]
            else:
                for r in R: self.rd |= r
            if "addtid" in op: self.rd.add(("x", "m0"))
            return
        if op.startswith(("buffer_", "global_", "flat_", "scratch_")):
            self.kind = "vmem"
            islds = (" lds" in (" " + mods)) or ("_lds_" in op)
            if islds:
                for r in R: self.rd |= r
                self.rd.add(("x", "m0")); self.kind = "vmemlds"
            elif "load" in op:
                self.wr = R[0]
                for r in R[1:]: self.rd |= r
            elif "store" in op:
                for r in R: self.rd |= r
                if "x4" in op or "x3" in op:
                    self.sdata = R[0] if op.startswith("buffer_") else R[1]
            elif "atomic" in op:
                for r in R: self.rd |= r
                if " sc0" in (" " + mods): self.wr = R[0]
            else:
                for r in R: self.rd |= r
            return
        if op.startswith("s_"):
            self.kind = "salu"
            if op.startswith(("s_load", "s_buffer_load", "s_memtime", "s_memrealtime")):
                self.kind = "smem"; self.wr = R[0]
                for r in R[1:]: self.rd |= r
                return
            if op.startswith(("s_cmp", "s_bitcmp")):
                for r in R: self.rd |= r
                return
            if op.startswith(("s_waitcnt", "s_barrier", "s_endpgm", "s_sleep", "s_setprio", "s_set_gpr_idx", "s_setreg")):
                return
            if R:
                self.wr = set(R[0])
                for r in R[1:]: self.rd |= r
                if "saveexec" in op: self.wr.add(("x", "exec"))
            return
        raise ValueError("unknown instruction: " + text)

def isv(r): return r[0] in ("v", "a")
def iss(r): return r[0] == "s" or r == ("x", "vcc")

def need(p, c):
    n = 0
    VAL = ("valu", "trans", "dot", "readlane", "permlane")
    pv = p.kind in VAL
    cv = c.kind in VAL
    pwv = {r for r in p.wr if isv(r)}
    pws = {r for r in p.wr if iss(r)}
    if pv:
        if c.kind == "mfma" and pwv & c.rd: n = max(n, 2)
        if cv and c.dpp and pwv & c.rd: n = max(n, 2)
        if c.kind == "readlane" and pwv & c.rd: n = max(n, 1)
        if c.kind == "permlane" and pwv & c.rd: n = max(n, 2)
        if pws:
            if cv and pws & c.rd: n = max(n, 4 if c.op.startswith(("v_readlane", "v_writelane")) else 2)
            if c.kind in ("vmem", "vmemlds") and pws & c.rd: n = max(n, 5)
            if c.kind == "mfma" and pws & c.rd: n = max(n, 2)
        if ("x", "exec") in p.wr:
            if cv and c.dpp: n = max(n, 5)
            if c.kind == "mfma": n = max(n, 4)
            if c.kind in ("readlane", "permlane"): n = max(n, 4)
            if cv: n = max(n, 2)
        if p.kind == "trans" and cv and c.kind != "trans" and pwv & c.rd: n = max(n, 1)
        if p.kind == "trans" and c.kind == "trans" and pwv & c.rd: n = max(n, 1)
        if p.kind == "dot":
            if cv or c.kind in ("mfma", "ds", "vmem"):
                if pwv & (c.rd | c.wr):
                    same = (c.op == p.op)
                    if same:
                        last = c.text.split(";")[0].split(",")[-1].split()[0]
                        others = ",".join(c.text.split(";")[0].split(",")[1:-1])
                        if (pwv & regs_of(others)) : n = max(n, 3)
                        elif c.op.startswith("v_dot2c"):
                            pass
                    else:
                        n = max(n, 3)
        if "op_sel:" in p.text and not p.op.startswith("v_pk") and cv and pwv & (c.rd | c.wr): n = max(n, 1)
        if ("sdwa" in p.text or "dst_sel" in p.text) and cv and pwv & (c.rd | c.wr): n = max(n, 1)
    if p.kind == "mfma":
        big = {4: 8, 8: 12, 16: 20}[p.passes]
        ovl = {4: 6, 8: 10, 16: 18}[p.passes]
        war = {4: 3, 8: 7, 16: 15}[p.passes]
        if c.kind == "mfma":
            if p.wr & c.srcAB: n = max(n, big)
            if p.wr & c.srcC:
                if not (p.wr == c.srcC and p.passes == c.passes): n = max(n, ovl)
            elif p.wr & c.wr:
                n = max(n, ovl)
        elif cv:
            if p.wr & (c.rd | c.wr): n = max(n, big)
            if p.srcC & c.wr: n = max(n, war)
        elif c.kind in ("ds", "vmem", "vmemlds"):
            if p.wr & (c.rd | c.wr): n = max(n, big)
    if p.kind == "salu" and ("x", "m0") in p.wr:
        if ("x", "m0") in c.rd and c.kind in ("ds", "vmemlds"): n = max(n, 1)
    if p.kind == "vmem" and p.sdata:
        if p.sdata & c.wr: n = max(n, 2 if cv else 1)
    return n

WIN = 22
def pad_hazards(lines):
    ins = [Ins(l) for l in lines]
    def scan(seq, upto):
        dist = 0; req = 0
        for p in reversed(seq):
            if p.kind in ("none", "label"): continue
            n = need(p, upto)
            if n > dist: req = max(req, n - dist)
            dist += p.nop
            if dist >= WIN: break
        return req
    out = []
    total = 0
    for c in ins:
        if c.kind not in ("none", "label"):
            r = scan(out[-64:], c)
            if r > 0:
                out.append(Ins(f"s_nop {r-1}")); total += r
        out.append(c)
    changed = True
    rounds = 0
    while changed and rounds < 10:
        changed = False; rounds += 1
        labpos = {x.label: i for i, x in enumerate(out) if x.kind == "label"}
        for i, b in enumerate(out):
            if b.kind != "branch" or b.target not in labpos: continue
            hist = out[max(0, i - 64): i + 1]
            j = labpos[b.target] + 1
            seq = list(hist)
            cnt = 0
            k = j
            while k < len(out) and cnt < WIN:
                c = out[k]
                if c.kind not in ("none", "label"):
                    dist = 0; req = 0
                    for idx in range(len(seq) - 1, -1, -1):
                        p = seq[idx]
                        if p.kind in ("none", "label"): continue
                        if idx < len(hist):
                            n = need(p, c)
                            if n > dist: req = max(req, n - dist)
                        dist += p.nop
                        if dist >= WIN: break
                    if req > 0:
                        out.insert(j, Ins(f"s_nop {req-1}")); total += req
                        changed = True
                        break
                    cnt += c.nop
                    if c.kind == "branch" and c.op == "s_branch": break
                    if c.op == "s_endpgm": break
                seq.append(c)
                k += 1
            if changed: break
    return [x.text for x in out], total
```

```python
import sys, math, struct
sys.path.insert(0, "gen")
from asmlib import Asm, pad_hazards

NAME = "recurrent_scan__ssm_conv_s4d__mixer_channel_mlp__prompt"
L, D, N, F = 2048, 448, 256, 1792
H_OFF, XNT_OFF, ST_OFF, KDBG_OFF = 0, 0x700000, 0x8C0000, 0xA80000
WS_SRD_SIZE = 0x1000000
X_BYTES = L * D * 2
W_BYTES = D * F * 2

def f2u(x): return struct.unpack("<I", struct.pack("<f", x))[0]
def hx(x): return hex(f2u(x))

S_X, S_LOGA, S_AIM, S_CRE, S_CIM, S_LOGDT, S_DSKIP, S_BX, S_W1, S_B1, S_W2, S_B2, S_OUT, S_DBG, S_WS = \
    16, 18, 20, 22, 24, 26, 28, 30, 32, 34, 36, 38, 40, 42, 44
SRD_X, SRD_W, SRD_WS, SRD_OUT = 48, 52, 56, 60

def sp(b): return f"s[{b}:{b+1}]"
def srd(b): return f"s[{b}:{b+3}]"
def vr(b, n=4): return f"v[{b}:{b+n-1}]" if n > 1 else f"v{b}"

def prologue(a, nwg):
    a(f"""
    s_load_dwordx16 s[16:31], s[0:1], 0
    s_load_dwordx8 s[32:39], s[0:1], 64
    s_load_dwordx4 s[40:43], s[0:1], 96
    s_load_dwordx2 s[44:45], s[0:1], 112
    v_lshrrev_b32 v1, 6, v0
    v_and_b32 v0, 63, v0
    s_cmp_ge_u32 s2, {nwg}
    v_readfirstlane_b32 s3, v1
    s_cbranch_scc1 L_END
    s_waitcnt lgkmcnt(0)
    """)

def mk_srd(a, dst, base, size):
    a(f"""
    s_mov_b32 s{dst}, s{base}
    s_mov_b32 s{dst+1}, s{base+1}
    s_mov_b32 s{dst+2}, {hex(size)}
    s_mov_b32 s{dst+3}, 0x00020000
    """)

def bf16r(a, dst, src, tmp=None):
    a(f"v_cvt_pk_bf16_f32 v{dst}, v{src}, v{src}")
    a(f"v_and_b32 v{dst}, 0xffff0000, v{dst}")

def signal(a, addr_v, val_v, off):
    a(f"""
    s_mov_b64 exec, 1
    ds_write_b32 v{addr_v}, v{val_v} offset:{off}
    s_mov_b64 exec, -1
    """)

def spin_lds(a, tmp, addr_v, off, target_s):
    lab = a.newlabel("SPIN")
    a(f"""
    {lab}:
    ds_read_b32 v{tmp}, v{addr_v} offset:{off}
    s_waitcnt lgkmcnt(0)
    v_cmp_gt_u32 vcc, s{target_s}, v{tmp}
    s_cbranch_vccnz {lab}
    """)

def path_ln(a, idx_s, fused):
    STR = 912
    a.c("---- LN path")
    mk_srd(a, SRD_WS, S_WS, WS_SRD_SIZE)
    a(f"""
    v_lshrrev_b32 v1, 3, v0
    v_and_b32 v2, 7, v0                     ; chunk c
    s_lshl_b32 s4, s{idx_s}, 6              ; r0
    s_lshl_b32 s5, s3, 3
    s_add_u32 s5, s5, s4
    v_add_u32 v3, s5, v1
    v_mul_u32_u24 v3, 896, v3
    v_lshl_add_u32 v3, v2, 4, v3
    """)
    for i in range(7):
        a(f"global_load_dwordx4 {vr(32+4*i)}, v3, {sp(S_X)} offset:{128*i}")
    a(f"""
    s_lshl_b32 s5, s3, 3
    v_add_u32 v4, s5, v1
    v_mul_u32_u24 v4, {STR}, v4
    v_lshl_add_u32 v4, v2, 4, v4
    s_mov_b32 s6, 0x3f803f80
    v_mov_b32 v5, 0
    v_mov_b32 v6, 0
    s_waitcnt vmcnt(0)
    """)
    for i in range(28):
        a(f"v_dot2_f32_bf16 v5, v{32+i}, s6, v5")
        a(f"v_dot2_f32_bf16 v6, v{32+i}, v{32+i}, v6")
    for r in (5, 6):
        a(f"s_nop 2")
        a(f"v_add_f32_dpp v{r}, v{r}, v{r} quad_perm:[1,0,3,2] row_mask:0xf bank_mask:0xf")
        a(f"v_add_f32_dpp v{r}, v{r}, v{r} quad_perm:[2,3,0,1] row_mask:0xf bank_mask:0xf")
        a(f"v_add_f32_dpp v{r}, v{r}, v{r} row_half_mirror row_mask:0xf bank_mask:0xf")
    a(f"""
    s_mov_b32 s6, {hx(1.0/448)}
    v_mul_f32 v5, s6, v5                    ; mean
    v_mul_f32 v6, s6, v6                    ; E[x^2]
    v_fma_f32 v6, -v5, v5, v6               ; var
    v_max_f32 v6, 0, v6
    """)
    bf16r(a, 7, 5)
    bf16r(a, 6, 6)
    a(f"v_add_f32 v6, {hx(1e-5)}, v6")
    bf16r(a, 6, 6)
    a("v_sqrt_f32 v6, v6")
    bf16r(a, 6, 6)
    a("v_rcp_f32 v6, v6")
    a("v_mov_b32 v8, v7")
    for i in range(28):
        s = 32 + i
        a(f"""
        v_lshlrev_b32 v10, 16, v{s}
        v_and_b32 v11, 0xffff0000, v{s}
        v_sub_f32 v10, v10, v7
        v_sub_f32 v11, v11, v7
        v_cvt_pk_bf16_f32 v12, v10, v11
        v_lshlrev_b32 v10, 16, v12
        v_and_b32 v11, 0xffff0000, v12
        v_mul_f32 v10, v10, v6
        v_mul_f32 v11, v11, v6
        v_cvt_pk_bf16_f32 v{s}, v10, v11
        """)
    for i in range(7):
        a(f"ds_write_b128 v4, {vr(32+4*i)} offset:{128*i}")
    a("s_waitcnt lgkmcnt(0)")
    a("s_barrier")
    a(f"""
    v_lshrrev_b32 v1, 4, v0                 ; g
    v_and_b32 v2, 15, v0                    ; i
    v_lshrrev_b32 v3, 2, v2                 ; r
    v_lshl_add_u32 v3, v1, 3, v3            ; 8g + r
    v_mul_u32_u24 v3, {STR}, v3
    v_and_b32 v4, 3, v0
    v_lshl_add_u32 v3, v4, 3, v3
    v_lshlrev_b32 v5, 12, v2
    v_lshl_add_u32 v5, v1, 4, v5            ; + g*16 bytes (8 l's)
    s_lshl_b32 s5, s4, 1                    ; r0*2 bytes
    s_add_u32 s5, s5, {XNT_OFF}
    s_mul_i32 s6, s3, 7                     ; t0
    """)
    for j in range(7):
        a(f"""
        s_add_u32 s7, s6, {j}
        s_lshr_b32 s8, s7, 1                ; dblock
        s_and_b32 s9, s7, 1                 ; lhalf
        s_mul_i32 s10, s9, {32*STR}
        s_lshl_b32 s11, s8, 5
        s_add_u32 s10, s10, s11
        v_add_u32 v6, s10, v3
        ds_read_b64_tr_b16 v[{32+4*j}:{33+4*j}], v6
        ds_read_b64_tr_b16 v[{34+4*j}:{35+4*j}], v6 offset:{4*STR}
        """)
    for j in range(7):
        a(f"""
        s_add_u32 s7, s6, {j}
        s_lshr_b32 s8, s7, 1
        s_and_b32 s9, s7, 1
        s_lshl_b32 s10, s8, 16
        s_lshl_b32 s11, s9, 6               ; lhalf*32*2
        s_add_u32 s10, s10, s11
        s_add_u32 s10, s10, s5
        s_waitcnt lgkmcnt({2*(6-j)})
        buffer_store_dwordx4 {vr(32+4*j)}, v5, {srd(SRD_WS)}, s10 offen{' sc1' if fused else ''}
        """)
    a("s_waitcnt vmcnt(0)")

G1_SLOT = 32768
G1_R = 3
G1_TAB = 32768
G1_FLAG = 98304

def path_g1(a, fused):
    a.c("---- G1 path")
    VW1, VX0, VX1 = 2, 3, 4
    VA = [5, 6]
    VB = [[8, 9], [10, 11], [12, 13], [14, 15]]
    VSX, VSXX, VSW = 16, 17, 18
    VFL, VT, VT2, VSIG = 19, 20, 21, 22
    AF = [[32, 36], [40, 44]]
    BF = [[48, 52], [56, 60]]
    ACC = 128
    def acc(fbp, lbp): return ACC + 16 * (2 * fbp + lbp)
    mk_srd(a, SRD_X, S_X, X_BYTES)
    mk_srd(a, SRD_W, S_W1, W_BYTES)
    mk_srd(a, SRD_WS, S_WS, WS_SRD_SIZE)
    a(f"""
    s_and_b32 s6, s3, 1                     ; wf
    s_lshr_b32 s7, s3, 1                    ; wl
    v_lshrrev_b32 v1, 4, v0                 ; i>>4
    v_and_b32 v7, 15, v0
    v_lshlrev_b32 v23, 2, v1
    v_xor_b32 v7, v7, v23                   ; gchunk
    v_mul_u32_u24 v{VW1}, 3584, v1
    v_lshl_add_u32 v{VW1}, v7, 4, v{VW1}
    s_lshl_b32 s8, s5, 8                    ; ft*256
    v_add_u32 v{VW1}, s8, v{VW1}
    v_and_b32 v7, 7, v0
    v_xor_b32 v7, v7, v1                    ; (i&7)^(i>>4)
    v_lshrrev_b32 v23, 3, v0
    v_mul_u32_u24 v23, 896, v23
    s_mul_i32 s8, s4, {128*896}
    v_add_u32 v23, s8, v23
    v_lshl_add_u32 v{VX0}, v7, 4, v23
    v_xor_b32 v7, 4, v7
    v_lshl_add_u32 v{VX1}, v7, 4, v23
    s_mul_i32 s8, s3, {16*3584}
    s_mul_i32 s9, s3, {32*896}
    s_lshl_b32 s10, s3, 12
    """)
    def dma_stage(slot_s):
        a(f"s_add_u32 m0, s{slot_s}, s10")
        a(f"s_mov_b32 s11, s8")
        for j in range(4):
            a(f"buffer_load_dwordx4 v{VW1}, {srd(SRD_W)}, s11 offen lds")
            a(f"s_add_u32 m0, m0, 1024" if j < 3 else f"s_add_u32 m0, m0, {16384-3072}")
            a(f"s_add_u32 s11, s11, {4*3584}" if j < 3 else f"s_mov_b32 s11, s9")
        for j in range(4):
            a(f"buffer_load_dwordx4 v{VX0 if j % 2 == 0 else VX1}, {srd(SRD_X)}, s11 offen lds")
            if j < 3:
                a(f"s_add_u32 m0, m0, 1024")
                a(f"s_add_u32 s11, s11, {8*896}")
        a(f"s_add_u32 s8, s8, {64*3584}")
        a(f"s_add_u32 s9, s9, 128")
    for s in range(G1_R):
        a(f"s_mov_b32 s12, {s*G1_SLOT}")
        dma_stage(12)
    a(f"""
    v_and_b32 v1, 31, v0
    s_lshl_b32 s12, s5, 7
    s_lshl_b32 s13, s6, 6
    s_add_u32 s12, s12, s13
    s_lshl_b32 s13, s7, 5
    s_add_u32 s12, s12, s13
    v_add_u32 v7, s12, v1
    v_lshlrev_b32 v7, 1, v7
    global_load_ushort v24, v7, {sp(S_B1)}
    """)
    a(f"""
    v_lshrrev_b32 v1, 4, v0                 ; g
    v_lshrrev_b32 v7, 1, v1                 ; hi
    v_bfe_u32 v23, v0, 2, 2                 ; r
    v_lshl_add_u32 v25, v7, 3, v23          ; 8hi + r
    v_lshlrev_b32 v25, 8, v25               ; *256
    v_and_b32 v26, 1, v0
    v_lshl_add_u32 v25, v26, 3, v25         ; + (c&1)*8
    v_and_b32 v26, 1, v1
    v_lshlrev_b32 v26, 1, v26               ; 2(g&1)
    v_bfe_u32 v27, v0, 1, 1                 ; c>>1
    v_add_u32 v26, v26, v27
    s_lshl_b32 s12, s6, 3                   ; wf*8
    v_add_u32 v26, s12, v26
    v_lshlrev_b32 v23, 2, v23               ; 4r
    s_lshl_b32 s12, s7, 2
    v_add_u32 v27, s12, v26
    v_xor_b32 v27, v27, v23
    v_lshl_add_u32 v{VA[0]}, v27, 4, v25
    s_xor_b32 s12, s12, 4
    v_add_u32 v27, s12, v26
    v_xor_b32 v27, v27, v23
    v_lshl_add_u32 v{VA[1]}, v27, 4, v25
    ; B addrs
    v_and_b32 v1, 31, v0
    v_lshrrev_b32 v7, 5, v0                 ; hi
    v_bfe_u32 v23, v0, 1, 3                 ; swz = (l>>1)&7
    v_lshlrev_b32 v25, 7, v1                ; l*128
    s_lshl_b32 s12, s7, 13
    s_add_u32 s12, s12, 16384
    s_lshl_b32 s13, s6, 12
    s_add_u32 s13, s13, s12
    s_xor_b32 s14, s13, 4096
    """)
    for ks in range(4):
        a(f"""
        v_add_u32 v26, {2*ks}, v7
        v_xor_b32 v26, v26, v23
        v_lshl_add_u32 v26, v26, 4, v25
        v_add_u32 v{VB[ks][0]}, s13, v26
        v_add_u32 v{VB[ks][1]}, s14, v26
        """)
    a(f"""
    v_and_b32 v{VFL}, 3, v0
    v_lshlrev_b32 v{VFL}, 2, v{VFL}
    v_add_u32 v{VFL}, {G1_FLAG}, v{VFL}
    s_lshl_b32 s12, s3, 2
    s_add_u32 s12, s12, {G1_FLAG}
    v_mov_b32 v{VSIG}, s12
    v_mov_b32 v{VSX}, 0
    v_mov_b32 v{VSXX}, 0
    v_mov_b32 v{VSW}, 0
    s_mov_b32 s15, 0x3f803f80
    """)
    for i in range(64):
        a(f"v_mov_b32 v{ACC+i}, 0")
    a(f"""
    v_lshlrev_b32 v{VT}, 2, v0
    v_add_u32 v{VT}, {G1_FLAG}, v{VT}
    v_mov_b32 v{VT2}, 0
    s_cmp_lg_u32 s3, 0
    s_cbranch_scc1 G1_NOINIT
    ds_write_b32 v{VT}, v{VT2}
    s_waitcnt lgkmcnt(0)
    G1_NOINIT:
    s_barrier
    """)
    a(f"""
    s_waitcnt vmcnt(17)
    v_mov_b32 v{VT}, 1
    """)
    signal(a, VSIG, VT, 0)
    a("s_mov_b32 s64, 1")
    spin_lds(a, VT, VFL, 0, 64)
    def reads(ks, st):
        for fbp in range(2):
            b = AF[st][fbp]
            a(f"ds_read_b64_tr_b16 v[{b}:{b+1}], v{VA[fbp]} offset:{ks*4096}")
            a(f"ds_read_b64_tr_b16 v[{b+2}:{b+3}], v{VA[fbp]} offset:{ks*4096+1024}")
        for lbp in range(2):
            a(f"ds_read_b128 {vr(BF[st][lbp])}, v{VB[ks][lbp]}")
    def mfmas(st, extra=None):
        dots = []
        for j in range(4):
            dots.append(f"v_dot2_f32_bf16 v{VSX}, v{BF[st][0]+j}, s15, v{VSX}")
            dots.append(f"v_dot2_f32_bf16 v{VSXX}, v{BF[st][0]+j}, v{BF[st][0]+j}, v{VSXX}")
            dots.append(f"v_dot2_f32_bf16 v{VSW}, v{AF[st][0]+j}, s15, v{VSW}")
        k = 0
        for fbp in range(2):
            for lbp in range(2):
                a(f"v_mfma_f32_32x32x16_bf16 {vr(acc(fbp,lbp),16)}, {vr(AF[st][fbp])}, {vr(BF[st][lbp])}, {vr(acc(fbp,lbp),16)}")
                for d in dots[3*k:3*k+3]: a(d)
                if extra and k in extra: extra[k]()
                k += 1
    reads(0, 0)
    a(f"""
    s_mov_b32 s64, 0
    s_mov_b32 s65, 0
    G1_LOOP:
    """)
    reads(1, 1)
    a(f"ds_read_b32 v{VT}, v{VFL} offset:16")
    a("s_waitcnt lgkmcnt(7)")
    mfmas(0)
    a("s_waitcnt lgkmcnt(0)")
    reads(2, 0)
    def k1_dma():
        skip = a.newlabel("G1_NODMA"); ok = a.newlabel("G1_DOK")
        a(f"""
        s_cmp_eq_u32 s64, 0
        s_cbranch_scc1 {skip}
        s_cmp_gt_u32 s64, {7-G1_R}
        s_cbranch_scc1 {skip}
        v_cmp_gt_u32 vcc, s64, v{VT}
        s_cbranch_vccz {ok}
        """)
        spin_lds(a, VT, VFL, 16, 64)
        a(f"{ok}:")
        a(f"""
        s_sub_u32 s66, s65, {G1_SLOT}
        s_cmp_eq_u32 s65, 0
        s_cselect_b32 s66, {(G1_R-1)*G1_SLOT}, s66
        """)
        dma_stage(66)
        a(f"{skip}:")
    def k1_full():
        l0 = a.newlabel("G1_V0"); l1 = a.newlabel("G1_V1")
        a(f"""
        s_cmp_gt_u32 s64, {7-G1_R}
        s_cbranch_scc1 {l0}
        s_waitcnt vmcnt({8*(G1_R-2)})
        s_branch {l1}
        {l0}:
        s_waitcnt vmcnt(0)
        {l1}:
        s_add_u32 s67, s64, 2
        v_mov_b32 v{VT2}, s67
        """)
        signal(a, VSIG, VT2, 0)
    mfmas(1, {1: k1_dma, 3: k1_full})
    a("s_waitcnt lgkmcnt(1)")
    reads(3, 1)
    a(f"ds_read_b32 v{VT}, v{VFL} offset:0")
    mfmas(0)
    a("s_waitcnt lgkmcnt(0)")
    ok = a.newlabel("G1_FOK")
    a(f"""
    s_add_u32 s67, s64, 2
    s_min_u32 s67, s67, 7
    v_cmp_gt_u32 vcc, s67, v{VT}
    s_cbranch_vccz {ok}
    """)
    spin_lds(a, VT, VFL, 0, 67)
    a(f"{ok}:")
    a(f"""
    s_add_u32 s67, s64, 1
    v_mov_b32 v{VT2}, s67
    """)
    signal(a, VSIG, VT2, 16)
    a(f"""
    s_add_u32 s65, s65, {G1_SLOT}
    s_cmp_eq_u32 s65, {G1_R*G1_SLOT}
    s_mov_b32 s68, {G1_SLOT}
    s_cselect_b32 s68, {(-(G1_R-1)*G1_SLOT) & 0xffffffff}, s68
    s_cselect_b32 s65, 0, s65
    """)
    for r in VA + [x for p in VB for x in p]:
        a(f"v_add_u32 v{r}, s68, v{r}")
    reads(0, 0)
    mfmas(1)
    a(f"""
    s_add_u32 s64, s64, 1
    s_cmp_lt_u32 s64, 7
    s_cbranch_scc1 G1_LOOP
    s_waitcnt lgkmcnt(0)
    """)
    a.c("G1 stats")
    def hsum(r, t):
        a(f"""
        v_mov_b32 v{t}, v{r}
        s_nop 1
        v_permlane32_swap_b32 v{r}, v{t}
        v_add_f32 v{r}, v{r}, v{t}
        """)
    hsum(VSX, 23); hsum(VSXX, 23); hsum(VSW, 23)
    a(f"""
    s_mov_b32 s12, {hx(1.0/448)}
    v_mul_f32 v25, s12, v{VSX}               ; mean
    v_mul_f32 v26, s12, v{VSXX}
    v_fma_f32 v26, -v25, v25, v26            ; var
    v_max_f32 v26, 0, v26
    """)
    bf16r(a, 27, 25)
    bf16r(a, 28, 26)
    a(f"v_add_f32 v28, {hx(1e-5)}, v28")
    bf16r(a, 28, 28)
    a("v_sqrt_f32 v28, v28")
    bf16r(a, 28, 28)
    a("v_rcp_f32 v28, v28")
    a("""
    v_sub_f32 v29, v25, v27
    v_mul_f32 v29, v29, v28
    """)
    bf16r(a, 29, 29)
    a("""
    v_mul_f32 v30, v26, v28
    v_mul_f32 v30, v30, v28
    """)
    bf16r(a, 30, 30)
    a(f"v_add_f32 v30, {hx(1e-5)}, v30")
    bf16r(a, 30, 30)
    a("v_sqrt_f32 v30, v30")
    bf16r(a, 30, 30)
    a("v_rcp_f32 v30, v30")
    a(f"""
    v_mul_f32 v32, v28, v30                  ; alpha
    v_fma_f32 v33, v27, v28, v29             ; m*rs + m2
    v_mul_f32 v33, v33, v30
    v_sub_f32 v33, 0, v33                    ; beta
    v_and_b32 v1, 31, v0
    s_lshl_b32 s12, s7, 6
    s_lshl_b32 s13, s6, 5
    s_add_u32 s12, s12, s13
    v_add_u32 v7, s12, v1
    v_lshlrev_b32 v7, 3, v7
    ds_write_b64 v7, v[32:33] offset:{G1_TAB}
    s_lshl_b32 s12, s6, 6
    s_lshl_b32 s13, s7, 5
    s_add_u32 s12, s12, s13
    v_add_u32 v7, s12, v1
    v_lshlrev_b32 v7, 2, v7
    v_lshlrev_b32 v24, 16, v24               ; b1 as f32
    ds_write_b32 v7, v{VSW} offset:{G1_TAB+1024}
    ds_write_b32 v7, v24 offset:{G1_TAB+1536}
    s_waitcnt lgkmcnt(0)
    v_mov_b32 v{VT2}, 1
    """)
    signal(a, VSIG, VT2, 32)
    a("s_mov_b32 s67, 1")
    spin_lds(a, VT, VFL, 32, 67)
    a.c("G1 epilogue")
    a(f"""
    v_and_b32 v1, 31, v0
    s_lshl_b32 s12, s7, 6
    s_lshl_b32 s13, s6, 5
    s_add_u32 s14, s12, s13
    v_add_u32 v7, s14, v1
    v_lshlrev_b32 v7, 3, v7
    ds_read_b64 v[2:3], v7 offset:{G1_TAB}
    v_xor_b32 v7, 256, v7
    ds_read_b64 v[4:5], v7 offset:{G1_TAB}
    v_lshrrev_b32 v7, 5, v0                  ; hi
    v_lshlrev_b32 v7, 4, v7                  ; 4hi*4B
    s_lshl_b32 s12, s6, 8                    ; wf*64*4
    s_lshl_b32 s13, s7, 7                    ; wl*32*4
    s_add_u32 s14, s12, s13
    v_add_u32 v8, s14, v7                    ; fbp=0
    v_xor_b32 v9, 128, v8                    ; fbp=1
    """)
    ST = [32, 48]; BT = [64, 80]
    for fbp in range(2):
        for i in range(4):
            a(f"ds_read_b128 {vr(ST[fbp]+4*i)}, v{8+fbp} offset:{G1_TAB+1024+32*i}")
            a(f"ds_read_b128 {vr(BT[fbp]+4*i)}, v{8+fbp} offset:{G1_TAB+1536+32*i}")
    C1 = 2.0 * math.sqrt(2.0 / math.pi) * math.log2(math.e)
    C2 = C1 * 0.044715
    a(f"""
    v_mov_b32 v28, {hx(C1)}
    v_mov_b32 v29, {hx(C1)}
    s_mov_b32 s72, {hx(C2)}
    s_mov_b32 s73, {hx(C2)}
    s_mov_b32 s74, 1.0
    s_mov_b32 s75, 1.0
    v_lshlrev_b32 v10, 4, v0                 ; lane*16
    s_lshl_b32 s12, s4, 2
    s_lshl_b32 s13, s7, 1
    s_add_u32 s12, s12, s13
    s_mul_i32 s12, s12, 112
    s_lshl_b32 s13, s5, 3
    s_add_u32 s12, s12, s13
    s_lshl_b32 s13, s6, 2
    s_add_u32 s12, s12, s13
    s_lshl_b32 s76, s12, 10
    s_waitcnt lgkmcnt(0)
    """)
    for fbp in range(2):
        for lbp in range(2):
            A = acc(fbp, lbp); ab = 2 + 2 * lbp
            a(f"""
            s_xor_b32 s12, s6, {lbp}
            s_mul_i32 s12, s12, {112*1024}
            s_xor_b32 s13, s7, {fbp}
            s_lshl_b32 s13, s13, 11
            s_add_u32 s77, s76, s12
            s_add_u32 s77, s77, s13
            """)
            P = 96
            for p in range(8):
                x = A + 2 * p
                t = 12 + 2 * (p % 4)
                u = 20 + 2 * (p % 4)
                a(f"""
                v_pk_fma_f32 v[{t}:{t+1}], v[{ST[fbp]+2*p}:{ST[fbp]+2*p+1}], v[{ab}:{ab+1}], v[{BT[fbp]+2*p}:{BT[fbp]+2*p+1}] op_sel:[0,1,0] op_sel_hi:[1,1,1]
                v_pk_fma_f32 v[{x}:{x+1}], v[{x}:{x+1}], v[{ab}:{ab+1}], v[{t}:{t+1}] op_sel:[0,0,0] op_sel_hi:[1,0,1]
                v_pk_mul_f32 v[{t}:{t+1}], v[{x}:{x+1}], v[{x}:{x+1}]
                v_pk_fma_f32 v[{t}:{t+1}], v[{t}:{t+1}], s[72:73], v[28:29]
                v_pk_mul_f32 v[{t}:{t+1}], v[{t}:{t+1}], v[{x}:{x+1}] neg_lo:[1,0] neg_hi:[1,0]
                v_exp_f32 v{u}, v{t}
                v_exp_f32 v{u+1}, v{t+1}
                v_pk_add_f32 v[{u}:{u+1}], v[{u}:{u+1}], s[74:75]
                v_rcp_f32 v{u}, v{u}
                v_rcp_f32 v{u+1}, v{u+1}
                v_pk_mul_f32 v[{x}:{x+1}], v[{x}:{x+1}], v[{u}:{u+1}]
                v_cvt_pk_bf16_f32 v{P+p}, v{x}, v{x+1}
                """)
            P2 = P + 8 * ((2 * fbp + lbp) % 2)
            sc = " sc1" if fused else ""
            a(f"buffer_store_dwordx4 {vr(P)}, v10, {srd(SRD_WS)}, s77 offen{sc}")
            a(f"buffer_store_dwordx4 {vr(P+4)}, v10, {srd(SRD_WS)}, s77 offen offset:1024{sc}")
            a("s_nop 1")
    a("s_waitcnt vmcnt(0)")


CH_SZ = 24576
TILE_SZ = 8704; TROW = 544
CSTR = 4160
U_PAD = 17408; U_OFF = U_PAD + 480
T_OFF = 22000
AF_OFF = 24568
LOG2E = math.log2(math.e)

def cmul(a, r, x, y, t):
    a(f"v_pk_mul_f32 v[{t}:{t+1}], v[{x}:{x+1}], v[{y}:{y+1}] op_sel:[0,0] op_sel_hi:[1,0]")
    a(f"v_pk_fma_f32 v[{r}:{r+1}], v[{x}:{x+1}], v[{y}:{y+1}], v[{t}:{t+1}] op_sel:[1,1,0] op_sel_hi:[0,1,1] neg_lo:[1,0,0]")

def cmul_n(a, jobs, t0=8):
    for k, (r, x, y) in enumerate(jobs):
        t = t0 + 2 * k
        a(f"v_pk_mul_f32 v[{t}:{t+1}], v[{x}:{x+1}], v[{y}:{y+1}] op_sel:[0,0] op_sel_hi:[1,0]")
    for k, (r, x, y) in enumerate(jobs):
        t = t0 + 2 * k
        a(f"v_pk_fma_f32 v[{r}:{r+1}], v[{x}:{x+1}], v[{y}:{y+1}], v[{t}:{t+1}] op_sel:[1,1,0] op_sel_hi:[0,1,1] neg_lo:[1,0,0]")

def pair_sync(a, val, VMY, VOT, VT):
    lab = a.newlabel("PS")
    a(f"""
    v_mov_b32 v{VT}, {val}
    s_waitcnt lgkmcnt(0)
    ds_write_b32 v{VMY}, v{VT}
    {lab}:
    ds_read_b32 v{VT}, v{VOT}
    s_waitcnt lgkmcnt(0)
    v_cmp_gt_u32 vcc, {val}, v{VT}
    s_cbranch_vccnz {lab}
    """)

def path_kc(a, aux_base, fused, dbgk=False, init_barrier=True):
    a.c("---- Kgen + conv path")
    ZP = {k: 32 + 4 * i for i, k in enumerate((1, 2, 4, 8, 16, 32, 64))}
    C2 = 60
    SA = {n: 64 + 4 * i for i, n in enumerate(("0a", "0b", "1a", "1b", "2a", "2b"))}
    ZB = 88
    SB = {n: 92 + 4 * i for i, n in enumerate(("0a", "0b", "1a", "1b"))}
    RB0, RB1, RA, DD = 112, 144, 176, 208
    GA = 228
    VMY, VOT, VT = 6, 7, 5
    VTW, VTR = 2, 3
    mk_srd(a, SRD_WS, S_WS, WS_SRD_SIZE)
    a(f"""
    s_lshr_b32 s6, s5, 1                    ; ch
    s_and_b32 s7, s5, 1                     ; hh
    s_lshl_b32 s8, s4, 1
    s_add_u32 s8, s8, s6                    ; d
    s_mul_i32 s9, s6, {CH_SZ}
    s_add_u32 s9, s9, {aux_base}
    s_lshl_b32 s10, s8, 9
    s_lshl_b32 s11, s7, 8
    s_add_u32 s10, s10, s11
    v_lshl_add_u32 v1, v0, 2, s10
    global_load_dword v8, v1, {sp(S_LOGA)}
    global_load_dword v9, v1, {sp(S_AIM)}
    global_load_dword v10, v1, {sp(S_CRE)}
    global_load_dword v11, v1, {sp(S_CIM)}
    s_lshl_b32 s10, s4, 2
    s_load_dword s12, {sp(S_LOGDT)}, s10
    s_load_dword s13, {sp(S_DSKIP)}, s10
    s_lshl_b32 s10, s7, 10
    s_add_u32 s10, s10, s9
    v_lshl_add_u32 v1, v0, 4, s10
    v_add_u32 v1, {U_PAD}, v1
    v_mov_b32 v12, 0
    v_mov_b32 v13, 0
    v_mov_b32 v14, 0
    v_mov_b32 v15, 0
    ds_write_b128 v1, v[12:15]
    ds_write_b128 v1, v[12:15] offset:2048
    ds_write_b128 v1, v[12:15] offset:4096
    s_cmp_lg_u32 s7, 0
    s_cbranch_scc1 KC_Z1
    ds_write_b128 v1, v[12:15] offset:6144
    KC_Z1:
    ; flags
    s_lshl_b32 s10, s7, 2
    s_add_u32 s10, s10, s9
    s_add_u32 s10, s10, {AF_OFF}
    v_mov_b32 v{VMY}, s10
    s_xor_b32 s10, s10, 4
    v_mov_b32 v{VOT}, s10
    s_mul_i32 s10, s7, {TILE_SZ}
    s_add_u32 s10, s10, s9
    v_lshl_add_u32 v{VTW}, v0, 3, s10
    v_and_b32 v1, 15, v0
    v_mul_u32_u24 v{VTR}, {TROW}, v1
    v_lshrrev_b32 v4, 4, v0                 ; g
    v_lshl_add_u32 v{VTR}, v4, 4, v{VTR}
    v_add_u32 v{VTR}, s10, v{VTR}
    """)
    a(f"""
    s_lshl_b32 s10, s7, 10
    s_sub_u32 s10, s10, 4
    v_lshl_add_u32 v16, v0, 3, s10          ; l0 (r=0)
    s_add_u32 s11, s9, {T_OFF}              ; Tbase
    s_sub_u32 s14, s11, {4*0x4280}
    s_add_u32 s15, s11, 512
    v_cvt_f32_i32 v17, v16
    v_lshl_add_u32 v18, v16, 2, s11         ; x0 = 4*l0 + Tbase
    """)
    for r in range(2):
        for j in range(0, 12, 2):
            o = 512 * r + j
            g0 = GA + 12 * r + j
            a(f"""
            v_add_f32 v20, {hx(float(o))}, v17
            v_add_f32 v21, {hx(float(o+1))}, v17
            v_cvt_pk_bf16_f32 v20, v20, v21
            v_bfe_i32 v21, v20, 0, 16
            v_ashrrev_i32 v20, 16, v20
            v_lshl_add_u32 v21, v21, 2, s14
            v_lshl_add_u32 v20, v20, 2, s14
            v_add_u32 v22, {4*o}, v18
            v_add_u32 v23, {4*(o+1)}, v18
            v_med3_i32 v{g0}, v22, s15, v21
            v_med3_i32 v{g0+1}, v23, s15, v20
            """)
    a(f"""
    v_and_b32 v1, 15, v0                    ; c
    v_lshlrev_b32 v20, 6, v4                ; 64g  (=16*4g entries)
    v_add_u32 v21, v20, v1
    v_lshl_add_u32 v24, v21, 2, s11
    v_add_u32 v24, 4, v24                   ; A0B0: 1 + 64g + c
    v_lshrrev_b32 v21, 1, v4
    v_add_u32 v21, 1, v21
    v_lshrrev_b32 v21, v21, v1              ; c >> (1 + (g>>1))
    v_add_u32 v21, v21, v20
    v_lshl_add_u32 v25, v21, 2, s11
    v_add_u32 v25, {4*257}, v25             ; A1B0
    v_lshrrev_b32 v21, 1, v1
    v_add_u32 v22, 4, v21
    v_max_u32 v22, v22, v1                  ; g>=2 form
    v_add_u32 v23, 8, v1                    ; g<2 form
    v_cmp_gt_u32 vcc, 2, v4
    v_cndmask_b32 v22, v22, v23, vcc
    v_add_u32 v22, v22, v20
    v_lshl_add_u32 v26, v22, 2, s11
    v_add_u32 v26, {4*257}, v26             ; A1B1
    v_lshlrev_b32 v20, 5, v4                ; 32g (=8*4g)
    v_lshrrev_b32 v22, 3, v1
    v_add_u32 v22, v22, v20
    v_lshl_add_u32 v27, v22, 2, s11
    v_add_u32 v27, {4*513}, v27             ; A2B0
    v_lshrrev_b32 v22, 2, v1
    v_add_u32 v22, 2, v22
    v_max_u32 v22, v22, v21
    v_add_u32 v22, v22, v20
    v_lshl_add_u32 v28, v22, 2, s11
    v_add_u32 v28, {4*513}, v28             ; A2B1
    s_waitcnt lgkmcnt(0)
    """)
    if init_barrier:
        a("s_barrier")
    a(f"""
    s_lshl_b32 s10, s6, 4
    s_lshr_b32 s12, s12, s10
    s_lshl_b32 s12, s12, 16
    s_lshr_b32 s13, s13, s10
    s_lshl_b32 s13, s13, 16
    v_mov_b32 v1, {hx(LOG2E)}
    v_mul_f32 v4, s12, v1
    v_exp_f32 v4, v4
    """)
    bf16r(a, 4, 4)
    a("s_waitcnt vmcnt(0)")
    a(f"""
    v_lshlrev_b32 v12, 16, v8
    v_and_b32 v13, 0xffff0000, v8
    v_mul_f32 v12, v12, v1
    v_mul_f32 v13, v13, v1
    v_exp_f32 v12, v12
    v_exp_f32 v13, v13
    v_cvt_pk_bf16_f32 v12, v12, v13
    v_lshlrev_b32 v14, 16, v12
    v_and_b32 v15, 0xffff0000, v12
    v_mul_f32 v16, v4, v1                   ; dt*log2e
    v_mul_f32 v14, v14, v4                  ; |ar|
    v_mul_f32 v15, v15, v4
    v_mul_f32 v14, v14, v1
    v_mul_f32 v15, v15, v1
    v_exp_f32 v14, -v14                     ; |z|
    v_exp_f32 v15, -v15
    v_lshlrev_b32 v16, 16, v9
    v_and_b32 v17, 0xffff0000, v9
    v_mul_f32 v16, v16, v4                  ; ai
    v_mul_f32 v17, v17, v4
    v_mul_f32 v16, 0.15915494, v16          ; revolutions
    v_mul_f32 v17, 0.15915494, v17
    v_rndne_f32 v18, v16
    v_rndne_f32 v19, v17
    v_sub_f32 v16, v16, v18
    v_sub_f32 v17, v17, v19
    v_cos_f32 v18, v16
    v_sin_f32 v19, v16
    v_cos_f32 v20, v17
    v_sin_f32 v21, v17
    v_mul_f32 v{ZP[1]}, v14, v18
    v_mul_f32 v{ZP[1]+1}, v14, v19
    v_mul_f32 v{ZP[1]+2}, v15, v20
    v_mul_f32 v{ZP[1]+3}, v15, v21
    v_add_f32 v4, v4, v4                    ; 2dt
    v_lshlrev_b32 v16, 16, v10
    v_and_b32 v17, 0xffff0000, v10
    v_lshlrev_b32 v18, 16, v11
    v_and_b32 v19, 0xffff0000, v11
    v_mul_f32 v{C2}, v16, v4
    v_mul_f32 v{C2+1}, v18, v4
    v_mul_f32 v{C2+2}, v17, v4
    v_mul_f32 v{C2+3}, v19, v4
    """)
    def both(r, x, y): return [(r + 2 * c, x + 2 * c, y + 2 * c) for c in range(2)]
    cmul_n(a, both(ZP[2], ZP[1], ZP[1]) + both(SA["0a"], C2, ZP[1]))
    cmul_n(a, both(ZP[4], ZP[2], ZP[2]) + both(SA["1a"], C2, ZP[2]))
    cmul_n(a, both(ZP[8], ZP[4], ZP[4]) + both(SA["1b"], C2, ZP[4]))
    cmul_n(a, both(ZP[16], ZP[8], ZP[8]) + both(SA["2a"], C2, ZP[8]))
    cmul_n(a, both(ZP[32], ZP[16], ZP[16]))
    cmul_n(a, both(ZP[64], ZP[32], ZP[32]))
    cmul_n(a, both(ZB, ZP[64], ZP[64]))
    cmul_n(a, both(SA["0b"], SA["0a"], ZB) + both(ZB, ZB, ZB))
    cmul_n(a, both(SA["1a"], SA["1a"], ZB) + both(ZB, ZB, ZB))
    cmul_n(a, both(SA["1b"], SA["1b"], ZB) + both(SB["0a"], ZB, ZB))
    cmul_n(a, both(SA["2a"], SA["2a"], SB["0a"]))
    cmul_n(a, both(SA["2b"], SA["2a"], ZB))
    a(f"""
    v_add_f32 v29, v{C2}, v{C2+2}
    v_mov_b32 v{SB['0a']}, 1.0
    v_mov_b32 v{SB['0a']+1}, 0
    v_mov_b32 v{SB['0a']+2}, 1.0
    v_mov_b32 v{SB['0a']+3}, 0
    v_add_f32_dpp v29, v29, v29 row_shr:1 row_mask:0xf bank_mask:0xf bound_ctrl:0
    v_mov_b64 v[{SB['0b']}:{SB['0b']+1}], v[{ZP[8]}:{ZP[8]+1}]
    v_mov_b64 v[{SB['0b']+2}:{SB['0b']+3}], v[{ZP[8]+2}:{ZP[8]+3}]
    v_add_f32_dpp v29, v29, v29 row_shr:2 row_mask:0xf bank_mask:0xf bound_ctrl:0
    v_mov_b64 v[{SB['1a']}:{SB['1a']+1}], v[{ZP[16]}:{ZP[16]+1}]
    v_mov_b64 v[{SB['1a']+2}:{SB['1a']+3}], v[{ZP[16]+2}:{ZP[16]+3}]
    v_add_f32_dpp v29, v29, v29 row_shr:4 row_mask:0xf bank_mask:0xf bound_ctrl:0
    v_mov_b64 v[{SB['1b']}:{SB['1b']+1}], v[{ZP[32]}:{ZP[32]+1}]
    v_mov_b64 v[{SB['1b']+2}:{SB['1b']+3}], v[{ZP[32]+2}:{ZP[32]+3}]
    v_add_f32_dpp v29, v29, v29 row_shr:8 row_mask:0xf bank_mask:0xf bound_ctrl:0
    s_nop 1
    v_add_f32_dpp v29, v29, v29 row_bcast:15 row_mask:0xa bank_mask:0xf
    s_nop 1
    v_add_f32_dpp v29, v29, v29 row_bcast:31 row_mask:0xc bank_mask:0xf
    """)
    for i in range(20):
        a(f"v_mov_b32 v{DD+i}, 0")
    def gen_tile(s0, st0, s1, st1, conj, dest):
        lab = a.newlabel("GEN")
        neg = "-" if conj else ""
        a(f"""
        v_mov_b32 v1, v{VTW}
        s_mov_b32 s10, 8
        {lab}:
        v_cvt_pk_bf16_f32 v16, v{s0}, {neg}v{s0+1}
        v_cvt_pk_bf16_f32 v17, v{s0+2}, {neg}v{s0+3}
        v_cvt_pk_bf16_f32 v18, v{s1}, {neg}v{s1+1}
        v_cvt_pk_bf16_f32 v19, v{s1+2}, {neg}v{s1+3}
        ds_write_b64 v1, v[16:17]
        ds_write_b64 v1, v[18:19] offset:{8*TROW}
        """)
        cmul_n(a, both(s0, s0, st0) + both(s1, s1, st1))
        a(f"""
        v_add_u32 v1, {TROW}, v1
        s_sub_u32 s10, s10, 1
        s_cmp_lg_u32 s10, 0
        s_cbranch_scc1 {lab}
        """)
        for kk in range(8):
            a(f"ds_read_b128 {vr(dest+4*kk)}, v{VTR} offset:{64*kk}")
    gen_tile(SB["0a"], ZP[1], SB["0b"], ZP[1], True, RB0)
    gen_tile(SB["1a"], ZP[2], SB["1b"], ZP[4], True, RB1)
    def mm(dt, B):
        for kk in range(8):
            a(f"v_mfma_f32_16x16x32_bf16 {vr(DD+4*dt)}, {vr(RA+4*kk)}, {vr(B+4*kk)}, {vr(DD+4*dt)}")
    def mm2(d0, B0_, d1, B1_):
        for kk in range(8):
            a(f"v_mfma_f32_16x16x32_bf16 {vr(DD+4*d0)}, {vr(RA+4*kk)}, {vr(B0_+4*kk)}, {vr(DD+4*d0)}")
            a(f"v_mfma_f32_16x16x32_bf16 {vr(DD+4*d1)}, {vr(RA+4*kk)}, {vr(B1_+4*kk)}, {vr(DD+4*d1)}")
    gen_tile(SA["0a"], ZP[16], SA["0b"], ZP[16], False, RA)
    a("s_waitcnt lgkmcnt(0)")
    mm(0, RB0)
    gen_tile(SA["1a"], ZP[32], SA["1b"], ZP[64], False, RA)
    a("s_waitcnt lgkmcnt(0)")
    mm2(1, RB0, 2, RB1)
    gen_tile(SA["2a"], ZP[64], SA["2b"], ZP[64], False, RA)
    a("s_waitcnt lgkmcnt(0)")
    mm2(3, RB0, 4, RB1)
    def lanes(fn):
        m = 0
        for ln in range(64):
            if fn(ln & 15, ln >> 4): m |= 1 << ln
        return m
    masks = [lanes(lambda c, g: True),
             lanes(lambda c, g: (c % 2 == 0) if g < 2 else (c % 4 == 0)),
             lanes(lambda c, g: (c < 8) if g < 2 else (c >= 8 or c % 2 == 0)),
             lanes(lambda c, g: c in (0, 8)),
             lanes(lambda c, g: c in (0, 4, 8, 10, 12, 14))]
    for t in range(5):
        m = masks[t]
        a(f"s_mov_b32 exec_lo, {hex(m & 0xffffffff)}")
        a(f"s_mov_b32 exec_hi, {hex(m >> 32)}")
        for j in range(4):
            a(f"ds_add_f32 v{24+t}, v{DD+4*t+j} offset:{(64 if t < 3 else 32)*j}")
    a(f"""
    s_mov_b32 exec_lo, 0
    s_mov_b32 exec_hi, 0x80000000
    v_mov_b32 v1, s11
    ds_add_f32 v1, v29
    s_mov_b64 exec, -1
    """)
    pair_sync(a, 1, VMY, VOT, VT)
    a(f"""
    s_lshl_b32 s10, s8, 12
    s_lshl_b32 s14, s7, 11
    s_add_u32 s10, s10, s14
    s_add_u32 s10, s10, {XNT_OFF}
    s_add_u32 s14, s14, s9
    s_add_u32 m0, s14, {U_OFF}
    v_lshlrev_b32 v1, 4, v0
    s_nop 0
    buffer_load_dwordx4 v1, {srd(SRD_WS)}, s10 offen lds{' sc1' if fused else ''}
    buffer_load_dwordx4 v1, {srd(SRD_WS)}, s10 offen offset:1024 lds{' sc1' if fused else ''}
    """)
    a(f"""
    s_lshl_b32 s10, s7, 11
    s_add_u32 s10, s10, s9
    s_add_u32 s10, s10, 32
    v_lshl_add_u32 v2, v0, 4, s10
    v_add_u32 v3, {2*CSTR}, v2
    """)
    for r in range(2):
        G = 32 + 12 * r
        for j in range(12):
            a(f"ds_read_b32 v{G+j}, v{GA+12*r+j}")
    for r in range(2):
        G = 32 + 12 * r
        P = 64 + 16 * r
        a(f"s_waitcnt lgkmcnt({12 if r == 0 else 4})")
        p = lambda k: {0: P+8, 1: P+4, 2: P+0, 3: P+1, 4: P+2, 5: P+3}[k]
        for k in range(6):
            a(f"v_cvt_pk_bf16_f32 v{p(k)}, v{G+2*k}, v{G+2*k+1}")
        a(f"""
        v_mov_b32 v{P+5}, v{p(2)}
        v_mov_b32 v{P+6}, v{p(3)}
        v_mov_b32 v{P+7}, v{p(4)}
        v_alignbit_b32 v100, v{p(2)}, v{p(1)}, 16
        v_alignbit_b32 v101, v{p(3)}, v{p(2)}, 16
        v_alignbit_b32 v102, v{p(4)}, v{p(3)}, 16
        v_alignbit_b32 v103, v{p(5)}, v{p(4)}, 16
        v_alignbit_b32 v104, v{p(1)}, v{p(0)}, 16
        v_mov_b32 v105, v100
        v_mov_b32 v106, v101
        v_mov_b32 v107, v102
        ds_write_b128 v2, v[{P}:{P+3}] offset:{1024*r}
        ds_write_b128 v2, v[100:103] offset:{1024*r + CSTR}
        ds_write_b128 v3, v[{P+4}:{P+7}] offset:{1024*r}
        ds_write_b128 v3, v[104:107] offset:{1024*r + CSTR}
        """)
        if dbgk:
            a(f"""
            s_lshl_b32 s10, s8, 12
            s_lshl_b32 s14, s7, 11
            s_add_u32 s10, s10, s14
            s_add_u32 s10, s10, {KDBG_OFF + 1024*r}
            v_lshlrev_b32 v1, 4, v0
            buffer_store_dwordx4 v[{P}:{P+3}], v1, {srd(SRD_WS)}, s10 offen
            """)
    a(f"""
    s_cmp_lg_u32 s7, 0
    s_cbranch_scc1 KC_Z2
    v_lshrrev_b32 v1, 1, v0
    v_mul_u32_u24 v1, {CSTR}, v1
    v_and_b32 v4, 1, v0
    v_lshl_add_u32 v1, v4, 4, v1
    v_add_u32 v1, s9, v1
    v_mov_b32 v12, 0
    v_mov_b32 v13, 0
    v_mov_b32 v14, 0
    v_mov_b32 v15, 0
    s_mov_b64 exec, 0xff
    ds_write_b128 v1, v[12:15]
    s_mov_b64 exec, -1
    KC_Z2:
    """)
    VA, VB = 2, 3
    BR, AR, ACC = 32, 64, 80
    a(f"""
    v_lshrrev_b32 v4, 4, v0                 ; g
    v_bfe_u32 v8, v0, 2, 2                  ; r
    v_mul_u32_u24 v8, {CSTR}, v8
    v_and_b32 v9, 3, v0                     ; c
    v_lshl_add_u32 v8, v9, 3, v8            ; + 8c
    v_lshrrev_b32 v9, 1, v4                 ; g>>1
    v_and_b32 v10, 1, v4                    ; g&1
    v_lshlrev_b32 v11, 5, v9                ; 32(g>>1)
    v_lshlrev_b32 v12, 4, v10               ; 16(g&1)
    v_add_u32 v8, v8, v11
    v_sub_u32 v8, v8, v12
    s_lshl_b32 s10, s7, 8                   ; 64*i0 = 256*hh
    s_add_u32 s14, s10, s9
    s_add_u32 s14, s14, {32 - 8}
    v_add_u32 v{VA}, s14, v8
    v_and_b32 v8, 15, v0
    v_lshlrev_b32 v8, 5, v8
    v_sub_u32 v8, v8, v11
    v_add_u32 v8, v8, v12
    s_sub_u32 s14, s9, s10
    s_add_u32 s14, s14, {U_OFF}
    v_add_u32 v{VB}, s14, v8
    """)
    for i in range(32):
        a(f"v_mov_b32 v{ACC+i}, 0")
    a("s_waitcnt vmcnt(0)")
    pair_sync(a, 2, VMY, VOT, VT)
    def ldA(P):
        buf = AR + 4 * (P % 4)
        off = 512 * (P % 8) + (64 if P >= 8 else 0)
        a(f"ds_read_b64_tr_b16 v[{buf}:{buf+1}], v{VA} offset:{off+8}")
        a(f"ds_read_b64_tr_b16 v[{buf+2}:{buf+3}], v{VA} offset:{off}")
    for s in range(7, -1, -1):
        a(f"ds_read_b128 {vr(BR+4*s)}, v{VB} offset:{512*s}")
    for P in range(3):
        ldA(P)
    a(f"""
    v_subrev_u32 v{VB}, 64, v{VB}
    s_mov_b32 s10, 4
    s_waitcnt lgkmcnt(0)
    CONV_LOOP:
    """)
    for P in range(8):
        a("s_waitcnt lgkmcnt(7)")
        ldA(P + 3)
        first = True
        for s in range(7 - P, -1, -1):
            if P == 0 and s <= 2:
                a(f"s_waitcnt lgkmcnt({3*(s+1)})")
            a(f"v_mfma_f32_16x16x32_bf16 {vr(ACC+4*(P+s))}, {vr(AR+4*(P%4))}, {vr(BR+4*s)}, {vr(ACC+4*(P+s))}")
            if first:
                a(f"ds_read_b128 {vr(BR+4*s)}, v{VB} offset:{512*s}")
                first = False
    a(f"""
    v_add_u32 v{VA}, 64, v{VA}
    v_subrev_u32 v{VB}, 64, v{VB}
    s_sub_u32 s10, s10, 1
    s_cmp_lg_u32 s10, 0
    s_cbranch_scc1 CONV_LOOP
    """)
    pair_sync(a, 3, VMY, VOT, VT)
    a(f"""
    s_lshl_b32 s10, s7, 12
    s_add_u32 s10, s10, s9
    v_lshl_add_u32 v2, v0, 4, s10
    v_xor_b32 v3, 4096, v2                  ; partner's area (base is multiple of 8192? -> use add/sub)
    """)
    assert aux_base % 8192 == 0 and CH_SZ % 8192 == 0
    a("""
    s_cmp_lg_u32 s7, 0
    s_cbranch_scc1 KC_X1
    """)
    for t in range(4):
        a(f"ds_write_b128 v2, {vr(ACC+16+4*t)} offset:{1024*t}")
    a("s_branch KC_X2")
    a.label("KC_X1")
    for t in range(4):
        a(f"ds_write_b128 v2, {vr(ACC+4*t)} offset:{1024*t}")
    for i in range(16):
        a(f"v_mov_b32 v{ACC+i}, v{ACC+16+i}")
    a.label("KC_X2")
    pair_sync(a, 4, VMY, VOT, VT)
    a(f"""
    v_and_b32 v8, 15, v0
    v_lshlrev_b32 v8, 5, v8
    v_lshrrev_b32 v4, 4, v0
    v_lshl_add_u32 v8, v4, 3, v8            ; 2*(16a'+4g)
    s_lshl_b32 s10, s7, 11
    v_add_u32 v8, s10, v8
    s_add_u32 s14, s9, {U_OFF}
    v_add_u32 v9, s14, v8
    """)
    for t in range(4):
        a(f"ds_read_b128 {vr(32+4*t)}, v3 offset:{1024*t}")
        a(f"ds_read_b64 v[{48+2*t}:{49+2*t}], v9 offset:{512*t}")
    a(f"""
    s_lshl_b32 s10, s8, 12
    s_add_u32 s10, s10, {ST_OFF}
    """)
    for t in range(4):
        A = ACC + 4 * t; X = 48 + 2 * t; Pp = 32 + 4 * t
        a(f"""
        s_waitcnt lgkmcnt({2*(3-t)})
        v_pk_add_f32 v[{A}:{A+1}], v[{A}:{A+1}], v[{Pp}:{Pp+1}]
        v_pk_add_f32 v[{A+2}:{A+3}], v[{A+2}:{A+3}], v[{Pp+2}:{Pp+3}]
        v_lshlrev_b32 v12, 16, v{X}
        v_and_b32 v13, 0xffff0000, v{X}
        v_lshlrev_b32 v14, 16, v{X+1}
        v_and_b32 v15, 0xffff0000, v{X+1}
        v_mul_f32 v12, s13, v12
        v_mul_f32 v13, s13, v13
        v_mul_f32 v14, s13, v14
        v_mul_f32 v15, s13, v15
        v_cvt_pk_bf16_f32 v16, v12, v13
        v_cvt_pk_bf16_f32 v17, v14, v15
        v_cvt_pk_bf16_f32 v18, v{A}, v{A+1}
        v_cvt_pk_bf16_f32 v19, v{A+2}, v{A+3}
        v_lshlrev_b32 v12, 16, v16
        v_and_b32 v13, 0xffff0000, v16
        v_lshlrev_b32 v14, 16, v17
        v_and_b32 v15, 0xffff0000, v17
        v_lshlrev_b32 v20, 16, v18
        v_and_b32 v21, 0xffff0000, v18
        v_lshlrev_b32 v22, 16, v19
        v_and_b32 v23, 0xffff0000, v19
        v_pk_add_f32 v[12:13], v[12:13], v[20:21]
        v_pk_add_f32 v[14:15], v[14:15], v[22:23]
        v_cvt_pk_bf16_f32 v{24+2*(t%2)}, v12, v13
        v_cvt_pk_bf16_f32 v{25+2*(t%2)}, v14, v15
        buffer_store_dwordx2 v[{24+2*(t%2)}:{25+2*(t%2)}], v8, {srd(SRD_WS)}, s10 offen offset:{512*t}{' sc1' if fused else ''}
        """)
    a("s_waitcnt vmcnt(0)")


G2_WREG = 28672
G2_PSTR = 272
G2_STILE = 17408
G2_SSTR = 144

def path_g2(a, fused, sync4=None):
    a.c("---- G2 path")
    VH0, VH1, VW2 = 2, 3, 4
    VA = [5, 6]
    VX, VB2, VS = 8, 16, 24
    AF = [[32, 36], [40, 44]]
    ACC = 48
    FR = 112
    def acc(db_, lb_): return ACC + 16 * (2 * db_ + lb_)
    def fr(t, lb_): return FR + 8 * (t % 14) + 4 * lb_
    sc = " sc1" if fused else ""
    mk_srd(a, SRD_X, S_X, X_BYTES)
    mk_srd(a, SRD_W, S_W2, W_BYTES)
    mk_srd(a, SRD_WS, S_WS, WS_SRD_SIZE)
    mk_srd(a, SRD_OUT, S_OUT, X_BYTES)
    a(f"""
    s_mul_i32 s6, s4, {2*112}
    s_mul_i32 s7, s3, 28
    s_add_u32 s6, s6, s7
    s_lshl_b32 s6, s6, 10                   ; s6 = h soffset
    v_lshlrev_b32 v{VH0}, 4, v0
    v_add_u32 v{VH1}, {112*1024}, v{VH0}
    v_lshrrev_b32 v1, 3, v0
    v_and_b32 v7, 7, v0
    v_bfe_u32 v234, v0, 4, 1                  ; (row>>1)&1
    v_lshlrev_b32 v234, 2, v234
    v_xor_b32 v7, v7, v234
    v_mul_u32_u24 v{VW2}, 896, v1
    v_lshl_add_u32 v{VW2}, v7, 4, v{VW2}
    s_mul_i32 s7, s3, {448*896}
    s_lshl_b32 s8, s5, 7
    s_add_u32 s7, s7, s8
    s_add_u32 s8, s7, {7168-1024}
    s_mul_i32 s9, s3, {G2_WREG}
    """)
    def group(t):
        a(f"buffer_load_dwordx4 {vr(fr(t,0))}, v{VH0}, {srd(SRD_WS)}, s6 offen{sc}")
        a(f"buffer_load_dwordx4 {vr(fr(t,1))}, v{VH1}, {srd(SRD_WS)}, s6 offen{sc}")
        a(f"s_add_u32 m0, s9, {2048*(t%14)}")
        a(f"s_add_u32 s6, s6, 1024")
        a(f"buffer_load_dwordx4 v{VW2}, {srd(SRD_W)}, s7 offen lds")
        a(f"buffer_load_dwordx4 v{VW2}, {srd(SRD_W)}, s8 offen offset:1024 lds")
        a(f"s_add_u32 s7, s7, {16*896}")
        a(f"s_add_u32 s8, s8, {16*896}")
    a(f"""
    ; thread (l = 16w + i, o = g + 4k)
    v_and_b32 v1, 15, v0                    ; i
    v_lshrrev_b32 v7, 4, v0                 ; g
    s_lshl_b32 s10, s4, 6
    s_lshl_b32 s11, s3, 4
    s_add_u32 s10, s10, s11                 ; l0 + 16w
    v_add_u32 v234, s10, v1
    v_mul_u32_u24 v234, 896, v234
    v_lshl_add_u32 v234, v7, 4, v234
    s_lshl_b32 s11, s5, 7
    v_add_u32 v230, s11, v234
    buffer_load_dwordx4 {vr(VX)}, v230, {srd(SRD_X)}, 0 offen
    buffer_load_dwordx4 {vr(VX+4)}, v230, {srd(SRD_X)}, 0 offen offset:64
    v_lshlrev_b32 v234, 4, v7
    v_add_u32 v234, s11, v234
    global_load_dwordx4 {vr(VB2)}, v234, {sp(S_B2)}
    global_load_dwordx4 {vr(VB2+4)}, v234, {sp(S_B2)} offset:64
    v_lshrrev_b32 v234, 3, v0
    v_and_b32 v235, 7, v0
    s_lshl_b32 s10, s5, 6
    s_lshl_b32 s11, s3, 4
    s_add_u32 s10, s10, s11                 ; d0 + 16w
    v_add_u32 v236, s10, v234
    v_lshlrev_b32 v236, 12, v236
    v_lshl_add_u32 v231, v235, 4, v236        ; + chunk*16
    s_lshl_b32 s10, s4, 7
    s_add_u32 s10, s10, {ST_OFF}
    v_mul_u32_u24 v232, {G2_SSTR}, v234
    v_lshl_add_u32 v232, v235, 4, v232
    v_add_u32 v232, s9, v232
    """)
    if not fused:
        a(f"""
        buffer_load_dwordx4 {vr(VS)}, v231, {srd(SRD_WS)}, s10 offen
        s_add_u32 s11, s10, {8*4096}
        buffer_load_dwordx4 {vr(VS+4)}, v231, {srd(SRD_WS)}, s11 offen
        """)
    for t in range(14):
        group(t)
    a(f"""
    v_lshrrev_b32 v1, 4, v0                 ; g
    v_lshrrev_b32 v7, 1, v1                 ; hi
    v_bfe_u32 v234, v0, 2, 2                  ; r
    v_lshl_add_u32 v235, v7, 2, v234           ; row
    v_lshlrev_b32 v235, 7, v235               ; *128
    v_and_b32 v236, 1, v0
    v_lshl_add_u32 v235, v236, 3, v235         ; + (c&1)*8
    v_add_u32 v235, s9, v235
    v_and_b32 v236, 1, v1
    v_lshlrev_b32 v236, 1, v236
    v_bfe_u32 v233, v0, 1, 1
    v_add_u32 v236, v236, v233                ; 2(g&1) + (c>>1)
    v_bfe_u32 v233, v0, 3, 1                ; (r>>1)&1  (row>>1)&1 = (r>>1)&1
    v_lshlrev_b32 v233, 2, v233
    v_xor_b32 v236, v236, v233
    v_lshl_add_u32 v{VA[0]}, v236, 4, v235
    v_xor_b32 v236, 4, v236
    v_lshl_add_u32 v{VA[1]}, v236, 4, v235
    """)
    for i in range(64):
        a(f"v_mov_b32 v{ACC+i}, 0")
    def trr(t):
        p = t % 2
        for db_ in range(2):
            b = AF[p][db_]
            a(f"ds_read_b64_tr_b16 v[{b}:{b+1}], v{VA[db_]} offset:{2048*(t%14)}")
            a(f"ds_read_b64_tr_b16 v[{b+2}:{b+3}], v{VA[db_]} offset:{2048*(t%14)+1024}")
    a("s_waitcnt vmcnt(52)")
    trr(0)
    a(f"""
    s_mov_b32 s12, 2
    G2_LOOP:
    s_cmp_eq_u32 s12, 1
    s_cbranch_scc0 G2_NOSW
    s_mov_b32 s{SRD_WS+2}, 0
    s_mov_b32 s{SRD_W+2}, 0
    G2_NOSW:
    """)
    for t in range(14):
        a("s_waitcnt vmcnt(48)")
        trr(t + 1)
        a("s_waitcnt lgkmcnt(4)")
        p = t % 2
        for db_ in range(2):
            for lb_ in range(2):
                a(f"v_mfma_f32_32x32x16_bf16 {vr(acc(db_,lb_),16)}, {vr(AF[p][db_])}, {vr(fr(t,lb_))}, {vr(acc(db_,lb_),16)}")
        group(t)
    a(f"""
    s_sub_u32 s12, s12, 1
    s_cmp_lg_u32 s12, 0
    s_cbranch_scc1 G2_LOOP
    s_mov_b32 s{SRD_WS+2}, {hex(WS_SRD_SIZE)}
    s_waitcnt vmcnt(0) lgkmcnt(0)
    """)
    a(f"""
    v_and_b32 v1, 31, v0
    v_mul_u32_u24 v1, {G2_PSTR}, v1
    v_lshrrev_b32 v7, 5, v0
    v_lshl_add_u32 v1, v7, 4, v1
    v_add_u32 v1, s9, v1
    """)
    for db_ in range(2):
        for lb_ in range(2):
            for q in range(4):
                a(f"ds_write_b128 v1, {vr(acc(db_,lb_)+4*q)} offset:{lb_*32*G2_PSTR + db_*128 + q*32}")
    if fused:
        a("; (fused: s tile load happens here)")
    a(f"""
    ds_write_b128 v232, {vr(VS)} offset:{G2_STILE}
    ds_write_b128 v232, {vr(VS+4)} offset:{G2_STILE + 8*G2_SSTR}
    s_waitcnt lgkmcnt(0)
    """)
    if sync4: sync4()
    else: a("s_barrier")
    a(f"""
    v_and_b32 v1, 15, v0
    v_lshrrev_b32 v7, 4, v0                 ; g
    s_lshl_b32 s11, s3, 4
    v_add_u32 v2, s11, v1
    v_mul_u32_u24 v2, {G2_PSTR}, v2
    v_lshl_add_u32 v2, v7, 5, v2            ; + g*32 (k=0) ; +128 for k=1
    v_lshrrev_b32 v3, 1, v7
    v_mul_u32_u24 v3, {G2_WREG}, v3
    v_and_b32 v4, 1, v7
    v_lshlrev_b32 v4, 3, v4
    v_bfe_u32 v5, v0, 2, 2
    v_add_u32 v4, v4, v5
    v_mul_u32_u24 v4, {G2_SSTR}, v4
    v_add_u32 v3, v3, v4
    v_and_b32 v4, 3, v0
    v_lshl_add_u32 v3, v4, 3, v3
    s_lshl_b32 s11, s3, 5                   ; 16w*2 bytes
    v_add_u32 v3, s11, v3
    v_add_u32 v3, {G2_STILE}, v3
    v_add_u32 v4, {2*G2_WREG}, v3
    v_add_u32 v5, {2*G2_WREG}, v2
    """)
    for k in range(2):
        for w in range(4):
            base = 2 if w < 2 else 5
            for hq in range(2):
                a(f"ds_read_b128 {vr(48+32*k+8*w+4*hq)}, v{base} offset:{(w%2)*G2_WREG + k*128 + hq*16}")
        sv = 3 if k == 0 else 4
        a(f"ds_read_b64_tr_b16 v[{112+4*k}:{113+4*k}], v{sv}")
        a(f"ds_read_b64_tr_b16 v[{114+4*k}:{115+4*k}], v{sv} offset:{4*G2_SSTR}")
    a(f"""
    s_mov_b32 s70, {hx(-LOG2E)}
    s_mov_b32 s72, 1.0
    s_mov_b32 s73, 1.0
    """)
    for k in range(2):
        B = 48 + 32 * k
        a(f"s_waitcnt lgkmcnt({10 if k == 0 else 0})")
        for p in range(4):
            x = B + 2 * p
            a(f"""
            v_pk_add_f32 v[{x}:{x+1}], v[{x}:{x+1}], v[{x+8}:{x+9}]
            v_pk_add_f32 v[{x+16}:{x+17}], v[{x+16}:{x+17}], v[{x+24}:{x+25}]
            v_pk_add_f32 v[{x}:{x+1}], v[{x}:{x+1}], v[{x+16}:{x+17}]
            v_cvt_pk_bf16_f32 v120, v{x}, v{x+1}
            v_lshlrev_b32 v122, 16, v120
            v_and_b32 v123, 0xffff0000, v120
            v_lshlrev_b32 v124, 16, v{VB2+4*k+p}
            v_and_b32 v125, 0xffff0000, v{VB2+4*k+p}
            v_pk_add_f32 v[122:123], v[122:123], v[124:125]
            v_cvt_pk_bf16_f32 v120, v122, v123
            v_lshlrev_b32 v122, 16, v120
            v_and_b32 v123, 0xffff0000, v120          ; m
            v_mul_f32 v124, s70, v122
            v_mul_f32 v125, s70, v123
            v_exp_f32 v124, v124
            v_exp_f32 v125, v125
            v_pk_add_f32 v[124:125], v[124:125], s[72:73]
            v_rcp_f32 v124, v124
            v_rcp_f32 v125, v125
            v_pk_mul_f32 v[122:123], v[122:123], v[124:125]
            v_cvt_pk_bf16_f32 v120, v122, v123        ; g
            v_lshlrev_b32 v122, 16, v120
            v_and_b32 v123, 0xffff0000, v120
            v_lshlrev_b32 v124, 16, v{112+4*k+p}
            v_and_b32 v125, 0xffff0000, v{112+4*k+p}
            v_pk_mul_f32 v[122:123], v[122:123], v[124:125]
            v_cvt_pk_bf16_f32 v120, v122, v123        ; s*g
            v_lshlrev_b32 v122, 16, v120
            v_and_b32 v123, 0xffff0000, v120
            v_lshlrev_b32 v124, 16, v{VX+4*k+p}
            v_and_b32 v125, 0xffff0000, v{VX+4*k+p}
            v_pk_add_f32 v[122:123], v[122:123], v[124:125]
            v_cvt_pk_bf16_f32 v{128+4*k+p}, v122, v123
            """)
        a(f"buffer_store_dwordx4 {vr(128+4*k)}, v230, {srd(SRD_OUT)}, 0 offen offset:{64*k}")
    a("s_waitcnt vmcnt(0)")

def kernel_desc(name, vgpr=256, sgpr=102):
    return f"""
.section .rodata,"a"
.p2align 6
.amdhsa_kernel {name}
  .amdhsa_next_free_vgpr {vgpr}
  .amdhsa_next_free_sgpr {sgpr}
  .amdhsa_accum_offset {vgpr}
  .amdhsa_group_segment_fixed_size 0
  .amdhsa_kernarg_size 120
  .amdhsa_user_sgpr_count 2
  .amdhsa_user_sgpr_kernarg_segment_ptr 1
  .amdhsa_system_sgpr_workgroup_id_x 1
.end_amdhsa_kernel
"""

def finish_kernel(a, name):
    lines, npad = pad_hazards(a.lines)
    body = "\n".join(("    " + l if not l.endswith(":") else l) for l in lines)
    body = body.replace("L_END", f"{name}_END")
    txt = f""".text
.globl {name}
.p2align 8
.type {name},@function
{name}:
{body}
{name}_END:
    s_endpgm
"""
    return txt, npad

HEADER = open(f"cdna_kernels/{NAME}.s.ref").read().split("; Override launch")[0]

def build_file(kernels, path):
    out = [HEADER.rstrip("\n")]
    if len(kernels) == 1 and kernels[0][0] == NAME + "_kernel":
        k = kernels[0]
        out.append(f"; @launch grid=({k[1]},1,1) block=({k[2]},1,1) lds={k[3]}")
    else:
        for k in kernels:
            out.append(f"; @launch kernel={k[0]} grid=({k[1]},1,1) block=({k[2]},1,1) lds={k[3]}")
    out.append('.amdgcn_target "amdgcn-amd-amdhsa--gfx950"')
    descs = []
    for k in kernels:
        txt, npad = finish_kernel(k[4], k[0])
        out.append(txt)
        descs.append(kernel_desc(k[0], vgpr=k[5]))
        print(f"{k[0]}: {len(txt.splitlines())} lines, {npad} nops", file=sys.stderr)
    out += descs
    open(path, "w").write("\n".join(out))

def k_ln():
    a = Asm(); prologue(a, 32)
    path_ln(a, 2, False)
    return ("ln_kernel", 32, 512, 64 * 912, a, 64)

def k_g1():
    a = Asm(); prologue(a, 224)
    a("""
    s_and_b32 s4, s2, 7
    s_lshr_b32 s5, s2, 3
    s_lshl_b32 s4, s4, 1
    s_cmp_ge_u32 s5, 14
    s_cselect_b32 s6, 1, 0
    s_cselect_b32 s7, 14, 0
    s_add_u32 s4, s4, s6
    s_sub_u32 s5, s5, s7
    """)
    path_g1(a, False)
    return ("g1_kernel", 224, 256, G1_FLAG + 256, a, 256)

def k_kc(dbgk=True):
    a = Asm(); prologue(a, 224)
    a("""
    s_mov_b32 s4, s2
    s_mov_b32 s5, s3
    """)
    path_kc(a, 0, False, dbgk)
    return ("kc_kernel", 224, 256, 2 * CH_SZ, a, 256)

def k_g2():
    a = Asm(); prologue(a, 224)
    a("""
    s_and_b32 s4, s2, 7
    s_lshr_b32 s5, s2, 3
    s_mul_i32 s6, s5, 37
    s_lshr_b32 s6, s6, 8                    ; y/7 for y<28
    s_mul_i32 s7, s6, 7
    s_sub_u32 s5, s5, s7
    s_lshl_b32 s4, s4, 2
    s_add_u32 s4, s4, s6
    """)
    path_g2(a, False)
    return ("g2_kernel", 224, 256, 4 * G2_WREG, a, 256)

if __name__ == "__main__":
    which = sys.argv[1] if len(sys.argv) > 1 else "dbg"
    if which == "dbg":
        ks = [k_ln(), k_g1(), k_kc(), k_g2()]
        build_file(ks, "dbg.s")
    elif which == "multi":
        ks = [k_ln(), k_g1(), k_kc(False), k_g2()]
        build_file(ks, sys.argv[2])
```

```python
import sys, math, struct
sys.path.insert(0, "gen")
from asmlib import Asm, pad_hazards

NAME = "recurrent_scan__ssm_conv_s4d__mixer_channel_mlp__prompt"
L, D, N, F = 2048, 448, 256, 1792
H_OFF, XNT_OFF, ST_OFF, KDBG_OFF = 0, 0x700000, 0x8C0000, 0xA80000
WS_SRD_SIZE = 0x1000000
X_BYTES = L * D * 2
W_BYTES = D * F * 2

def f2u(x): return struct.unpack("<I", struct.pack("<f", x))[0]
def hx(x): return hex(f2u(x))

S_X, S_LOGA, S_AIM, S_CRE, S_CIM, S_LOGDT, S_DSKIP, S_BX, S_W1, S_B1, S_W2, S_B2, S_OUT, S_DBG, S_WS = \
    16, 18, 20, 22, 24, 26, 28, 30, 32, 34, 36, 38, 40, 42, 44
SRD_X, SRD_W, SRD_WS, SRD_OUT = 48, 52, 56, 60

def sp(b): return f"s[{b}:{b+1}]"
def srd(b): return f"s[{b}:{b+3}]"
def vr(b, n=4): return f"v[{b}:{b+n-1}]" if n > 1 else f"v{b}"

def prologue(a, nwg):
    a(f"""
    s_load_dwordx16 s[16:31], s[0:1], 0
    s_load_dwordx8 s[32:39], s[0:1], 64
    s_load_dwordx4 s[40:43], s[0:1], 96
    s_load_dwordx2 s[44:45], s[0:1], 112
    v_lshrrev_b32 v1, 6, v0
    v_and_b32 v0, 63, v0
    s_cmp_ge_u32 s2, {nwg}
    v_readfirstlane_b32 s3, v1
    s_cbranch_scc1 L_END
    s_waitcnt lgkmcnt(0)
    """)

def mk_srd(a, dst, base, size):
    a(f"""
    s_mov_b32 s{dst}, s{base}
    s_mov_b32 s{dst+1}, s{base+1}
    s_mov_b32 s{dst+2}, {hex(size)}
    s_mov_b32 s{dst+3}, 0x00020000
    """)

def bf16r(a, dst, src, tmp=None):
    a(f"v_cvt_pk_bf16_f32 v{dst}, v{src}, v{src}")
    a(f"v_and_b32 v{dst}, 0xffff0000, v{dst}")

def signal(a, addr_v, val_v, off):
    a(f"""
    s_mov_b64 exec, 1
    ds_write_b32 v{addr_v}, v{val_v} offset:{off}
    s_mov_b64 exec, -1
    """)

def spin_lds(a, tmp, addr_v, off, target_s):
    lab = a.newlabel("SPIN")
    a(f"""
    {lab}:
    ds_read_b32 v{tmp}, v{addr_v} offset:{off}
    s_waitcnt lgkmcnt(0)
    v_cmp_gt_u32 vcc, s{target_s}, v{tmp}
    s_cbranch_vccnz {lab}
    """)

def path_ln(a, idx_s, fused):
    STR = 912
    a.c("---- LN path")
    mk_srd(a, SRD_WS, S_WS, WS_SRD_SIZE)
    a(f"""
    v_lshrrev_b32 v1, 3, v0
    v_and_b32 v2, 7, v0                     ; chunk c
    s_lshl_b32 s4, s{idx_s}, 6              ; r0
    s_lshl_b32 s5, s3, 3
    s_add_u32 s5, s5, s4
    v_add_u32 v3, s5, v1
    v_mul_u32_u24 v3, 896, v3
    v_lshl_add_u32 v3, v2, 4, v3
    """)
    for i in range(7):
        a(f"global_load_dwordx4 {vr(32+4*i)}, v3, {sp(S_X)} offset:{128*i}")
    a(f"""
    s_lshl_b32 s5, s3, 3
    v_add_u32 v4, s5, v1
    v_mul_u32_u24 v4, {STR}, v4
    v_lshl_add_u32 v4, v2, 4, v4
    s_mov_b32 s6, 0x3f803f80
    v_mov_b32 v5, 0
    v_mov_b32 v6, 0
    s_waitcnt vmcnt(0)
    """)
    for i in range(28):
        a(f"v_dot2_f32_bf16 v5, v{32+i}, s6, v5")
        a(f"v_dot2_f32_bf16 v6, v{32+i}, v{32+i}, v6")
    for r in (5, 6):
        a(f"s_nop 2")
        a(f"v_add_f32_dpp v{r}, v{r}, v{r} quad_perm:[1,0,3,2] row_mask:0xf bank_mask:0xf")
        a(f"v_add_f32_dpp v{r}, v{r}, v{r} quad_perm:[2,3,0,1] row_mask:0xf bank_mask:0xf")
        a(f"v_add_f32_dpp v{r}, v{r}, v{r} row_half_mirror row_mask:0xf bank_mask:0xf")
    a(f"""
    s_mov_b32 s6, {hx(1.0/448)}
    v_mul_f32 v5, s6, v5                    ; mean
    v_mul_f32 v6, s6, v6                    ; E[x^2]
    v_fma_f32 v6, -v5, v5, v6               ; var
    v_max_f32 v6, 0, v6
    """)
    bf16r(a, 7, 5)
    bf16r(a, 6, 6)
    a(f"v_add_f32 v6, {hx(1e-5)}, v6")
    bf16r(a, 6, 6)
    a("v_sqrt_f32 v6, v6")
    bf16r(a, 6, 6)
    a("v_rcp_f32 v6, v6")
    a("v_mov_b32 v8, v7")
    for i in range(28):
        s = 32 + i
        a(f"""
        v_lshlrev_b32 v10, 16, v{s}
        v_and_b32 v11, 0xffff0000, v{s}
        v_sub_f32 v10, v10, v7
        v_sub_f32 v11, v11, v7
        v_cvt_pk_bf16_f32 v12, v10, v11
        v_lshlrev_b32 v10, 16, v12
        v_and_b32 v11, 0xffff0000, v12
        v_mul_f32 v10, v10, v6
        v_mul_f32 v11, v11, v6
        v_cvt_pk_bf16_f32 v{s}, v10, v11
        """)
    for i in range(7):
        a(f"ds_write_b128 v4, {vr(32+4*i)} offset:{128*i}")
    a("s_waitcnt lgkmcnt(0)")
    a("s_barrier")
    a(f"""
    v_lshrrev_b32 v1, 4, v0                 ; g
    v_and_b32 v2, 15, v0                    ; i
    v_lshrrev_b32 v3, 2, v2                 ; r
    v_lshl_add_u32 v3, v1, 3, v3            ; 8g + r
    v_mul_u32_u24 v3, {STR}, v3
    v_and_b32 v4, 3, v0
    v_lshl_add_u32 v3, v4, 3, v3
    v_lshlrev_b32 v5, 12, v2
    v_lshl_add_u32 v5, v1, 4, v5            ; + g*16 bytes (8 l's)
    s_lshl_b32 s5, s4, 1                    ; r0*2 bytes
    s_add_u32 s5, s5, {XNT_OFF}
    s_mul_i32 s6, s3, 7                     ; t0
    """)
    for j in range(7):
        a(f"""
        s_add_u32 s7, s6, {j}
        s_lshr_b32 s8, s7, 1                ; dblock
        s_and_b32 s9, s7, 1                 ; lhalf
        s_mul_i32 s10, s9, {32*STR}
        s_lshl_b32 s11, s8, 5
        s_add_u32 s10, s10, s11
        v_add_u32 v6, s10, v3
        ds_read_b64_tr_b16 v[{32+4*j}:{33+4*j}], v6
        ds_read_b64_tr_b16 v[{34+4*j}:{35+4*j}], v6 offset:{4*STR}
        """)
    for j in range(7):
        a(f"""
        s_add_u32 s7, s6, {j}
        s_lshr_b32 s8, s7, 1
        s_and_b32 s9, s7, 1
        s_lshl_b32 s10, s8, 16
        s_lshl_b32 s11, s9, 6               ; lhalf*32*2
        s_add_u32 s10, s10, s11
        s_add_u32 s10, s10, s5
        s_waitcnt lgkmcnt({2*(6-j)})
        buffer_store_dwordx4 {vr(32+4*j)}, v5, {srd(SRD_WS)}, s10 offen{' sc1' if fused else ''}
        """)
    a("s_waitcnt vmcnt(0)")

G1_SLOT = 32768
G1_R = 3
G1_TAB = 32768
G1_FLAG = 98304

def path_g1(a, fused):
    a.c("---- G1 path")
    VW1, VX0, VX1 = 2, 3, 4
    VA = [5, 6]
    VB = [[8, 9], [10, 11], [12, 13], [14, 15]]
    VSX, VSXX, VSW = 16, 17, 18
    VFL, VT, VT2, VSIG = 19, 20, 21, 22
    AF = [[32, 36], [40, 44]]
    BF = [[48, 52], [56, 60]]
    ACC = 128
    def acc(fbp, lbp): return ACC + 16 * (2 * fbp + lbp)
    mk_srd(a, SRD_X, S_X, X_BYTES)
    mk_srd(a, SRD_W, S_W1, W_BYTES)
    mk_srd(a, SRD_WS, S_WS, WS_SRD_SIZE)
    a(f"""
    s_and_b32 s6, s3, 1                     ; wf
    s_lshr_b32 s7, s3, 1                    ; wl
    v_lshrrev_b32 v1, 4, v0                 ; i>>4
    v_and_b32 v7, 15, v0
    v_lshlrev_b32 v23, 2, v1
    v_xor_b32 v7, v7, v23                   ; gchunk
    v_mul_u32_u24 v{VW1}, 3584, v1
    v_lshl_add_u32 v{VW1}, v7, 4, v{VW1}
    s_lshl_b32 s8, s5, 8                    ; ft*256
    v_add_u32 v{VW1}, s8, v{VW1}
    v_and_b32 v7, 7, v0
    v_xor_b32 v7, v7, v1                    ; (i&7)^(i>>4)
    v_lshrrev_b32 v23, 3, v0
    v_mul_u32_u24 v23, 896, v23
    s_mul_i32 s8, s4, {128*896}
    v_add_u32 v23, s8, v23
    v_lshl_add_u32 v{VX0}, v7, 4, v23
    v_xor_b32 v7, 4, v7
    v_lshl_add_u32 v{VX1}, v7, 4, v23
    s_mul_i32 s8, s3, {16*3584}
    s_mul_i32 s9, s3, {32*896}
    s_lshl_b32 s10, s3, 12
    """)
    def dma_stage(slot_s):
        a(f"s_add_u32 m0, s{slot_s}, s10")
        a(f"s_mov_b32 s11, s8")
        for j in range(4):
            a(f"buffer_load_dwordx4 v{VW1}, {srd(SRD_W)}, s11 offen lds")
            a(f"s_add_u32 m0, m0, 1024" if j < 3 else f"s_add_u32 m0, m0, {16384-3072}")
            a(f"s_add_u32 s11, s11, {4*3584}" if j < 3 else f"s_mov_b32 s11, s9")
        for j in range(4):
            a(f"buffer_load_dwordx4 v{VX0 if j % 2 == 0 else VX1}, {srd(SRD_X)}, s11 offen lds")
            if j < 3:
                a(f"s_add_u32 m0, m0, 1024")
                a(f"s_add_u32 s11, s11, {8*896}")
        a(f"s_add_u32 s8, s8, {64*3584}")
        a(f"s_add_u32 s9, s9, 128")
    for s in range(G1_R):
        a(f"s_mov_b32 s12, {s*G1_SLOT}")
        dma_stage(12)
    a(f"""
    v_and_b32 v1, 31, v0
    s_lshl_b32 s12, s5, 7
    s_lshl_b32 s13, s6, 6
    s_add_u32 s12, s12, s13
    s_lshl_b32 s13, s7, 5
    s_add_u32 s12, s12, s13
    v_add_u32 v7, s12, v1
    v_lshlrev_b32 v7, 1, v7
    global_load_ushort v24, v7, {sp(S_B1)}
    """)
    a(f"""
    v_lshrrev_b32 v1, 4, v0                 ; g
    v_lshrrev_b32 v7, 1, v1                 ; hi
    v_bfe_u32 v23, v0, 2, 2                 ; r
    v_lshl_add_u32 v25, v7, 3, v23          ; 8hi + r
    v_lshlrev_b32 v25, 8, v25               ; *256
    v_and_b32 v26, 1, v0
    v_lshl_add_u32 v25, v26, 3, v25         ; + (c&1)*8
    v_and_b32 v26, 1, v1
    v_lshlrev_b32 v26, 1, v26               ; 2(g&1)
    v_bfe_u32 v27, v0, 1, 1                 ; c>>1
    v_add_u32 v26, v26, v27
    s_lshl_b32 s12, s6, 3                   ; wf*8
    v_add_u32 v26, s12, v26
    v_lshlrev_b32 v23, 2, v23               ; 4r
    s_lshl_b32 s12, s7, 2
    v_add_u32 v27, s12, v26
    v_xor_b32 v27, v27, v23
    v_lshl_add_u32 v{VA[0]}, v27, 4, v25
    s_xor_b32 s12, s12, 4
    v_add_u32 v27, s12, v26
    v_xor_b32 v27, v27, v23
    v_lshl_add_u32 v{VA[1]}, v27, 4, v25
    ; B addrs
    v_and_b32 v1, 31, v0
    v_lshrrev_b32 v7, 5, v0                 ; hi
    v_bfe_u32 v23, v0, 1, 3                 ; swz = (l>>1)&7
    v_lshlrev_b32 v25, 7, v1                ; l*128
    s_lshl_b32 s12, s7, 13
    s_add_u32 s12, s12, 16384
    s_lshl_b32 s13, s6, 12
    s_add_u32 s13, s13, s12
    s_xor_b32 s14, s13, 4096
    """)
    for ks in range(4):
        a(f"""
        v_add_u32 v26, {2*ks}, v7
        v_xor_b32 v26, v26, v23
        v_lshl_add_u32 v26, v26, 4, v25
        v_add_u32 v{VB[ks][0]}, s13, v26
        v_add_u32 v{VB[ks][1]}, s14, v26
        """)
    a(f"""
    v_and_b32 v{VFL}, 3, v0
    v_lshlrev_b32 v{VFL}, 2, v{VFL}
    v_add_u32 v{VFL}, {G1_FLAG}, v{VFL}
    s_lshl_b32 s12, s3, 2
    s_add_u32 s12, s12, {G1_FLAG}
    v_mov_b32 v{VSIG}, s12
    v_mov_b32 v{VSX}, 0
    v_mov_b32 v{VSXX}, 0
    v_mov_b32 v{VSW}, 0
    s_mov_b32 s15, 0x3f803f80
    """)
    for i in range(64):
        a(f"v_mov_b32 v{ACC+i}, 0")
    a(f"""
    v_lshlrev_b32 v{VT}, 2, v0
    v_add_u32 v{VT}, {G1_FLAG}, v{VT}
    v_mov_b32 v{VT2}, 0
    s_cmp_lg_u32 s3, 0
    s_cbranch_scc1 G1_NOINIT
    ds_write_b32 v{VT}, v{VT2}
    s_waitcnt lgkmcnt(0)
    G1_NOINIT:
    s_barrier
    """)
    a(f"""
    s_waitcnt vmcnt(17)
    v_mov_b32 v{VT}, 1
    """)
    signal(a, VSIG, VT, 0)
    a("s_mov_b32 s64, 1")
    spin_lds(a, VT, VFL, 0, 64)
    def reads(ks, st):
        for fbp in range(2):
            b = AF[st][fbp]
            a(f"ds_read_b64_tr_b16 v[{b}:{b+1}], v{VA[fbp]} offset:{ks*4096}")
            a(f"ds_read_b64_tr_b16 v[{b+2}:{b+3}], v{VA[fbp]} offset:{ks*4096+1024}")
        for lbp in range(2):
            a(f"ds_read_b128 {vr(BF[st][lbp])}, v{VB[ks][lbp]}")
    def mfmas(st, extra=None):
        dots = []
        for j in range(4):
            dots.append(f"v_dot2_f32_bf16 v{VSX}, v{BF[st][0]+j}, s15, v{VSX}")
            dots.append(f"v_dot2_f32_bf16 v{VSXX}, v{BF[st][0]+j}, v{BF[st][0]+j}, v{VSXX}")
            dots.append(f"v_dot2_f32_bf16 v{VSW}, v{AF[st][0]+j}, s15, v{VSW}")
        k = 0
        for fbp in range(2):
            for lbp in range(2):
                a(f"v_mfma_f32_32x32x16_bf16 {vr(acc(fbp,lbp),16)}, {vr(AF[st][fbp])}, {vr(BF[st][lbp])}, {vr(acc(fbp,lbp),16)}")
                for d in dots[3*k:3*k+3]: a(d)
                if extra and k in extra: extra[k]()
                k += 1
    reads(0, 0)
    a(f"""
    s_mov_b32 s64, 0
    s_mov_b32 s65, 0
    G1_LOOP:
    """)
    reads(1, 1)
    a(f"ds_read_b32 v{VT}, v{VFL} offset:16")
    a("s_waitcnt lgkmcnt(7)")
    mfmas(0)
    a("s_waitcnt lgkmcnt(0)")
    reads(2, 0)
    def k1_dma():
        skip = a.newlabel("G1_NODMA"); ok = a.newlabel("G1_DOK")
        a(f"""
        s_cmp_eq_u32 s64, 0
        s_cbranch_scc1 {skip}
        s_cmp_gt_u32 s64, {7-G1_R}
        s_cbranch_scc1 {skip}
        v_cmp_gt_u32 vcc, s64, v{VT}
        s_cbranch_vccz {ok}
        """)
        spin_lds(a, VT, VFL, 16, 64)
        a(f"{ok}:")
        a(f"""
        s_sub_u32 s66, s65, {G1_SLOT}
        s_cmp_eq_u32 s65, 0
        s_cselect_b32 s66, {(G1_R-1)*G1_SLOT}, s66
        """)
        dma_stage(66)
        a(f"{skip}:")
    def k1_full():
        l0 = a.newlabel("G1_V0"); l1 = a.newlabel("G1_V1")
        a(f"""
        s_cmp_gt_u32 s64, {7-G1_R}
        s_cbranch_scc1 {l0}
        s_waitcnt vmcnt({8*(G1_R-2)})
        s_branch {l1}
        {l0}:
        s_waitcnt vmcnt(0)
        {l1}:
        s_add_u32 s67, s64, 2
        v_mov_b32 v{VT2}, s67
        """)
        signal(a, VSIG, VT2, 0)
    mfmas(1, {1: k1_dma, 3: k1_full})
    a("s_waitcnt lgkmcnt(1)")
    reads(3, 1)
    a(f"ds_read_b32 v{VT}, v{VFL} offset:0")
    mfmas(0)
    a("s_waitcnt lgkmcnt(0)")
    ok = a.newlabel("G1_FOK")
    a(f"""
    s_add_u32 s67, s64, 2
    s_min_u32 s67, s67, 7
    v_cmp_gt_u32 vcc, s67, v{VT}
    s_cbranch_vccz {ok}
    """)
    spin_lds(a, VT, VFL, 0, 67)
    a(f"{ok}:")
    a(f"""
    s_add_u32 s67, s64, 1
    v_mov_b32 v{VT2}, s67
    """)
    signal(a, VSIG, VT2, 16)
    a(f"""
    s_add_u32 s65, s65, {G1_SLOT}
    s_cmp_eq_u32 s65, {G1_R*G1_SLOT}
    s_mov_b32 s68, {G1_SLOT}
    s_cselect_b32 s68, {(-(G1_R-1)*G1_SLOT) & 0xffffffff}, s68
    s_cselect_b32 s65, 0, s65
    """)
    for r in VA + [x for p in VB for x in p]:
        a(f"v_add_u32 v{r}, s68, v{r}")
    reads(0, 0)
    mfmas(1)
    a(f"""
    s_add_u32 s64, s64, 1
    s_cmp_lt_u32 s64, 7
    s_cbranch_scc1 G1_LOOP
    s_waitcnt lgkmcnt(0)
    """)
    a.c("G1 stats")
    def hsum(r, t):
        a(f"""
        v_mov_b32 v{t}, v{r}
        s_nop 1
        v_permlane32_swap_b32 v{r}, v{t}
        v_add_f32 v{r}, v{r}, v{t}
        """)
    hsum(VSX, 23); hsum(VSXX, 23); hsum(VSW, 23)
    a(f"""
    s_mov_b32 s12, {hx(1.0/448)}
    v_mul_f32 v25, s12, v{VSX}               ; mean
    v_mul_f32 v26, s12, v{VSXX}
    v_fma_f32 v26, -v25, v25, v26            ; var
    v_max_f32 v26, 0, v26
    """)
    bf16r(a, 27, 25)
    bf16r(a, 28, 26)
    a(f"v_add_f32 v28, {hx(1e-5)}, v28")
    bf16r(a, 28, 28)
    a("v_sqrt_f32 v28, v28")
    bf16r(a, 28, 28)
    a("v_rcp_f32 v28, v28")
    a("""
    v_sub_f32 v29, v25, v27
    v_mul_f32 v29, v29, v28
    """)
    bf16r(a, 29, 29)
    a("""
    v_mul_f32 v30, v26, v28
    v_mul_f32 v30, v30, v28
    """)
    bf16r(a, 30, 30)
    a(f"v_add_f32 v30, {hx(1e-5)}, v30")
    bf16r(a, 30, 30)
    a("v_sqrt_f32 v30, v30")
    bf16r(a, 30, 30)
    a("v_rcp_f32 v30, v30")
    a(f"""
    v_mul_f32 v32, v28, v30                  ; alpha
    v_fma_f32 v33, v27, v28, v29             ; m*rs + m2
    v_mul_f32 v33, v33, v30
    v_sub_f32 v33, 0, v33                    ; beta
    v_and_b32 v1, 31, v0
    s_lshl_b32 s12, s7, 6
    s_lshl_b32 s13, s6, 5
    s_add_u32 s12, s12, s13
    v_add_u32 v7, s12, v1
    v_lshlrev_b32 v7, 3, v7
    ds_write_b64 v7, v[32:33] offset:{G1_TAB}
    s_lshl_b32 s12, s6, 6
    s_lshl_b32 s13, s7, 5
    s_add_u32 s12, s12, s13
    v_add_u32 v7, s12, v1
    v_lshlrev_b32 v7, 2, v7
    v_lshlrev_b32 v24, 16, v24               ; b1 as f32
    ds_write_b32 v7, v{VSW} offset:{G1_TAB+1024}
    ds_write_b32 v7, v24 offset:{G1_TAB+1536}
    s_waitcnt lgkmcnt(0)
    v_mov_b32 v{VT2}, 1
    """)
    signal(a, VSIG, VT2, 32)
    a("s_mov_b32 s67, 1")
    spin_lds(a, VT, VFL, 32, 67)
    a.c("G1 epilogue")
    a(f"""
    v_and_b32 v1, 31, v0
    s_lshl_b32 s12, s7, 6
    s_lshl_b32 s13, s6, 5
    s_add_u32 s14, s12, s13
    v_add_u32 v7, s14, v1
    v_lshlrev_b32 v7, 3, v7
    ds_read_b64 v[2:3], v7 offset:{G1_TAB}
    v_xor_b32 v7, 256, v7
    ds_read_b64 v[4:5], v7 offset:{G1_TAB}
    v_lshrrev_b32 v7, 5, v0                  ; hi
    v_lshlrev_b32 v7, 4, v7                  ; 4hi*4B
    s_lshl_b32 s12, s6, 8                    ; wf*64*4
    s_lshl_b32 s13, s7, 7                    ; wl*32*4
    s_add_u32 s14, s12, s13
    v_add_u32 v8, s14, v7                    ; fbp=0
    v_xor_b32 v9, 128, v8                    ; fbp=1
    """)
    ST = [32, 48]; BT = [64, 80]
    for fbp in range(2):
        for i in range(4):
            a(f"ds_read_b128 {vr(ST[fbp]+4*i)}, v{8+fbp} offset:{G1_TAB+1024+32*i}")
            a(f"ds_read_b128 {vr(BT[fbp]+4*i)}, v{8+fbp} offset:{G1_TAB+1536+32*i}")
    C1 = 2.0 * math.sqrt(2.0 / math.pi) * math.log2(math.e)
    C2 = C1 * 0.044715
    a(f"""
    v_mov_b32 v28, {hx(C1)}
    v_mov_b32 v29, {hx(C1)}
    s_mov_b32 s72, {hx(C2)}
    s_mov_b32 s73, {hx(C2)}
    s_mov_b32 s74, 1.0
    s_mov_b32 s75, 1.0
    v_lshlrev_b32 v10, 4, v0                 ; lane*16
    s_lshl_b32 s12, s4, 2
    s_lshl_b32 s13, s7, 1
    s_add_u32 s12, s12, s13
    s_mul_i32 s12, s12, 112
    s_lshl_b32 s13, s5, 3
    s_add_u32 s12, s12, s13
    s_lshl_b32 s13, s6, 2
    s_add_u32 s12, s12, s13
    s_lshl_b32 s76, s12, 10
    s_waitcnt lgkmcnt(0)
    """)
    for fbp in range(2):
        for lbp in range(2):
            A = acc(fbp, lbp); ab = 2 + 2 * lbp
            a(f"""
            s_xor_b32 s12, s6, {lbp}
            s_mul_i32 s12, s12, {112*1024}
            s_xor_b32 s13, s7, {fbp}
            s_lshl_b32 s13, s13, 11
            s_add_u32 s77, s76, s12
            s_add_u32 s77, s77, s13
            """)
            P = 96
            for p in range(8):
                x = A + 2 * p
                t = 12 + 2 * (p % 4)
                u = 20 + 2 * (p % 4)
                a(f"""
                v_pk_fma_f32 v[{t}:{t+1}], v[{ST[fbp]+2*p}:{ST[fbp]+2*p+1}], v[{ab}:{ab+1}], v[{BT[fbp]+2*p}:{BT[fbp]+2*p+1}] op_sel:[0,1,0] op_sel_hi:[1,1,1]
                v_pk_fma_f32 v[{x}:{x+1}], v[{x}:{x+1}], v[{ab}:{ab+1}], v[{t}:{t+1}] op_sel:[0,0,0] op_sel_hi:[1,0,1]
                v_pk_mul_f32 v[{t}:{t+1}], v[{x}:{x+1}], v[{x}:{x+1}]
                v_pk_fma_f32 v[{t}:{t+1}], v[{t}:{t+1}], s[72:73], v[28:29]
                v_pk_mul_f32 v[{t}:{t+1}], v[{t}:{t+1}], v[{x}:{x+1}] neg_lo:[1,0] neg_hi:[1,0]
                v_exp_f32 v{u}, v{t}
                v_exp_f32 v{u+1}, v{t+1}
                v_pk_add_f32 v[{u}:{u+1}], v[{u}:{u+1}], s[74:75]
                v_rcp_f32 v{u}, v{u}
                v_rcp_f32 v{u+1}, v{u+1}
                v_pk_mul_f32 v[{x}:{x+1}], v[{x}:{x+1}], v[{u}:{u+1}]
                v_cvt_pk_bf16_f32 v{P+p}, v{x}, v{x+1}
                """)
            P2 = P + 8 * ((2 * fbp + lbp) % 2)
            sc = " sc1" if fused else ""
            a(f"buffer_store_dwordx4 {vr(P)}, v10, {srd(SRD_WS)}, s77 offen{sc}")
            a(f"buffer_store_dwordx4 {vr(P+4)}, v10, {srd(SRD_WS)}, s77 offen offset:1024{sc}")
            a("s_nop 1")
    a("s_waitcnt vmcnt(0)")


CH_SZ = 24576
TILE_SZ = 8704; TROW = 544
CSTR = 4160
U_PAD = 17408; U_OFF = U_PAD + 480
T_OFF = 22000
AF_OFF = 24568
LOG2E = math.log2(math.e)

def cmul(a, r, x, y, t):
    a(f"v_pk_mul_f32 v[{t}:{t+1}], v[{x}:{x+1}], v[{y}:{y+1}] op_sel:[0,0] op_sel_hi:[1,0]")
    a(f"v_pk_fma_f32 v[{r}:{r+1}], v[{x}:{x+1}], v[{y}:{y+1}], v[{t}:{t+1}] op_sel:[1,1,0] op_sel_hi:[0,1,1] neg_lo:[1,0,0]")

def cmul_n(a, jobs, t0=8):
    for k, (r, x, y) in enumerate(jobs):
        t = t0 + 2 * k
        a(f"v_pk_mul_f32 v[{t}:{t+1}], v[{x}:{x+1}], v[{y}:{y+1}] op_sel:[0,0] op_sel_hi:[1,0]")
    for k, (r, x, y) in enumerate(jobs):
        t = t0 + 2 * k
        a(f"v_pk_fma_f32 v[{r}:{r+1}], v[{x}:{x+1}], v[{y}:{y+1}], v[{t}:{t+1}] op_sel:[1,1,0] op_sel_hi:[0,1,1] neg_lo:[1,0,0]")

def pair_sync(a, val, VMY, VOT, VT):
    lab = a.newlabel("PS")
    a(f"""
    v_mov_b32 v{VT}, {val}
    s_waitcnt lgkmcnt(0)
    ds_write_b32 v{VMY}, v{VT}
    {lab}:
    ds_read_b32 v{VT}, v{VOT}
    s_waitcnt lgkmcnt(0)
    v_cmp_gt_u32 vcc, {val}, v{VT}
    s_cbranch_vccnz {lab}
    """)

def path_kc(a, aux_base, fused, dbgk=False, init_barrier=True):
    a.c("---- Kgen + conv path")
    ZP = {k: 32 + 4 * i for i, k in enumerate((1, 2, 4, 8, 16, 32, 64))}
    C2 = 60
    SA = {n: 64 + 4 * i for i, n in enumerate(("0a", "0b", "1a", "1b", "2a", "2b"))}
    ZB = 88
    SB = {n: 92 + 4 * i for i, n in enumerate(("0a", "0b", "1a", "1b"))}
    RB0, RB1, RA, DD = 112, 144, 176, 208
    GA = 228
    VMY, VOT, VT = 6, 7, 5
    VTW, VTR = 2, 3
    mk_srd(a, SRD_WS, S_WS, WS_SRD_SIZE)
    a(f"""
    s_lshr_b32 s6, s5, 1                    ; ch
    s_and_b32 s7, s5, 1                     ; hh
    s_lshl_b32 s8, s4, 1
    s_add_u32 s8, s8, s6                    ; d
    s_mul_i32 s9, s6, {CH_SZ}
    s_add_u32 s9, s9, {aux_base}
    s_lshl_b32 s10, s8, 9
    s_lshl_b32 s11, s7, 8
    s_add_u32 s10, s10, s11
    v_lshl_add_u32 v1, v0, 2, s10
    global_load_dword v8, v1, {sp(S_LOGA)}
    global_load_dword v9, v1, {sp(S_AIM)}
    global_load_dword v10, v1, {sp(S_CRE)}
    global_load_dword v11, v1, {sp(S_CIM)}
    s_lshl_b32 s10, s4, 2
    s_load_dword s12, {sp(S_LOGDT)}, s10
    s_load_dword s13, {sp(S_DSKIP)}, s10
    s_lshl_b32 s10, s7, 10
    s_add_u32 s10, s10, s9
    v_lshl_add_u32 v1, v0, 4, s10
    v_add_u32 v1, {U_PAD}, v1
    v_mov_b32 v12, 0
    v_mov_b32 v13, 0
    v_mov_b32 v14, 0
    v_mov_b32 v15, 0
    ds_write_b128 v1, v[12:15]
    ds_write_b128 v1, v[12:15] offset:2048
    ds_write_b128 v1, v[12:15] offset:4096
    s_cmp_lg_u32 s7, 0
    s_cbranch_scc1 KC_Z1
    ds_write_b128 v1, v[12:15] offset:6144
    KC_Z1:
    ; flags
    s_lshl_b32 s10, s7, 2
    s_add_u32 s10, s10, s9
    s_add_u32 s10, s10, {AF_OFF}
    v_mov_b32 v{VMY}, s10
    s_xor_b32 s10, s10, 4
    v_mov_b32 v{VOT}, s10
    s_mul_i32 s10, s7, {TILE_SZ}
    s_add_u32 s10, s10, s9
    v_lshl_add_u32 v{VTW}, v0, 3, s10
    v_and_b32 v1, 15, v0
    v_mul_u32_u24 v{VTR}, {TROW}, v1
    v_lshrrev_b32 v4, 4, v0                 ; g
    v_lshl_add_u32 v{VTR}, v4, 4, v{VTR}
    v_add_u32 v{VTR}, s10, v{VTR}
    """)
    a(f"""
    s_lshl_b32 s10, s7, 10
    s_sub_u32 s10, s10, 4
    v_lshl_add_u32 v16, v0, 3, s10          ; l0 (r=0)
    s_add_u32 s11, s9, {T_OFF}              ; Tbase
    s_sub_u32 s14, s11, {4*0x4280}
    s_add_u32 s15, s11, 512
    v_cvt_f32_i32 v17, v16
    v_lshl_add_u32 v18, v16, 2, s11         ; x0 = 4*l0 + Tbase
    """)
    for r in range(2):
        for j in range(0, 12, 2):
            o = 512 * r + j
            g0 = GA + 12 * r + j
            a(f"""
            v_add_f32 v20, {hx(float(o))}, v17
            v_add_f32 v21, {hx(float(o+1))}, v17
            v_cvt_pk_bf16_f32 v20, v20, v21
            v_bfe_i32 v21, v20, 0, 16
            v_ashrrev_i32 v20, 16, v20
            v_lshl_add_u32 v21, v21, 2, s14
            v_lshl_add_u32 v20, v20, 2, s14
            v_add_u32 v22, {4*o}, v18
            v_add_u32 v23, {4*(o+1)}, v18
            v_med3_i32 v{g0}, v22, s15, v21
            v_med3_i32 v{g0+1}, v23, s15, v20
            """)
    a(f"""
    v_and_b32 v1, 15, v0                    ; c
    v_lshlrev_b32 v20, 6, v4                ; 64g  (=16*4g entries)
    v_add_u32 v21, v20, v1
    v_lshl_add_u32 v24, v21, 2, s11
    v_add_u32 v24, 4, v24                   ; A0B0: 1 + 64g + c
    v_lshrrev_b32 v21, 1, v4
    v_add_u32 v21, 1, v21
    v_lshrrev_b32 v21, v21, v1              ; c >> (1 + (g>>1))
    v_add_u32 v21, v21, v20
    v_lshl_add_u32 v25, v21, 2, s11
    v_add_u32 v25, {4*257}, v25             ; A1B0
    v_lshrrev_b32 v21, 1, v1
    v_add_u32 v22, 4, v21
    v_max_u32 v22, v22, v1                  ; g>=2 form
    v_add_u32 v23, 8, v1                    ; g<2 form
    v_cmp_gt_u32 vcc, 2, v4
    v_cndmask_b32 v22, v22, v23, vcc
    v_add_u32 v22, v22, v20
    v_lshl_add_u32 v26, v22, 2, s11
    v_add_u32 v26, {4*257}, v26             ; A1B1
    v_lshlrev_b32 v20, 5, v4                ; 32g (=8*4g)
    v_lshrrev_b32 v22, 3, v1
    v_add_u32 v22, v22, v20
    v_lshl_add_u32 v27, v22, 2, s11
    v_add_u32 v27, {4*513}, v27             ; A2B0
    v_lshrrev_b32 v22, 2, v1
    v_add_u32 v22, 2, v22
    v_max_u32 v22, v22, v21
    v_add_u32 v22, v22, v20
    v_lshl_add_u32 v28, v22, 2, s11
    v_add_u32 v28, {4*513}, v28             ; A2B1
    s_waitcnt lgkmcnt(0)
    """)
    if init_barrier:
        a("s_barrier")
    a(f"""
    s_lshl_b32 s10, s6, 4
    s_lshr_b32 s12, s12, s10
    s_lshl_b32 s12, s12, 16
    s_lshr_b32 s13, s13, s10
    s_lshl_b32 s13, s13, 16
    v_mov_b32 v1, {hx(LOG2E)}
    v_mul_f32 v4, s12, v1
    v_exp_f32 v4, v4
    """)
    bf16r(a, 4, 4)
    a("s_waitcnt vmcnt(0)")
    a(f"""
    v_lshlrev_b32 v12, 16, v8
    v_and_b32 v13, 0xffff0000, v8
    v_mul_f32 v12, v12, v1
    v_mul_f32 v13, v13, v1
    v_exp_f32 v12, v12
    v_exp_f32 v13, v13
    v_cvt_pk_bf16_f32 v12, v12, v13
    v_lshlrev_b32 v14, 16, v12
    v_and_b32 v15, 0xffff0000, v12          ; exp(logA) bf16-rounded
    v_mul_f32 v16, v4, v1                   ; dt*log2e
    v_mul_f32 v14, v14, v4                  ; |ar|
    v_mul_f32 v15, v15, v4
    v_mul_f32 v14, v14, v1
    v_mul_f32 v15, v15, v1
    v_exp_f32 v14, -v14                     ; |z|
    v_exp_f32 v15, -v15
    v_lshlrev_b32 v16, 16, v9
    v_and_b32 v17, 0xffff0000, v9
    v_mul_f32 v16, v16, v4                  ; ai
    v_mul_f32 v17, v17, v4
    v_mul_f32 v16, 0.15915494, v16          ; revolutions
    v_mul_f32 v17, 0.15915494, v17
    v_rndne_f32 v18, v16
    v_rndne_f32 v19, v17
    v_sub_f32 v16, v16, v18
    v_sub_f32 v17, v17, v19
    v_cos_f32 v18, v16
    v_sin_f32 v19, v16
    v_cos_f32 v20, v17
    v_sin_f32 v21, v17
    v_mul_f32 v{ZP[1]}, v14, v18
    v_mul_f32 v{ZP[1]+1}, v14, v19
    v_mul_f32 v{ZP[1]+2}, v15, v20
    v_mul_f32 v{ZP[1]+3}, v15, v21
    v_add_f32 v4, v4, v4                    ; 2dt
    v_lshlrev_b32 v16, 16, v10
    v_and_b32 v17, 0xffff0000, v10
    v_lshlrev_b32 v18, 16, v11
    v_and_b32 v19, 0xffff0000, v11
    v_mul_f32 v{C2}, v16, v4
    v_mul_f32 v{C2+1}, v18, v4
    v_mul_f32 v{C2+2}, v17, v4
    v_mul_f32 v{C2+3}, v19, v4
    """)
    def both(r, x, y): return [(r + 2 * c, x + 2 * c, y + 2 * c) for c in range(2)]
    cmul_n(a, both(ZP[2], ZP[1], ZP[1]) + both(SA["0a"], C2, ZP[1]))
    cmul_n(a, both(ZP[4], ZP[2], ZP[2]) + both(SA["1a"], C2, ZP[2]))
    cmul_n(a, both(ZP[8], ZP[4], ZP[4]) + both(SA["1b"], C2, ZP[4]))
    cmul_n(a, both(ZP[16], ZP[8], ZP[8]) + both(SA["2a"], C2, ZP[8]))
    cmul_n(a, both(ZP[32], ZP[16], ZP[16]))
    cmul_n(a, both(ZP[64], ZP[32], ZP[32]))
    cmul_n(a, both(ZB, ZP[64], ZP[64]))
    cmul_n(a, both(SA["0b"], SA["0a"], ZB) + both(ZB, ZB, ZB))
    cmul_n(a, both(SA["1a"], SA["1a"], ZB) + both(ZB, ZB, ZB))
    cmul_n(a, both(SA["1b"], SA["1b"], ZB) + both(SB["0a"], ZB, ZB))
    cmul_n(a, both(SA["2a"], SA["2a"], SB["0a"]))
    cmul_n(a, both(SA["2b"], SA["2a"], ZB))
    a(f"""
    v_add_f32 v29, v{C2}, v{C2+2}
    v_mov_b32 v{SB['0a']}, 1.0
    v_mov_b32 v{SB['0a']+1}, 0
    v_mov_b32 v{SB['0a']+2}, 1.0
    v_mov_b32 v{SB['0a']+3}, 0
    v_add_f32_dpp v29, v29, v29 row_shr:1 row_mask:0xf bank_mask:0xf bound_ctrl:0
    v_mov_b64 v[{SB['0b']}:{SB['0b']+1}], v[{ZP[8]}:{ZP[8]+1}]
    v_mov_b64 v[{SB['0b']+2}:{SB['0b']+3}], v[{ZP[8]+2}:{ZP[8]+3}]
    v_add_f32_dpp v29, v29, v29 row_shr:2 row_mask:0xf bank_mask:0xf bound_ctrl:0
    v_mov_b64 v[{SB['1a']}:{SB['1a']+1}], v[{ZP[16]}:{ZP[16]+1}]
    v_mov_b64 v[{SB['1a']+2}:{SB['1a']+3}], v[{ZP[16]+2}:{ZP[16]+3}]
    v_add_f32_dpp v29, v29, v29 row_shr:4 row_mask:0xf bank_mask:0xf bound_ctrl:0
    v_mov_b64 v[{SB['1b']}:{SB['1b']+1}], v[{ZP[32]}:{ZP[32]+1}]
    v_mov_b64 v[{SB['1b']+2}:{SB['1b']+3}], v[{ZP[32]+2}:{ZP[32]+3}]
    v_add_f32_dpp v29, v29, v29 row_shr:8 row_mask:0xf bank_mask:0xf bound_ctrl:0
    s_nop 1
    v_add_f32_dpp v29, v29, v29 row_bcast:15 row_mask:0xa bank_mask:0xf
    s_nop 1
    v_add_f32_dpp v29, v29, v29 row_bcast:31 row_mask:0xc bank_mask:0xf
    """)
    for i in range(20):
        a(f"v_mov_b32 v{DD+i}, 0")
    def gen_tile(s0, st0, s1, st1, conj, dest):
        lab = a.newlabel("GEN")
        neg = "-" if conj else ""
        a(f"""
        v_mov_b32 v1, v{VTW}
        s_mov_b32 s10, 8
        {lab}:
        v_cvt_pk_bf16_f32 v16, v{s0}, {neg}v{s0+1}
        v_cvt_pk_bf16_f32 v17, v{s0+2}, {neg}v{s0+3}
        v_cvt_pk_bf16_f32 v18, v{s1}, {neg}v{s1+1}
        v_cvt_pk_bf16_f32 v19, v{s1+2}, {neg}v{s1+3}
        ds_write_b64 v1, v[16:17]
        ds_write_b64 v1, v[18:19] offset:{8*TROW}
        """)
        cmul_n(a, both(s0, s0, st0) + both(s1, s1, st1))
        a(f"""
        v_add_u32 v1, {TROW}, v1
        s_sub_u32 s10, s10, 1
        s_cmp_lg_u32 s10, 0
        s_cbranch_scc1 {lab}
        """)
        for kk in range(8):
            a(f"ds_read_b128 {vr(dest+4*kk)}, v{VTR} offset:{64*kk}")
    gen_tile(SB["0a"], ZP[1], SB["0b"], ZP[1], True, RB0)
    gen_tile(SB["1a"], ZP[2], SB["1b"], ZP[4], True, RB1)
    def mm(dt, B):
        for kk in range(8):
            a(f"v_mfma_f32_16x16x32_bf16 {vr(DD+4*dt)}, {vr(RA+4*kk)}, {vr(B+4*kk)}, {vr(DD+4*dt)}")
    def mm2(d0, B0_, d1, B1_):
        for kk in range(8):
            a(f"v_mfma_f32_16x16x32_bf16 {vr(DD+4*d0)}, {vr(RA+4*kk)}, {vr(B0_+4*kk)}, {vr(DD+4*d0)}")
            a(f"v_mfma_f32_16x16x32_bf16 {vr(DD+4*d1)}, {vr(RA+4*kk)}, {vr(B1_+4*kk)}, {vr(DD+4*d1)}")
    gen_tile(SA["0a"], ZP[16], SA["0b"], ZP[16], False, RA)
    a("s_waitcnt lgkmcnt(0)")
    mm(0, RB0)
    gen_tile(SA["1a"], ZP[32], SA["1b"], ZP[64], False, RA)
    a("s_waitcnt lgkmcnt(0)")
    mm2(1, RB0, 2, RB1)
    gen_tile(SA["2a"], ZP[64], SA["2b"], ZP[64], False, RA)
    a("s_waitcnt lgkmcnt(0)")
    mm2(3, RB0, 4, RB1)
    def lanes(fn):
        m = 0
        for ln in range(64):
            if fn(ln & 15, ln >> 4): m |= 1 << ln
        return m
    masks = [lanes(lambda c, g: True),
             lanes(lambda c, g: (c % 2 == 0) if g < 2 else (c % 4 == 0)),
             lanes(lambda c, g: (c < 8) if g < 2 else (c >= 8 or c % 2 == 0)),
             lanes(lambda c, g: c in (0, 8)),
             lanes(lambda c, g: c in (0, 4, 8, 10, 12, 14))]
    for t in range(5):
        m = masks[t]
        a(f"s_mov_b32 exec_lo, {hex(m & 0xffffffff)}")
        a(f"s_mov_b32 exec_hi, {hex(m >> 32)}")
        for j in range(4):
            a(f"ds_add_f32 v{24+t}, v{DD+4*t+j} offset:{(64 if t < 3 else 32)*j}")
    a(f"""
    s_mov_b32 exec_lo, 0
    s_mov_b32 exec_hi, 0x80000000
    v_mov_b32 v1, s11
    ds_add_f32 v1, v29
    s_mov_b64 exec, -1
    """)
    pair_sync(a, 1, VMY, VOT, VT)
    a(f"""
    s_lshl_b32 s10, s8, 12
    s_lshl_b32 s14, s7, 11
    s_add_u32 s10, s10, s14
    s_add_u32 s10, s10, {XNT_OFF}
    s_add_u32 s14, s14, s9
    s_add_u32 m0, s14, {U_OFF}
    v_lshlrev_b32 v1, 4, v0
    s_nop 0
    buffer_load_dwordx4 v1, {srd(SRD_WS)}, s10 offen lds{' sc1' if fused else ''}
    buffer_load_dwordx4 v1, {srd(SRD_WS)}, s10 offen offset:1024 lds{' sc1' if fused else ''}
    """)
    a(f"""
    s_lshl_b32 s10, s7, 11
    s_add_u32 s10, s10, s9
    s_add_u32 s10, s10, 32
    v_lshl_add_u32 v2, v0, 4, s10
    v_add_u32 v3, {2*CSTR}, v2
    """)
    for r in range(2):
        G = 32 + 12 * r
        for j in range(12):
            a(f"ds_read_b32 v{G+j}, v{GA+12*r+j}")
    for r in range(2):
        G = 32 + 12 * r
        P = 64 + 16 * r
        a(f"s_waitcnt lgkmcnt({12 if r == 0 else 4})")
        p = lambda k: {0: P+8, 1: P+4, 2: P+0, 3: P+1, 4: P+2, 5: P+3}[k]
        for k in range(6):
            a(f"v_cvt_pk_bf16_f32 v{p(k)}, v{G+2*k}, v{G+2*k+1}")
        a(f"""
        v_mov_b32 v{P+5}, v{p(2)}
        v_mov_b32 v{P+6}, v{p(3)}
        v_mov_b32 v{P+7}, v{p(4)}
        v_alignbit_b32 v100, v{p(2)}, v{p(1)}, 16
        v_alignbit_b32 v101, v{p(3)}, v{p(2)}, 16
        v_alignbit_b32 v102, v{p(4)}, v{p(3)}, 16
        v_alignbit_b32 v103, v{p(5)}, v{p(4)}, 16
        v_alignbit_b32 v104, v{p(1)}, v{p(0)}, 16
        v_mov_b32 v105, v100
        v_mov_b32 v106, v101
        v_mov_b32 v107, v102
        ds_write_b128 v2, v[{P}:{P+3}] offset:{1024*r}
        ds_write_b128 v2, v[100:103] offset:{1024*r + CSTR}
        ds_write_b128 v3, v[{P+4}:{P+7}] offset:{1024*r}
        ds_write_b128 v3, v[104:107] offset:{1024*r + CSTR}
        """)
        if dbgk:
            a(f"""
            s_lshl_b32 s10, s8, 12
            s_lshl_b32 s14, s7, 11
            s_add_u32 s10, s10, s14
            s_add_u32 s10, s10, {KDBG_OFF + 1024*r}
            v_lshlrev_b32 v1, 4, v0
            buffer_store_dwordx4 v[{P}:{P+3}], v1, {srd(SRD_WS)}, s10 offen
            """)
    a(f"""
    s_cmp_lg_u32 s7, 0
    s_cbranch_scc1 KC_Z2
    v_lshrrev_b32 v1, 1, v0
    v_mul_u32_u24 v1, {CSTR}, v1
    v_and_b32 v4, 1, v0
    v_lshl_add_u32 v1, v4, 4, v1
    v_add_u32 v1, s9, v1
    v_mov_b32 v12, 0
    v_mov_b32 v13, 0
    v_mov_b32 v14, 0
    v_mov_b32 v15, 0
    s_mov_b64 exec, 0xff
    ds_write_b128 v1, v[12:15]
    s_mov_b64 exec, -1
    KC_Z2:
    """)
    VA, VB = 2, 3
    BR, AR, ACC = 32, 64, 80
    a(f"""
    v_lshrrev_b32 v4, 4, v0                 ; g
    v_bfe_u32 v8, v0, 2, 2                  ; r
    v_mul_u32_u24 v8, {CSTR}, v8
    v_and_b32 v9, 3, v0                     ; c
    v_lshl_add_u32 v8, v9, 3, v8            ; + 8c
    v_lshrrev_b32 v9, 1, v4                 ; g>>1
    v_and_b32 v10, 1, v4                    ; g&1
    v_lshlrev_b32 v11, 5, v9                ; 32(g>>1)
    v_lshlrev_b32 v12, 4, v10               ; 16(g&1)
    v_add_u32 v8, v8, v11
    v_sub_u32 v8, v8, v12
    s_lshl_b32 s10, s7, 8                   ; 64*i0 = 256*hh
    s_add_u32 s14, s10, s9
    s_add_u32 s14, s14, {32 - 8}
    v_add_u32 v{VA}, s14, v8
    v_and_b32 v8, 15, v0
    v_lshlrev_b32 v8, 5, v8
    v_sub_u32 v8, v8, v11
    v_add_u32 v8, v8, v12
    s_sub_u32 s14, s9, s10
    s_add_u32 s14, s14, {U_OFF}
    v_add_u32 v{VB}, s14, v8
    """)
    for i in range(32):
        a(f"v_mov_b32 v{ACC+i}, 0")
    a("s_waitcnt vmcnt(0)")
    pair_sync(a, 2, VMY, VOT, VT)
    def ldA(P):
        buf = AR + 4 * (P % 4)
        off = 512 * (P % 8) + (64 if P >= 8 else 0)
        a(f"ds_read_b64_tr_b16 v[{buf}:{buf+1}], v{VA} offset:{off+8}")
        a(f"ds_read_b64_tr_b16 v[{buf+2}:{buf+3}], v{VA} offset:{off}")
    for s in range(7, -1, -1):
        a(f"ds_read_b128 {vr(BR+4*s)}, v{VB} offset:{512*s}")
    for P in range(3):
        ldA(P)
    a(f"""
    v_subrev_u32 v{VB}, 64, v{VB}
    s_mov_b32 s10, 4
    s_waitcnt lgkmcnt(0)
    CONV_LOOP:
    """)
    for P in range(8):
        a("s_waitcnt lgkmcnt(7)")
        ldA(P + 3)
        first = True
        for s in range(7 - P, -1, -1):
            if P == 0 and s <= 2:
                a(f"s_waitcnt lgkmcnt({3*(s+1)})")
            a(f"v_mfma_f32_16x16x32_bf16 {vr(ACC+4*(P+s))}, {vr(AR+4*(P%4))}, {vr(BR+4*s)}, {vr(ACC+4*(P+s))}")
            if first:
                a(f"ds_read_b128 {vr(BR+4*s)}, v{VB} offset:{512*s}")
                first = False
    a(f"""
    v_add_u32 v{VA}, 64, v{VA}
    v_subrev_u32 v{VB}, 64, v{VB}
    s_sub_u32 s10, s10, 1
    s_cmp_lg_u32 s10, 0
    s_cbranch_scc1 CONV_LOOP
    """)
    pair_sync(a, 3, VMY, VOT, VT)
    a(f"""
    s_lshl_b32 s10, s7, 12
    s_add_u32 s10, s10, s9
    v_lshl_add_u32 v2, v0, 4, s10
    v_xor_b32 v3, 4096, v2                  ; partner's area (base is multiple of 8192? -> use add/sub)
    """)
    assert aux_base % 8192 == 0 and CH_SZ % 8192 == 0
    a("""
    s_cmp_lg_u32 s7, 0
    s_cbranch_scc1 KC_X1
    """)
    for t in range(4):
        a(f"ds_write_b128 v2, {vr(ACC+16+4*t)} offset:{1024*t}")
    a("s_branch KC_X2")
    a.label("KC_X1")
    for t in range(4):
        a(f"ds_write_b128 v2, {vr(ACC+4*t)} offset:{1024*t}")
    for i in range(16):
        a(f"v_mov_b32 v{ACC+i}, v{ACC+16+i}")
    a.label("KC_X2")
    pair_sync(a, 4, VMY, VOT, VT)
    a(f"""
    v_and_b32 v8, 15, v0
    v_lshlrev_b32 v8, 5, v8
    v_lshrrev_b32 v4, 4, v0
    v_lshl_add_u32 v8, v4, 3, v8            ; 2*(16a'+4g)
    s_lshl_b32 s10, s7, 11
    v_add_u32 v8, s10, v8
    s_add_u32 s14, s9, {U_OFF}
    v_add_u32 v9, s14, v8
    """)
    for t in range(4):
        a(f"ds_read_b128 {vr(32+4*t)}, v3 offset:{1024*t}")
        a(f"ds_read_b64 v[{48+2*t}:{49+2*t}], v9 offset:{512*t}")
    a(f"""
    s_lshl_b32 s10, s8, 12
    s_add_u32 s10, s10, {ST_OFF}
    """)
    for t in range(4):
        A = ACC + 4 * t; X = 48 + 2 * t; Pp = 32 + 4 * t
        a(f"""
        s_waitcnt lgkmcnt({2*(3-t)})
        v_pk_add_f32 v[{A}:{A+1}], v[{A}:{A+1}], v[{Pp}:{Pp+1}]
        v_pk_add_f32 v[{A+2}:{A+3}], v[{A+2}:{A+3}], v[{Pp+2}:{Pp+3}]
        v_lshlrev_b32 v12, 16, v{X}
        v_and_b32 v13, 0xffff0000, v{X}
        v_lshlrev_b32 v14, 16, v{X+1}
        v_and_b32 v15, 0xffff0000, v{X+1}
        v_mul_f32 v12, s13, v12
        v_mul_f32 v13, s13, v13
        v_mul_f32 v14, s13, v14
        v_mul_f32 v15, s13, v15
        v_cvt_pk_bf16_f32 v16, v12, v13
        v_cvt_pk_bf16_f32 v17, v14, v15
        v_cvt_pk_bf16_f32 v18, v{A}, v{A+1}
        v_cvt_pk_bf16_f32 v19, v{A+2}, v{A+3}
        v_lshlrev_b32 v12, 16, v16
        v_and_b32 v13, 0xffff0000, v16
        v_lshlrev_b32 v14, 16, v17
        v_and_b32 v15, 0xffff0000, v17
        v_lshlrev_b32 v20, 16, v18
        v_and_b32 v21, 0xffff0000, v18
        v_lshlrev_b32 v22, 16, v19
        v_and_b32 v23, 0xffff0000, v19
        v_pk_add_f32 v[12:13], v[12:13], v[20:21]
        v_pk_add_f32 v[14:15], v[14:15], v[22:23]
        v_cvt_pk_bf16_f32 v{24+2*(t%2)}, v12, v13
        v_cvt_pk_bf16_f32 v{25+2*(t%2)}, v14, v15
        buffer_store_dwordx2 v[{24+2*(t%2)}:{25+2*(t%2)}], v8, {srd(SRD_WS)}, s10 offen offset:{512*t}{' sc1' if fused else ''}
        """)
    a("s_waitcnt vmcnt(0)")


G2_WREG = 28672
G2_PSTR = 272
G2_STILE = 17408
G2_SSTR = 144

def path_g2(a, fused, sync4=None):
    a.c("---- G2 path")
    VH0, VH1, VW2 = 2, 3, 4
    VA = [5, 6]
    VX, VB2, VS = 8, 16, 24
    AF = [[32, 36], [40, 44]]
    ACC = 48
    FR = 112
    def acc(db_, lb_): return ACC + 16 * (2 * db_ + lb_)
    def fr(t, lb_): return FR + 8 * (t % 14) + 4 * lb_
    sc = " sc1" if fused else ""
    mk_srd(a, SRD_X, S_X, X_BYTES)
    mk_srd(a, SRD_W, S_W2, W_BYTES)
    mk_srd(a, SRD_WS, S_WS, WS_SRD_SIZE)
    mk_srd(a, SRD_OUT, S_OUT, X_BYTES)
    a(f"""
    s_mul_i32 s6, s4, {2*112}
    s_mul_i32 s7, s3, 28
    s_add_u32 s6, s6, s7
    s_lshl_b32 s6, s6, 10                   ; s6 = h soffset
    v_lshlrev_b32 v{VH0}, 4, v0
    v_add_u32 v{VH1}, {112*1024}, v{VH0}
    v_lshrrev_b32 v1, 3, v0
    v_and_b32 v7, 7, v0
    v_bfe_u32 v234, v0, 4, 1                  ; (row>>1)&1
    v_lshlrev_b32 v234, 2, v234
    v_xor_b32 v7, v7, v234
    v_mul_u32_u24 v{VW2}, 896, v1
    v_lshl_add_u32 v{VW2}, v7, 4, v{VW2}
    s_mul_i32 s7, s3, {448*896}
    s_lshl_b32 s8, s5, 7
    s_add_u32 s7, s7, s8
    s_add_u32 s8, s7, {7168-1024}
    s_mul_i32 s9, s3, {G2_WREG}
    """)
    def group(t):
        a(f"buffer_load_dwordx4 {vr(fr(t,0))}, v{VH0}, {srd(SRD_WS)}, s6 offen{sc}")
        a(f"buffer_load_dwordx4 {vr(fr(t,1))}, v{VH1}, {srd(SRD_WS)}, s6 offen{sc}")
        a(f"s_add_u32 m0, s9, {2048*(t%14)}")
        a(f"s_add_u32 s6, s6, 1024")
        a(f"buffer_load_dwordx4 v{VW2}, {srd(SRD_W)}, s7 offen lds")
        a(f"buffer_load_dwordx4 v{VW2}, {srd(SRD_W)}, s8 offen offset:1024 lds")
        a(f"s_add_u32 s7, s7, {16*896}")
        a(f"s_add_u32 s8, s8, {16*896}")
    a(f"""
    ; thread (l = 16w + i, o = g + 4k)
    v_and_b32 v1, 15, v0                    ; i
    v_lshrrev_b32 v7, 4, v0                 ; g
    s_lshl_b32 s10, s4, 6
    s_lshl_b32 s11, s3, 4
    s_add_u32 s10, s10, s11                 ; l0 + 16w
    v_add_u32 v234, s10, v1
    v_mul_u32_u24 v234, 896, v234
    v_lshl_add_u32 v234, v7, 4, v234
    s_lshl_b32 s11, s5, 7
    v_add_u32 v230, s11, v234
    buffer_load_dwordx4 {vr(VX)}, v230, {srd(SRD_X)}, 0 offen
    buffer_load_dwordx4 {vr(VX+4)}, v230, {srd(SRD_X)}, 0 offen offset:64
    v_lshlrev_b32 v234, 4, v7
    v_add_u32 v234, s11, v234
    global_load_dwordx4 {vr(VB2)}, v234, {sp(S_B2)}
    global_load_dwordx4 {vr(VB2+4)}, v234, {sp(S_B2)} offset:64
    v_lshrrev_b32 v234, 3, v0
    v_and_b32 v235, 7, v0
    s_lshl_b32 s10, s5, 6
    s_lshl_b32 s11, s3, 4
    s_add_u32 s10, s10, s11                 ; d0 + 16w
    v_add_u32 v236, s10, v234
    v_lshlrev_b32 v236, 12, v236
    v_lshl_add_u32 v231, v235, 4, v236        ; + chunk*16
    s_lshl_b32 s10, s4, 7
    s_add_u32 s10, s10, {ST_OFF}
    v_mul_u32_u24 v232, {G2_SSTR}, v234
    v_lshl_add_u32 v232, v235, 4, v232
    v_add_u32 v232, s9, v232
    """)
    if not fused:
        a(f"""
        buffer_load_dwordx4 {vr(VS)}, v231, {srd(SRD_WS)}, s10 offen
        s_add_u32 s11, s10, {8*4096}
        buffer_load_dwordx4 {vr(VS+4)}, v231, {srd(SRD_WS)}, s11 offen
        """)
    for t in range(14):
        group(t)
    a(f"""
    v_lshrrev_b32 v1, 4, v0                 ; g
    v_lshrrev_b32 v7, 1, v1                 ; hi
    v_bfe_u32 v234, v0, 2, 2                  ; r
    v_lshl_add_u32 v235, v7, 2, v234           ; row
    v_lshlrev_b32 v235, 7, v235               ; *128
    v_and_b32 v236, 1, v0
    v_lshl_add_u32 v235, v236, 3, v235         ; + (c&1)*8
    v_add_u32 v235, s9, v235
    v_and_b32 v236, 1, v1
    v_lshlrev_b32 v236, 1, v236
    v_bfe_u32 v233, v0, 1, 1
    v_add_u32 v236, v236, v233                ; 2(g&1) + (c>>1)
    v_bfe_u32 v233, v0, 3, 1                ; (r>>1)&1  (row>>1)&1 = (r>>1)&1
    v_lshlrev_b32 v233, 2, v233
    v_xor_b32 v236, v236, v233
    v_lshl_add_u32 v{VA[0]}, v236, 4, v235
    v_xor_b32 v236, 4, v236
    v_lshl_add_u32 v{VA[1]}, v236, 4, v235
    """)
    for i in range(64):
        a(f"v_mov_b32 v{ACC+i}, 0")
    def trr(t):
        p = t % 2
        for db_ in range(2):
            b = AF[p][db_]
            a(f"ds_read_b64_tr_b16 v[{b}:{b+1}], v{VA[db_]} offset:{2048*(t%14)}")
            a(f"ds_read_b64_tr_b16 v[{b+2}:{b+3}], v{VA[db_]} offset:{2048*(t%14)+1024}")
    a("s_waitcnt vmcnt(52)")
    trr(0)
    a(f"""
    s_mov_b32 s12, 2
    G2_LOOP:
    s_cmp_eq_u32 s12, 1
    s_cbranch_scc0 G2_NOSW
    s_mov_b32 s{SRD_WS+2}, 0
    s_mov_b32 s{SRD_W+2}, 0
    G2_NOSW:
    """)
    for t in range(14):
        a("s_waitcnt vmcnt(48)")
        trr(t + 1)
        a("s_waitcnt lgkmcnt(4)")
        p = t % 2
        for db_ in range(2):
            for lb_ in range(2):
                a(f"v_mfma_f32_32x32x16_bf16 {vr(acc(db_,lb_),16)}, {vr(AF[p][db_])}, {vr(fr(t,lb_))}, {vr(acc(db_,lb_),16)}")
        group(t)
    a(f"""
    s_sub_u32 s12, s12, 1
    s_cmp_lg_u32 s12, 0
    s_cbranch_scc1 G2_LOOP
    s_mov_b32 s{SRD_WS+2}, {hex(WS_SRD_SIZE)}
    s_waitcnt vmcnt(0) lgkmcnt(0)
    """)
    a(f"""
    v_and_b32 v1, 31, v0
    v_mul_u32_u24 v1, {G2_PSTR}, v1
    v_lshrrev_b32 v7, 5, v0
    v_lshl_add_u32 v1, v7, 4, v1
    v_add_u32 v1, s9, v1
    """)
    for db_ in range(2):
        for lb_ in range(2):
            for q in range(4):
                a(f"ds_write_b128 v1, {vr(acc(db_,lb_)+4*q)} offset:{lb_*32*G2_PSTR + db_*128 + q*32}")
    if fused:
        a("; (fused: s tile load happens here)")
    a(f"""
    ds_write_b128 v232, {vr(VS)} offset:{G2_STILE}
    ds_write_b128 v232, {vr(VS+4)} offset:{G2_STILE + 8*G2_SSTR}
    s_waitcnt lgkmcnt(0)
    """)
    if sync4: sync4()
    else: a("s_barrier")
    a(f"""
    v_and_b32 v1, 15, v0
    v_lshrrev_b32 v7, 4, v0                 ; g
    s_lshl_b32 s11, s3, 4
    v_add_u32 v2, s11, v1
    v_mul_u32_u24 v2, {G2_PSTR}, v2
    v_lshl_add_u32 v2, v7, 5, v2            ; + g*32 (k=0) ; +128 for k=1
    v_lshrrev_b32 v3, 1, v7
    v_mul_u32_u24 v3, {G2_WREG}, v3
    v_and_b32 v4, 1, v7
    v_lshlrev_b32 v4, 3, v4
    v_bfe_u32 v5, v0, 2, 2
    v_add_u32 v4, v4, v5
    v_mul_u32_u24 v4, {G2_SSTR}, v4
    v_add_u32 v3, v3, v4
    v_and_b32 v4, 3, v0
    v_lshl_add_u32 v3, v4, 3, v3
    s_lshl_b32 s11, s3, 5                   ; 16w*2 bytes
    v_add_u32 v3, s11, v3
    v_add_u32 v3, {G2_STILE}, v3
    v_add_u32 v4, {2*G2_WREG}, v3
    v_add_u32 v5, {2*G2_WREG}, v2
    """)
    for k in range(2):
        for w in range(4):
            base = 2 if w < 2 else 5
            for hq in range(2):
                a(f"ds_read_b128 {vr(48+32*k+8*w+4*hq)}, v{base} offset:{(w%2)*G2_WREG + k*128 + hq*16}")
        sv = 3 if k == 0 else 4
        a(f"ds_read_b64_tr_b16 v[{112+4*k}:{113+4*k}], v{sv}")
        a(f"ds_read_b64_tr_b16 v[{114+4*k}:{115+4*k}], v{sv} offset:{4*G2_SSTR}")
    a(f"""
    s_mov_b32 s70, {hx(-LOG2E)}
    s_mov_b32 s72, 1.0
    s_mov_b32 s73, 1.0
    """)
    for k in range(2):
        B = 48 + 32 * k
        a(f"s_waitcnt lgkmcnt({10 if k == 0 else 0})")
        for p in range(4):
            x = B + 2 * p
            a(f"""
            v_pk_add_f32 v[{x}:{x+1}], v[{x}:{x+1}], v[{x+8}:{x+9}]
            v_pk_add_f32 v[{x+16}:{x+17}], v[{x+16}:{x+17}], v[{x+24}:{x+25}]
            v_pk_add_f32 v[{x}:{x+1}], v[{x}:{x+1}], v[{x+16}:{x+17}]
            v_cvt_pk_bf16_f32 v120, v{x}, v{x+1}
            v_lshlrev_b32 v122, 16, v120
            v_and_b32 v123, 0xffff0000, v120
            v_lshlrev_b32 v124, 16, v{VB2+4*k+p}
            v_and_b32 v125, 0xffff0000, v{VB2+4*k+p}
            v_pk_add_f32 v[122:123], v[122:123], v[124:125]
            v_cvt_pk_bf16_f32 v120, v122, v123
            v_lshlrev_b32 v122, 16, v120
            v_and_b32 v123, 0xffff0000, v120          ; m
            v_mul_f32 v124, s70, v122
            v_mul_f32 v125, s70, v123
            v_exp_f32 v124, v124
            v_exp_f32 v125, v125
            v_pk_add_f32 v[124:125], v[124:125], s[72:73]
            v_rcp_f32 v124, v124
            v_rcp_f32 v125, v125
            v_pk_mul_f32 v[122:123], v[122:123], v[124:125]
            v_cvt_pk_bf16_f32 v120, v122, v123        ; g
            v_lshlrev_b32 v122, 16, v120
            v_and_b32 v123, 0xffff0000, v120
            v_lshlrev_b32 v124, 16, v{112+4*k+p}
            v_and_b32 v125, 0xffff0000, v{112+4*k+p}
            v_pk_mul_f32 v[122:123], v[122:123], v[124:125]
            v_cvt_pk_bf16_f32 v120, v122, v123        ; s*g
            v_lshlrev_b32 v122, 16, v120
            v_and_b32 v123, 0xffff0000, v120
            v_lshlrev_b32 v124, 16, v{VX+4*k+p}
            v_and_b32 v125, 0xffff0000, v{VX+4*k+p}
            v_pk_add_f32 v[122:123], v[122:123], v[124:125]
            v_cvt_pk_bf16_f32 v{128+4*k+p}, v122, v123
            """)
        a(f"buffer_store_dwordx4 {vr(128+4*k)}, v230, {srd(SRD_OUT)}, 0 offen offset:{64*k}")
    a("s_waitcnt vmcnt(0)")

def kernel_desc(name, vgpr=256, sgpr=102):
    return f"""
.section .rodata,"a"
.p2align 6
.amdhsa_kernel {name}
  .amdhsa_next_free_vgpr {vgpr}
  .amdhsa_next_free_sgpr {sgpr}
  .amdhsa_accum_offset {vgpr}
  .amdhsa_group_segment_fixed_size 0
  .amdhsa_kernarg_size 120
  .amdhsa_user_sgpr_count 2
  .amdhsa_user_sgpr_kernarg_segment_ptr 1
  .amdhsa_system_sgpr_workgroup_id_x 1
.end_amdhsa_kernel
"""

def finish_kernel(a, name):
    lines, npad = pad_hazards(a.lines)
    body = "\n".join(("    " + l if not l.endswith(":") else l) for l in lines)
    body = body.replace("L_END", f"{name}_END")
    import re as _re
    labs = set(l[:-1] for l in lines if l.endswith(":"))
    for lb in sorted(labs, key=len, reverse=True):
        body = _re.sub(r"\b" + lb + r"\b", f"{name}_{lb}", body)
    txt = f""".text
.globl {name}
.p2align 8
.type {name},@function
{name}:
{body}
{name}_END:
    s_endpgm
"""
    return txt, npad

HEADER = open(f"cdna_kernels/{NAME}.s.ref").read().split("; Override launch")[0]

def build_file(kernels, path):
    out = [HEADER.rstrip("\n")]
    if len(kernels) == 1 and kernels[0][0] == NAME + "_kernel":
        k = kernels[0]
        out.append(f"; @launch grid=({k[1]},1,1) block=({k[2]},1,1) lds={k[3]}")
    else:
        for k in kernels:
            out.append(f"; @launch kernel={k[0]} grid=({k[1]},1,1) block=({k[2]},1,1) lds={k[3]}")
    out.append('.amdgcn_target "amdgcn-amd-amdhsa--gfx950"')
    descs = []
    for k in kernels:
        txt, npad = finish_kernel(k[4], k[0])
        out.append(txt)
        descs.append(kernel_desc(k[0], vgpr=k[5]))
        print(f"{k[0]}: {len(txt.splitlines())} lines, {npad} nops", file=sys.stderr)
    out += descs
    open(path, "w").write("\n".join(out))

def k_ln():
    a = Asm(); prologue(a, 32)
    path_ln(a, 2, False)
    return ("ln_kernel", 32, 512, 64 * 912, a, 64)

def k_g1():
    a = Asm(); prologue(a, 224)
    a("""
    s_and_b32 s4, s2, 7
    s_lshr_b32 s5, s2, 3
    s_lshl_b32 s4, s4, 1
    s_cmp_ge_u32 s5, 14
    s_cselect_b32 s6, 1, 0
    s_cselect_b32 s7, 14, 0
    s_add_u32 s4, s4, s6
    s_sub_u32 s5, s5, s7
    """)
    path_g1(a, False)
    return ("g1_kernel", 224, 256, G1_FLAG + 256, a, 256)

def k_kc(dbgk=True):
    a = Asm(); prologue(a, 224)
    a("""
    s_mov_b32 s4, s2
    s_mov_b32 s5, s3
    """)
    path_kc(a, 0, False, dbgk)
    return ("kc_kernel", 224, 256, 2 * CH_SZ, a, 256)

def k_g2():
    a = Asm(); prologue(a, 224)
    a("""
    s_and_b32 s4, s2, 7
    s_lshr_b32 s5, s2, 3
    s_mul_i32 s6, s5, 37
    s_lshr_b32 s6, s6, 8                    ; y/7 for y<28
    s_mul_i32 s7, s6, 7
    s_sub_u32 s5, s5, s7
    s_lshl_b32 s4, s4, 2
    s_add_u32 s4, s4, s6
    """)
    path_g2(a, False)
    return ("g2_kernel", 224, 256, 4 * G2_WREG, a, 256)

if __name__ == "__main__":
    which = sys.argv[1] if len(sys.argv) > 1 else "dbg"
    if which == "dbg":
        ks = [k_ln(), k_g1(), k_kc(), k_g2()]
        build_file(ks, "dbg.s")
    elif which == "exp":
        def k_nop(name):
            a = Asm(); prologue(a, 1)
            return (name, 1, 64, 0, a, 64)
        base = [k_ln(), k_g1(), k_kc(False), k_g2()]
        build_file(base + [k_nop("n1_kernel"), k_nop("n2_kernel")], "e1.s")
        k2 = k_ln(); k2 = ("ln2_kernel",) + k2[1:]
        build_file([base[0], k2] + base[1:], "e2.s")
        k2 = k_g2(); k2 = ("g2b_kernel",) + k2[1:]
        build_file(base + [k2], "e3.s")
    elif which == "multi":
        ks = [k_ln(), k_g1(), k_kc(False), k_g2()]
        build_file(ks, sys.argv[2])
```

```python
import sys, math, struct
sys.path.insert(0, "gen")
from asmlib import Asm, pad_hazards

NAME = "recurrent_scan__ssm_conv_s4d__mixer_channel_mlp__prompt"
L, D, N, F = 2048, 448, 256, 1792
H_OFF, XB_OFF, ST_OFF, FLAG_OFF = 0, 0x700000, 0x8C0000, 0xA80000
FL_LN, FL_G1, FL_CV, FL_EPOCH = FLAG_OFF, FLAG_OFF + 0x1000, FLAG_OFF + 0x2000, FLAG_OFF + 0x3000
TS_OFF = 0xE00000
WS_SRD_SIZE = 0x1000000
X_BYTES = L * D * 2
W_BYTES = D * F * 2
LOG2E = math.log2(math.e)

def f2u(x): return struct.unpack("<I", struct.pack("<f", x))[0]
def hx(x): return hex(f2u(x))

S_X, S_LOGA, S_AIM, S_CRE, S_CIM, S_LOGDT, S_DSKIP, S_BX, S_W1, S_B1, S_W2, S_B2, S_OUT, S_DBG, S_WS = \
    16, 18, 20, 22, 24, 26, 28, 30, 32, 34, 36, 38, 40, 42, 44
S_EPOCH, S_TAG = 46, 47
SRD_X, SRD_W, SRD_WS, SRD_OUT = 48, 52, 56, 60
S_XX, S_YY = 78, 79

def sp(b): return f"s[{b}:{b+1}]"
def srd(b): return f"s[{b}:{b+3}]"
def vr(b, n=4): return f"v[{b}:{b+n-1}]" if n > 1 else f"v{b}"

AUX_BASE = 114688
CH_SZ = 24576
TILE_SZ = 8704; TROW = 544
CSTR = 4160
U_PAD = 17408; U_OFF = U_PAD + 480
T1_OFF = U_OFF + 16
T0_OFF = T1_OFF + 4096
AF_OFF = 24568
SPARE = 17376
GFLAG = AUX_BASE + SPARE
MFLAG = AUX_BASE + CH_SZ + SPARE
CNT_G1, CNT_LN, CNT_CV, CNT_G2 = MFLAG + 16, MFLAG + 20, MFLAG + 24, MFLAG + 28
G1_SLOT = 32768; G1_R = 3
G1_TAB = 32768
G2_WREG = 28672; G2_PSTR = 272; G2_STILE = 17408; G2_SSTR = 144

TS_ON = False
def ts(a, i):
    if not TS_ON: return
    a(f"s_memtime s[{80+2*i}:{81+2*i}]")
    a("s_waitcnt lgkmcnt(0)")
def ts_dump(a, n=10):
    if not TS_ON: return
    a(f"""
    s_memrealtime s[70:71]
    s_waitcnt lgkmcnt(0)
    s_lshl_b32 s76, s2, 3
    s_add_u32 s76, s76, s3
    s_lshl_b32 s76, s76, 7
    s_add_u32 s76, s76, {TS_OFF}
    s_add_u32 s74, s{S_WS}, s76
    s_addc_u32 s75, s{S_WS+1}, 0
    v_mov_b32 v1, 0
    """)
    for i in range(n):
        a(f"""
        v_mov_b32 v2, s{80+2*i}
        v_mov_b32 v3, s{81+2*i}
        global_store_dwordx2 v1, v[2:3], s[74:75] offset:{8*i}
        """)
    a(f"""
    v_mov_b32 v2, s70
    v_mov_b32 v3, s71
    global_store_dwordx2 v1, v[2:3], s[74:75] offset:{8*n}
    v_mov_b32 v2, s100
    v_mov_b32 v3, s101
    global_store_dwordx2 v1, v[2:3], s[74:75] offset:{8*n+8}
    s_waitcnt vmcnt(0)
    """)

def mk_srd(a, dst, base, size):
    a(f"""
    s_mov_b32 s{dst}, s{base}
    s_mov_b32 s{dst+1}, s{base+1}
    s_mov_b32 s{dst+2}, {hex(size)}
    s_mov_b32 s{dst+3}, 0x00020000
    """)

def bf16r(a, dst, src):
    a(f"v_cvt_pk_bf16_f32 v{dst}, v{src}, v{src}")
    a(f"v_and_b32 v{dst}, 0xffff0000, v{dst}")

def signal(a, addr_v, val_v, off):
    a(f"""
    s_mov_b64 exec, 1
    ds_write_b32 v{addr_v}, v{val_v} offset:{off}
    s_mov_b64 exec, -1
    """)

S_BUD = 69
def budget(a):
    a(f"s_sub_u32 s{S_BUD}, s{S_BUD}, 1")
    a("s_cbranch_scc1 L_BAIL")

def spin_lds(a, tmp, addr_v, off, target):
    lab = a.newlabel("SPIN")
    a(f"{lab}:")
    budget(a)
    a(f"""
    ds_read_b32 v{tmp}, v{addr_v} offset:{off}
    s_waitcnt lgkmcnt(0)
    v_cmp_gt_u32 vcc, {target}, v{tmp}
    s_cbranch_vccnz {lab}
    """)

def publish(a, cnt_addr, nwaves, flag_off_s, vt0, vt1):
    lab = a.newlabel("PUB")
    a(f"""
    s_waitcnt vmcnt(0)
    v_mov_b32 v{vt0}, {cnt_addr}
    v_mov_b32 v{vt1}, 1
    s_mov_b64 exec, 1
    ds_add_rtn_u32 v{vt1}, v{vt0}, v{vt1}
    s_waitcnt lgkmcnt(0)
    v_cmp_eq_u32 vcc, {nwaves-1}, v{vt1}
    s_cbranch_vccz {lab}
    v_mov_b32 v{vt0}, s{flag_off_s}
    v_mov_b32 v{vt1}, s{S_TAG}
    global_store_dword v{vt0}, v{vt1}, {sp(S_WS)} sc1
    {lab}:
    s_mov_b64 exec, -1
    """)

def poll_flags(a, addr_v, nlanes, vt, wide=False):
    lab = a.newlabel("POLL"); ok = a.newlabel("POLLOK")
    if nlanes < 64:
        a(f"s_mov_b64 exec, {hex((1 << nlanes) - 1)}")
    a(f"{lab}:")
    budget(a)
    if wide:
        a(f"""
        global_load_dwordx4 v[{vt}:{vt+3}], v{addr_v}, {sp(S_WS)} sc1
        s_waitcnt vmcnt(0)
        v_xor_b32 v{vt}, s{S_TAG}, v{vt}
        v_xor_b32 v{vt+1}, s{S_TAG}, v{vt+1}
        v_xor_b32 v{vt+2}, s{S_TAG}, v{vt+2}
        v_xor_b32 v{vt+3}, s{S_TAG}, v{vt+3}
        v_or3_b32 v{vt}, v{vt}, v{vt+1}, v{vt+2}
        v_or_b32 v{vt}, v{vt}, v{vt+3}
        v_cmp_ne_u32 vcc, 0, v{vt}
        """)
    else:
        a(f"""
        global_load_dword v{vt}, v{addr_v}, {sp(S_WS)} sc1
        s_waitcnt vmcnt(0)
        v_cmp_ne_u32 vcc, s{S_TAG}, v{vt}
        """)
    a(f"""
    s_cbranch_vccz {ok}
    s_sleep 2
    s_branch {lab}
    {ok}:
    """)
    if nlanes < 64:
        a("s_mov_b64 exec, -1")

def prologue(a):
    if TS_ON:
        a("s_memtime s[80:81]")
        a("s_memrealtime s[100:101]")
    a(f"""
    s_load_dwordx16 s[16:31], s[0:1], 0
    s_load_dwordx8 s[32:39], s[0:1], 64
    s_load_dwordx4 s[40:43], s[0:1], 96
    s_load_dwordx2 s[44:45], s[0:1], 112
    v_lshrrev_b32 v1, 6, v0
    v_and_b32 v0, 63, v0
    s_cmp_ge_u32 s2, 256
    v_readfirstlane_b32 s3, v1
    s_cbranch_scc1 L_END
    s_and_b32 s{S_XX}, s2, 7
    s_lshr_b32 s{S_YY}, s2, 3
    s_mov_b32 s{S_BUD}, 0x40000
    s_lshl_b32 s4, s{S_XX}, 5
    s_add_u32 s4, s4, s{S_YY}               ; q
    s_lshl_b32 s5, s4, 3
    s_add_u32 s5, s5, s3
    s_mul_i32 s5, s5, 896
    v_lshlrev_b32 v1, 4, v0
    v_mov_b32 v240, 0
    v_mov_b32 v241, 0
    v_mov_b32 v242, 0
    v_mov_b32 v243, 0
    s_waitcnt lgkmcnt(0)
    s_add_u32 s6, s{S_X}, s5
    s_addc_u32 s7, s{S_X+1}, 0
    s_mov_b32 exec_hi, 0x00ffffff
    global_load_dwordx4 v[240:243], v1, s[6:7]
    s_mov_b32 exec_hi, -1
    s_add_u32 s6, s{S_WS}, {FL_EPOCH}
    s_addc_u32 s7, s{S_WS+1}, 0
    s_load_dword s{S_EPOCH}, s[6:7], 0
    """)
    mk_srd(a, SRD_WS, S_WS, WS_SRD_SIZE)

def ln_common(a):
    a.c("---- LN (1 row per wave)")
    a(f"""
    s_mov_b32 s6, 0x3f803f80
    v_dot2_f32_bf16 v244, v240, s6, 0
    v_dot2_f32_bf16 v245, v240, v240, 0
    """)
    for i in range(1, 4):
        a(f"v_dot2_f32_bf16 v244, v{240+i}, s6, v244")
        a(f"v_dot2_f32_bf16 v245, v{240+i}, v{240+i}, v245")
    for sh in (1, 2, 4, 8):
        for r in (244, 245):
            a(f"v_add_f32_dpp v{r}, v{r}, v{r} row_shr:{sh} row_mask:0xf bank_mask:0xf bound_ctrl:0")
    for r in (244, 245):
        a(f"v_add_f32_dpp v{r}, v{r}, v{r} row_bcast:15 row_mask:0xa bank_mask:0xf")
    for r in (244, 245):
        a(f"v_add_f32_dpp v{r}, v{r}, v{r} row_bcast:31 row_mask:0xc bank_mask:0xf")
    a(f"""
    v_readlane_b32 s6, v244, 63
    v_readlane_b32 s7, v245, 63
    s_mov_b32 s8, {hx(1.0/448)}
    v_mov_b32 v246, s8
    v_mul_f32 v244, s6, v246                ; mean
    v_mul_f32 v245, s7, v246
    v_fma_f32 v245, -v244, v244, v245       ; var
    v_max_f32 v245, 0, v245
    """)
    bf16r(a, 244, 244)
    bf16r(a, 245, 245)
    a(f"v_add_f32 v245, {hx(1e-5)}, v245")
    bf16r(a, 245, 245)
    a("v_sqrt_f32 v245, v245")
    bf16r(a, 245, 245)
    a("v_rcp_f32 v245, v245")
    a("v_mov_b32 v247, v244")
    a("v_mov_b32 v246, v244")
    a("v_mov_b32 v244, v245")
    for i in range(4):
        s = 240 + i
        a(f"""
        v_lshlrev_b32 v248, 16, v{s}
        v_and_b32 v249, 0xffff0000, v{s}
        v_pk_add_f32 v[248:249], v[248:249], v[246:247] neg_lo:[0,1] neg_hi:[0,1]
        v_cvt_pk_bf16_f32 v250, v248, v249
        v_lshlrev_b32 v248, 16, v250
        v_and_b32 v249, 0xffff0000, v250
        v_pk_mul_f32 v[248:249], v[248:249], v[244:245]
        v_cvt_pk_bf16_f32 v{s}, v248, v249
        """)
    a(f"""
    s_lshr_b32 s6, s3, 2
    s_mul_i32 s6, s6, {CH_SZ}
    s_and_b32 s7, s3, 3
    s_mul_i32 s7, s7, 896
    s_add_u32 s6, s6, s7
    s_add_u32 s6, s6, {AUX_BASE + U_OFF}
    v_lshl_add_u32 v248, v0, 4, s6
    s_mov_b32 exec_hi, 0x00ffffff
    ds_write_b128 v248, v[240:243]
    s_mov_b32 exec_hi, -1
    s_waitcnt lgkmcnt(0)
    s_mul_i32 s{S_TAG}, s{S_EPOCH}, 0x9E3779B1
    s_add_u32 s{S_TAG}, s{S_TAG}, 0x7F4A7C15
    """)
    ts(a, 1)
    a("s_barrier")

def ln_store(a):
    a(f"""
    v_lshrrev_b32 v8, 4, v0
    v_bfe_u32 v9, v0, 2, 2
    v_mul_u32_u24 v9, 896, v9
    v_lshl_add_u32 v9, v8, 5, v9
    v_and_b32 v8, 3, v0
    v_lshl_add_u32 v9, v8, 3, v9
    s_lshl_b32 s10, s5, 7
    s_add_u32 s10, s10, {AUX_BASE + U_OFF}
    v_add_u32 v9, s10, v9
    ds_read_b64_tr_b16 v[12:13], v9
    ds_read_b64_tr_b16 v[14:15], v9 offset:{CH_SZ}
    ds_read_b64_tr_b16 v[16:17], v9 offset:512
    ds_read_b64_tr_b16 v[18:19], v9 offset:{CH_SZ+512}
    s_lshl_b32 s10, s{S_XX}, 5
    s_add_u32 s10, s10, s{S_YY}
    s_mul_i32 s10, s10, 7168
    s_lshl_b32 s11, s5, 10
    s_add_u32 s10, s10, s11
    s_add_u32 s10, s10, {XB_OFF}
    v_lshlrev_b32 v8, 4, v0
    s_waitcnt lgkmcnt(2)
    buffer_store_dwordx4 v[12:15], v8, {srd(SRD_WS)}, s10 offen sc1
    s_cmp_eq_u32 s5, 3
    s_cbranch_scc1 LNS_SKIP
    s_add_u32 s10, s10, 4096
    s_waitcnt lgkmcnt(0)
    buffer_store_dwordx4 v[16:19], v8, {srd(SRD_WS)}, s10 offen sc1
    LNS_SKIP:
    s_waitcnt lgkmcnt(0)
    """)

def ln_publish(a):
    a(f"""
    s_lshl_b32 s10, s{S_XX}, 5
    s_add_u32 s10, s10, s{S_YY}
    s_lshl_b32 s10, s10, 2
    s_add_u32 s10, s10, {FL_LN}
    """)
    publish(a, CNT_LN, 4, 10, 8, 9)

VW1, VX0, VX1 = 2, 3, 4
def g1_dma_stage(a, slot_s):
    a(f"s_add_u32 m0, s{slot_s}, s10")
    a(f"s_mov_b32 s11, s8")
    for j in range(4):
        a(f"buffer_load_dwordx4 v{VW1}, {srd(SRD_W)}, s11 offen lds")
        a(f"s_add_u32 m0, m0, 1024" if j < 3 else f"s_add_u32 m0, m0, {16384-3072}")
        a(f"s_add_u32 s11, s11, {4*3584}" if j < 3 else f"s_mov_b32 s11, s9")
    for j in range(4):
        a(f"buffer_load_dwordx4 v{VX0 if j % 2 == 0 else VX1}, {srd(SRD_X)}, s11 offen lds")
        if j < 3:
            a(f"s_add_u32 m0, m0, 1024")
            a(f"s_add_u32 s11, s11, {8*896}")
    a(f"s_add_u32 s8, s8, {64*3584}")
    a(f"s_add_u32 s9, s9, 128")

def g1_pre(a):
    a.c("---- G1 pre")
    mk_srd(a, SRD_X, S_X, X_BYTES)
    mk_srd(a, SRD_W, S_W1, W_BYTES)
    a(f"""
    s_mul_i32 s6, s{S_YY}, 37
    s_lshr_b32 s6, s6, 8                    ; y/7
    s_mul_i32 s7, s6, 7
    s_sub_u32 s7, s{S_YY}, s7               ; y%7
    s_lshr_b32 s4, s{S_XX}, 1
    s_lshl_b32 s4, s4, 2
    s_add_u32 s4, s4, s6                    ; rb
    s_and_b32 s5, s{S_XX}, 1
    s_mul_i32 s5, s5, 7
    s_add_u32 s5, s5, s7                    ; ft
    v_lshrrev_b32 v1, 4, v0
    v_and_b32 v7, 15, v0
    v_lshlrev_b32 v23, 2, v1
    v_xor_b32 v7, v7, v23
    v_mul_u32_u24 v{VW1}, 3584, v1
    v_lshl_add_u32 v{VW1}, v7, 4, v{VW1}
    s_lshl_b32 s8, s5, 8
    v_add_u32 v{VW1}, s8, v{VW1}
    v_and_b32 v7, 7, v0
    v_xor_b32 v7, v7, v1
    v_lshrrev_b32 v23, 3, v0
    v_mul_u32_u24 v23, 896, v23
    s_mul_i32 s8, s4, {128*896}
    v_add_u32 v23, s8, v23
    v_lshl_add_u32 v{VX0}, v7, 4, v23
    v_xor_b32 v7, 4, v7
    v_lshl_add_u32 v{VX1}, v7, 4, v23
    s_mul_i32 s8, s3, {16*3584}
    s_mul_i32 s9, s3, {32*896}
    s_lshl_b32 s10, s3, 12
    """)
    for s in range(G1_R):
        a(f"s_mov_b32 s12, {s*G1_SLOT}")
        g1_dma_stage(a, 12)
    a(f"""
    s_and_b32 s6, s3, 1                     ; wf
    s_lshr_b32 s7, s3, 1                    ; wl
    v_and_b32 v1, 31, v0
    s_lshl_b32 s12, s5, 7
    s_lshl_b32 s13, s6, 6
    s_add_u32 s12, s12, s13
    s_lshl_b32 s13, s7, 5
    s_add_u32 s12, s12, s13
    v_add_u32 v7, s12, v1
    v_lshlrev_b32 v7, 1, v7
    global_load_ushort v24, v7, {sp(S_B1)}
    s_cmp_lg_u32 s3, 0
    s_cbranch_scc1 G1_NOINIT
    v_lshlrev_b32 v7, 2, v0
    v_mov_b32 v23, 0
    v_add_u32 v25, {GFLAG}, v7
    v_add_u32 v26, {MFLAG}, v7
    s_mov_b64 exec, 0xff
    ds_write_b32 v25, v23
    ds_write_b32 v26, v23
    s_mov_b64 exec, -1
    G1_NOINIT:
    s_mov_b64 s[64:65], s[4:5]
    s_mov_b64 s[66:67], s[8:9]
    s_waitcnt vmcnt(25)
    """)

def g1_main(a):
    a.c("---- G1 main")
    VA = [5, 6]
    VB = [[8, 9], [10, 11], [12, 13], [14, 15]]
    VSX, VSXX, VSW = 16, 17, 18
    VFL, VT, VT2, VSIG, VMF = 19, 20, 21, 22, 30
    AF = [[32, 36], [40, 44]]
    BF = [[48, 52], [56, 60]]
    ACC = 128
    def acc(fbp, lbp): return ACC + 16 * (2 * fbp + lbp)
    a(f"""
    s_mov_b64 s[4:5], s[64:65]
    s_mov_b64 s[8:9], s[66:67]
    s_and_b32 s6, s3, 1
    s_lshr_b32 s7, s3, 1
    s_lshl_b32 s10, s3, 12
    v_lshrrev_b32 v1, 4, v0                 ; g
    v_lshrrev_b32 v7, 1, v1                 ; hi
    v_bfe_u32 v23, v0, 2, 2                 ; r
    v_lshl_add_u32 v25, v7, 3, v23
    v_lshlrev_b32 v25, 8, v25
    v_and_b32 v26, 1, v0
    v_lshl_add_u32 v25, v26, 3, v25
    v_and_b32 v26, 1, v1
    v_lshlrev_b32 v26, 1, v26
    v_bfe_u32 v27, v0, 1, 1
    v_add_u32 v26, v26, v27
    s_lshl_b32 s12, s6, 3
    v_add_u32 v26, s12, v26
    v_lshlrev_b32 v23, 2, v23
    s_lshl_b32 s12, s7, 2
    v_add_u32 v27, s12, v26
    v_xor_b32 v27, v27, v23
    v_lshl_add_u32 v{VA[0]}, v27, 4, v25
    s_xor_b32 s12, s12, 4
    v_add_u32 v27, s12, v26
    v_xor_b32 v27, v27, v23
    v_lshl_add_u32 v{VA[1]}, v27, 4, v25
    v_and_b32 v1, 31, v0
    v_lshrrev_b32 v7, 5, v0
    v_bfe_u32 v23, v0, 1, 3
    v_lshlrev_b32 v25, 7, v1
    s_lshl_b32 s12, s7, 13
    s_add_u32 s12, s12, 16384
    s_lshl_b32 s13, s6, 12
    s_add_u32 s13, s13, s12
    s_xor_b32 s14, s13, 4096
    """)
    for ks in range(4):
        a(f"""
        v_add_u32 v26, {2*ks}, v7
        v_xor_b32 v26, v26, v23
        v_lshl_add_u32 v26, v26, 4, v25
        v_add_u32 v{VB[ks][0]}, s13, v26
        v_add_u32 v{VB[ks][1]}, s14, v26
        """)
    a(f"""
    v_and_b32 v{VFL}, 3, v0
    v_lshlrev_b32 v{VFL}, 2, v{VFL}
    v_add_u32 v{VMF}, {MFLAG}, v{VFL}
    v_add_u32 v{VFL}, {GFLAG}, v{VFL}
    s_lshl_b32 s12, s3, 2
    s_add_u32 s12, s12, {GFLAG}
    v_mov_b32 v{VSIG}, s12
    v_mov_b32 v{VSX}, 0
    v_mov_b32 v{VSXX}, 0
    v_mov_b32 v{VSW}, 0
    s_mov_b32 s15, 0x3f803f80
    """)
    for i in range(64):
        a(f"v_mov_b32 v{ACC+i}, 0")
    a(f"""
    s_waitcnt vmcnt(17)
    v_mov_b32 v{VT}, 1
    """)
    signal(a, VSIG, VT, 0)
    spin_lds(a, VT, VFL, 0, 1)
    ts(a, 2)
    def reads(ks, st):
        for fbp in range(2):
            b = AF[st][fbp]
            a(f"ds_read_b64_tr_b16 v[{b}:{b+1}], v{VA[fbp]} offset:{ks*4096}")
            a(f"ds_read_b64_tr_b16 v[{b+2}:{b+3}], v{VA[fbp]} offset:{ks*4096+1024}")
        for lbp in range(2):
            a(f"ds_read_b128 {vr(BF[st][lbp])}, v{VB[ks][lbp]}")
    def mfmas(st, extra=None):
        dots = []
        for j in range(4):
            dots.append(f"v_dot2_f32_bf16 v{VSX}, v{BF[st][0]+j}, s15, v{VSX}")
            dots.append(f"v_dot2_f32_bf16 v{VSXX}, v{BF[st][0]+j}, v{BF[st][0]+j}, v{VSXX}")
            dots.append(f"v_dot2_f32_bf16 v{VSW}, v{AF[st][0]+j}, s15, v{VSW}")
        k = 0
        for fbp in range(2):
            for lbp in range(2):
                a(f"v_mfma_f32_32x32x16_bf16 {vr(acc(fbp,lbp),16)}, {vr(AF[st][fbp])}, {vr(BF[st][lbp])}, {vr(acc(fbp,lbp),16)}")
                for d in dots[3*k:3*k+3]: a(d)
                if extra and k in extra: extra[k]()
                k += 1
    reads(0, 0)
    a(f"""
    s_mov_b32 s64, 0
    s_mov_b32 s65, 0
    G1_LOOP:
    """)
    reads(1, 1)
    a(f"ds_read_b32 v{VT}, v{VFL} offset:16")
    a("s_waitcnt lgkmcnt(7)")
    mfmas(0)
    a("s_waitcnt lgkmcnt(0)")
    reads(2, 0)
    def k1_dma():
        skip = a.newlabel("G1_NODMA"); ok = a.newlabel("G1_DOK")
        a(f"""
        s_cmp_eq_u32 s64, 0
        s_cbranch_scc1 {skip}
        s_cmp_gt_u32 s64, {7-G1_R}
        s_cbranch_scc1 {skip}
        v_cmp_gt_u32 vcc, s64, v{VT}
        s_cbranch_vccz {ok}
        """)
        spin_lds(a, VT, VFL, 16, "s64")
        a(f"{ok}:")
        a(f"""
        s_sub_u32 s66, s65, {G1_SLOT}
        s_cmp_eq_u32 s65, 0
        s_cselect_b32 s66, {(G1_R-1)*G1_SLOT}, s66
        """)
        g1_dma_stage(a, 66)
        a(f"{skip}:")
    def k1_full():
        l0 = a.newlabel("G1_V0"); l1 = a.newlabel("G1_V1")
        a(f"""
        s_cmp_gt_u32 s64, {7-G1_R}
        s_cbranch_scc1 {l0}
        s_waitcnt vmcnt({8*(G1_R-2)})
        s_branch {l1}
        {l0}:
        s_waitcnt vmcnt(0)
        {l1}:
        s_add_u32 s67, s64, 2
        v_mov_b32 v{VT2}, s67
        """)
        signal(a, VSIG, VT2, 0)
    mfmas(1, {1: k1_dma, 3: k1_full})
    a("s_waitcnt lgkmcnt(1)")
    reads(3, 1)
    a(f"ds_read_b32 v{VT}, v{VFL} offset:0")
    mfmas(0)
    a("s_waitcnt lgkmcnt(0)")
    ok = a.newlabel("G1_FOK")
    a(f"""
    s_add_u32 s67, s64, 2
    s_min_u32 s67, s67, 7
    v_cmp_gt_u32 vcc, s67, v{VT}
    s_cbranch_vccz {ok}
    """)
    spin_lds(a, VT, VFL, 0, "s67")
    a(f"{ok}:")
    a(f"""
    s_add_u32 s67, s64, 1
    v_mov_b32 v{VT2}, s67
    """)
    signal(a, VSIG, VT2, 16)
    a(f"""
    s_add_u32 s65, s65, {G1_SLOT}
    s_cmp_eq_u32 s65, {G1_R*G1_SLOT}
    s_mov_b32 s68, {G1_SLOT}
    s_cselect_b32 s68, {(-(G1_R-1)*G1_SLOT) & 0xffffffff}, s68
    s_cselect_b32 s65, 0, s65
    """)
    for r in VA + [x for p in VB for x in p]:
        a(f"v_add_u32 v{r}, s68, v{r}")
    reads(0, 0)
    mfmas(1)
    a(f"""
    s_add_u32 s64, s64, 1
    s_cmp_lt_u32 s64, 7
    s_cbranch_scc1 G1_LOOP
    s_waitcnt lgkmcnt(0)
    """)
    ts(a, 3)
    a.c("G1 stats")
    def hsum(r, t):
        a(f"""
        v_mov_b32 v{t}, v{r}
        s_nop 1
        v_permlane32_swap_b32 v{r}, v{t}
        v_add_f32 v{r}, v{r}, v{t}
        """)
    hsum(VSX, 23); hsum(VSXX, 23); hsum(VSW, 23)
    a(f"""
    s_mov_b32 s12, {hx(1.0/448)}
    v_mul_f32 v25, s12, v{VSX}
    v_mul_f32 v26, s12, v{VSXX}
    v_fma_f32 v26, -v25, v25, v26
    v_max_f32 v26, 0, v26
    """)
    bf16r(a, 27, 25)
    bf16r(a, 28, 26)
    a(f"v_add_f32 v28, {hx(1e-5)}, v28")
    bf16r(a, 28, 28)
    a("v_sqrt_f32 v28, v28")
    bf16r(a, 28, 28)
    a("v_rcp_f32 v28, v28")
    a("""
    v_sub_f32 v29, v25, v27
    v_mul_f32 v29, v29, v28
    """)
    bf16r(a, 29, 29)
    a("""
    v_mul_f32 v31, v26, v28
    v_mul_f32 v31, v31, v28
    """)
    bf16r(a, 31, 31)
    a(f"v_add_f32 v31, {hx(1e-5)}, v31")
    bf16r(a, 31, 31)
    a("v_sqrt_f32 v31, v31")
    bf16r(a, 31, 31)
    a("v_rcp_f32 v31, v31")
    a(f"""
    v_mul_f32 v32, v28, v31
    v_fma_f32 v33, v27, v28, v29
    v_mul_f32 v33, v33, v31
    v_sub_f32 v33, 0, v33
    v_and_b32 v1, 31, v0
    s_lshl_b32 s12, s7, 6
    s_lshl_b32 s13, s6, 5
    s_add_u32 s12, s12, s13
    v_add_u32 v7, s12, v1
    v_lshlrev_b32 v7, 3, v7
    ds_write_b64 v7, v[32:33] offset:{G1_TAB}
    s_lshl_b32 s12, s6, 6
    s_lshl_b32 s13, s7, 5
    s_add_u32 s12, s12, s13
    v_add_u32 v7, s12, v1
    v_lshlrev_b32 v7, 2, v7
    v_lshlrev_b32 v24, 16, v24
    ds_write_b32 v7, v{VSW} offset:{G1_TAB+1024}
    ds_write_b32 v7, v24 offset:{G1_TAB+1536}
    s_lshl_b32 s12, s3, 2
    s_add_u32 s12, s12, {MFLAG}
    v_mov_b32 v7, s12
    s_waitcnt lgkmcnt(0)
    v_mov_b32 v{VT2}, 1
    """)
    signal(a, 7, VT2, 0)
    spin_lds(a, VT, VMF, 0, 1)
    ts(a, 4)
    a.c("G1 epilogue")
    a(f"""
    v_and_b32 v1, 31, v0
    s_lshl_b32 s12, s7, 6
    s_lshl_b32 s13, s6, 5
    s_add_u32 s14, s12, s13
    v_add_u32 v7, s14, v1
    v_lshlrev_b32 v7, 3, v7
    ds_read_b64 v[2:3], v7 offset:{G1_TAB}
    v_xor_b32 v7, 256, v7
    ds_read_b64 v[4:5], v7 offset:{G1_TAB}
    v_lshrrev_b32 v7, 5, v0
    v_lshlrev_b32 v7, 4, v7
    s_lshl_b32 s12, s6, 8
    s_lshl_b32 s13, s7, 7
    s_add_u32 s14, s12, s13
    v_add_u32 v8, s14, v7
    v_xor_b32 v9, 128, v8
    """)
    ST = [32, 48]; BT = [64, 80]
    for fbp in range(2):
        for i in range(4):
            a(f"ds_read_b128 {vr(ST[fbp]+4*i)}, v{8+fbp} offset:{G1_TAB+1024+32*i}")
            a(f"ds_read_b128 {vr(BT[fbp]+4*i)}, v{8+fbp} offset:{G1_TAB+1536+32*i}")
    C1 = 2.0 * math.sqrt(2.0 / math.pi) * LOG2E
    C2 = C1 * 0.044715
    a(f"""
    v_mov_b32 v28, {hx(C1)}
    v_mov_b32 v29, {hx(C1)}
    s_mov_b32 s72, {hx(C2)}
    s_mov_b32 s73, {hx(C2)}
    s_mov_b32 s74, 1.0
    s_mov_b32 s75, 1.0
    v_lshlrev_b32 v10, 4, v0
    s_lshl_b32 s12, s4, 2
    s_lshl_b32 s13, s7, 1
    s_add_u32 s12, s12, s13
    s_mul_i32 s12, s12, 112
    s_lshl_b32 s13, s5, 3
    s_add_u32 s12, s12, s13
    s_lshl_b32 s13, s6, 2
    s_add_u32 s12, s12, s13
    s_lshl_b32 s76, s12, 10
    s_waitcnt lgkmcnt(0)
    """)
    for fbp in range(2):
        for lbp in range(2):
            A = acc(fbp, lbp); ab = 2 + 2 * lbp
            a(f"""
            s_xor_b32 s12, s6, {lbp}
            s_mul_i32 s12, s12, {112*1024}
            s_xor_b32 s13, s7, {fbp}
            s_lshl_b32 s13, s13, 11
            s_add_u32 s77, s76, s12
            s_add_u32 s77, s77, s13
            """)
            P = 96 + 8 * ((2 * fbp + lbp) % 2)
            for p in range(8):
                x = A + 2 * p
                t = 12 + 2 * (p % 4)
                u = 20 + 2 * (p % 4)
                a(f"""
                v_pk_fma_f32 v[{t}:{t+1}], v[{ST[fbp]+2*p}:{ST[fbp]+2*p+1}], v[{ab}:{ab+1}], v[{BT[fbp]+2*p}:{BT[fbp]+2*p+1}] op_sel:[0,1,0] op_sel_hi:[1,1,1]
                v_pk_fma_f32 v[{x}:{x+1}], v[{x}:{x+1}], v[{ab}:{ab+1}], v[{t}:{t+1}] op_sel:[0,0,0] op_sel_hi:[1,0,1]
                v_pk_mul_f32 v[{t}:{t+1}], v[{x}:{x+1}], v[{x}:{x+1}]
                v_pk_fma_f32 v[{t}:{t+1}], v[{t}:{t+1}], s[72:73], v[28:29]
                v_pk_mul_f32 v[{t}:{t+1}], v[{t}:{t+1}], v[{x}:{x+1}] neg_lo:[1,0] neg_hi:[1,0]
                v_exp_f32 v{u}, v{t}
                v_exp_f32 v{u+1}, v{t+1}
                v_pk_add_f32 v[{u}:{u+1}], v[{u}:{u+1}], s[74:75]
                v_rcp_f32 v{u}, v{u}
                v_rcp_f32 v{u+1}, v{u+1}
                v_pk_mul_f32 v[{x}:{x+1}], v[{x}:{x+1}], v[{u}:{u+1}]
                v_cvt_pk_bf16_f32 v{P+p}, v{x}, v{x+1}
                """)
            a(f"buffer_store_dwordx4 {vr(P)}, v10, {srd(SRD_WS)}, s77 offen sc1")
            a(f"buffer_store_dwordx4 {vr(P+4)}, v10, {srd(SRD_WS)}, s77 offen offset:1024 sc1")
    ts(a, 5)
    a(f"""
    s_lshl_b32 s12, s4, 4
    s_add_u32 s12, s12, s5
    s_lshl_b32 s12, s12, 2
    s_add_u32 s12, s12, {FL_G1}
    """)
    publish(a, CNT_G1, 4, 12, 8, 9)
    ts(a, 6)

def g2_main(a):
    a.c("---- G2 path")
    VH0, VH1, VW2 = 2, 3, 4
    VA = [5, 6]
    VX, VB2, VS = 8, 16, 24
    AF = [[32, 36], [40, 44]]
    ACC = 48
    FR = 112
    def acc(db_, lb_): return ACC + 16 * (2 * db_ + lb_)
    def fr(t, lb_): return FR + 8 * (t % 14) + 4 * lb_
    mk_srd(a, SRD_W, S_W2, W_BYTES)
    mk_srd(a, SRD_OUT, S_OUT, X_BYTES)
    a(f"""
    ; lb64 = 4x + y/7, db = y%7
    s_mul_i32 s6, s{S_YY}, 37
    s_lshr_b32 s6, s6, 8
    s_mul_i32 s7, s6, 7
    s_sub_u32 s5, s{S_YY}, s7
    s_lshl_b32 s4, s{S_XX}, 2
    s_add_u32 s4, s4, s6
    s_mul_i32 s6, s4, {2*112}
    s_mul_i32 s7, s3, 28
    s_add_u32 s6, s6, s7
    s_lshl_b32 s6, s6, 10
    v_lshlrev_b32 v{VH0}, 4, v0
    v_add_u32 v{VH1}, {112*1024}, v{VH0}
    v_lshrrev_b32 v1, 3, v0
    v_and_b32 v7, 7, v0
    v_bfe_u32 v234, v0, 4, 1
    v_lshlrev_b32 v234, 2, v234
    v_xor_b32 v7, v7, v234
    v_mul_u32_u24 v{VW2}, 896, v1
    v_lshl_add_u32 v{VW2}, v7, 4, v{VW2}
    s_mul_i32 s7, s3, {448*896}
    s_lshl_b32 s8, s5, 7
    s_add_u32 s7, s7, s8
    s_add_u32 s8, s7, {7168-1024}
    s_mul_i32 s9, s3, {G2_WREG}
    """)
    def dpart(t):
        a(f"s_add_u32 m0, s9, {2048*(t%14)}")
        a(f"buffer_load_dwordx4 v{VW2}, {srd(SRD_W)}, s7 offen lds")
        a(f"buffer_load_dwordx4 v{VW2}, {srd(SRD_W)}, s8 offen offset:1024 lds")
        a(f"s_add_u32 s7, s7, {16*896}")
        a(f"s_add_u32 s8, s8, {16*896}")
    def fpart(t):
        a(f"buffer_load_dwordx4 {vr(fr(t,0))}, v{VH0}, {srd(SRD_WS)}, s6 offen sc1")
        a(f"buffer_load_dwordx4 {vr(fr(t,1))}, v{VH1}, {srd(SRD_WS)}, s6 offen sc1")
        a(f"s_add_u32 s6, s6, 1024")
    a(f"v_mov_b32 v7, {CNT_G1}")
    spin_lds(a, 1, 7, 0, 4)
    a(f"""
    v_and_b32 v1, 15, v0
    v_lshrrev_b32 v7, 4, v0
    s_lshl_b32 s10, s4, 6
    s_lshl_b32 s11, s3, 4
    s_add_u32 s10, s10, s11
    v_add_u32 v234, s10, v1
    v_mul_u32_u24 v234, 896, v234
    v_lshl_add_u32 v234, v7, 4, v234
    s_lshl_b32 s11, s5, 7
    v_add_u32 v230, s11, v234
    buffer_load_dwordx4 {vr(VX)}, v230, {srd(SRD_X)}, 0 offen
    buffer_load_dwordx4 {vr(VX+4)}, v230, {srd(SRD_X)}, 0 offen offset:64
    v_lshlrev_b32 v234, 4, v7
    v_add_u32 v234, s11, v234
    global_load_dwordx4 {vr(VB2)}, v234, {sp(S_B2)}
    global_load_dwordx4 {vr(VB2+4)}, v234, {sp(S_B2)} offset:64
    """)
    for t in range(14):
        dpart(t)
    a(f"""
    v_lshrrev_b32 v234, 3, v0
    v_and_b32 v235, 7, v0
    s_lshl_b32 s10, s5, 6
    s_lshl_b32 s11, s3, 4
    s_add_u32 s10, s10, s11                 ; d0 + 16w
    v_add_u32 v236, s10, v234
    v_lshlrev_b32 v236, 12, v236
    v_lshl_add_u32 v231, v235, 4, v236
    v_mul_u32_u24 v232, {G2_SSTR}, v234
    v_lshl_add_u32 v232, v235, 4, v232
    v_add_u32 v232, s9, v232
    s_lshl_b32 s11, s10, 1
    s_add_u32 s11, s11, {FL_CV}
    v_lshl_add_u32 v237, v0, 2, s11
    v_lshrrev_b32 v1, 4, v0
    v_lshrrev_b32 v7, 1, v1
    v_bfe_u32 v234, v0, 2, 2
    v_lshl_add_u32 v235, v7, 2, v234
    v_lshlrev_b32 v235, 7, v235
    v_and_b32 v236, 1, v0
    v_lshl_add_u32 v235, v236, 3, v235
    v_add_u32 v235, s9, v235
    v_and_b32 v236, 1, v1
    v_lshlrev_b32 v236, 1, v236
    v_bfe_u32 v233, v0, 1, 1
    v_add_u32 v236, v236, v233
    v_bfe_u32 v233, v0, 3, 1
    v_lshlrev_b32 v233, 2, v233
    v_xor_b32 v236, v236, v233
    v_lshl_add_u32 v{VA[0]}, v236, 4, v235
    v_xor_b32 v236, 4, v236
    v_lshl_add_u32 v{VA[1]}, v236, 4, v235
    """)
    for i in range(64):
        a(f"v_mov_b32 v{ACC+i}, 0")
    a(f"""
    s_lshr_b32 s10, s4, 1
    s_lshl_b32 s10, s10, 4
    s_mul_i32 s11, s3, 7
    s_lshr_b32 s11, s11, 1
    s_add_u32 s10, s10, s11
    s_lshl_b32 s10, s10, 2
    s_add_u32 s10, s10, {FL_G1}
    v_lshl_add_u32 v234, v0, 2, s10
    """)
    ts(a, 7)
    poll_flags(a, 234, 4, 235)
    ts(a, 8)
    for t in range(14):
        fpart(t)
    def trr(t):
        p = t % 2
        for db_ in range(2):
            b = AF[p][db_]
            a(f"ds_read_b64_tr_b16 v[{b}:{b+1}], v{VA[db_]} offset:{2048*(t%14)}")
            a(f"ds_read_b64_tr_b16 v[{b+2}:{b+3}], v{VA[db_]} offset:{2048*(t%14)+1024}")
    trr(0)
    a(f"""
    s_mov_b32 s12, 2
    G2_LOOP:
    s_cmp_eq_u32 s12, 1
    s_cbranch_scc0 G2_NOSW
    s_mov_b32 s{SRD_WS+2}, 0
    s_mov_b32 s{SRD_W+2}, 0
    G2_NOSW:
    """)
    for t in range(14):
        n = min(26 + 2 * t, 48)
        a(f"s_waitcnt vmcnt({n})")
        trr(t + 1)
        a("s_waitcnt lgkmcnt(4)")
        p = t % 2
        for db_ in range(2):
            for lb_ in range(2):
                a(f"v_mfma_f32_32x32x16_bf16 {vr(acc(db_,lb_),16)}, {vr(AF[p][db_])}, {vr(fr(t,lb_))}, {vr(acc(db_,lb_),16)}")
        fpart(t); dpart(t)
    a(f"""
    s_sub_u32 s12, s12, 1
    s_cmp_lg_u32 s12, 0
    s_cbranch_scc1 G2_LOOP
    s_mov_b32 s{SRD_WS+2}, {hex(WS_SRD_SIZE)}
    s_waitcnt vmcnt(0) lgkmcnt(0)
    """)
    ts(a, 9)
    a(f"""
    v_and_b32 v1, 31, v0
    v_mul_u32_u24 v1, {G2_PSTR}, v1
    v_lshrrev_b32 v7, 5, v0
    v_lshl_add_u32 v1, v7, 4, v1
    v_add_u32 v1, s9, v1
    """)
    for db_ in range(2):
        for lb_ in range(2):
            for q in range(4):
                a(f"ds_write_b128 v1, {vr(acc(db_,lb_)+4*q)} offset:{lb_*32*G2_PSTR + db_*128 + q*32}")
    poll_flags(a, 237, 8, 235)
    a(f"""
    s_lshl_b32 s10, s4, 7
    s_add_u32 s10, s10, {ST_OFF}
    buffer_load_dwordx4 {vr(VS)}, v231, {srd(SRD_WS)}, s10 offen sc1
    s_add_u32 s11, s10, {8*4096}
    buffer_load_dwordx4 {vr(VS+4)}, v231, {srd(SRD_WS)}, s11 offen sc1
    s_waitcnt vmcnt(0)
    ds_write_b128 v232, {vr(VS)} offset:{G2_STILE}
    ds_write_b128 v232, {vr(VS+4)} offset:{G2_STILE + 8*G2_SSTR}
    v_mov_b32 v7, {CNT_G2}
    v_mov_b32 v1, 1
    s_waitcnt lgkmcnt(0)
    s_mov_b64 exec, 1
    ds_add_u32 v7, v1
    s_mov_b64 exec, -1
    """)
    spin_lds(a, 1, 7, 0, 4)
    a(f"""
    v_and_b32 v1, 15, v0
    v_lshrrev_b32 v7, 4, v0
    s_lshl_b32 s11, s3, 4
    v_add_u32 v2, s11, v1
    v_mul_u32_u24 v2, {G2_PSTR}, v2
    v_lshl_add_u32 v2, v7, 5, v2
    v_lshrrev_b32 v3, 1, v7
    v_mul_u32_u24 v3, {G2_WREG}, v3
    v_and_b32 v4, 1, v7
    v_lshlrev_b32 v4, 3, v4
    v_bfe_u32 v5, v0, 2, 2
    v_add_u32 v4, v4, v5
    v_mul_u32_u24 v4, {G2_SSTR}, v4
    v_add_u32 v3, v3, v4
    v_and_b32 v4, 3, v0
    v_lshl_add_u32 v3, v4, 3, v3
    s_lshl_b32 s11, s3, 5
    v_add_u32 v3, s11, v3
    v_add_u32 v3, {G2_STILE}, v3
    v_add_u32 v4, {2*G2_WREG}, v3
    v_add_u32 v5, {2*G2_WREG}, v2
    """)
    for k in range(2):
        for w in range(4):
            base = 2 if w < 2 else 5
            for hq in range(2):
                a(f"ds_read_b128 {vr(48+32*k+8*w+4*hq)}, v{base} offset:{(w%2)*G2_WREG + k*128 + hq*16}")
        sv = 3 if k == 0 else 4
        a(f"ds_read_b64_tr_b16 v[{112+4*k}:{113+4*k}], v{sv}")
        a(f"ds_read_b64_tr_b16 v[{114+4*k}:{115+4*k}], v{sv} offset:{4*G2_SSTR}")
    a(f"""
    s_mov_b32 s70, {hx(-LOG2E)}
    s_mov_b32 s72, 1.0
    s_mov_b32 s73, 1.0
    """)
    for k in range(2):
        B = 48 + 32 * k
        a(f"s_waitcnt lgkmcnt({10 if k == 0 else 0})")
        for p in range(4):
            x = B + 2 * p
            a(f"""
            v_pk_add_f32 v[{x}:{x+1}], v[{x}:{x+1}], v[{x+8}:{x+9}]
            v_pk_add_f32 v[{x+16}:{x+17}], v[{x+16}:{x+17}], v[{x+24}:{x+25}]
            v_pk_add_f32 v[{x}:{x+1}], v[{x}:{x+1}], v[{x+16}:{x+17}]
            v_cvt_pk_bf16_f32 v120, v{x}, v{x+1}
            v_lshlrev_b32 v122, 16, v120
            v_and_b32 v123, 0xffff0000, v120
            v_lshlrev_b32 v124, 16, v{VB2+4*k+p}
            v_and_b32 v125, 0xffff0000, v{VB2+4*k+p}
            v_pk_add_f32 v[122:123], v[122:123], v[124:125]
            v_cvt_pk_bf16_f32 v120, v122, v123
            v_lshlrev_b32 v122, 16, v120
            v_and_b32 v123, 0xffff0000, v120
            v_mul_f32 v124, s70, v122
            v_mul_f32 v125, s70, v123
            v_exp_f32 v124, v124
            v_exp_f32 v125, v125
            v_pk_add_f32 v[124:125], v[124:125], s[72:73]
            v_rcp_f32 v124, v124
            v_rcp_f32 v125, v125
            v_pk_mul_f32 v[122:123], v[122:123], v[124:125]
            v_cvt_pk_bf16_f32 v120, v122, v123
            v_lshlrev_b32 v122, 16, v120
            v_and_b32 v123, 0xffff0000, v120
            v_lshlrev_b32 v124, 16, v{112+4*k+p}
            v_and_b32 v125, 0xffff0000, v{112+4*k+p}
            v_pk_mul_f32 v[122:123], v[122:123], v[124:125]
            v_cvt_pk_bf16_f32 v120, v122, v123
            v_lshlrev_b32 v122, 16, v120
            v_and_b32 v123, 0xffff0000, v120
            v_lshlrev_b32 v124, 16, v{VX+4*k+p}
            v_and_b32 v125, 0xffff0000, v{VX+4*k+p}
            v_pk_add_f32 v[122:123], v[122:123], v[124:125]
            v_cvt_pk_bf16_f32 v{128+4*k+p}, v122, v123
            """)
        a(f"buffer_store_dwordx4 {vr(128+4*k)}, v230, {srd(SRD_OUT)}, 0 offen offset:{64*k}")
    a(f"""
    s_or_b32 s10, s2, s3
    s_cmp_lg_u32 s10, 0
    s_cbranch_scc1 G2_NOEP
    s_add_u32 s10, s{S_EPOCH}, 1
    v_mov_b32 v1, {FL_EPOCH}
    v_mov_b32 v2, s10
    s_mov_b64 exec, 1
    global_store_dword v1, v2, {sp(S_WS)}
    s_mov_b64 exec, -1
    G2_NOEP:
    """)

def cmul_n(a, jobs, t0=8):
    for k, (r, x, y) in enumerate(jobs):
        t = t0 + 2 * k
        a(f"v_pk_mul_f32 v[{t}:{t+1}], v[{x}:{x+1}], v[{y}:{y+1}] op_sel:[0,0] op_sel_hi:[1,0]")
    for k, (r, x, y) in enumerate(jobs):
        t = t0 + 2 * k
        a(f"v_pk_fma_f32 v[{r}:{r+1}], v[{x}:{x+1}], v[{y}:{y+1}], v[{t}:{t+1}] op_sel:[1,1,0] op_sel_hi:[0,1,1] neg_lo:[1,0,0]")

def pair_sync(a, val, VMY, VOT, VT):
    lab = a.newlabel("PS")
    a(f"""
    v_mov_b32 v{VT}, {val}
    s_waitcnt lgkmcnt(0)
    ds_write_b32 v{VMY}, v{VT}
    {lab}:
    s_sub_u32 s{S_BUD}, s{S_BUD}, 1
    s_cbranch_scc1 L_BAIL
    ds_read_b32 v{VT}, v{VOT}
    s_waitcnt lgkmcnt(0)
    v_cmp_gt_u32 vcc, {val}, v{VT}
    s_cbranch_vccnz {lab}
    """)

KC_GA = 204
KC_SC = 228
KC_RAW = 233
def kc_pre(a):
    a.c("---- KC pre")
    GA = KC_GA
    a(f"""
    s_sub_u32 s5, s3, 4
    s_mul_i32 s4, s{S_XX}, 28
    s_add_u32 s4, s4, s{S_YY}               ; cp
    s_lshr_b32 s6, s5, 1                    ; ch
    s_and_b32 s7, s5, 1                     ; hh
    s_lshl_b32 s8, s4, 1
    s_add_u32 s8, s8, s6                    ; d
    s_mul_i32 s9, s6, {CH_SZ}
    s_add_u32 s9, s9, {AUX_BASE}
    s_lshl_b32 s10, s8, 9
    s_lshl_b32 s11, s7, 8
    s_add_u32 s10, s10, s11
    v_lshl_add_u32 v1, v0, 2, s10
    global_load_dword v{KC_RAW}, v1, {sp(S_LOGA)}
    global_load_dword v{KC_RAW+1}, v1, {sp(S_AIM)}
    global_load_dword v{KC_RAW+2}, v1, {sp(S_CRE)}
    global_load_dword v{KC_RAW+3}, v1, {sp(S_CIM)}
    s_lshl_b32 s10, s4, 2
    s_load_dword s12, {sp(S_LOGDT)}, s10
    s_load_dword s13, {sp(S_DSKIP)}, s10
    v_mov_b32 v12, 0
    v_mov_b32 v13, 0
    v_mov_b32 v14, 0
    v_mov_b32 v15, 0
    v_lshl_add_u32 v1, v0, 4, s9
    s_cmp_lg_u32 s7, 0
    s_cbranch_scc1 KC_Z1
    s_mov_b64 exec, 0x3fffffff
    ds_write_b128 v1, v[12:15] offset:{U_PAD}
    s_mov_b64 exec, 1
    ds_write_b128 v1, v[12:15] offset:{T0_OFF-16}
    ds_write_b64 v1, v[12:13] offset:{AF_OFF}
    s_mov_b64 exec, -1
    KC_Z1:
    """)
    a(f"""
    s_lshl_b32 s10, s7, 10
    s_sub_u32 s10, s10, 4
    v_lshl_add_u32 v16, v0, 3, s10
    s_add_u32 s11, s9, {T1_OFF}
    s_sub_u32 s14, s11, {4*0x4280}
    s_add_u32 s15, s11, 512
    v_cvt_f32_i32 v17, v16
    v_lshl_add_u32 v18, v16, 2, s11
    """)
    for r in range(2):
        for j in range(0, 12, 2):
            o = 512 * r + j
            g0 = GA + 12 * r + j
            a(f"""
            v_add_f32 v20, {hx(float(o))}, v17
            v_add_f32 v21, {hx(float(o+1))}, v17
            v_cvt_pk_bf16_f32 v20, v20, v21
            v_bfe_i32 v21, v20, 0, 16
            v_ashrrev_i32 v20, 16, v20
            v_lshl_add_u32 v21, v21, 2, s14
            v_lshl_add_u32 v20, v20, 2, s14
            v_add_u32 v22, {4*o}, v18
            v_add_u32 v23, {4*(o+1)}, v18
            v_med3_i32 v{g0}, v22, s15, v21
            v_med3_i32 v{g0+1}, v23, s15, v20
            """)
    SC = KC_SC
    a(f"""
    s_xor_b32 s10, s7, 1
    s_lshl_b32 s10, s10, 12
    s_add_u32 s11, s11, s10
    v_lshrrev_b32 v4, 4, v0
    v_and_b32 v1, 15, v0
    v_lshlrev_b32 v20, 6, v4
    v_add_u32 v21, v20, v1
    v_lshl_add_u32 v{SC}, v21, 2, s11
    v_add_u32 v{SC}, 4, v{SC}
    v_lshrrev_b32 v21, 1, v4
    v_add_u32 v21, 1, v21
    v_lshrrev_b32 v21, v21, v1
    v_add_u32 v21, v21, v20
    v_lshl_add_u32 v{SC+1}, v21, 2, s11
    v_add_u32 v{SC+1}, {4*257}, v{SC+1}
    v_lshrrev_b32 v21, 1, v1
    v_add_u32 v22, 4, v21
    v_max_u32 v22, v22, v1
    v_add_u32 v23, 8, v1
    v_cmp_gt_u32 vcc, 2, v4
    v_cndmask_b32 v22, v22, v23, vcc
    v_add_u32 v22, v22, v20
    v_lshl_add_u32 v{SC+2}, v22, 2, s11
    v_add_u32 v{SC+2}, {4*257}, v{SC+2}
    v_lshlrev_b32 v20, 5, v4
    v_lshrrev_b32 v22, 3, v1
    v_add_u32 v22, v22, v20
    v_lshl_add_u32 v{SC+3}, v22, 2, s11
    v_add_u32 v{SC+3}, {4*513}, v{SC+3}
    v_lshrrev_b32 v22, 2, v1
    v_add_u32 v22, 2, v22
    v_max_u32 v22, v22, v21
    v_add_u32 v22, v22, v20
    v_lshl_add_u32 v{SC+4}, v22, 2, s11
    v_add_u32 v{SC+4}, {4*513}, v{SC+4}
    s_waitcnt lgkmcnt(0)
    s_mov_b64 s[64:65], s[4:5]
    s_mov_b64 s[66:67], s[12:13]
    s_mov_b32 s68, s11
    s_waitcnt vmcnt(4)
    """)

def kc_main(a):
    a.c("---- KC main")
    ZP = {k: 32 + 4 * i for i, k in enumerate((1, 2, 4, 8, 16, 32, 64))}
    C2 = 60
    SA = {n: 64 + 4 * i for i, n in enumerate(("0a", "0b", "1a", "1b", "2a", "2b"))}
    ZB = 88
    SB = {n: 92 + 4 * i for i, n in enumerate(("0a", "0b", "1a", "1b"))}
    RB0, RB1, RA, DD = 108, 140, 172, 24
    DD = 238
    GA, SC, RAW = KC_GA, KC_SC, KC_RAW
    VMY, VOT, VT = 6, 7, 5
    VTW, VTR = 2, 3
    DT = [20, 24, 28, 240, 244]
    a(f"""
    s_mov_b64 s[4:5], s[64:65]
    s_mov_b64 s[12:13], s[66:67]
    s_waitcnt vmcnt(0)
    """)
    ln_store(a)
    a("s_mov_b32 s11, s68")
    a(f"""
    s_cmp_lt_u32 s{S_YY}, 28
    s_cbranch_scc1 KC_GO
    """)
    ln_publish(a)
    a("s_branch L_END")
    a(f"""
    KC_GO:
    s_lshr_b32 s6, s5, 1
    s_and_b32 s7, s5, 1
    s_lshl_b32 s8, s4, 1
    s_add_u32 s8, s8, s6
    s_mul_i32 s9, s6, {CH_SZ}
    s_add_u32 s9, s9, {AUX_BASE}
    s_lshl_b32 s10, s7, 2
    s_add_u32 s10, s10, s9
    s_add_u32 s10, s10, {AF_OFF}
    v_mov_b32 v{VMY}, s10
    s_xor_b32 s10, s10, 4
    v_mov_b32 v{VOT}, s10
    s_mul_i32 s10, s7, {TILE_SZ}
    s_add_u32 s10, s10, s9
    v_lshl_add_u32 v{VTW}, v0, 3, s10
    v_and_b32 v1, 15, v0
    v_mul_u32_u24 v{VTR}, {TROW}, v1
    v_lshrrev_b32 v4, 4, v0
    v_lshl_add_u32 v{VTR}, v4, 4, v{VTR}
    v_add_u32 v{VTR}, s10, v{VTR}
    s_lshl_b32 s10, s6, 4
    s_lshr_b32 s12, s12, s10
    s_lshl_b32 s12, s12, 16
    s_lshr_b32 s13, s13, s10
    s_lshl_b32 s13, s13, 16
    v_mov_b32 v1, {hx(LOG2E)}
    v_mul_f32 v4, s12, v1
    v_exp_f32 v4, v4
    """)
    bf16r(a, 4, 4)
    a(f"""
    v_lshlrev_b32 v12, 16, v{RAW}
    v_and_b32 v13, 0xffff0000, v{RAW}
    v_mul_f32 v12, v12, v1
    v_mul_f32 v13, v13, v1
    v_exp_f32 v12, v12
    v_exp_f32 v13, v13
    v_cvt_pk_bf16_f32 v12, v12, v13
    v_lshlrev_b32 v14, 16, v12
    v_and_b32 v15, 0xffff0000, v12
    v_mul_f32 v14, v14, v4
    v_mul_f32 v15, v15, v4
    v_mul_f32 v14, v14, v1
    v_mul_f32 v15, v15, v1
    v_exp_f32 v14, -v14
    v_exp_f32 v15, -v15
    v_lshlrev_b32 v16, 16, v{RAW+1}
    v_and_b32 v17, 0xffff0000, v{RAW+1}
    v_mul_f32 v16, v16, v4
    v_mul_f32 v17, v17, v4
    v_mul_f32 v16, 0.15915494, v16
    v_mul_f32 v17, 0.15915494, v17
    v_rndne_f32 v18, v16
    v_rndne_f32 v19, v17
    v_sub_f32 v16, v16, v18
    v_sub_f32 v17, v17, v19
    v_cos_f32 v18, v16
    v_sin_f32 v19, v16
    v_cos_f32 v20, v17
    v_sin_f32 v21, v17
    v_mul_f32 v{ZP[1]}, v14, v18
    v_mul_f32 v{ZP[1]+1}, v14, v19
    v_mul_f32 v{ZP[1]+2}, v15, v20
    v_mul_f32 v{ZP[1]+3}, v15, v21
    v_add_f32 v4, v4, v4
    v_lshlrev_b32 v16, 16, v{RAW+2}
    v_and_b32 v17, 0xffff0000, v{RAW+2}
    v_lshlrev_b32 v18, 16, v{RAW+3}
    v_and_b32 v19, 0xffff0000, v{RAW+3}
    v_mul_f32 v{C2}, v16, v4
    v_mul_f32 v{C2+1}, v18, v4
    v_mul_f32 v{C2+2}, v17, v4
    v_mul_f32 v{C2+3}, v19, v4
    """)
    def both(r, x, y): return [(r + 2 * c, x + 2 * c, y + 2 * c) for c in range(2)]
    cmul_n(a, both(ZP[2], ZP[1], ZP[1]) + both(SA["0a"], C2, ZP[1]))
    cmul_n(a, both(ZP[4], ZP[2], ZP[2]) + both(SA["1a"], C2, ZP[2]))
    cmul_n(a, both(ZP[8], ZP[4], ZP[4]) + both(SA["1b"], C2, ZP[4]))
    cmul_n(a, both(ZP[16], ZP[8], ZP[8]) + both(SA["2a"], C2, ZP[8]))
    cmul_n(a, both(ZP[32], ZP[16], ZP[16]))
    cmul_n(a, both(ZP[64], ZP[32], ZP[32]))
    cmul_n(a, both(ZB, ZP[64], ZP[64]))
    cmul_n(a, both(SA["0b"], SA["0a"], ZB) + both(ZB, ZB, ZB))
    cmul_n(a, both(SA["1a"], SA["1a"], ZB) + both(ZB, ZB, ZB))
    cmul_n(a, both(SA["1b"], SA["1b"], ZB) + both(SB["0a"], ZB, ZB))
    cmul_n(a, both(SA["2a"], SA["2a"], SB["0a"]))
    cmul_n(a, both(SA["2b"], SA["2a"], ZB))
    K0 = 248
    a(f"""
    v_add_f32 v{K0}, v{C2}, v{C2+2}
    v_mov_b32 v{SB['0a']}, 1.0
    v_mov_b32 v{SB['0a']+1}, 0
    v_mov_b32 v{SB['0a']+2}, 1.0
    v_mov_b32 v{SB['0a']+3}, 0
    v_add_f32_dpp v{K0}, v{K0}, v{K0} row_shr:1 row_mask:0xf bank_mask:0xf bound_ctrl:0
    v_mov_b64 v[{SB['0b']}:{SB['0b']+1}], v[{ZP[8]}:{ZP[8]+1}]
    v_mov_b64 v[{SB['0b']+2}:{SB['0b']+3}], v[{ZP[8]+2}:{ZP[8]+3}]
    v_add_f32_dpp v{K0}, v{K0}, v{K0} row_shr:2 row_mask:0xf bank_mask:0xf bound_ctrl:0
    v_mov_b64 v[{SB['1a']}:{SB['1a']+1}], v[{ZP[16]}:{ZP[16]+1}]
    v_mov_b64 v[{SB['1a']+2}:{SB['1a']+3}], v[{ZP[16]+2}:{ZP[16]+3}]
    v_add_f32_dpp v{K0}, v{K0}, v{K0} row_shr:4 row_mask:0xf bank_mask:0xf bound_ctrl:0
    v_mov_b64 v[{SB['1b']}:{SB['1b']+1}], v[{ZP[32]}:{ZP[32]+1}]
    v_mov_b64 v[{SB['1b']+2}:{SB['1b']+3}], v[{ZP[32]+2}:{ZP[32]+3}]
    v_add_f32_dpp v{K0}, v{K0}, v{K0} row_shr:8 row_mask:0xf bank_mask:0xf bound_ctrl:0
    s_nop 1
    v_add_f32_dpp v{K0}, v{K0}, v{K0} row_bcast:15 row_mask:0xa bank_mask:0xf
    s_nop 1
    v_add_f32_dpp v{K0}, v{K0}, v{K0} row_bcast:31 row_mask:0xc bank_mask:0xf
    """)
    for t in range(5):
        for i in range(4):
            a(f"v_mov_b32 v{DT[t]+i}, 0")
    ts(a, 2)
    def gen_tile(s0, st0, s1, st1, conj, dest):
        lab = a.newlabel("GEN")
        neg = "-" if conj else ""
        a(f"""
        v_mov_b32 v1, v{VTW}
        s_mov_b32 s10, 8
        {lab}:
        v_cvt_pk_bf16_f32 v16, v{s0}, {neg}v{s0+1}
        v_cvt_pk_bf16_f32 v17, v{s0+2}, {neg}v{s0+3}
        v_cvt_pk_bf16_f32 v18, v{s1}, {neg}v{s1+1}
        v_cvt_pk_bf16_f32 v19, v{s1+2}, {neg}v{s1+3}
        ds_write_b64 v1, v[16:17]
        ds_write_b64 v1, v[18:19] offset:{8*TROW}
        """)
        cmul_n(a, both(s0, s0, st0) + both(s1, s1, st1))
        a(f"""
        v_add_u32 v1, {TROW}, v1
        s_sub_u32 s10, s10, 1
        s_cmp_lg_u32 s10, 0
        s_cbranch_scc1 {lab}
        """)
        for kk in range(8):
            a(f"ds_read_b128 {vr(dest+4*kk)}, v{VTR} offset:{64*kk}")
    gen_tile(SB["0a"], ZP[1], SB["0b"], ZP[1], True, RB0)
    gen_tile(SB["1a"], ZP[2], SB["1b"], ZP[4], True, RB1)
    ln_publish(a)
    def mm(dt, B):
        for kk in range(8):
            a(f"v_mfma_f32_16x16x32_bf16 {vr(DT[dt])}, {vr(RA+4*kk)}, {vr(B+4*kk)}, {vr(DT[dt])}")
    def mm2(d0, B0_, d1, B1_):
        for kk in range(8):
            a(f"v_mfma_f32_16x16x32_bf16 {vr(DT[d0])}, {vr(RA+4*kk)}, {vr(B0_+4*kk)}, {vr(DT[d0])}")
            a(f"v_mfma_f32_16x16x32_bf16 {vr(DT[d1])}, {vr(RA+4*kk)}, {vr(B1_+4*kk)}, {vr(DT[d1])}")
    gen_tile(SA["0a"], ZP[16], SA["0b"], ZP[16], False, RA)
    a("s_waitcnt lgkmcnt(0)")
    mm(0, RB0)
    gen_tile(SA["1a"], ZP[32], SA["1b"], ZP[64], False, RA)
    a("s_waitcnt lgkmcnt(0)")
    mm2(1, RB0, 2, RB1)
    gen_tile(SA["2a"], ZP[64], SA["2b"], ZP[64], False, RA)
    a("s_waitcnt lgkmcnt(0)")
    mm2(3, RB0, 4, RB1)
    ts(a, 3)
    def lanes(fn):
        m = 0
        for ln in range(64):
            if fn(ln & 15, ln >> 4): m |= 1 << ln
        return m
    masks = [lanes(lambda c, g: True),
             lanes(lambda c, g: (c % 2 == 0) if g < 2 else (c % 4 == 0)),
             lanes(lambda c, g: (c < 8) if g < 2 else (c >= 8 or c % 2 == 0)),
             lanes(lambda c, g: c in (0, 8)),
             lanes(lambda c, g: c in (0, 4, 8, 10, 12, 14))]
    a(f"v_mov_b32 v8, {CNT_LN}")
    spin_lds(a, 9, 8, 0, 4)
    for t in range(5):
        m = masks[t]
        a(f"s_mov_b32 exec_lo, {hex(m & 0xffffffff)}")
        a(f"s_mov_b32 exec_hi, {hex(m >> 32)}")
        for j in range(4):
            a(f"ds_write_b32 v{SC+t}, v{DT[t]+j} offset:{(64 if t < 3 else 32)*j}")
    a(f"""
    s_mov_b32 exec_lo, 0
    s_mov_b32 exec_hi, 0x80000000
    v_mov_b32 v1, s11
    ds_write_b32 v1, v{K0}
    v_mov_b32 v12, 0
    v_mov_b32 v13, 0
    v_mov_b32 v14, 0
    v_mov_b32 v15, 0
    v_subrev_u32 v1, 16, v1
    ds_write_b128 v1, v[12:15]
    s_mov_b64 exec, -1
    """)
    pair_sync(a, 1, VMY, VOT, VT)
    ts(a, 4)
    for r in range(2):
        G = 32 + 24 * r
        for j in range(12):
            a(f"ds_read2st64_b32 v[{G+2*j}:{G+2*j+1}], v{GA+12*r+j} offset0:0 offset1:16")
    a(f"""
    v_lshlrev_b32 v1, 4, v0
    v_add_u32 v1, {FL_LN}, v1
    """)
    poll_flags(a, 1, 64, 8, wide=True)
    a(f"""
    s_lshl_b32 s10, s7, 7
    v_add_u32 v1, s10, v0
    v_mul_u32_u24 v1, 7168, v1
    s_lshl_b32 s10, s8, 4
    s_add_u32 s10, s10, {XB_OFF}
    buffer_load_dwordx4 v[112:115], v1, {srd(SRD_WS)}, s10 offen sc1
    s_add_u32 s10, s10, {64*7168}
    buffer_load_dwordx4 v[116:119], v1, {srd(SRD_WS)}, s10 offen sc1
    s_lshl_b32 s10, s7, 11
    s_add_u32 s10, s10, s9
    s_add_u32 s10, s10, 32
    v_lshl_add_u32 v2, v0, 4, s10
    v_add_u32 v3, {2*CSTR}, v2
    s_waitcnt lgkmcnt(0)
    """)
    ts(a, 5)
    for r in range(2):
        G = 32 + 24 * r
        P = 80 + 16 * r
        p = lambda k: {0: P+8, 1: P+4, 2: P+0, 3: P+1, 4: P+2, 5: P+3}[k]
        for j in range(12):
            a(f"v_add_f32 v{G+2*j}, v{G+2*j}, v{G+2*j+1}")
        for k in range(6):
            a(f"v_cvt_pk_bf16_f32 v{p(k)}, v{G+4*k}, v{G+4*k+2}")
        a(f"""
        v_mov_b32 v{P+5}, v{p(2)}
        v_mov_b32 v{P+6}, v{p(3)}
        v_mov_b32 v{P+7}, v{p(4)}
        v_alignbit_b32 v120, v{p(2)}, v{p(1)}, 16
        v_alignbit_b32 v121, v{p(3)}, v{p(2)}, 16
        v_alignbit_b32 v122, v{p(4)}, v{p(3)}, 16
        v_alignbit_b32 v123, v{p(5)}, v{p(4)}, 16
        v_alignbit_b32 v124, v{p(1)}, v{p(0)}, 16
        v_mov_b32 v125, v120
        v_mov_b32 v126, v121
        v_mov_b32 v127, v122
        ds_write_b128 v2, v[{P}:{P+3}] offset:{1024*r}
        ds_write_b128 v2, v[120:123] offset:{1024*r + CSTR}
        ds_write_b128 v3, v[{P+4}:{P+7}] offset:{1024*r}
        ds_write_b128 v3, v[124:127] offset:{1024*r + CSTR}
        """)
    a(f"""
    s_cmp_lg_u32 s7, 0
    s_cbranch_scc1 KC_Z2
    v_lshrrev_b32 v1, 1, v0
    v_mul_u32_u24 v1, {CSTR}, v1
    v_and_b32 v4, 1, v0
    v_lshl_add_u32 v1, v4, 4, v1
    v_add_u32 v1, s9, v1
    v_mov_b32 v12, 0
    v_mov_b32 v13, 0
    v_mov_b32 v14, 0
    v_mov_b32 v15, 0
    s_mov_b64 exec, 0xff
    ds_write_b128 v1, v[12:15]
    s_mov_b64 exec, -1
    KC_Z2:
    """)
    VA, VB = 2, 3
    BR, AR, ACC = 32, 64, 80
    pair_sync(a, 2, VMY, VOT, VT)
    a(f"""
    s_lshl_b32 s10, s7, 11
    s_add_u32 s10, s10, s9
    v_lshl_add_u32 v1, v0, 4, s10
    s_waitcnt vmcnt(0)
    ds_write_b128 v1, v[112:115] offset:{U_OFF}
    ds_write_b128 v1, v[116:119] offset:{U_OFF+1024}
    v_lshrrev_b32 v4, 4, v0
    v_bfe_u32 v8, v0, 2, 2
    v_mul_u32_u24 v8, {CSTR}, v8
    v_and_b32 v9, 3, v0
    v_lshl_add_u32 v8, v9, 3, v8
    v_lshrrev_b32 v9, 1, v4
    v_and_b32 v10, 1, v4
    v_lshlrev_b32 v11, 5, v9
    v_lshlrev_b32 v12, 4, v10
    v_add_u32 v8, v8, v11
    v_sub_u32 v8, v8, v12
    s_lshl_b32 s10, s7, 8
    s_add_u32 s14, s10, s9
    s_add_u32 s14, s14, {32 - 8}
    v_add_u32 v{VA}, s14, v8
    v_and_b32 v8, 15, v0
    v_lshlrev_b32 v8, 5, v8
    v_sub_u32 v8, v8, v11
    v_add_u32 v8, v8, v12
    s_sub_u32 s14, s9, s10
    s_add_u32 s14, s14, {U_OFF}
    v_add_u32 v{VB}, s14, v8
    """)
    for i in range(32):
        a(f"v_mov_b32 v{ACC+i}, 0")
    pair_sync(a, 3, VMY, VOT, VT)
    ts(a, 6)
    def ldA(P):
        buf = AR + 4 * (P % 4)
        off = 512 * (P % 8) + (64 if P >= 8 else 0)
        a(f"ds_read_b64_tr_b16 v[{buf}:{buf+1}], v{VA} offset:{off+8}")
        a(f"ds_read_b64_tr_b16 v[{buf+2}:{buf+3}], v{VA} offset:{off}")
    for s in range(7, -1, -1):
        a(f"ds_read_b128 {vr(BR+4*s)}, v{VB} offset:{512*s}")
    for P in range(3):
        ldA(P)
    a(f"""
    v_subrev_u32 v{VB}, 64, v{VB}
    s_mov_b32 s10, 4
    s_waitcnt lgkmcnt(0)
    CONV_LOOP:
    """)
    for P in range(8):
        a("s_waitcnt lgkmcnt(7)")
        ldA(P + 3)
        first = True
        for s in range(7 - P, -1, -1):
            if P == 0 and s <= 2:
                a(f"s_waitcnt lgkmcnt({3*(s+1)})")
            a(f"v_mfma_f32_16x16x32_bf16 {vr(ACC+4*(P+s))}, {vr(AR+4*(P%4))}, {vr(BR+4*s)}, {vr(ACC+4*(P+s))}")
            if first:
                a(f"ds_read_b128 {vr(BR+4*s)}, v{VB} offset:{512*s}")
                first = False
    a(f"""
    v_add_u32 v{VA}, 64, v{VA}
    v_subrev_u32 v{VB}, 64, v{VB}
    s_sub_u32 s10, s10, 1
    s_cmp_lg_u32 s10, 0
    s_cbranch_scc1 CONV_LOOP
    """)
    ts(a, 7)
    pair_sync(a, 4, VMY, VOT, VT)
    a(f"""
    s_lshl_b32 s10, s7, 12
    s_add_u32 s10, s10, s9
    v_lshl_add_u32 v2, v0, 4, s10
    v_xor_b32 v3, 4096, v2
    s_cmp_lg_u32 s7, 0
    s_cbranch_scc1 KC_X1
    """)
    assert AUX_BASE % 8192 == 0 and CH_SZ % 8192 == 0
    for t in range(4):
        a(f"ds_write_b128 v2, {vr(ACC+16+4*t)} offset:{1024*t}")
    a("s_branch KC_X2")
    a.label("KC_X1")
    for t in range(4):
        a(f"ds_write_b128 v2, {vr(ACC+4*t)} offset:{1024*t}")
    for i in range(16):
        a(f"v_mov_b32 v{ACC+i}, v{ACC+16+i}")
    a.label("KC_X2")
    pair_sync(a, 5, VMY, VOT, VT)
    a(f"""
    v_and_b32 v8, 15, v0
    v_lshlrev_b32 v8, 5, v8
    v_lshrrev_b32 v4, 4, v0
    v_lshl_add_u32 v8, v4, 3, v8
    s_lshl_b32 s10, s7, 11
    v_add_u32 v8, s10, v8
    s_add_u32 s14, s9, {U_OFF}
    v_add_u32 v9, s14, v8
    """)
    for t in range(4):
        a(f"ds_read_b128 {vr(32+4*t)}, v3 offset:{1024*t}")
        a(f"ds_read_b64 v[{48+2*t}:{49+2*t}], v9 offset:{512*t}")
    a(f"""
    s_lshl_b32 s10, s8, 12
    s_add_u32 s10, s10, {ST_OFF}
    """)
    for t in range(4):
        A = ACC + 4 * t; X = 48 + 2 * t; Pp = 32 + 4 * t
        a(f"""
        s_waitcnt lgkmcnt({2*(3-t)})
        v_pk_add_f32 v[{A}:{A+1}], v[{A}:{A+1}], v[{Pp}:{Pp+1}]
        v_pk_add_f32 v[{A+2}:{A+3}], v[{A+2}:{A+3}], v[{Pp+2}:{Pp+3}]
        v_lshlrev_b32 v12, 16, v{X}
        v_and_b32 v13, 0xffff0000, v{X}
        v_lshlrev_b32 v14, 16, v{X+1}
        v_and_b32 v15, 0xffff0000, v{X+1}
        v_mul_f32 v12, s13, v12
        v_mul_f32 v13, s13, v13
        v_mul_f32 v14, s13, v14
        v_mul_f32 v15, s13, v15
        v_cvt_pk_bf16_f32 v16, v12, v13
        v_cvt_pk_bf16_f32 v17, v14, v15
        v_cvt_pk_bf16_f32 v18, v{A}, v{A+1}
        v_cvt_pk_bf16_f32 v19, v{A+2}, v{A+3}
        v_lshlrev_b32 v12, 16, v16
        v_and_b32 v13, 0xffff0000, v16
        v_lshlrev_b32 v14, 16, v17
        v_and_b32 v15, 0xffff0000, v17
        v_lshlrev_b32 v20, 16, v18
        v_and_b32 v21, 0xffff0000, v18
        v_lshlrev_b32 v22, 16, v19
        v_and_b32 v23, 0xffff0000, v19
        v_pk_add_f32 v[12:13], v[12:13], v[20:21]
        v_pk_add_f32 v[14:15], v[14:15], v[22:23]
        v_cvt_pk_bf16_f32 v{24+2*(t%2)}, v12, v13
        v_cvt_pk_bf16_f32 v{25+2*(t%2)}, v14, v15
        buffer_store_dwordx2 v[{24+2*(t%2)}:{25+2*(t%2)}], v8, {srd(SRD_WS)}, s10 offen offset:{512*t} sc1
        """)
    ts(a, 8)
    a(f"""
    s_lshl_b32 s10, s4, 2
    s_add_u32 s10, s10, {FL_CV}
    """)
    publish(a, CNT_CV, 4, 10, 8, 9)
    ts(a, 9)

def build():
    a = Asm()
    prologue(a)
    a(f"""
    s_cmp_ge_u32 s3, 4
    s_cbranch_scc1 R_AUX
    s_cmp_ge_u32 s{S_YY}, 28
    s_cbranch_scc1 R_SPARE_G
    """)
    g1_pre(a)
    a("s_branch R_LN")
    a.label("R_SPARE_G")
    a(f"""
    s_cmp_lg_u32 s3, 0
    s_cbranch_scc1 R_SP1
    v_lshlrev_b32 v7, 2, v0
    v_mov_b32 v23, 0
    v_add_u32 v26, {MFLAG}, v7
    s_mov_b64 exec, 0xff
    ds_write_b32 v26, v23
    s_mov_b64 exec, -1
    R_SP1:
    s_waitcnt vmcnt(0)
    s_branch R_LN
    """)
    a.label("R_AUX")
    a(f"""
    s_cmp_ge_u32 s{S_YY}, 28
    s_cbranch_scc1 R_SPARE_A
    """)
    kc_pre(a)
    a("s_branch R_LN")
    a.label("R_SPARE_A")
    a("""
    s_sub_u32 s5, s3, 4
    s_mov_b32 s65, s5
    s_waitcnt vmcnt(0)
    """)
    a.label("R_LN")
    a("s_waitcnt lgkmcnt(0)")
    ln_common(a)
    a(f"""
    s_cmp_ge_u32 s3, 4
    s_cbranch_scc1 R_AUX2
    s_cmp_ge_u32 s{S_YY}, 28
    s_cbranch_scc1 L_END
    """)
    g1_main(a)
    g2_main(a)
    ts_dump(a)
    a("s_branch L_END")
    a.label("R_AUX2")
    kc_main(a)
    ts_dump(a)
    a("s_branch L_END")
    return a

def finish(a, name, vgpr=256):
    lines, npad = pad_hazards(a.lines)
    body = "\n".join(("    " + l if not l.endswith(":") else l) for l in lines)
    body = body.replace("L_END", f"{name}_END").replace("L_BAIL", f"{name}_BAIL")
    hdr = open(f"cdna_kernels/{NAME}.s.ref").read().split("; Override launch")[0].rstrip("\n")
    txt = f"""{hdr}
; @launch grid=(256,1,1) block=(512,1,1) lds=163840
.amdgcn_target "amdgcn-amd-amdhsa--gfx950"
.text
.globl {name}
.p2align 8
.type {name},@function
{name}:
{body}
{name}_BAIL:
    s_mov_b64 exec, 1
    v_mov_b32 v1, 0
    v_mov_b32 v2, s2
    v_lshl_or_b32 v2, v2, 4, s3
    v_or_b32 v2, 0xbad00000, v2
    global_store_dword v1, v2, s[42:43]
    s_waitcnt vmcnt(0)
{name}_END:
    s_endpgm
.section .rodata,"a"
.p2align 6
.amdhsa_kernel {name}
  .amdhsa_next_free_vgpr {vgpr}
  .amdhsa_next_free_sgpr 102
  .amdhsa_accum_offset {vgpr}
  .amdhsa_group_segment_fixed_size 0
  .amdhsa_kernarg_size 120
  .amdhsa_user_sgpr_count 2
  .amdhsa_user_sgpr_kernarg_segment_ptr 1
  .amdhsa_system_sgpr_workgroup_id_x 1
.end_amdhsa_kernel
"""
    print(f"{len(lines)} lines, {npad} nops", file=sys.stderr)
    return txt

if __name__ == "__main__":
    out = sys.argv[1]
    if len(sys.argv) > 2 and sys.argv[2] == "ts": TS_ON = True
    a = build()
    open(out, "w").write(finish(a, NAME + "_kernel"))
```

```python
import sys, math, struct, os
sys.path.insert(0, "gen")
from asmlib import Asm, pad_hazards

NAME = "recurrent_scan__ssm_conv_s4d__mixer_channel_mlp__prompt"
L, D, N, F = 2048, 448, 256, 1792
H_OFF, XB_OFF, ST_OFF, FLAG_OFF = 0, 0x700000, 0x8C0000, 0xA80000
FL_LN, FL_G1, FL_CV, FL_EPOCH = FLAG_OFF, FLAG_OFF + 0x1000, FLAG_OFF + 0x2000, FLAG_OFF + 0x3000
STAT_OFF = FLAG_OFF + 0x4000
SF_OFF = FLAG_OFF + 0xC000
TS_OFF = 0xE00000
WS_SRD_SIZE = 0x1000000
X_BYTES = L * D * 2
W_BYTES = D * F * 2
LOG2E = math.log2(math.e)

def f2u(x): return struct.unpack("<I", struct.pack("<f", x))[0]
def hx(x): return hex(f2u(x))

S_X, S_LOGA, S_AIM, S_CRE, S_CIM, S_LOGDT, S_DSKIP, S_BX, S_W1, S_B1, S_W2, S_B2, S_OUT, S_DBG, S_WS = \
    16, 18, 20, 22, 24, 26, 28, 30, 32, 34, 36, 38, 40, 42, 44
S_EPOCH, S_TAG = 46, 47
SRD_W1, SRD_X, SRD_WS, SRD_OUT, SRD_W2 = 48, 52, 56, 60, 64
S_BUD = 69
S_XX, S_YY = 78, 79

def sp(b): return f"s[{b}:{b+1}]"
def srd(b): return f"s[{b}:{b+3}]"
def vr(b, n=4): return f"v[{b}:{b+n-1}]" if n > 1 else f"v{b}"

SLOT = 16384; NSLOT = 7
AUX_BASE = NSLOT * SLOT
CH_SZ = 24576
TILE_SZ = 8704; TROW = 544
CSTR = 4160
U_OFF = 17376; U_PAD = U_OFF - 480
T1_OFF = U_OFF + 28
T0_OFF = T1_OFF + 4096
FREE = 24064
GFLAG = AUX_BASE + FREE
CNT_G1, CNT_LN, CNT_CV, CNT_LNS = GFLAG + 16, GFLAG + 20, GFLAG + 24, GFLAG + 28
G2FLAG = GFLAG + 32
AF_OFF = FREE + 64
DUMMY = AUX_BASE + CH_SZ + FREE + 256
G2_PSTR = 272; G2_WREG = 28672; G2_STILE = 17408; G2_SSTR = 144

OPT = dict(kv.split("=") for kv in os.environ.get("G3OPT", "").split(",") if kv)
def opt(k, d): return int(OPT.get(k, d))

TS_ON = False
def ts(a, i):
    if not TS_ON: return
    a(f"s_memtime s[{80+2*i}:{81+2*i}]")
    a("s_waitcnt lgkmcnt(0)")
def ts_dump(a, n=10):
    if not TS_ON: return
    a(f"""
    s_memrealtime s[70:71]
    s_waitcnt lgkmcnt(0)
    s_lshl_b32 s76, s2, 3
    s_add_u32 s76, s76, s3
    s_lshl_b32 s76, s76, 7
    s_add_u32 s76, s76, {TS_OFF}
    s_add_u32 s74, s{S_WS}, s76
    s_addc_u32 s75, s{S_WS+1}, 0
    v_mov_b32 v1, 0
    """)
    for i in range(n):
        a(f"""
        v_mov_b32 v2, s{80+2*i}
        v_mov_b32 v3, s{81+2*i}
        global_store_dwordx2 v1, v[2:3], s[74:75] offset:{8*i}
        """)
    a(f"""
    v_mov_b32 v2, s70
    v_mov_b32 v3, s71
    global_store_dwordx2 v1, v[2:3], s[74:75] offset:{8*n}
    v_mov_b32 v2, s100
    v_mov_b32 v3, s101
    global_store_dwordx2 v1, v[2:3], s[74:75] offset:{8*n+8}
    s_waitcnt vmcnt(0)
    """)

class VM:
    def __init__(self): self.ops = []
    def issue(self, tag): self.ops.append(tag)
    def wait(self, a, tag):
        idx = max(i for i, t in enumerate(self.ops) if t == tag)
        n = len(self.ops) - 1 - idx
        a(f"s_waitcnt vmcnt({min(n, 63)})")
    def all(self, a):
        a("s_waitcnt vmcnt(0)")

def mk_srd(a, dst, base, size):
    a(f"""
    s_mov_b32 s{dst}, s{base}
    s_mov_b32 s{dst+1}, s{base+1}
    s_mov_b32 s{dst+2}, {hex(size)}
    s_mov_b32 s{dst+3}, 0x00020000
    """)

def bf16r(a, dst, src):
    a(f"v_cvt_pk_bf16_f32 v{dst}, v{src}, v{src}")
    a(f"v_and_b32 v{dst}, 0xffff0000, v{dst}")

def budget(a):
    a(f"s_sub_u32 s{S_BUD}, s{S_BUD}, 1")
    a("s_cbranch_scc1 L_BAIL")

TAIL = []
def spin_lds(a, tmp, addr_v, off, target):
    lab = a.newlabel("SPIN")
    a(f"{lab}:")
    budget(a)
    a(f"""
    ds_read_b32 v{tmp}, v{addr_v} offset:{off}
    s_waitcnt lgkmcnt(0)
    v_cmp_gt_u32 vcc, {target}, v{tmp}
    s_cbranch_vccnz {lab}
    """)

def check_flag(a, vval, vaddr, target):
    s = a.newlabel("CF"); b = a.newlabel("CFB")
    a(f"v_cmp_gt_u32 vcc, {target}, v{vval}")
    a(f"s_cbranch_vccnz {s}")
    a(f"{b}:")
    TAIL.append(f"""
    {s}:
    s_sub_u32 s{S_BUD}, s{S_BUD}, 1
    s_cbranch_scc1 L_BAIL
    ds_read_b32 v{vval}, v{vaddr}
    s_waitcnt lgkmcnt(0)
    v_cmp_gt_u32 vcc, {target}, v{vval}
    s_cbranch_vccnz {s}
    s_branch {b}
    """)

def publish(a, cnt_addr, nwaves, flag_off_s, vt0, vt1):
    lab = a.newlabel("PUB")
    a(f"""
    s_waitcnt vmcnt(0)
    v_mov_b32 v{vt0}, {cnt_addr}
    v_mov_b32 v{vt1}, 1
    s_mov_b64 exec, 1
    ds_add_rtn_u32 v{vt1}, v{vt0}, v{vt1}
    s_waitcnt lgkmcnt(0)
    v_cmp_eq_u32 vcc, {nwaves-1}, v{vt1}
    s_cbranch_vccz {lab}
    v_mov_b32 v{vt0}, s{flag_off_s}
    v_mov_b32 v{vt1}, s{S_TAG}
    global_store_dword v{vt0}, v{vt1}, {sp(S_WS)} sc1
    {lab}:
    s_mov_b64 exec, -1
    """)

def poll_flags(a, addr_v, nlanes, vt, wide=False):
    lab = a.newlabel("POLL"); ok = a.newlabel("POLLOK")
    if nlanes < 64:
        a(f"s_mov_b64 exec, {hex((1 << nlanes) - 1)}")
    a(f"{lab}:")
    budget(a)
    if wide:
        a(f"""
        global_load_dwordx4 v[{vt}:{vt+3}], v{addr_v}, {sp(S_WS)} sc1
        s_waitcnt vmcnt(0)
        v_xor_b32 v{vt}, s{S_TAG}, v{vt}
        v_xor_b32 v{vt+1}, s{S_TAG}, v{vt+1}
        v_xor_b32 v{vt+2}, s{S_TAG}, v{vt+2}
        v_xor_b32 v{vt+3}, s{S_TAG}, v{vt+3}
        v_or3_b32 v{vt}, v{vt}, v{vt+1}, v{vt+2}
        v_or_b32 v{vt}, v{vt}, v{vt+3}
        v_cmp_ne_u32 vcc, 0, v{vt}
        """)
    else:
        a(f"""
        global_load_dword v{vt}, v{addr_v}, {sp(S_WS)} sc1
        s_waitcnt vmcnt(0)
        v_cmp_ne_u32 vcc, s{S_TAG}, v{vt}
        """)
    a(f"""
    s_cbranch_vccz {ok}
    s_sleep 1
    s_branch {lab}
    {ok}:
    """)
    if nlanes < 64:
        a("s_mov_b64 exec, -1")

def mod_sub(a, r, t, m, times):
    for k in times:
        a(f"s_cmp_ge_u32 s{r}, {k*m}")
        a(f"s_cselect_b32 s{t}, {k*m}, 0")
        a(f"s_sub_u32 s{r}, s{r}, s{t}")

def prologue(a):
    if TS_ON:
        a("s_memtime s[80:81]")
        a("s_memrealtime s[100:101]")
    a(f"""
    s_load_dwordx16 s[16:31], s[0:1], 0
    s_load_dwordx8 s[32:39], s[0:1], 64
    s_load_dwordx4 s[40:43], s[0:1], 96
    s_load_dwordx2 s[44:45], s[0:1], 112
    v_lshrrev_b32 v1, 6, v0
    v_and_b32 v0, 63, v0
    s_cmp_ge_u32 s2, 256
    v_readfirstlane_b32 s3, v1
    s_cbranch_scc1 L_END
    s_and_b32 s{S_XX}, s2, 7
    s_lshr_b32 s{S_YY}, s2, 3
    s_mov_b32 s{S_BUD}, 0x40000
    s_cmp_ge_u32 s3, 4
    s_cbranch_scc1 R_AUX
    s_cmp_ge_u32 s{S_YY}, 28
    s_cbranch_scc1 R_SPARE_G
    """)

def epoch_load(a):
    a(f"""
    s_add_u32 s6, s{S_WS}, {FL_EPOCH}
    s_addc_u32 s7, s{S_WS+1}, 0
    s_load_dword s{S_EPOCH}, s[6:7], 0
    """)
def tag_calc(a):
    a(f"""
    s_mul_i32 s{S_TAG}, s{S_EPOCH}, 0x9E3779B1
    s_add_u32 s{S_TAG}, s{S_TAG}, 0x7F4A7C15
    """)

VW1, VW1B, VX, VXB = 2, 3, 4, 5
VA = [[6, 7], [10, 11]]
VB = [[8, 9], [12, 13]]
VSIG, VCNT = 14, 15
VFL, VFV, VB1, VB2R, VW2, VW2B, VT0 = 248, 249, 250, 251, 252, 253, 254
FB = [16, 32, 48, 64]
ACC = 128
W2R = 16
HB = 192
S_RB, S_FT, S_LB, S_DB = 70, 71, 72, 73
S_U, S_KD, S_WO, S_HS, S_KH = 74, 68, 76, 77, 75
def acc(p, q): return ACC + 16 * (2 * p + q)

def g1_dma(a, vm, u, j):
    base = (u % NSLOT) * SLOT
    if j == 0:
        a(f"s_add_u32 m0, s{S_WO}, {base}")
        a(f"buffer_load_dwordx4 v{VW1}, {srd(SRD_W1)}, s8 offen lds")
    elif j == 1:
        a(f"buffer_load_dwordx4 v{VW1B}, {srd(SRD_W1)}, s8 offen offset:1024 lds")
    elif j == 2:
        a(f"s_add_u32 m0, s{S_WO}, {base + 8192}")
        a(f"buffer_load_dwordx4 v{VX}, {srd(SRD_X)}, s9 offen lds")
    else:
        a(f"buffer_load_dwordx4 v{VXB}, {srd(SRD_X)}, s9 offen offset:1024 lds")
    vm.issue(("u", u))
def g1_adv(a):
    a(f"""
    s_add_u32 s{S_U}, s{S_U}, 1
    s_cmp_eq_u32 s{S_U}, 14
    s_cselect_b32 s{S_U}, 0, s{S_U}
    s_mul_i32 s8, s{S_U}, {32*3584}
    s_lshl_b32 s9, s{S_U}, 6
    """)
def w2_dma(a, vm, t, j):
    tt = t % 14
    base = (tt >> 1) * SLOT + (tt & 1) * 8192
    if j == 0:
        a(f"s_add_u32 m0, s{S_WO}, {base}")
        a(f"buffer_load_dwordx4 v{VW2}, {srd(SRD_W2)}, s{S_KD} offen lds")
    else:
        a(f"buffer_load_dwordx4 v{VW2B}, {srd(SRD_W2)}, s{S_KD} offen offset:1024 lds")
    vm.issue(("w", t))
def w2_adv(a):
    a(f"""
    s_add_u32 s{S_KD}, s{S_KD}, {16*896}
    s_cmp_eq_u32 s{S_KD}, {28*16*896}
    s_cselect_b32 s{S_KD}, 0, s{S_KD}
    """)

def g_path(a):
    vm = VM()
    a.c("---- G init")
    a(f"""
    s_mul_i32 s6, s{S_YY}, 37
    s_lshr_b32 s6, s6, 8                    ; yq
    s_mul_i32 s7, s6, 7
    s_sub_u32 s7, s{S_YY}, s7               ; yr
    s_lshr_b32 s4, s{S_XX}, 1
    s_lshl_b32 s{S_RB}, s4, 2
    s_add_u32 s{S_RB}, s{S_RB}, s6
    s_and_b32 s5, s{S_XX}, 1
    s_mul_i32 s{S_FT}, s5, 7
    s_add_u32 s{S_FT}, s{S_FT}, s7
    s_lshl_b32 s{S_LB}, s{S_XX}, 2
    s_add_u32 s{S_LB}, s{S_LB}, s6
    s_mov_b32 s{S_DB}, s7
    s_lshl_b32 s8, s7, 1
    s_lshl_b32 s9, s6, 2
    s_add_u32 s8, s8, s9
    s_and_b32 s9, s4, 1
    s_mul_i32 s9, s9, 7
    s_add_u32 s{S_U}, s8, s9
    """)
    mod_sub(a, S_U, 9, 14, (2, 1))
    a(f"""
    s_mul_i32 s8, s{S_U}, {32*3584}
    s_lshl_b32 s9, s{S_U}, 6
    s_lshl_b32 s{S_WO}, s3, 11
    ; VW1
    v_lshrrev_b32 v1, 4, v0
    v_and_b32 v16, 15, v0
    v_lshlrev_b32 v17, 2, v1
    v_xor_b32 v16, v16, v17
    v_mul_u32_u24 v{VW1}, 3584, v1
    v_lshl_add_u32 v{VW1}, v16, 4, v{VW1}
    s_lshl_b32 s10, s{S_FT}, 8
    s_mul_i32 s11, s3, {8*3584}
    s_add_u32 s10, s10, s11
    v_add_u32 v{VW1}, s10, v{VW1}
    v_add_u32 v{VW1B}, {14336-1024}, v{VW1}
    ; VX
    v_and_b32 v16, 3, v0
    v_and_b32 v17, 3, v1
    v_xor_b32 v16, v16, v17
    v_lshrrev_b32 v17, 2, v0
    v_mul_u32_u24 v17, 896, v17
    v_lshl_add_u32 v{VX}, v16, 4, v17
    s_lshl_b32 s10, s{S_RB}, 7
    s_lshl_b32 s11, s3, 5
    s_add_u32 s10, s10, s11
    s_mul_i32 s10, s10, 896
    v_add_u32 v{VX}, s10, v{VX}
    v_add_u32 v{VXB}, {14336-1024}, v{VX}
    s_waitcnt lgkmcnt(0)
    """)
    mk_srd(a, SRD_W1, S_W1, W_BYTES)
    mk_srd(a, SRD_X, S_X, X_BYTES)
    for u in range(6):
        for j in range(4): g1_dma(a, vm, u, j)
        g1_adv(a)
    epoch_load(a)
    mk_srd(a, SRD_WS, S_WS, WS_SRD_SIZE)
    mk_srd(a, SRD_W2, S_W2, W_BYTES)
    mk_srd(a, SRD_OUT, S_OUT, X_BYTES)
    a(f"""
    s_and_b32 s6, s3, 1                     ; wf
    s_lshr_b32 s7, s3, 1                    ; wl
    s_lshl_b32 s10, s{S_FT}, 8
    s_lshl_b32 s11, s6, 7
    s_add_u32 s10, s10, s11
    v_lshl_add_u32 v16, v0, 1, s10
    global_load_ushort v{VB1}, v16, {sp(S_B1)}
    s_lshl_b32 s10, s{S_DB}, 7
    v_lshl_add_u32 v16, v0, 1, s10
    global_load_ushort v{VB2R}, v16, {sp(S_B2)}
    """)
    vm.issue("b1"); vm.issue("b2")
    a(f"""
    v_lshrrev_b32 v16, 1, v1                ; hi = g>>1
    v_bfe_u32 v17, v0, 2, 2                 ; r
    v_lshl_add_u32 v18, v16, 3, v17
    v_lshlrev_b32 v18, 8, v18               ; row*256
    v_and_b32 v19, 1, v0
    v_lshl_add_u32 v18, v19, 3, v18
    v_and_b32 v19, 1, v1
    v_lshlrev_b32 v19, 1, v19
    v_bfe_u32 v20, v0, 1, 1
    v_add_u32 v19, v19, v20
    s_lshl_b32 s10, s6, 3
    v_add_u32 v19, s10, v19
    v_lshlrev_b32 v17, 2, v17
    v_xor_b32 v20, v19, v17
    v_lshl_add_u32 v{VA[0][0]}, v20, 4, v18
    v_xor_b32 v{VA[0][1]}, 64, v{VA[0][0]}
    v_add_u32 v{VA[1][0]}, 0x10000, v{VA[0][0]}
    v_add_u32 v{VA[1][1]}, 0x10000, v{VA[0][1]}
    v_and_b32 v16, 31, v0
    v_lshrrev_b32 v17, 5, v0
    v_bfe_u32 v18, v0, 2, 2
    v_xor_b32 v17, v17, v18
    v_lshlrev_b32 v16, 6, v16
    v_lshl_add_u32 v16, v17, 4, v16
    s_lshl_b32 s10, s7, 12
    s_add_u32 s10, s10, 8192
    v_add_u32 v{VB[0][0]}, s10, v16
    v_xor_b32 v{VB[0][1]}, 32, v{VB[0][0]}
    v_add_u32 v{VB[1][0]}, 0x10000, v{VB[0][0]}
    v_add_u32 v{VB[1][1]}, 0x10000, v{VB[0][1]}
    ; flags
    v_and_b32 v16, 3, v0
    v_lshlrev_b32 v16, 2, v16
    v_add_u32 v{VFL}, {GFLAG}, v16
    v_lshlrev_b32 v16, 2, v0
    v_add_u32 v{VSIG}, {DUMMY}, v16
    s_lshl_b32 s10, s3, 2
    s_add_u32 s10, s10, {GFLAG}
    v_writelane_b32 v{VSIG}, s10, 0
    v_mov_b32 v{VCNT}, 1
    ; w2 DMA lane offsets
    v_lshrrev_b32 v16, 3, v0
    v_and_b32 v17, 7, v0
    v_bfe_u32 v18, v0, 4, 1
    v_lshlrev_b32 v18, 2, v18
    v_xor_b32 v17, v17, v18
    v_mul_u32_u24 v16, 896, v16
    v_lshl_add_u32 v{VW2}, v17, 4, v16
    s_mul_i32 s10, s3, {448*896}
    s_lshl_b32 s11, s{S_DB}, 7
    s_add_u32 s10, s10, s11
    v_add_u32 v{VW2}, s10, v{VW2}
    v_add_u32 v{VW2B}, {7168-1024}, v{VW2}
    s_lshl_b32 s10, s{S_DB}, 2
    s_and_b32 s11, s{S_LB}, 3
    s_mul_i32 s11, s11, 7
    s_add_u32 s10, s10, s11
    s_mul_i32 s11, s{S_XX}, 3
    s_add_u32 s10, s10, s11
    """)
    mod_sub(a, 10, 11, 28, (2, 1))
    a(f"""
    s_mul_i32 s{S_KD}, s10, {16*896}
    s_lshl_b32 s{S_KH}, s10, 10
    v_lshrrev_b32 v16, 1, v1
    v_bfe_u32 v17, v0, 2, 2
    v_lshl_add_u32 v18, v16, 2, v17
    v_lshlrev_b32 v18, 7, v18
    v_and_b32 v19, 1, v0
    v_lshl_add_u32 v18, v19, 3, v18
    v_add_u32 v18, s{S_WO}, v18
    v_and_b32 v19, 1, v1
    v_lshlrev_b32 v19, 1, v19
    v_bfe_u32 v20, v0, 1, 1
    v_add_u32 v19, v19, v20
    v_bfe_u32 v20, v0, 3, 1
    v_lshlrev_b32 v20, 2, v20
    v_xor_b32 v19, v19, v20
    v_lshl_add_u32 v{VT0}, v19, 4, v18
    s_lshl_b32 s12, s{S_RB}, 2
    s_lshl_b32 s13, s7, 1
    s_add_u32 s12, s12, s13
    s_mul_i32 s12, s12, 112
    s_lshl_b32 s13, s{S_FT}, 3
    s_add_u32 s12, s12, s13
    s_lshl_b32 s13, s6, 2
    s_add_u32 s12, s12, s13
    s_lshl_b32 s{S_HS}, s12, 10
    s_waitcnt lgkmcnt(0)
    """)
    tag_calc(a)
    if opt("prio", 1): a("s_setprio 2")
    a("s_barrier")
    ts(a, 1)
    if opt("gdelay", 0):
        a(f"v_mov_b32 v16, {CNT_LNS}")
        spin_lds(a, 17, 16, 0, 4)
    vm.wait(a, ("u", 1))
    a(f"ds_write_b32 v{VSIG}, v{VCNT}")
    spin_lds(a, VFV, VFL, 0, 1)
    ts(a, 2)
    def reads(u, ks, fb):
        s = u % NSLOT
        bs = 1 if s >= 4 else 0
        o = s * SLOT - bs * 65536
        r = []
        for fbp in range(2):
            b = FB[fb] + 4 * fbp
            r.append(f"ds_read_b64_tr_b16 v[{b}:{b+1}], v{VA[bs][fbp]} offset:{o + ks*4096}")
            r.append(f"ds_read_b64_tr_b16 v[{b+2}:{b+3}], v{VA[bs][fbp]} offset:{o + ks*4096 + 1024}")
        for lbp in range(2):
            r.append(f"ds_read_b128 {vr(FB[fb] + 8 + 4*lbp)}, v{VB[bs][ks]} offset:{o + lbp*2048}")
        return r
    def mfma(fb, k, first=False):
        fbp, lbp = k >> 1, k & 1
        c = "0" if (first and opt("mz", 1)) else vr(acc(fbp, lbp), 16)
        a(f"v_mfma_f32_32x32x16_bf16 {vr(acc(fbp,lbp),16)}, {vr(FB[fb]+4*fbp)}, {vr(FB[fb]+8+4*lbp)}, {c}")
    if not opt("mz", 1):
        for i in range(64): a(f"v_mov_b32 v{ACC+i}, 0")
    for r in reads(0, 0, 0): a(r)
    for r in reads(0, 1, 1): a(r)
    a(f"ds_read_b32 v{VFV}, v{VFL}")
    STATV, SFV = 192, 196
    for h in range(14):
        c0, c1 = (2 * h) % 4, (2 * h + 1) % 4
        n0, n1 = (2 * h + 2) % 4, (2 * h + 3) % 4
        last = (h == 13)
        un = h + 6
        def dma(j):
            if un < 14:
                g1_dma(a, vm, un, j)
                if j == 3: g1_adv(a)
            else:
                t = 2 * (un - 14) + (j >> 1)
                w2_dma(a, vm, t, j & 1)
                if j & 1: w2_adv(a)
        a("s_waitcnt lgkmcnt(7)")
        mfma(c0, 0, h == 0); mfma(c0, 1, h == 0)
        a("s_waitcnt lgkmcnt(0)")
        check_flag(a, VFV, VFL, h + 1)
        if h + 2 < 14:
            vm.wait(a, ("u", h + 2))
        a(f"v_add_u32 v{VCNT}, 1, v{VCNT}")
        a(f"ds_write_b32 v{VSIG}, v{VCNT}")
        rn0 = [] if last else reads(h + 1, 0, n0)
        rn1 = [] if last else reads(h + 1, 1, n1)
        for r in rn0[:3]: a(r)
        mfma(c0, 2, h == 0)
        for r in rn0[3:]: a(r)
        dma(0)
        mfma(c0, 3, h == 0)
        dma(1)
        for r in rn1[:3]: a(r)
        mfma(c1, 0)
        for r in rn1[3:]: a(r)
        dma(2)
        mfma(c1, 1)
        dma(3)
        if h == 12:
            a(f"""
            s_lshl_b32 s10, s{S_RB}, 7
            s_lshl_b32 s11, s7, 6
            s_add_u32 s10, s10, s11
            s_lshl_b32 s10, s10, 4
            s_add_u32 s10, s10, {STAT_OFF}
            v_lshl_add_u32 v{VW1}, v0, 4, s10
            global_load_dwordx4 {vr(STATV)}, v{VW1}, {sp(S_WS)} sc1
            """)
            vm.issue("stat")
        mfma(c1, 2)
        if h == 12:
            a(f"""
            s_lshl_b32 s10, s{S_FT}, 7
            s_lshl_b32 s11, s6, 6
            s_add_u32 s10, s10, s11
            s_lshl_b32 s10, s10, 3
            s_add_u32 s10, s10, {SF_OFF}
            v_lshl_add_u32 v{VW1B}, v0, 3, s10
            global_load_dwordx2 v[{SFV}:{SFV+1}], v{VW1B}, {sp(S_WS)} sc1
            """)
            vm.issue("sf")
        a(f"ds_read_b32 v{VFV}, v{VFL}")
        mfma(c1, 3)
        if last:
            a("s_nop 0")
    ts(a, 3)
    a("s_waitcnt lgkmcnt(0)")
    check_flag(a, VFV, VFL, 15)
    for j in range(4):
        w2_dma(a, vm, 12 + (j >> 1), j & 1)
        if j & 1: w2_adv(a)
    VA2 = [[6, 7], [10, 11]]
    VH0, VH1 = 8, 9
    a(f"""
    v_mov_b32 v{VA2[0][0]}, v{VT0}
    v_xor_b32 v{VA2[0][1]}, 64, v{VT0}
    v_add_u32 v{VA2[1][0]}, 0x10000, v{VA2[0][0]}
    v_add_u32 v{VA2[1][1]}, 0x10000, v{VA2[0][1]}
    v_lshlrev_b32 v{VH0}, 4, v0
    v_add_u32 v{VH1}, {112*1024}, v{VH0}
    """)
    vm.wait(a, "sf")
    sl = a.newlabel("STP"); bk = a.newlabel("STB")
    a(f"""
    {bk}:
    v_xor_b32 v198, s{S_TAG}, v{STATV+1}
    v_xor_b32 v199, s{S_TAG}, v{STATV+3}
    v_xor_b32 v200, s{S_TAG}, v{SFV+1}
    v_or3_b32 v198, v198, v199, v200
    v_cmp_ne_u32 vcc, 0, v198
    s_cbranch_vccnz {sl}
    """)
    TAIL.append(f"""
    {sl}:
    s_sub_u32 s{S_BUD}, s{S_BUD}, 1
    s_cbranch_scc1 L_BAIL
    s_sleep 1
    global_load_dwordx4 {vr(STATV)}, v{VW1}, {sp(S_WS)} sc1
    global_load_dwordx2 v[{SFV}:{SFV+1}], v{VW1B}, {sp(S_WS)} sc1
    s_waitcnt vmcnt(0)
    s_branch {bk}
    """)
    ts(a, 4)
    AL, GA_, SS = STATV, STATV + 2, SFV
    AE = 200
    BN = 204
    BE = [[208, 212], [216, 220]]
    KC_ = [224, 226]
    DL = [228, 230]
    a(f"""
    v_rcp_f32 v198, v{AL}                       ; delta
    v_cvt_pk_bf16_f32 v{AE}, v{SS}, v{SS}       ; S_hi|S_hi
    v_and_b32 v199, 0xffff0000, v{AE}
    v_sub_f32 v199, v{SS}, v199
    v_cvt_pk_bf16_f32 v199, v199, v199          ; S_lo
    v_and_b32 v199, 0xffff, v199
    v_lshl_or_b32 v{AE+1}, v{VB1}, 16, v199     ; S_lo | b1<<16
    v_mov_b32 v{AE+2}, v{VB1}
    v_mov_b32 v{AE+3}, 0
    v_cvt_pk_bf16_f32 v{BN+1}, v{GA_}, v198
    v_lshlrev_b32 v232, 16, v{BN+1}
    v_and_b32 v233, 0xffff0000, v{BN+1}
    v_sub_f32 v232, v{GA_}, v232                ; g_lo
    v_sub_f32 v233, v198, v233                  ; d_lo
    v_cvt_pk_bf16_f32 v{BN}, v{GA_}, v232
    v_cvt_pk_bf16_f32 v{BN+2}, v233, 0          ; d_lo | 0
    """)
    for k in range(3):
        a(f"""
        v_mov_b32 v{BE[0][0]+k}, v{BN+k}
        v_mov_b32 v{BE[0][1]+k}, 0
        v_mov_b32 v{BE[1][0]+k}, 0
        v_mov_b32 v{BE[1][1]+k}, v{BN+k}
        v_permlane32_swap_b32 v{BE[0][0]+k}, v{BE[0][1]+k}
        v_permlane32_swap_b32 v{BE[1][0]+k}, v{BE[1][1]+k}
        """)
    for p in range(2):
        for q in range(2):
            a(f"v_mov_b32 v{BE[p][q]+3}, 0")
    for p in range(2):
        for q in range(2):
            a(f"v_mfma_f32_32x32x16_bf16 {vr(acc(p,q),16)}, {vr(AE)}, {vr(BE[p][q])}, {vr(acc(p,q),16)}")
    C1 = 2.0 * math.sqrt(2.0 / math.pi) * LOG2E
    C2 = C1 * 0.044715
    a(f"""
    v_mul_f32 v232, v{AL}, v{AL}
    v_mul_f32 v232, v232, v{AL}
    v_mul_f32 v{KC_[0]}, {hx(C2)}, v232
    v_mul_f32 v{DL[0]+1}, {hx(C1)}, v{AL}
    v_mov_b32 v{DL[0]}, v198
    v_mov_b32 v{KC_[1]}, v{KC_[0]}
    v_mov_b32 v{DL[1]+1}, v{DL[0]+1}
    v_mov_b32 v{DL[1]}, v198
    v_permlane32_swap_b32 v{KC_[0]}, v{KC_[1]}
    v_permlane32_swap_b32 v{DL[0]+1}, v{DL[1]+1}
    v_permlane32_swap_b32 v{DL[0]}, v{DL[1]}
    """)
    def trr(t, tsrc):
        tt = tsrc % 14
        o = (tt >> 1) * SLOT + (tt & 1) * 8192
        bs = 1 if o >= 65536 - 2048 else 0
        o -= bs * 65536
        r = []
        for db_ in range(2):
            b = W2R + 8 * (t % 14) + 4 * db_
            r.append(f"ds_read_b64_tr_b16 v[{b}:{b+1}], v{VA2[bs][db_]} offset:{o}")
            r.append(f"ds_read_b64_tr_b16 v[{b+2}:{b+3}], v{VA2[bs][db_]} offset:{o+1024}")
        return r
    class Rec:
        def __init__(s): s.l = []
        def __call__(s, t):
            for ln in t.strip("\n").split("\n"):
                if ln.strip(): s.l.append(ln.strip())
    def dma_steps(ts_):
        out = []
        for t in ts_:
            out.append(("dma", t, 0)); out.append(("dma", t, 1))
        return out
    TT = [232, 236]
    PK = [240, 192]
    def gelu_quadrant(p, q, extras, pk):
        A = acc(p, q)
        ex = list(extras)
        def put():
            if ex:
                e = ex.pop(0)
                if isinstance(e, str): a(e)
                else:
                    _, t, j = e
                    w2_dma(a, vm, t, j)
                    if j: w2_adv(a)
        kc, dl = KC_[q], DL[q]
        for pp in range(0, 8, 2):
            X = [A + 2 * pp, A + 2 * pp + 2]
            for i in range(2):
                w = TT[i]; x = X[i]
                a(f"v_pk_mul_f32 v[{w}:{w+1}], v[{x}:{x+1}], v[{x}:{x+1}]")
            for i in range(2):
                w = TT[i]
                a(f"v_pk_fma_f32 v[{w}:{w+1}], v[{w}:{w+1}], v[{kc}:{kc+1}], v[{dl}:{dl+1}] op_sel:[0,0,1] op_sel_hi:[1,0,1]")
            for i in range(2):
                w = TT[i]; x = X[i]
                a(f"v_pk_mul_f32 v[{w}:{w+1}], v[{w}:{w+1}], v[{x}:{x+1}] neg_lo:[1,0] neg_hi:[1,0]")
            for i in range(2):
                w = TT[i]
                a(f"v_exp_f32 v{w}, v{w}"); put()
                a(f"v_exp_f32 v{w+1}, v{w+1}"); put()
            for i in range(2):
                w = TT[i]
                a(f"v_pk_fma_f32 v[{w}:{w+1}], v[{w}:{w+1}], v[{dl}:{dl+1}], v[{dl}:{dl+1}] op_sel:[0,0,0] op_sel_hi:[1,0,0]")
            for i in range(2):
                w = TT[i]
                a(f"v_rcp_f32 v{w}, v{w}"); put()
                a(f"v_rcp_f32 v{w+1}, v{w+1}"); put()
            for i in range(2):
                w = TT[i]; x = X[i]
                a(f"v_pk_mul_f32 v[{w}:{w+1}], v[{x}:{x+1}], v[{w}:{w+1}]")
            for i in range(2):
                w = TT[i]
                a(f"v_cvt_pk_bf16_f32 v{pk+pp+i}, v{w}, v{w+1}")
        while ex: put()
        a(f"s_add_u32 s10, s{S_HS}, {q*112*1024 + p*2048}")
        a(f"buffer_store_dwordx4 {vr(pk)}, v{VH0}, {srd(SRD_WS)}, s10 offen sc1")
        a(f"buffer_store_dwordx4 {vr(pk+4)}, v{VH0}, {srd(SRD_WS)}, s10 offen offset:1024 sc1")
        vm.issue("h"); vm.issue("h")
    vm.wait(a, ("w", 4))
    ex0 = sum([trr(t, t) for t in range(0, 5)], [])
    gelu_quadrant(0, 0, ex0, PK[0])
    a("s_waitcnt lgkmcnt(0)")
    vm.wait(a, ("w", 9))
    ex1 = dma_steps(range(14, 19)) + sum([trr(t, t) for t in range(5, 10)], [])
    gelu_quadrant(0, 1, ex1, PK[1])
    a("s_waitcnt lgkmcnt(0)")
    vm.wait(a, ("w", 13))
    ex2 = dma_steps(range(19, 24)) + sum([trr(t, t) for t in range(10, 14)], [])
    gelu_quadrant(1, 0, ex2, PK[0])
    a("s_waitcnt lgkmcnt(0)")
    ex3 = dma_steps(range(24, 28))
    gelu_quadrant(1, 1, ex3, PK[1])
    ts(a, 5)
    a(f"""
    s_lshl_b32 s12, s{S_RB}, 4
    s_add_u32 s12, s12, s{S_FT}
    s_lshl_b32 s12, s12, 2
    s_add_u32 s12, s12, {FL_G1}
    """)
    publish(a, CNT_G1, 4, 12, 232, 233)
    ts(a, 6)
    a.c("---- G2")
    a(f"""
    v_mov_b32 v200, v{VB2R}
    v_mov_b32 v201, 0
    v_mov_b32 v202, 0
    v_mov_b32 v203, 0
    v_mov_b32 v204, 0x3e80
    v_mov_b32 v205, 0
    v_mov_b32 v206, 0
    v_mov_b32 v207, 0
    v_mov_b32 v208, 0
    v_mov_b32 v209, 0
    v_mov_b32 v210, 0
    v_mov_b32 v211, 0
    v_permlane32_swap_b32 v204, v208
    """)
    a(f"""
    v_mov_b32 v208, 0
    v_mov_b32 v212, 0x3e80
    v_permlane32_swap_b32 v208, v212
    """)
    for db_ in range(2):
        for lb_ in range(2):
            B = 204 if db_ == 0 else 208
            a(f"v_mfma_f32_32x32x16_bf16 {vr(acc(db_,lb_),16)}, v[200:203], {vr(B)}, 0")
    a(f"""
    s_mul_i32 s6, s{S_LB}, {2*112}
    s_mul_i32 s7, s3, 28
    s_add_u32 s6, s6, s7
    s_lshl_b32 s6, s6, 10
    s_lshr_b32 s10, s{S_LB}, 1
    s_lshl_b32 s10, s10, 4
    s_mul_i32 s11, s3, 7
    s_lshr_b32 s11, s11, 1
    s_add_u32 s10, s10, s11
    s_lshl_b32 s10, s10, 2
    s_add_u32 s10, s10, {FL_G1}
    v_lshl_add_u32 v1, v0, 2, s10
    """)
    VO, VS_, VSL, VCV = 2, 3, 4, 5
    a(f"""
    v_and_b32 v232, 15, v0
    v_lshrrev_b32 v233, 4, v0
    s_lshl_b32 s10, s{S_LB}, 6
    s_lshl_b32 s11, s3, 4
    s_add_u32 s10, s10, s11
    v_add_u32 v234, s10, v232
    v_mul_u32_u24 v234, 896, v234
    v_lshl_add_u32 v234, v233, 4, v234
    s_lshl_b32 s11, s{S_DB}, 7
    v_add_u32 v{VO}, s11, v234
    v_lshrrev_b32 v234, 3, v0
    v_and_b32 v235, 7, v0
    s_lshl_b32 s10, s{S_DB}, 6
    s_lshl_b32 s11, s3, 4
    s_add_u32 s10, s10, s11                 ; d0 + 16w
    v_add_u32 v236, s10, v234
    v_lshlrev_b32 v236, 12, v236
    v_lshl_add_u32 v{VS_}, v235, 4, v236
    s_mul_i32 s9, s3, {G2_WREG}
    v_mul_u32_u24 v{VSL}, {G2_SSTR}, v234
    v_lshl_add_u32 v{VSL}, v235, 4, v{VSL}
    v_add_u32 v{VSL}, s9, v{VSL}
    s_lshl_b32 s11, s10, 1
    s_add_u32 s11, s11, {FL_CV}
    v_lshl_add_u32 v{VCV}, v0, 2, s11
    """)
    poll_flags(a, 1, 4, 232)
    ts(a, 7)
    vm2 = VM()
    NH = 7
    def hload(t):
        b = HB + 8 * (t % NH)
        a(f"s_add_u32 s10, s6, s{S_KH}")
        a(f"buffer_load_dwordx4 {vr(b)}, v{VH0}, {srd(SRD_WS)}, s10 offen sc1")
        a(f"buffer_load_dwordx4 {vr(b+4)}, v{VH1}, {srd(SRD_WS)}, s10 offen sc1")
        vm2.issue(("h", t)); vm2.issue(("h", t))
        a(f"s_add_u32 s{S_KH}, s{S_KH}, 1024")
        a(f"s_cmp_eq_u32 s{S_KH}, {28*1024}")
        a(f"s_cselect_b32 s{S_KH}, 0, s{S_KH}")
    for t in range(NH): hload(t)
    VX_ = 24
    for t in range(28):
        vm2.wait(a, ("h", t))
        if t == 14:
            a("s_waitcnt lgkmcnt(0)")
        elif t > 14:
            pass
        for db_ in range(2):
            for lb_ in range(2):
                a(f"v_mfma_f32_32x32x16_bf16 {vr(acc(db_,lb_),16)}, {vr(W2R + 8*(t%14) + 4*db_)}, {vr(HB + 8*(t%NH) + 4*lb_)}, {vr(acc(db_,lb_),16)}")
        if t + NH < 28: hload(t + NH)
        if t < 14:
            for r in trr(t + 14, t + 14): a(r)
        if t == 14:
            a(f"""
            v_mov_b32 v{VCNT}, 100
            ds_write_b32 v{VSIG}, v{VCNT}
            """)
        if t == 21:
            a(f"buffer_load_dwordx4 v[16:19], v{VO}, {srd(SRD_X)}, 0 offen")
            a(f"buffer_load_dwordx4 v[20:23], v{VO}, {srd(SRD_X)}, 0 offen offset:64")
            vm2.issue("x"); vm2.issue("x")
    a(f"ds_read_b32 v{VFV}, v{VFL}")
    ts(a, 8)
    a(f"""
    s_mul_i32 s9, s3, {G2_WREG}
    v_and_b32 v1, 31, v0
    v_mul_u32_u24 v1, {G2_PSTR}, v1
    v_lshrrev_b32 v7, 5, v0
    v_lshl_add_u32 v1, v7, 4, v1
    v_add_u32 v1, s9, v1
    s_waitcnt lgkmcnt(0)
    """)
    check_flag(a, VFV, VFL, 100)
    poll_flags(a, VCV, 8, 235)
    VS = 24
    a(f"""
    s_lshl_b32 s10, s{S_LB}, 7
    s_add_u32 s10, s10, {ST_OFF}
    buffer_load_dwordx4 {vr(VS)}, v{VS_}, {srd(SRD_WS)}, s10 offen sc1
    s_add_u32 s11, s10, {8*4096}
    buffer_load_dwordx4 {vr(VS+4)}, v{VS_}, {srd(SRD_WS)}, s11 offen sc1
    """)
    for db_ in range(2):
        for lb_ in range(2):
            for q in range(4):
                a(f"ds_write_b128 v1, {vr(acc(db_,lb_)+4*q)} offset:{lb_*32*G2_PSTR + db_*128 + q*32}")
    a(f"""
    s_waitcnt vmcnt(0)
    ds_write_b128 v{VSL}, {vr(VS)} offset:{G2_STILE}
    ds_write_b128 v{VSL}, {vr(VS+4)} offset:{G2_STILE + 8*G2_SSTR}
    v_mov_b32 v{VCNT}, 200
    s_waitcnt lgkmcnt(0)
    ds_write_b32 v{VSIG}, v{VCNT}
    v_and_b32 v1, 15, v0
    v_lshrrev_b32 v7, 4, v0
    s_lshl_b32 s11, s3, 4
    v_add_u32 v6, s11, v1
    v_mul_u32_u24 v6, {G2_PSTR}, v6
    v_lshl_add_u32 v6, v7, 5, v6
    v_lshrrev_b32 v3, 1, v7
    v_mul_u32_u24 v3, {G2_WREG}, v3
    v_and_b32 v4, 1, v7
    v_lshlrev_b32 v4, 3, v4
    v_bfe_u32 v5, v0, 2, 2
    v_add_u32 v4, v4, v5
    v_mul_u32_u24 v4, {G2_SSTR}, v4
    v_add_u32 v3, v3, v4
    v_and_b32 v4, 3, v0
    v_lshl_add_u32 v3, v4, 3, v3
    s_lshl_b32 s11, s3, 5
    v_add_u32 v3, s11, v3
    v_add_u32 v3, {G2_STILE}, v3
    v_add_u32 v4, {2*G2_WREG}, v3
    v_add_u32 v5, {2*G2_WREG}, v6
    """)
    spin_lds(a, VFV, VFL, 0, 200)
    for k in range(2):
        for w in range(4):
            base = 6 if w < 2 else 5
            for hq in range(2):
                a(f"ds_read_b128 {vr(48+32*k+8*w+4*hq)}, v{base} offset:{(w%2)*G2_WREG + k*128 + hq*16}")
        sv = 3 if k == 0 else 4
        a(f"ds_read_b64_tr_b16 v[{112+4*k}:{113+4*k}], v{sv}")
        a(f"ds_read_b64_tr_b16 v[{114+4*k}:{115+4*k}], v{sv} offset:{4*G2_SSTR}")
    a(f"""
    s_mov_b32 s70, {hx(-LOG2E)}
    s_mov_b32 s71, {hx(-LOG2E)}
    s_mov_b32 s72, 1.0
    s_mov_b32 s73, 1.0
    """)
    for k in range(2):
        B = 48 + 32 * k
        a(f"s_waitcnt lgkmcnt({10 if k == 0 else 0})")
        for p in range(4):
            x = B + 2 * p
            t0 = 120 + 8 * (p % 2)
            a(f"""
            v_pk_add_f32 v[{x}:{x+1}], v[{x}:{x+1}], v[{x+8}:{x+9}]
            v_pk_add_f32 v[{x+16}:{x+17}], v[{x+16}:{x+17}], v[{x+24}:{x+25}]
            v_lshlrev_b32 v{t0+2}, 16, v{112+4*k+p}
            v_pk_add_f32 v[{x}:{x+1}], v[{x}:{x+1}], v[{x+16}:{x+17}]
            v_and_b32 v{t0+3}, 0xffff0000, v{112+4*k+p}
            v_pk_mul_f32 v[{t0}:{t0+1}], v[{x}:{x+1}], s[70:71]
            v_exp_f32 v{t0}, v{t0}
            v_exp_f32 v{t0+1}, v{t0+1}
            v_pk_mul_f32 v[{x}:{x+1}], v[{x}:{x+1}], v[{t0+2}:{t0+3}]
            v_pk_add_f32 v[{t0}:{t0+1}], v[{t0}:{t0+1}], s[72:73]
            v_lshlrev_b32 v{t0+4}, 16, v{16+4*k+p}
            v_rcp_f32 v{t0}, v{t0}
            v_rcp_f32 v{t0+1}, v{t0+1}
            v_and_b32 v{t0+5}, 0xffff0000, v{16+4*k+p}
            v_pk_fma_f32 v[{x}:{x+1}], v[{x}:{x+1}], v[{t0}:{t0+1}], v[{t0+4}:{t0+5}]
            v_cvt_pk_bf16_f32 v{136+4*k+p}, v{x}, v{x+1}
            """)
        a(f"buffer_store_dwordx4 {vr(136+4*k)}, v{VO}, {srd(SRD_OUT)}, 0 offen offset:{64*k}")
    a(f"""
    s_or_b32 s10, s2, s3
    s_cmp_lg_u32 s10, 0
    s_cbranch_scc1 G2_NOEP
    s_add_u32 s10, s{S_EPOCH}, 1
    v_mov_b32 v1, {FL_EPOCH}
    v_mov_b32 v2, s10
    s_mov_b64 exec, 1
    global_store_dword v1, v2, {sp(S_WS)}
    s_mov_b64 exec, -1
    G2_NOEP:
    """)
    ts(a, 9)

def spare_g(a):
    a.c("---- spare G: S_f")
    a(f"""
    s_sub_u32 s4, s{S_YY}, 28
    s_lshl_b32 s4, s4, 3
    s_add_u32 s4, s4, s{S_XX}               ; j
    s_waitcnt lgkmcnt(0)
    """)
    epoch_load(a)
    a(f"""
    s_cmp_lg_u32 s3, 0
    s_cbranch_scc1 SG_SKIP
    s_cmp_ge_u32 s4, 28
    s_cbranch_scc1 SG_SKIP
    """)
    mk_srd(a, SRD_W1, S_W1, W_BYTES)
    a(f"""
    v_lshrrev_b32 v1, 3, v0
    v_mul_u32_u24 v1, 3584, v1
    v_and_b32 v2, 7, v0
    v_lshl_add_u32 v1, v2, 4, v1
    s_lshl_b32 s5, s4, 7
    v_add_u32 v1, s5, v1
    s_mov_b32 s8, 0
    """)
    for i in range(56):
        a(f"buffer_load_dwordx4 {vr(16+4*i)}, v1, {srd(SRD_W1)}, s8 offen")
        if i < 55: a(f"s_add_u32 s8, s8, {8*3584}")
    a(f"""
    v_and_b32 v2, 15, v0
    v_mov_b32 v8, 0
    v_mov_b32 v9, 0
    v_mov_b32 v10, 0
    v_mov_b32 v11, 0
    v_mov_b32 v3, 0x3f80
    v_mov_b32 v4, 0x3f800000
    """)
    for j in range(8):
        a(f"v_cmp_eq_u32 vcc, {j}, v2")
        a(f"v_cndmask_b32 v{8 + j//2}, v{8 + j//2}, v{3 if j % 2 == 0 else 4}, vcc")
    a(f"""
    s_waitcnt lgkmcnt(0)
    SG_SKIP:
    s_waitcnt lgkmcnt(0)
    s_barrier
    s_cmp_lg_u32 s3, 0
    s_cbranch_scc1 L_END
    s_cmp_ge_u32 s4, 28
    s_cbranch_scc1 L_END
    """)
    tag_calc(a)
    for i in range(56):
        a(f"s_waitcnt vmcnt({55-i})")
        c = "0" if i < 2 else vr(240 + 4 * (i % 2))
        a(f"v_mfma_f32_16x16x32_bf16 {vr(240 + 4*(i%2))}, v[8:11], {vr(16+4*i)}, {c}")
    for r in range(4):
        a(f"v_add_f32 v{240+r}, v{240+r}, v{244+r}")
    for r in range(4):
        a(f"v_add_f32_dpp v{240+r}, v{240+r}, v{240+r} row_ror:8 row_mask:0xf bank_mask:0xf")
    a(f"""
    v_mov_b32 v4, v240
    v_mov_b32 v5, s{S_TAG}
    v_mov_b32 v6, v241
    v_mov_b32 v7, s{S_TAG}
    v_mov_b32 v8, v242
    v_mov_b32 v9, s{S_TAG}
    v_mov_b32 v10, v243
    v_mov_b32 v11, s{S_TAG}
    v_and_b32 v1, 7, v0
    v_lshrrev_b32 v2, 4, v0
    v_lshlrev_b32 v1, 6, v1
    v_lshl_add_u32 v1, v2, 5, v1            ; (8n + 4g')*8 bytes
    s_lshl_b32 s5, s4, 9
    s_add_u32 s5, s5, {SF_OFF}
    v_add_u32 v1, s5, v1
    s_mov_b32 exec_lo, 0x00ff00ff
    s_mov_b32 exec_hi, 0
    global_store_dwordx4 v1, v[4:7], {sp(S_WS)} sc1
    global_store_dwordx4 v1, v[8:11], {sp(S_WS)} offset:16 sc1
    s_mov_b64 exec, -1
    s_waitcnt vmcnt(0)
    s_branch L_END
    """)

PRIME = {}
def mkprime(a, y):
    p0, p1 = PRIME[y]
    a(f"v_mov_b32 v{p0}, v{y+1}")
    a(f"v_mov_b32 v{p1}, v{y+3}")
def cmul_n(a, jobs, t0=8):
    for k, (r, x, y, yp) in enumerate(jobs):
        t = t0 + 2 * k
        a(f"v_pk_mul_f32 v[{t}:{t+1}], v[{x}:{x+1}], v[{y}:{y+1}] op_sel:[0,0] op_sel_hi:[1,0]")
    for k, (r, x, y, yp) in enumerate(jobs):
        t = t0 + 2 * k
        assert yp % 2 == 0
        a(f"v_pk_fma_f32 v[{r}:{r+1}], v[{x}:{x+1}], v[{yp}:{yp+1}], v[{t}:{t+1}] op_sel:[1,0,0] op_sel_hi:[0,0,1] neg_lo:[1,0,0]")
def both(r, x, y): return [(r + 2 * c, x + 2 * c, y + 2 * c, PRIME[y][c]) for c in range(2)]
def cm(a, r, x, y): cmul_n(a, both(r, x, y))

def pair_sync(a, val, VMY, VOT, VT):
    lab = a.newlabel("PS")
    a(f"""
    v_mov_b32 v{VT}, {val}
    s_waitcnt lgkmcnt(0)
    ds_write_b32 v{VMY}, v{VT}
    {lab}:
    s_sub_u32 s{S_BUD}, s{S_BUD}, 1
    s_cbranch_scc1 L_BAIL
    ds_read_b32 v{VT}, v{VOT}
    s_waitcnt lgkmcnt(0)
    v_cmp_gt_u32 vcc, {val}, v{VT}
    s_cbranch_vccnz {lab}
    """)

KC_GA = 204
KC_SC = 228
KC_RAW = 233
def kc_path(a):
    a.c("---- KC path")
    GA, SC, RAW = KC_GA, KC_SC, KC_RAW
    XA, XB_ = 32, 36
    a(f"""
    s_sub_u32 s5, s3, 4                     ; k
    s_cmp_lg_u32 s5, 0
    s_cbranch_scc1 KC_NOZ
    v_lshlrev_b32 v1, 2, v0
    v_mov_b32 v2, 0
    v_add_u32 v3, {GFLAG}, v1
    v_add_u32 v4, {GFLAG + CH_SZ}, v1
    s_mov_b64 exec, 0xffffffff
    ds_write_b32 v3, v2
    ds_write_b32 v4, v2
    s_mov_b64 exec, -1
    KC_NOZ:
    s_lshl_b32 s4, s{S_XX}, 5
    s_add_u32 s4, s4, s{S_YY}               ; q
    s_lshl_b32 s6, s4, 3
    s_lshl_b32 s7, s5, 1
    s_add_u32 s6, s6, s7
    v_lshrrev_b32 v1, 5, v0
    v_add_u32 v30, s6, v1                   ; row
    v_mul_u32_u24 v2, 896, v30
    v_and_b32 v3, 31, v0
    v_lshl_add_u32 v2, v3, 4, v2
    v_mov_b32 v{XB_}, 0
    v_mov_b32 v{XB_+1}, 0
    v_mov_b32 v{XB_+2}, 0
    v_mov_b32 v{XB_+3}, 0
    s_waitcnt lgkmcnt(0)
    global_load_dwordx4 {vr(XA)}, v2, {sp(S_X)}
    s_mov_b32 exec_lo, 0x00ffffff
    s_mov_b32 exec_hi, 0x00ffffff
    global_load_dwordx4 {vr(XB_)}, v2, {sp(S_X)} offset:512
    s_mov_b64 exec, -1
    """)
    epoch_load(a)
    mk_srd(a, SRD_WS, S_WS, WS_SRD_SIZE)
    a(f"""
    s_mul_i32 s4, s{S_XX}, 28
    s_min_u32 s6, s{S_YY}, 27
    s_add_u32 s4, s4, s6                    ; cp
    s_lshr_b32 s6, s5, 1                    ; ch
    s_and_b32 s7, s5, 1                     ; hh
    s_lshl_b32 s8, s4, 1
    s_add_u32 s8, s8, s6                    ; d
    s_mul_i32 s9, s6, {CH_SZ}
    s_add_u32 s9, s9, {AUX_BASE}
    s_lshl_b32 s10, s8, 9
    s_lshl_b32 s11, s7, 8
    s_add_u32 s10, s10, s11
    v_lshl_add_u32 v1, v0, 2, s10
    global_load_dword v{RAW}, v1, {sp(S_LOGA)}
    global_load_dword v{RAW+1}, v1, {sp(S_AIM)}
    global_load_dword v{RAW+2}, v1, {sp(S_CRE)}
    global_load_dword v{RAW+3}, v1, {sp(S_CIM)}
    s_lshl_b32 s10, s4, 2
    s_load_dword s12, {sp(S_LOGDT)}, s10
    s_load_dword s13, {sp(S_DSKIP)}, s10
    """)
    if opt("cpf", 1):
        a(f"""
        s_cmp_lg_u32 s5, 3
        s_cbranch_scc1 KC_NOPF
        s_getpc_b64 s[14:15]
        L_PC:
        s_and_b32 s10, s{S_YY}, 7
        s_lshl_b32 s10, s10, 6
        v_add_u32 v2, s10, v0
        v_lshlrev_b32 v2, 7, v2
        s_sub_u32 s14, s14, (L_PC - L_START)
        s_subb_u32 s15, s15, 0
        v_min_u32 v2, (L_CODE_END - L_START - 4), v2
        v_mov_b32 v3, s15
        v_add_co_u32 v2, vcc, s14, v2
        v_addc_co_u32 v3, vcc, 0, v3, vcc
        global_load_dword v255, v[2:3], off
        KC_NOPF:
        """)
    a(f"""
    v_mov_b32 v12, 0
    v_mov_b32 v13, 0
    v_mov_b32 v14, 0
    v_mov_b32 v15, 0
    v_mov_b32 v1, s9
    s_cmp_lg_u32 s7, 0
    s_cbranch_scc1 KC_Z1
    s_mov_b64 exec, 15
    v_lshl_add_u32 v1, v0, 2, s9
    ds_write_b32 v1, v12 offset:{T0_OFF-16}
    s_mov_b64 exec, -1
    KC_Z1:
    """)
    a(f"""
    s_lshl_b32 s10, s7, 10
    s_sub_u32 s10, s10, 4
    v_lshl_add_u32 v16, v0, 3, s10
    s_add_u32 s11, s9, {T1_OFF}
    s_sub_u32 s14, s11, {4*0x4280}
    s_add_u32 s15, s11, 512
    v_cvt_f32_i32 v17, v16
    v_lshl_add_u32 v18, v16, 2, s11
    """)
    for r in range(2):
        for j in range(0, 12, 2):
            o = 512 * r + j
            g0 = GA + 12 * r + j
            a(f"""
            v_add_f32 v20, {hx(float(o))}, v17
            v_add_f32 v21, {hx(float(o+1))}, v17
            v_cvt_pk_bf16_f32 v20, v20, v21
            v_bfe_i32 v21, v20, 0, 16
            v_ashrrev_i32 v20, 16, v20
            v_lshl_add_u32 v21, v21, 2, s14
            v_lshl_add_u32 v20, v20, 2, s14
            v_add_u32 v22, {4*o}, v18
            v_add_u32 v23, {4*(o+1)}, v18
            v_med3_i32 v{g0}, v22, s15, v21
            v_med3_i32 v{g0+1}, v23, s15, v20
            """)
    a(f"""
    s_xor_b32 s10, s7, 1
    s_lshl_b32 s10, s10, 12
    s_add_u32 s11, s11, s10
    v_lshrrev_b32 v4, 4, v0                 ; g
    v_and_b32 v1, 15, v0                    ; c
    v_lshlrev_b32 v20, 4, v1
    v_lshl_add_u32 v20, v4, 2, v20
    v_lshl_add_u32 v{SC}, v20, 2, s11
    v_add_u32 v{SC}, 4, v{SC}
    v_lshlrev_b32 v20, 3, v1
    v_lshl_add_u32 v20, v4, 2, v20
    v_add_u32 v20, 257, v20
    v_lshlrev_b32 v21, 2, v1
    v_lshl_add_u32 v21, v4, 6, v21
    v_add_u32 v21, {385 - 128}, v21
    v_cmp_gt_u32 vcc, 2, v4
    v_cndmask_b32 v20, v21, v20, vcc
    v_lshl_add_u32 v{SC+1}, v20, 2, s11
    v_lshlrev_b32 v20, 1, v1
    v_lshl_add_u32 v20, v4, 6, v20
    v_add_u32 v20, 513, v20
    v_lshl_add_u32 v{SC+2}, v20, 2, s11
    """)
    a(f"""
    s_mov_b32 s70, s4                       ; cp
    s_mov_b32 s71, s5                       ; k
    s_mov_b32 s72, s8                       ; d
    s_mov_b32 s73, s9
    s_mov_b32 s74, s11
    s_mov_b32 s75, s7                       ; hh
    s_waitcnt lgkmcnt(0)
    """)
    tag_calc(a)
    a(f"""
    s_lshl_b32 s10, s6, 4
    s_lshr_b32 s12, s12, s10
    s_lshl_b32 s76, s12, 16                 ; log_dt (f32 bits)
    s_lshr_b32 s13, s13, s10
    s_lshl_b32 s77, s13, 16                 ; D_skip (f32 bits)
    s_barrier
    """)
    ts(a, 1)
    U = 40
    a("s_waitcnt vmcnt(4)" if not opt("cpf", 1) else "s_waitcnt vmcnt(4)")
    for i in range(8):
        s = XA + i
        a(f"v_lshlrev_b32 v{U+2*i}, 16, v{s}")
        a(f"v_and_b32 v{U+2*i+1}, 0xffff0000, v{s}")
    a(f"v_pk_add_f32 v[8:9], v[{U}:{U+1}], v[{U+2}:{U+3}]")
    a(f"v_pk_mul_f32 v[10:11], v[{U}:{U+1}], v[{U}:{U+1}]")
    a(f"v_pk_add_f32 v[12:13], v[{U+4}:{U+5}], v[{U+6}:{U+7}]")
    a(f"v_pk_mul_f32 v[14:15], v[{U+2}:{U+3}], v[{U+2}:{U+3}]")
    for i in range(2, 8):
        acc_ = 10 if i % 2 == 0 else 14
        a(f"v_pk_fma_f32 v[{acc_}:{acc_+1}], v[{U+2*i}:{U+2*i+1}], v[{U+2*i}:{U+2*i+1}], v[{acc_}:{acc_+1}]")
        if i >= 4:
            acc2 = 8 if i % 2 == 0 else 12
            a(f"v_pk_add_f32 v[{acc2}:{acc2+1}], v[{acc2}:{acc2+1}], v[{U+2*i}:{U+2*i+1}]")
    a("""
    v_pk_add_f32 v[8:9], v[8:9], v[12:13]
    v_pk_add_f32 v[10:11], v[10:11], v[14:15]
    v_add_f32 v8, v8, v9
    v_add_f32 v10, v10, v11
    """)
    for m in ("quad_perm:[1,0,3,2]", "quad_perm:[2,3,0,1]", "row_half_mirror", "row_mirror"):
        for r in (8, 10):
            a(f"v_add_f32_dpp v{r}, v{r}, v{r} {m} row_mask:0xf bank_mask:0xf")
    a("""
    v_mov_b32 v9, v8
    v_mov_b32 v11, v10
    v_permlane16_swap_b32 v8, v9
    v_permlane16_swap_b32 v10, v11
    v_add_f32 v8, v8, v9
    v_add_f32 v10, v10, v11
    """)
    a(f"""
    v_mul_f32 v8, {hx(1.0/448)}, v8         ; mean
    v_mul_f32 v10, {hx(1.0/448)}, v10
    v_fma_f32 v10, -v8, v8, v10             ; var
    v_max_f32 v10, 0, v10
    """)
    bf16r(a, 12, 8)
    bf16r(a, 13, 10)
    a(f"v_add_f32 v13, {hx(1e-5)}, v13")
    bf16r(a, 13, 13)
    a("v_sqrt_f32 v13, v13")
    bf16r(a, 13, 13)
    a("v_rcp_f32 v14, v13")
    a("""
    v_sub_f32 v15, v8, v12
    v_mul_f32 v16, v12, v14
    v_mul_f32 v15, v15, v14
    v_sub_f32 v17, 0, v16
    v_mul_f32 v18, v10, v14
    """)
    for i in range(8):
        a(f"v_pk_fma_f32 v[{U+2*i}:{U+2*i+1}], v[{U+2*i}:{U+2*i+1}], v[14:15], v[16:17] op_sel:[0,0,1] op_sel_hi:[1,0,1]")
        if i == 0:
            bf16r(a, 15, 15)
            a("v_mul_f32 v18, v18, v14")
        if i == 2:
            bf16r(a, 18, 18)
            a(f"v_add_f32 v18, {hx(1e-5)}, v18")
        if i == 4:
            bf16r(a, 18, 18)
            a("v_sqrt_f32 v18, v18")
        if i == 6:
            bf16r(a, 18, 18)
            a("v_rcp_f32 v18, v18")
    for i in range(8):
        a(f"v_cvt_pk_bf16_f32 v{XA+i}, v{U+2*i}, v{U+2*i+1}")
    a(f"""
    v_mul_f32 v20, v14, v18                 ; alpha
    v_fma_f32 v22, v15, v13, v12
    v_sub_f32 v22, 0, v22
    v_mov_b32 v21, s{S_TAG}
    v_mov_b32 v23, s{S_TAG}
    v_lshlrev_b32 v24, 4, v30
    v_add_u32 v24, {STAT_OFF}, v24
    s_mov_b32 exec_lo, 1
    s_mov_b32 exec_hi, 1
    global_store_dwordx4 v24, v[20:23], {sp(S_WS)} sc1
    s_mov_b64 exec, -1
    s_lshr_b32 s6, s71, 1
    s_mul_i32 s6, s6, {CH_SZ}
    s_and_b32 s7, s71, 1
    s_mul_i32 s7, s7, {2*896}
    s_add_u32 s6, s6, s7
    s_add_u32 s6, s6, {AUX_BASE + U_OFF}
    v_lshrrev_b32 v1, 5, v0
    v_mul_u32_u24 v1, 896, v1
    v_and_b32 v2, 31, v0
    v_lshl_add_u32 v1, v2, 4, v1
    v_add_u32 v1, s6, v1
    ds_write_b128 v1, {vr(XA)}
    s_mov_b32 exec_lo, 0x00ffffff
    s_mov_b32 exec_hi, 0x00ffffff
    ds_write_b128 v1, {vr(XB_)} offset:512
    s_mov_b64 exec, 1
    v_mov_b32 v8, {CNT_LNS}
    v_mov_b32 v9, 1
    s_waitcnt lgkmcnt(0)
    ds_add_u32 v8, v9
    s_mov_b64 exec, -1
    v_mov_b32 v8, {CNT_LNS}
    v_lshrrev_b32 v10, 4, v0
    v_bfe_u32 v9, v0, 2, 2
    v_mul_u32_u24 v9, 896, v9
    v_lshl_add_u32 v9, v10, 5, v9
    v_and_b32 v10, 3, v0
    v_lshl_add_u32 v9, v10, 3, v9
    s_lshl_b32 s10, s71, 7
    s_add_u32 s10, s10, {AUX_BASE + U_OFF}
    v_add_u32 v9, s10, v9
    s_lshl_b32 s10, s{S_XX}, 5
    s_add_u32 s10, s10, s{S_YY}
    s_mul_i32 s10, s10, 7168
    s_lshl_b32 s11, s71, 10
    s_add_u32 s10, s10, s11
    s_add_u32 s10, s10, {XB_OFF}
    v_lshlrev_b32 v10, 4, v0
    """)
    spin_lds(a, 11, 8, 0, 4)
    a(f"""
    ds_read_b64_tr_b16 v[12:13], v9
    ds_read_b64_tr_b16 v[14:15], v9 offset:{CH_SZ}
    ds_read_b64_tr_b16 v[16:17], v9 offset:512
    ds_read_b64_tr_b16 v[18:19], v9 offset:{CH_SZ+512}
    s_waitcnt lgkmcnt(2)
    buffer_store_dwordx4 v[12:15], v10, {srd(SRD_WS)}, s10 offen sc1
    s_cmp_eq_u32 s71, 3
    s_cbranch_scc1 LNS_SKIP
    s_add_u32 s10, s10, 4096
    s_waitcnt lgkmcnt(0)
    buffer_store_dwordx4 v[16:19], v10, {srd(SRD_WS)}, s10 offen sc1
    LNS_SKIP:
    s_waitcnt lgkmcnt(0)
    """)
    ts(a, 2)
    def ln_publish():
        a(f"""
        s_lshl_b32 s10, s{S_XX}, 5
        s_add_u32 s10, s10, s{S_YY}
        s_lshl_b32 s10, s10, 2
        s_add_u32 s10, s10, {FL_LN}
        """)
        publish(a, CNT_LN, 4, 10, 8, 9)
    if opt("wpf", 1):
        a(f"""
        s_lshl_b32 s10, s{S_YY}, 3
        s_lshl_b32 s11, s71, 1
        s_add_u32 s10, s10, s11
        s_mul_i32 s10, s10, {49*128}
        v_lshl_add_u32 v1, v0, 7, s10
        s_mov_b32 exec_lo, -1
        s_mov_b32 exec_hi, 0x1ffff
        """)
    a(f"""
    s_cmp_lt_u32 s{S_YY}, 28
    s_cbranch_scc1 KC_GO
    """)
    if opt("wpf", 1):
        a(f"""
        global_load_dword v251, v1, {sp(S_W2)}
        global_load_dword v253, v1, {sp(S_W2)} offset:0
        """)
        a(f"v_add_u32 v1, {49*128}, v1")
        a(f"global_load_dword v253, v1, {sp(S_W2)}")
    a("s_mov_b64 exec, -1")
    ln_publish()
    a("s_branch L_END")
    a("KC_GO:")
    a("s_mov_b64 exec, -1")
    Z1, Z2, Z4, Z8, Z16, CHN, C2, A2S, A4S, A8S, Z256, Z512, Z1024, ST_ = 32, 36, 40, 44, 48, 52, 56, 60, 64, 68, 72, 76, 80, 84
    DT = [92, 96, 100]
    RB, RA0, RA1 = 108, 140, 172
    VMY, VOT, VT = 6, 7, 5
    VTR = 3
    VTW = [24, 25, 26, 27]
    CV = 16
    a(f"""
    s_mov_b32 s7, s75
    s_mov_b32 s9, s73
    s_lshl_b32 s10, s7, 2
    s_add_u32 s10, s10, s9
    s_add_u32 s10, s10, {AF_OFF}
    v_mov_b32 v{VMY}, s10
    s_xor_b32 s10, s10, 4
    v_mov_b32 v{VOT}, s10
    s_mul_i32 s10, s7, {TILE_SZ}
    s_add_u32 s10, s10, s9
    v_lshl_add_u32 v{VTW[0]}, v0, 3, s10
    v_add_u32 v{VTW[1]}, {4*TROW}, v{VTW[0]}
    v_add_u32 v{VTW[2]}, {8*TROW}, v{VTW[0]}
    v_add_u32 v{VTW[3]}, {12*TROW}, v{VTW[0]}
    v_and_b32 v1, 15, v0
    v_mul_u32_u24 v{VTR}, {TROW}, v1
    v_lshrrev_b32 v4, 4, v0
    v_lshl_add_u32 v{VTR}, v4, 4, v{VTR}
    v_add_u32 v{VTR}, s10, v{VTR}
    v_mov_b32 v1, {hx(LOG2E)}
    v_mul_f32 v4, s76, v1
    v_exp_f32 v4, v4
    """)
    bf16r(a, 4, 4)
    a(f"""
    s_waitcnt vmcnt(3)
    """)
    a(f"""
    s_waitcnt vmcnt(2)
    v_lshlrev_b32 v12, 16, v{RAW}
    v_and_b32 v13, 0xffff0000, v{RAW}
    v_mul_f32 v12, v12, v1
    v_mul_f32 v13, v13, v1
    v_exp_f32 v12, v12
    v_exp_f32 v13, v13
    v_cvt_pk_bf16_f32 v12, v12, v13
    v_lshlrev_b32 v14, 16, v12
    v_and_b32 v15, 0xffff0000, v12
    v_mul_f32 v14, v14, v4
    v_mul_f32 v15, v15, v4
    v_mul_f32 v14, v14, v1
    v_mul_f32 v15, v15, v1
    v_exp_f32 v14, -v14
    v_exp_f32 v15, -v15
    v_lshlrev_b32 v16, 16, v{RAW+1}
    v_and_b32 v17, 0xffff0000, v{RAW+1}
    v_mul_f32 v16, v16, v4
    v_mul_f32 v17, v17, v4
    v_mul_f32 v16, 0.15915494, v16
    v_mul_f32 v17, 0.15915494, v17
    v_rndne_f32 v18, v16
    v_rndne_f32 v19, v17
    v_sub_f32 v16, v16, v18
    v_sub_f32 v17, v17, v19
    v_cos_f32 v18, v16
    v_sin_f32 v19, v16
    v_cos_f32 v20, v17
    v_sin_f32 v21, v17
    v_mul_f32 v{Z1}, v14, v18
    v_mul_f32 v{Z1+1}, v14, v19
    v_mul_f32 v{Z1+2}, v15, v20
    v_mul_f32 v{Z1+3}, v15, v21
    v_add_f32 v4, v4, v4
    v_lshlrev_b32 v16, 16, v{RAW+2}
    v_and_b32 v17, 0xffff0000, v{RAW+2}
    v_lshlrev_b32 v18, 16, v{RAW+3}
    v_and_b32 v19, 0xffff0000, v{RAW+3}
    v_mul_f32 v{C2}, v16, v4
    v_mul_f32 v{C2+1}, v18, v4
    v_mul_f32 v{C2+2}, v17, v4
    v_mul_f32 v{C2+3}, v19, v4
    """)
    PRIME.update({Z1: (88, 90), Z2: (104, 106), Z4: (238, 240), Z8: (242, 244), Z16: (246, 248), Z256: (250, 252), Z512: (28, 30), Z1024: (254, 232)})
    mkprime(a, Z1); cm(a, Z2, Z1, Z1); mkprime(a, Z2); cm(a, Z4, Z2, Z2); mkprime(a, Z4); cm(a, Z8, Z4, Z4); mkprime(a, Z8); cm(a, Z16, Z8, Z8); mkprime(a, Z16)
    state = {"n": 0}
    def cvt(src, conj, slot):
        neg = "-" if conj else ""
        c = CV + 2 * slot
        a(f"v_cvt_pk_bf16_f32 v{c}, v{src}, {neg}v{src+1}")
        a(f"v_cvt_pk_bf16_f32 v{c+1}, v{src+2}, {neg}v{src+3}")
        return c
    def wr2(r0, c0, r1, c1):
        q = r0 // 4
        o0 = (r0 - 4 * q) * TROW // 8; o1 = (r1 - 4 * q) * TROW // 8
        assert 0 <= o0 <= 255 and 0 <= o1 <= 255
        a(f"ds_write2_b64 v{VTW[q]}, v[{c0}:{c0+1}], v[{c1}:{c1+1}] offset0:{o0} offset1:{o1}")
    def wr1(r, c):
        a(f"ds_write_b64 v{VTW[0]}, v[{c}:{c+1}] offset:{r*TROW}")
    def chain(reg, ratio, rows, conj, save=None, last_mul=False):
        pend = None
        for i, r in enumerate(rows):
            slot = (state["n"] % 4); state["n"] += 1
            c = cvt(reg, conj, slot)
            if save and r in save:
                s = save[r]
                a(f"v_mov_b64 v[{s}:{s+1}], v[{reg}:{reg+1}]")
                a(f"v_mov_b64 v[{s+2}:{s+3}], v[{reg+2}:{reg+3}]")
            if i + 1 < len(rows) or last_mul:
                cm(a, reg, reg, ratio)
            if pend is None:
                if i + 1 < len(rows) and rows[i + 1] // 4 == r // 4 and abs(rows[i + 1] - r) * TROW // 8 <= 255:
                    pend = (r, c)
                else:
                    wr1(r, c)
            else:
                wr2(pend[0], pend[1], r, c); pend = None
        assert pend is None
    def rd(dest):
        for kk in range(8):
            a(f"ds_read_b128 {vr(dest+4*kk)}, v{VTR} offset:{64*kk}")
    def mm(dt, A):
        for kk in range(8):
            c = "0" if kk == 0 else vr(DT[dt])
            a(f"v_mfma_f32_16x16x32_bf16 {vr(DT[dt])}, {vr(A+4*kk)}, {vr(RB+4*kk)}, {c}")
    a(f"""
    v_mov_b32 v{CV+6}, 0x3f80
    v_mov_b32 v{CV+7}, 0x3f80
    v_mov_b64 v[{CHN}:{CHN+1}], v[{Z16}:{Z16+1}]
    v_mov_b64 v[{CHN+2}:{CHN+3}], v[{Z16+2}:{Z16+3}]
    """)
    wr1(0, CV + 6)
    state["n"] = 0
    chain(CHN, Z16, [1], True, last_mul=True)
    chain(CHN, Z16, list(range(2, 16)), True, last_mul=True)
    rd(RB)
    a(f"v_mov_b64 v[{Z256}:{Z256+1}], v[{CHN}:{CHN+1}]")
    a(f"v_mov_b64 v[{Z256+2}:{Z256+3}], v[{CHN+2}:{CHN+3}]")
    mkprime(a, Z256)
    ln_publish()
    if opt("wpf", 1):
        a(f"""
        s_lshl_b32 s10, s{S_YY}, 3
        s_lshl_b32 s11, s71, 1
        s_add_u32 s10, s10, s11
        s_mul_i32 s10, s10, {49*128}
        v_lshl_add_u32 v1, v0, 7, s10
        s_mov_b32 exec_lo, -1
        s_mov_b32 exec_hi, 0x1ffff
        global_load_dword v251, v1, {sp(S_W2)}
        v_add_u32 v1, {49*128}, v1
        global_load_dword v253, v1, {sp(S_W2)}
        s_mov_b64 exec, -1
        """)
    cm(a, CHN, C2, Z1)
    chain(CHN, Z1, list(range(16)), False, save={1: A2S, 3: A4S, 7: A8S})
    rd(RA0)
    cm(a, Z512, Z256, Z256)
    mkprime(a, Z512)
    cm(a, CHN, A2S, Z256)
    cm(a, Z1024, Z512, Z512)
    mkprime(a, Z1024)
    cm(a, ST_, A4S, Z512)
    chain(CHN, Z2, list(range(8)), False)
    a("s_waitcnt lgkmcnt(4)")
    mm(0, RA0)
    cm(a, CHN, ST_, Z256)
    chain(ST_, Z4, list(range(8, 12)), False)
    chain(CHN, Z4, list(range(12, 16)), False)
    rd(RA1)
    cm(a, CHN, A8S, Z1024)
    cm(a, ST_, CHN, Z8)
    def a2():
        for tau in range(4):
            c0 = cvt(CHN, False, (2 * tau) % 4)
            c1 = cvt(ST_, False, (2 * tau + 1) % 4)
            if tau < 3:
                cmul_n(a, both(CHN, CHN, Z256) + both(ST_, ST_, Z256))
            wr2(2 * tau, c0, 2 * tau + 1, c1)
        c = cvt(C2, False, 0)
        wr1(8, c)
    a2()
    rd(RA0)
    a("s_waitcnt lgkmcnt(8)")
    mm(1, RA1)
    a("s_waitcnt lgkmcnt(0)")
    mm(2, RA0)
    ts(a, 3)
    a(f"""
    ds_write_b128 v{SC}, {vr(DT[0])}
    ds_write_b128 v{SC+1}, {vr(DT[1])}
    s_mov_b32 exec_lo, -1
    s_mov_b32 exec_hi, 0
    ds_write2_b64 v{SC+2}, v[{DT[2]}:{DT[2]+1}], v[{DT[2]+2}:{DT[2]+3}] offset0:0 offset1:16
    s_mov_b32 exec_lo, 0
    s_mov_b32 exec_hi, 1
    v_mov_b32 v1, s74
    ds_write_b32 v1, v{DT[2]}
    s_mov_b64 exec, -1
    v_mov_b32 v12, 0
    v_mov_b32 v13, 0
    v_mov_b32 v14, 0
    v_mov_b32 v15, 0
    s_cmp_eq_u32 s7, 0
    s_cbranch_scc1 KC_Z2
    v_lshl_add_u32 v1, v0, 2, s74
    s_mov_b64 exec, 15
    v_subrev_u32 v1, 16, v1
    ds_write_b32 v1, v12
    s_mov_b64 exec, 0x3fffffff
    v_lshl_add_u32 v1, v0, 4, s9
    ds_write_b128 v1, v[12:15] offset:{U_PAD}
    s_mov_b64 exec, -1
    KC_Z2:
    v_lshlrev_b32 v1, 4, v0
    v_add_u32 v1, {FL_LN}, v1
    """)
    pair_sync(a, 1, VMY, VOT, VT)
    ts(a, 4)
    for r in range(2):
        G = 32 + 24 * r
        for j in range(12):
            a(f"ds_read2st64_b32 v[{G+2*j}:{G+2*j+1}], v{GA+12*r+j} offset0:0 offset1:16")
    poll_flags(a, 1, 64, 8, wide=True)
    a(f"""
    s_lshl_b32 s10, s7, 7
    v_add_u32 v1, s10, v0
    v_mul_u32_u24 v1, 7168, v1
    s_lshl_b32 s10, s72, 4
    s_add_u32 s10, s10, {XB_OFF}
    buffer_load_dwordx4 v[112:115], v1, {srd(SRD_WS)}, s10 offen sc1
    s_add_u32 s10, s10, {64*7168}
    buffer_load_dwordx4 v[116:119], v1, {srd(SRD_WS)}, s10 offen sc1
    s_lshl_b32 s10, s7, 11
    s_add_u32 s10, s10, s9
    s_add_u32 s10, s10, 32
    v_lshl_add_u32 v2, v0, 4, s10
    v_add_u32 v3, {2*CSTR}, v2
    s_waitcnt lgkmcnt(0)
    """)
    ts(a, 5)
    for r in range(2):
        G = 32 + 24 * r
        P = 80 + 16 * r
        p = lambda k: {0: P+8, 1: P+4, 2: P+0, 3: P+1, 4: P+2, 5: P+3}[k]
        for j in range(12):
            a(f"v_add_f32 v{G+2*j}, v{G+2*j}, v{G+2*j+1}")
        for k in range(6):
            a(f"v_cvt_pk_bf16_f32 v{p(k)}, v{G+4*k}, v{G+4*k+2}")
        a(f"""
        v_mov_b32 v{P+5}, v{p(2)}
        v_mov_b32 v{P+6}, v{p(3)}
        v_mov_b32 v{P+7}, v{p(4)}
        v_alignbit_b32 v120, v{p(2)}, v{p(1)}, 16
        v_alignbit_b32 v121, v{p(3)}, v{p(2)}, 16
        v_alignbit_b32 v122, v{p(4)}, v{p(3)}, 16
        v_alignbit_b32 v123, v{p(5)}, v{p(4)}, 16
        v_alignbit_b32 v124, v{p(1)}, v{p(0)}, 16
        v_mov_b32 v125, v120
        v_mov_b32 v126, v121
        v_mov_b32 v127, v122
        ds_write_b128 v2, v[{P}:{P+3}] offset:{1024*r}
        ds_write_b128 v2, v[120:123] offset:{1024*r + CSTR}
        ds_write_b128 v3, v[{P+4}:{P+7}] offset:{1024*r}
        ds_write_b128 v3, v[124:127] offset:{1024*r + CSTR}
        """)
    a(f"""
    s_cmp_lg_u32 s7, 0
    s_cbranch_scc1 KC_Z3
    v_lshrrev_b32 v1, 1, v0
    v_mul_u32_u24 v1, {CSTR}, v1
    v_and_b32 v4, 1, v0
    v_lshl_add_u32 v1, v4, 4, v1
    v_add_u32 v1, s9, v1
    v_mov_b32 v12, 0
    v_mov_b32 v13, 0
    v_mov_b32 v14, 0
    v_mov_b32 v15, 0
    s_mov_b64 exec, 0xff
    ds_write_b128 v1, v[12:15]
    s_mov_b64 exec, -1
    KC_Z3:
    """)
    VA_, VB_ = 2, 3
    BR, AR, CACC = 32, 64, 80
    pair_sync(a, 2, VMY, VOT, VT)
    a(f"""
    s_lshl_b32 s10, s7, 11
    s_add_u32 s10, s10, s9
    v_lshl_add_u32 v1, v0, 4, s10
    s_waitcnt vmcnt(0)
    ds_write_b128 v1, v[112:115] offset:{U_OFF}
    ds_write_b128 v1, v[116:119] offset:{U_OFF+1024}
    v_lshrrev_b32 v4, 4, v0
    v_bfe_u32 v8, v0, 2, 2
    v_mul_u32_u24 v8, {CSTR}, v8
    v_and_b32 v9, 3, v0
    v_lshl_add_u32 v8, v9, 3, v8
    v_lshrrev_b32 v9, 1, v4
    v_and_b32 v10, 1, v4
    v_lshlrev_b32 v11, 5, v9
    v_lshlrev_b32 v12, 4, v10
    v_add_u32 v8, v8, v11
    v_sub_u32 v8, v8, v12
    s_lshl_b32 s10, s7, 8
    s_add_u32 s14, s10, s9
    s_add_u32 s14, s14, {32 - 8}
    v_add_u32 v{VA_}, s14, v8
    v_and_b32 v8, 15, v0
    v_lshlrev_b32 v8, 5, v8
    v_sub_u32 v8, v8, v11
    v_add_u32 v8, v8, v12
    s_sub_u32 s14, s9, s10
    s_add_u32 s14, s14, {U_OFF}
    v_add_u32 v{VB_}, s14, v8
    """)
    for i in range(32):
        a(f"v_mov_b32 v{CACC+i}, 0")
    pair_sync(a, 3, VMY, VOT, VT)
    ts(a, 6)
    def ldA(P):
        buf = AR + 4 * (P % 4)
        off = 512 * (P % 8) + (64 if P >= 8 else 0)
        a(f"ds_read_b64_tr_b16 v[{buf}:{buf+1}], v{VA_} offset:{off+8}")
        a(f"ds_read_b64_tr_b16 v[{buf+2}:{buf+3}], v{VA_} offset:{off}")
    for s in range(7, -1, -1):
        a(f"ds_read_b128 {vr(BR+4*s)}, v{VB_} offset:{512*s}")
    for P in range(3):
        ldA(P)
    a(f"""
    v_subrev_u32 v{VB_}, 64, v{VB_}
    s_mov_b32 s10, 4
    s_waitcnt lgkmcnt(0)
    CONV_LOOP:
    """)
    for P in range(8):
        a("s_waitcnt lgkmcnt(7)")
        ldA(P + 3)
        first = True
        for s in range(7 - P, -1, -1):
            if P == 0 and s <= 2:
                a(f"s_waitcnt lgkmcnt({3*(s+1)})")
            a(f"v_mfma_f32_16x16x32_bf16 {vr(CACC+4*(P+s))}, {vr(AR+4*(P%4))}, {vr(BR+4*s)}, {vr(CACC+4*(P+s))}")
            if first:
                a(f"ds_read_b128 {vr(BR+4*s)}, v{VB_} offset:{512*s}")
                first = False
    a(f"""
    v_add_u32 v{VA_}, 64, v{VA_}
    v_subrev_u32 v{VB_}, 64, v{VB_}
    s_sub_u32 s10, s10, 1
    s_cmp_lg_u32 s10, 0
    s_cbranch_scc1 CONV_LOOP
    """)
    ts(a, 7)
    pair_sync(a, 4, VMY, VOT, VT)
    a(f"""
    s_lshl_b32 s10, s7, 12
    s_add_u32 s10, s10, s9
    v_lshl_add_u32 v2, v0, 4, s10
    v_xor_b32 v3, 4096, v2
    s_cmp_lg_u32 s7, 0
    s_cbranch_scc1 KC_X1
    """)
    assert AUX_BASE % 8192 == 0 and CH_SZ % 8192 == 0
    for t in range(4):
        a(f"ds_write_b128 v2, {vr(CACC+16+4*t)} offset:{1024*t}")
    a("s_branch KC_X2")
    a.label("KC_X1")
    for t in range(4):
        a(f"ds_write_b128 v2, {vr(CACC+4*t)} offset:{1024*t}")
    for i in range(0, 16, 2):
        a(f"v_mov_b64 v[{CACC+i}:{CACC+i+1}], v[{CACC+16+i}:{CACC+17+i}]")
    a.label("KC_X2")
    a(f"""
    v_and_b32 v8, 15, v0
    v_lshlrev_b32 v8, 5, v8
    v_lshrrev_b32 v4, 4, v0
    v_lshl_add_u32 v8, v4, 3, v8
    s_lshl_b32 s10, s7, 11
    v_add_u32 v8, s10, v8
    s_add_u32 s14, s9, {U_OFF}
    v_add_u32 v9, s14, v8
    """)
    for t in range(4):
        a(f"ds_read_b64 v[{48+2*t}:{49+2*t}], v9 offset:{512*t}")
    pair_sync(a, 5, VMY, VOT, VT)
    for t in range(4):
        a(f"ds_read_b128 {vr(32+4*t)}, v3 offset:{1024*t}")
    a(f"""
    s_lshl_b32 s10, s72, 12
    s_add_u32 s10, s10, {ST_OFF}
    v_mov_b32 v10, s77
    v_mov_b32 v11, s77
    """)
    for t in range(4):
        A = CACC + 4 * t; X = 48 + 2 * t; Pp = 32 + 4 * t
        a(f"""
        v_lshlrev_b32 v12, 16, v{X}
        v_and_b32 v13, 0xffff0000, v{X}
        v_lshlrev_b32 v14, 16, v{X+1}
        v_and_b32 v15, 0xffff0000, v{X+1}
        v_pk_fma_f32 v[{A}:{A+1}], v[12:13], v[10:11], v[{A}:{A+1}]
        v_pk_fma_f32 v[{A+2}:{A+3}], v[14:15], v[10:11], v[{A+2}:{A+3}]
        s_waitcnt lgkmcnt({3-t})
        v_pk_add_f32 v[{A}:{A+1}], v[{A}:{A+1}], v[{Pp}:{Pp+1}]
        v_pk_add_f32 v[{A+2}:{A+3}], v[{A+2}:{A+3}], v[{Pp+2}:{Pp+3}]
        v_cvt_pk_bf16_f32 v{24+2*(t%2)}, v{A}, v{A+1}
        v_cvt_pk_bf16_f32 v{25+2*(t%2)}, v{A+2}, v{A+3}
        buffer_store_dwordx2 v[{24+2*(t%2)}:{25+2*(t%2)}], v8, {srd(SRD_WS)}, s10 offen offset:{512*t} sc1
        """)
    ts(a, 8)
    a(f"""
    s_lshl_b32 s10, s70, 2
    s_add_u32 s10, s10, {FL_CV}
    """)
    publish(a, CNT_CV, 4, 10, 8, 9)
    ts(a, 9)

def build():
    a = Asm()
    a.label("L_START")
    prologue(a)
    g_path(a)
    ts_dump(a)
    a("s_branch L_END")
    a.label("R_SPARE_G")
    spare_g(a)
    a.label("R_AUX")
    kc_path(a)
    ts_dump(a)
    a("s_branch L_END")
    for t in TAIL: a(t)
    return a

def finish(a, name, vgpr=256):
    lines, npad = pad_hazards(a.lines)
    body = "\n".join(("    " + l if not l.endswith(":") else l) for l in lines)
    body = body.replace("L_END", f"{name}_END").replace("L_BAIL", f"{name}_BAIL")
    hdr = open(f"cdna_kernels/{NAME}.s.ref").read().split("; Override launch")[0].rstrip("\n")
    txt = f"""{hdr}
; @launch grid=(256,1,1) block=(512,1,1) lds=163840
.amdgcn_target "amdgcn-amd-amdhsa--gfx950"
.text
.globl {name}
.p2align 8
.type {name},@function
{name}:
{body}
{name}_BAIL:
    s_mov_b64 exec, 1
    v_mov_b32 v1, 0
    v_mov_b32 v2, s2
    v_lshl_or_b32 v2, v2, 4, s3
    v_or_b32 v2, 0xbad00000, v2
    global_store_dword v1, v2, s[42:43]
    s_waitcnt vmcnt(0)
{name}_END:
    s_endpgm
L_CODE_END:
.section .rodata,"a"
.p2align 6
.amdhsa_kernel {name}
  .amdhsa_next_free_vgpr {vgpr}
  .amdhsa_next_free_sgpr 102
  .amdhsa_accum_offset {vgpr}
  .amdhsa_group_segment_fixed_size 0
  .amdhsa_kernarg_size 120
  .amdhsa_user_sgpr_count 2
  .amdhsa_user_sgpr_kernarg_segment_ptr 1
  .amdhsa_system_sgpr_workgroup_id_x 1
.end_amdhsa_kernel
"""
    print(f"{len(lines)} lines, {npad} nops", file=sys.stderr)
    return txt

if __name__ == "__main__":
    out = sys.argv[1]
    if len(sys.argv) > 2 and sys.argv[2] == "ts": TS_ON = True
    a = build()
    open(out, "w").write(finish(a, NAME + "_kernel"))
```

```python
import sys, math, struct, os
sys.path.insert(0, "gen")
from asmlib import Asm, pad_hazards

NAME = "recurrent_scan__ssm_conv_s4d__mixer_channel_mlp__prompt"
L, D, N, F = 2048, 448, 256, 1792
H_OFF, XB_OFF, ST_OFF, FLAG_OFF = 0, 0x700000, 0x8C0000, 0xA80000
FL_LN, FL_G1, FL_CV, FL_EPOCH = FLAG_OFF, FLAG_OFF + 0x1000, FLAG_OFF + 0x2000, FLAG_OFF + 0x3000
STAT_OFF = FLAG_OFF + 0x4000
SF_OFF = FLAG_OFF + 0xC000
TS_OFF = 0xE00000
WS_SRD_SIZE = 0x1000000
X_BYTES = L * D * 2
W_BYTES = D * F * 2
LOG2E = math.log2(math.e)

def f2u(x): return struct.unpack("<I", struct.pack("<f", x))[0]
def hx(x): return hex(f2u(x))

S_X, S_LOGA, S_AIM, S_CRE, S_CIM, S_LOGDT, S_DSKIP, S_BX, S_W1, S_B1, S_W2, S_B2, S_OUT, S_DBG, S_WS = \
    16, 18, 20, 22, 24, 26, 28, 30, 32, 34, 36, 38, 40, 42, 44
S_EPOCH, S_TAG = 46, 47
SRD_W1, SRD_X, SRD_WS, SRD_OUT, SRD_W2 = 48, 52, 56, 60, 64
S_BUD = 69
S_XX, S_YY = 78, 79

def sp(b): return f"s[{b}:{b+1}]"
def srd(b): return f"s[{b}:{b+3}]"
def vr(b, n=4): return f"v[{b}:{b+n-1}]" if n > 1 else f"v{b}"

SLOT = 16384; NSLOT = 7
AUX_BASE = NSLOT * SLOT
CH_SZ = 24576
TILE_SZ = 8704; TROW = 544
CSTR = 4160
U_OFF = 17376; U_PAD = U_OFF - 480
T1_OFF = U_OFF + 28
T0_OFF = T1_OFF + 4096
FREE = 24064
GFLAG = AUX_BASE + FREE
CNT_G1, CNT_LN, CNT_CV, CNT_LNS = GFLAG + 16, GFLAG + 20, GFLAG + 24, GFLAG + 28
G2FLAG = GFLAG + 32
AF_OFF = FREE + 64
DUMMY = AUX_BASE + CH_SZ + FREE + 256
G2_PSTR = 272; G2_WREG = 28672; G2_STILE = 17408; G2_SSTR = 144

OPT = dict(kv.split("=") for kv in os.environ.get("G3OPT", "").split(",") if kv)
def opt(k, d): return int(OPT.get(k, d))

TS_ON = False
TSG = os.environ.get("TSG", "g1,g2,g3,g4,g5,g6,g7,g8,g9").split(",")
TSK = os.environ.get("TSK", "k1,k2,k3,k4,k5,k6,k7,k8,k9").split(",")
def ts(a, name, wait=True):
    if not TS_ON: return
    lst = TSG if name.startswith("g") else TSK
    if name not in lst: return
    i = 1 + lst.index(name)
    assert i <= 9
    a(f"s_memtime s[{80+2*i}:{81+2*i}]")
    if wait and opt("tswait", 1): a("s_waitcnt lgkmcnt(0)")
def ts_dump(a, n=10):
    if not TS_ON: return
    a(f"""
    s_memrealtime s[70:71]
    s_waitcnt lgkmcnt(0)
    s_lshl_b32 s76, s2, 3
    s_add_u32 s76, s76, s3
    s_lshl_b32 s76, s76, 7
    s_add_u32 s76, s76, {TS_OFF}
    s_add_u32 s74, s{S_WS}, s76
    s_addc_u32 s75, s{S_WS+1}, 0
    v_mov_b32 v1, 0
    """)
    for i in range(n):
        a(f"""
        v_mov_b32 v2, s{80+2*i}
        v_mov_b32 v3, s{81+2*i}
        global_store_dwordx2 v1, v[2:3], s[74:75] offset:{8*i}
        """)
    a(f"""
    v_mov_b32 v2, s70
    v_mov_b32 v3, s71
    global_store_dwordx2 v1, v[2:3], s[74:75] offset:{8*n}
    v_mov_b32 v2, s100
    v_mov_b32 v3, s101
    global_store_dwordx2 v1, v[2:3], s[74:75] offset:{8*n+8}
    s_waitcnt vmcnt(0)
    """)

class VM:
    def __init__(self): self.ops = []
    def issue(self, tag): self.ops.append(tag)
    def wait(self, a, tag):
        idx = max(i for i, t in enumerate(self.ops) if t == tag)
        n = len(self.ops) - 1 - idx
        a(f"s_waitcnt vmcnt({min(n, 63)})")
    def all(self, a):
        a("s_waitcnt vmcnt(0)")

def mk_srd(a, dst, base, size):
    a(f"""
    s_mov_b32 s{dst}, s{base}
    s_mov_b32 s{dst+1}, s{base+1}
    s_mov_b32 s{dst+2}, {hex(size)}
    s_mov_b32 s{dst+3}, 0x00020000
    """)

def bf16r(a, dst, src):
    a(f"v_cvt_pk_bf16_f32 v{dst}, v{src}, v{src}")
    a(f"v_and_b32 v{dst}, 0xffff0000, v{dst}")

def budget(a):
    a(f"s_sub_u32 s{S_BUD}, s{S_BUD}, 1")
    a("s_cbranch_scc1 L_BAIL")

TAIL = []
def spin_lds(a, tmp, addr_v, off, target):
    lab = a.newlabel("SPIN")
    a(f"{lab}:")
    budget(a)
    a(f"""
    ds_read_b32 v{tmp}, v{addr_v} offset:{off}
    s_waitcnt lgkmcnt(0)
    v_cmp_gt_u32 vcc, {target}, v{tmp}
    s_cbranch_vccnz {lab}
    """)

def check_flag(a, vval, vaddr, target):
    s = a.newlabel("CF"); b = a.newlabel("CFB")
    a(f"v_cmp_gt_u32 vcc, {target}, v{vval}")
    a(f"s_cbranch_vccnz {s}")
    a(f"{b}:")
    TAIL.append(f"""
    {s}:
    s_sub_u32 s{S_BUD}, s{S_BUD}, 1
    s_cbranch_scc1 L_BAIL
    ds_read_b32 v{vval}, v{vaddr}
    s_waitcnt lgkmcnt(0)
    v_cmp_gt_u32 vcc, {target}, v{vval}
    s_cbranch_vccnz {s}
    s_branch {b}
    """)

def publish(a, cnt_addr, nwaves, flag_off_s, vt0, vt1):
    lab = a.newlabel("PUB")
    a(f"""
    s_waitcnt vmcnt(0)
    v_mov_b32 v{vt0}, {cnt_addr}
    v_mov_b32 v{vt1}, 1
    s_mov_b64 exec, 1
    ds_add_rtn_u32 v{vt1}, v{vt0}, v{vt1}
    s_waitcnt lgkmcnt(0)
    v_cmp_eq_u32 vcc, {nwaves-1}, v{vt1}
    s_cbranch_vccz {lab}
    v_mov_b32 v{vt0}, s{flag_off_s}
    v_mov_b32 v{vt1}, s{S_TAG}
    global_store_dword v{vt0}, v{vt1}, {sp(S_WS)} sc1
    {lab}:
    s_mov_b64 exec, -1
    """)

def poll_flags(a, addr_v, nlanes, vt, wide=False):
    lab = a.newlabel("POLL"); ok = a.newlabel("POLLOK")
    if nlanes < 64:
        a(f"s_mov_b64 exec, {hex((1 << nlanes) - 1)}")
    a(f"{lab}:")
    budget(a)
    if wide:
        a(f"""
        global_load_dwordx4 v[{vt}:{vt+3}], v{addr_v}, {sp(S_WS)} sc1
        s_waitcnt vmcnt(0)
        v_xor_b32 v{vt}, s{S_TAG}, v{vt}
        v_xor_b32 v{vt+1}, s{S_TAG}, v{vt+1}
        v_xor_b32 v{vt+2}, s{S_TAG}, v{vt+2}
        v_xor_b32 v{vt+3}, s{S_TAG}, v{vt+3}
        v_or3_b32 v{vt}, v{vt}, v{vt+1}, v{vt+2}
        v_or_b32 v{vt}, v{vt}, v{vt+3}
        v_cmp_ne_u32 vcc, 0, v{vt}
        """)
    else:
        a(f"""
        global_load_dword v{vt}, v{addr_v}, {sp(S_WS)} sc1
        s_waitcnt vmcnt(0)
        v_cmp_ne_u32 vcc, s{S_TAG}, v{vt}
        """)
    a(f"""
    s_cbranch_vccz {ok}
    s_sleep 1
    s_branch {lab}
    {ok}:
    """)
    if nlanes < 64:
        a("s_mov_b64 exec, -1")

def mod_sub(a, r, t, m, times):
    for k in times:
        a(f"s_cmp_ge_u32 s{r}, {k*m}")
        a(f"s_cselect_b32 s{t}, {k*m}, 0")
        a(f"s_sub_u32 s{r}, s{r}, s{t}")

def span_end(a):
    if not opt("span", 0): return
    a(f"""
    s_memtime s[96:97]
    s_memrealtime s[94:95]
    s_waitcnt lgkmcnt(0)
    s_sub_u32 s96, s96, s98
    s_sub_u32 s93, s94, s100
    s_not_b32 s92, s100
    v_mov_b32 v1, 0
    v_mov_b32 v2, s92
    v_mov_b32 v3, s94
    v_mov_b32 v4, s96
    v_mov_b32 v5, s93
    s_mov_b64 exec, 1
    global_atomic_umax v1, v2, s[42:43]
    global_atomic_umax v1, v3, s[42:43] offset:4
    global_atomic_umax v1, v4, s[42:43] offset:8
    global_atomic_umax v1, v5, s[42:43] offset:12
    s_mov_b64 exec, -1
    s_waitcnt vmcnt(0)
    """)
def prologue(a):
    if opt("span", 0):
        a("s_memtime s[98:99]")
        a("s_memrealtime s[100:101]")
    if TS_ON:
        a("s_memtime s[80:81]")
        a("s_memrealtime s[100:101]")
    a(f"""
    s_load_dwordx16 s[16:31], s[0:1], 0
    s_load_dwordx8 s[32:39], s[0:1], 64
    s_load_dwordx4 s[40:43], s[0:1], 96
    s_load_dwordx2 s[44:45], s[0:1], 112
    v_lshrrev_b32 v1, 6, v0
    v_and_b32 v0, 63, v0
    s_cmp_ge_u32 s2, 256
    v_readfirstlane_b32 s3, v1
    s_cbranch_scc1 L_END
    s_and_b32 s{S_XX}, s2, 7
    s_lshr_b32 s{S_YY}, s2, 3
    s_mov_b32 s{S_BUD}, 0x40000
    s_cmp_ge_u32 s3, 4
    s_cbranch_scc1 R_AUX
    s_cmp_ge_u32 s{S_YY}, 28
    s_cbranch_scc1 R_SPARE_G
    """)

def epoch_load(a):
    a(f"""
    s_add_u32 s6, s{S_WS}, {FL_EPOCH}
    s_addc_u32 s7, s{S_WS+1}, 0
    s_load_dword s{S_EPOCH}, s[6:7], 0
    """)
def tag_calc(a):
    a(f"""
    s_mul_i32 s{S_TAG}, s{S_EPOCH}, 0x9E3779B1
    s_add_u32 s{S_TAG}, s{S_TAG}, 0x7F4A7C15
    """)

VW1, VW1B, VX, VXB = 2, 3, 4, 5
VA = [[6, 7], [10, 11]]
VB = [[8, 9], [12, 13]]
VSIG, VCNT = 14, 15
VFL, VFV, VB1, VB2R, VW2, VW2B, VT0 = 248, 249, 250, 251, 252, 253, 254
FB = [16, 32, 48, 64]
ACC = 128
W2R = 16
HB = 192
S_RB, S_FT, S_LB, S_DB = 70, 71, 72, 73
S_U, S_KD, S_WO, S_HS, S_KH = 74, 68, 76, 77, 75
def acc(p, q): return ACC + 16 * (2 * p + q)

def g1_dma(a, vm, u, j):
    base = (u % NSLOT) * SLOT
    if j == 0:
        a(f"s_add_u32 m0, s{S_WO}, {base}")
        a(f"buffer_load_dwordx4 v{VW1}, {srd(SRD_W1)}, s8 offen lds")
    elif j == 1:
        a(f"buffer_load_dwordx4 v{VW1B}, {srd(SRD_W1)}, s8 offen offset:1024 lds")
    elif j == 2:
        a(f"s_add_u32 m0, s{S_WO}, {base + 8192}")
        a(f"buffer_load_dwordx4 v{VX}, {srd(SRD_X)}, s9 offen lds")
    else:
        a(f"buffer_load_dwordx4 v{VXB}, {srd(SRD_X)}, s9 offen offset:1024 lds")
    vm.issue(("u", u))
def g1_adv(a):
    a(f"""
    s_add_u32 s{S_U}, s{S_U}, 1
    s_cmp_eq_u32 s{S_U}, 14
    s_cselect_b32 s{S_U}, 0, s{S_U}
    s_mul_i32 s8, s{S_U}, {32*3584}
    s_lshl_b32 s9, s{S_U}, 6
    """)
def w2_dma(a, vm, t, j):
    tt = t % 14
    base = (tt >> 1) * SLOT + (tt & 1) * 8192
    if j == 0:
        a(f"s_add_u32 m0, s{S_WO}, {base}")
        a(f"buffer_load_dwordx4 v{VW2}, {srd(SRD_W2)}, s{S_KD} offen lds")
    else:
        a(f"buffer_load_dwordx4 v{VW2B}, {srd(SRD_W2)}, s{S_KD} offen offset:1024 lds")
    vm.issue(("w", t))
def w2_adv(a):
    a(f"""
    s_add_u32 s{S_KD}, s{S_KD}, {16*896}
    s_cmp_eq_u32 s{S_KD}, {28*16*896}
    s_cselect_b32 s{S_KD}, 0, s{S_KD}
    """)

def g_path(a):
    vm = VM()
    a.c("---- G init")
    a(f"""
    s_mul_i32 s6, s{S_YY}, 37
    s_lshr_b32 s6, s6, 8                    ; yq
    s_mul_i32 s7, s6, 7
    s_sub_u32 s7, s{S_YY}, s7               ; yr
    s_lshr_b32 s4, s{S_XX}, 1
    s_lshl_b32 s{S_RB}, s4, 2
    s_add_u32 s{S_RB}, s{S_RB}, s6
    s_and_b32 s5, s{S_XX}, 1
    s_mul_i32 s{S_FT}, s5, 7
    s_add_u32 s{S_FT}, s{S_FT}, s7
    s_lshl_b32 s{S_LB}, s{S_XX}, 2
    s_add_u32 s{S_LB}, s{S_LB}, s6
    s_mov_b32 s{S_DB}, s7
    s_lshl_b32 s8, s7, 1
    s_lshl_b32 s9, s6, 2
    s_add_u32 s8, s8, s9
    s_and_b32 s9, s4, 1
    s_mul_i32 s9, s9, 7
    s_add_u32 s{S_U}, s8, s9
    """)
    mod_sub(a, S_U, 9, 14, (2, 1))
    a(f"""
    s_mul_i32 s8, s{S_U}, {32*3584}
    s_lshl_b32 s9, s{S_U}, 6
    s_lshl_b32 s{S_WO}, s3, 11
    ; VW1
    v_lshrrev_b32 v1, 4, v0
    v_and_b32 v16, 15, v0
    v_lshlrev_b32 v17, 2, v1
    v_xor_b32 v16, v16, v17
    v_mul_u32_u24 v{VW1}, 3584, v1
    v_lshl_add_u32 v{VW1}, v16, 4, v{VW1}
    s_lshl_b32 s10, s{S_FT}, 8
    s_mul_i32 s11, s3, {8*3584}
    s_add_u32 s10, s10, s11
    v_add_u32 v{VW1}, s10, v{VW1}
    v_add_u32 v{VW1B}, {14336-1024}, v{VW1}
    ; VX
    v_and_b32 v16, 3, v0
    v_and_b32 v17, 3, v1
    v_xor_b32 v16, v16, v17
    v_lshrrev_b32 v17, 2, v0
    v_mul_u32_u24 v17, 896, v17
    v_lshl_add_u32 v{VX}, v16, 4, v17
    s_lshl_b32 s10, s{S_RB}, 7
    s_lshl_b32 s11, s3, 5
    s_add_u32 s10, s10, s11
    s_mul_i32 s10, s10, 896
    v_add_u32 v{VX}, s10, v{VX}
    v_add_u32 v{VXB}, {14336-1024}, v{VX}
    s_waitcnt lgkmcnt(0)
    """)
    ts(a, "gp_karg")
    mk_srd(a, SRD_W1, S_W1, W_BYTES)
    mk_srd(a, SRD_X, S_X, X_BYTES)
    for u in range(6):
        for j in range(4): g1_dma(a, vm, u, j)
        g1_adv(a)
    ts(a, "gp_dma")
    epoch_load(a)
    mk_srd(a, SRD_WS, S_WS, WS_SRD_SIZE)
    mk_srd(a, SRD_W2, S_W2, W_BYTES)
    mk_srd(a, SRD_OUT, S_OUT, X_BYTES)
    a(f"""
    s_and_b32 s6, s3, 1                     ; wf
    s_lshr_b32 s7, s3, 1                    ; wl
    s_lshl_b32 s10, s{S_FT}, 8
    s_lshl_b32 s11, s6, 7
    s_add_u32 s10, s10, s11
    v_lshl_add_u32 v16, v0, 1, s10
    global_load_ushort v{VB1}, v16, {sp(S_B1)}
    s_lshl_b32 s10, s{S_DB}, 7
    v_lshl_add_u32 v16, v0, 1, s10
    global_load_ushort v{VB2R}, v16, {sp(S_B2)}
    """)
    vm.issue("b1"); vm.issue("b2")
    a(f"""
    v_lshrrev_b32 v16, 1, v1                ; hi = g>>1
    v_bfe_u32 v17, v0, 2, 2                 ; r
    v_lshl_add_u32 v18, v16, 3, v17
    v_lshlrev_b32 v18, 8, v18               ; row*256
    v_and_b32 v19, 1, v0
    v_lshl_add_u32 v18, v19, 3, v18
    v_and_b32 v19, 1, v1
    v_lshlrev_b32 v19, 1, v19
    v_bfe_u32 v20, v0, 1, 1
    v_add_u32 v19, v19, v20
    s_lshl_b32 s10, s6, 3
    v_add_u32 v19, s10, v19
    v_lshlrev_b32 v17, 2, v17
    v_xor_b32 v20, v19, v17
    v_lshl_add_u32 v{VA[0][0]}, v20, 4, v18
    v_xor_b32 v{VA[0][1]}, 64, v{VA[0][0]}
    v_add_u32 v{VA[1][0]}, 0x10000, v{VA[0][0]}
    v_add_u32 v{VA[1][1]}, 0x10000, v{VA[0][1]}
    v_and_b32 v16, 31, v0
    v_lshrrev_b32 v17, 5, v0
    v_bfe_u32 v18, v0, 2, 2
    v_xor_b32 v17, v17, v18
    v_lshlrev_b32 v16, 6, v16
    v_lshl_add_u32 v16, v17, 4, v16
    s_lshl_b32 s10, s7, 12
    s_add_u32 s10, s10, 8192
    v_add_u32 v{VB[0][0]}, s10, v16
    v_xor_b32 v{VB[0][1]}, 32, v{VB[0][0]}
    v_add_u32 v{VB[1][0]}, 0x10000, v{VB[0][0]}
    v_add_u32 v{VB[1][1]}, 0x10000, v{VB[0][1]}
    ; flags
    v_and_b32 v16, 3, v0
    v_lshlrev_b32 v16, 2, v16
    v_add_u32 v{VFL}, {GFLAG}, v16
    v_lshlrev_b32 v16, 2, v0
    v_add_u32 v{VSIG}, {DUMMY}, v16
    s_lshl_b32 s10, s3, 2
    s_add_u32 s10, s10, {GFLAG}
    v_writelane_b32 v{VSIG}, s10, 0
    v_mov_b32 v{VCNT}, 1
    ; w2 DMA lane offsets
    v_lshrrev_b32 v16, 3, v0
    v_and_b32 v17, 7, v0
    v_bfe_u32 v18, v0, 4, 1
    v_lshlrev_b32 v18, 2, v18
    v_xor_b32 v17, v17, v18
    v_mul_u32_u24 v16, 896, v16
    v_lshl_add_u32 v{VW2}, v17, 4, v16
    s_mul_i32 s10, s3, {448*896}
    s_lshl_b32 s11, s{S_DB}, 7
    s_add_u32 s10, s10, s11
    v_add_u32 v{VW2}, s10, v{VW2}
    v_add_u32 v{VW2B}, {7168-1024}, v{VW2}
    s_lshl_b32 s10, s{S_DB}, 2
    s_and_b32 s11, s{S_LB}, 3
    s_mul_i32 s11, s11, 7
    s_add_u32 s10, s10, s11
    s_mul_i32 s11, s{S_XX}, 3
    s_add_u32 s10, s10, s11
    """)
    mod_sub(a, 10, 11, 28, (2, 1))
    a(f"""
    s_mul_i32 s{S_KD}, s10, {16*896}
    s_lshl_b32 s{S_KH}, s10, 10
    v_lshrrev_b32 v16, 1, v1
    v_bfe_u32 v17, v0, 2, 2
    v_lshl_add_u32 v18, v16, 2, v17
    v_lshlrev_b32 v18, 7, v18
    v_and_b32 v19, 1, v0
    v_lshl_add_u32 v18, v19, 3, v18
    v_add_u32 v18, s{S_WO}, v18
    v_and_b32 v19, 1, v1
    v_lshlrev_b32 v19, 1, v19
    v_bfe_u32 v20, v0, 1, 1
    v_add_u32 v19, v19, v20
    v_bfe_u32 v20, v0, 3, 1
    v_lshlrev_b32 v20, 2, v20
    v_xor_b32 v19, v19, v20
    v_lshl_add_u32 v{VT0}, v19, 4, v18
    s_lshl_b32 s12, s{S_RB}, 2
    s_lshl_b32 s13, s7, 1
    s_add_u32 s12, s12, s13
    s_mul_i32 s12, s12, 112
    s_lshl_b32 s13, s{S_FT}, 3
    s_add_u32 s12, s12, s13
    s_lshl_b32 s13, s6, 2
    s_add_u32 s12, s12, s13
    s_lshl_b32 s{S_HS}, s12, 10
    s_waitcnt lgkmcnt(0)
    """)
    tag_calc(a)
    ts(a, "gp_prebar")
    if opt("prio", 1): a("s_setprio 2")
    a("s_barrier")
    ts(a, "g1")
    if opt("nog", 0):
        ts_dump(a)
        a("s_branch L_END")
    if opt("gdelay", 0):
        a(f"v_mov_b32 v16, {CNT_LNS}")
        spin_lds(a, 17, 16, 0, 4)
    vm.wait(a, ("u", 1))
    a(f"ds_write_b32 v{VSIG}, v{VCNT}")
    spin_lds(a, VFV, VFL, 0, 1)
    ts(a, "g2")
    def reads(u, ks, fb):
        s = u % NSLOT
        bs = 1 if s >= 4 else 0
        o = s * SLOT - bs * 65536
        r = []
        for fbp in range(2):
            b = FB[fb] + 4 * fbp
            r.append(f"ds_read_b64_tr_b16 v[{b}:{b+1}], v{VA[bs][fbp]} offset:{o + ks*4096}")
            r.append(f"ds_read_b64_tr_b16 v[{b+2}:{b+3}], v{VA[bs][fbp]} offset:{o + ks*4096 + 1024}")
        for lbp in range(2):
            r.append(f"ds_read_b128 {vr(FB[fb] + 8 + 4*lbp)}, v{VB[bs][ks]} offset:{o + lbp*2048}")
        return r
    def mfma(fb, k, first=False):
        fbp, lbp = k >> 1, k & 1
        c = "0" if (first and opt("mz", 1)) else vr(acc(fbp, lbp), 16)
        a(f"v_mfma_f32_32x32x16_bf16 {vr(acc(fbp,lbp),16)}, {vr(FB[fb]+4*fbp)}, {vr(FB[fb]+8+4*lbp)}, {c}")
    if not opt("mz", 1):
        for i in range(64): a(f"v_mov_b32 v{ACC+i}, 0")
    for r in reads(0, 0, 0): a(r)
    for r in reads(0, 1, 1): a(r)
    a(f"ds_read_b32 v{VFV}, v{VFL}")
    STATV, SFV = 192, 196
    for h in range(14):
        c0, c1 = (2 * h) % 4, (2 * h + 1) % 4
        n0, n1 = (2 * h + 2) % 4, (2 * h + 3) % 4
        last = (h == 13)
        un = h + 6
        def dma(j):
            if un < 14:
                g1_dma(a, vm, un, j)
                if j == 3: g1_adv(a)
            else:
                t = 2 * (un - 14) + (j >> 1)
                w2_dma(a, vm, t, j & 1)
                if j & 1: w2_adv(a)
        a("s_waitcnt lgkmcnt(7)")
        mfma(c0, 0, h == 0); mfma(c0, 1, h == 0)
        a("s_waitcnt lgkmcnt(0)")
        check_flag(a, VFV, VFL, h + 1)
        if h + 2 < 14:
            vm.wait(a, ("u", h + 2))
        a(f"v_add_u32 v{VCNT}, 1, v{VCNT}")
        a(f"ds_write_b32 v{VSIG}, v{VCNT}")
        rn0 = [] if last else reads(h + 1, 0, n0)
        rn1 = [] if last else reads(h + 1, 1, n1)
        for r in rn0[:3]: a(r)
        mfma(c0, 2, h == 0)
        for r in rn0[3:]: a(r)
        dma(0)
        mfma(c0, 3, h == 0)
        dma(1)
        for r in rn1[:3]: a(r)
        mfma(c1, 0)
        for r in rn1[3:]: a(r)
        dma(2)
        mfma(c1, 1)
        dma(3)
        if h == 12:
            a(f"""
            s_lshl_b32 s10, s{S_RB}, 7
            s_lshl_b32 s11, s7, 6
            s_add_u32 s10, s10, s11
            s_lshl_b32 s10, s10, 4
            s_add_u32 s10, s10, {STAT_OFF}
            v_lshl_add_u32 v{VW1}, v0, 4, s10
            global_load_dwordx4 {vr(STATV)}, v{VW1}, {sp(S_WS)} sc1
            """)
            vm.issue("stat")
        mfma(c1, 2)
        if h == 12:
            a(f"""
            s_lshl_b32 s10, s{S_FT}, 7
            s_lshl_b32 s11, s6, 6
            s_add_u32 s10, s10, s11
            s_lshl_b32 s10, s10, 3
            s_add_u32 s10, s10, {SF_OFF}
            v_lshl_add_u32 v{VW1B}, v0, 3, s10
            global_load_dwordx2 v[{SFV}:{SFV+1}], v{VW1B}, {sp(S_WS)} sc1
            """)
            vm.issue("sf")
        a(f"ds_read_b32 v{VFV}, v{VFL}")
        mfma(c1, 3)
        if last:
            a("s_nop 0")
    ts(a, "g3")
    a("s_waitcnt lgkmcnt(0)")
    check_flag(a, VFV, VFL, 15)
    for j in range(4):
        w2_dma(a, vm, 12 + (j >> 1), j & 1)
        if j & 1: w2_adv(a)
    VA2 = [[6, 7], [10, 11]]
    VH0, VH1 = 8, 9
    a(f"""
    v_mov_b32 v{VA2[0][0]}, v{VT0}
    v_xor_b32 v{VA2[0][1]}, 64, v{VT0}
    v_add_u32 v{VA2[1][0]}, 0x10000, v{VA2[0][0]}
    v_add_u32 v{VA2[1][1]}, 0x10000, v{VA2[0][1]}
    v_lshlrev_b32 v{VH0}, 4, v0
    v_add_u32 v{VH1}, {112*1024}, v{VH0}
    """)
    vm.wait(a, "sf")
    sl = a.newlabel("STP"); bk = a.newlabel("STB")
    a(f"""
    {bk}:
    v_xor_b32 v198, s{S_TAG}, v{STATV+1}
    v_xor_b32 v199, s{S_TAG}, v{STATV+3}
    v_xor_b32 v200, s{S_TAG}, v{SFV+1}
    v_or3_b32 v198, v198, v199, v200
    v_cmp_ne_u32 vcc, 0, v198
    s_cbranch_vccnz {sl}
    """)
    TAIL.append(f"""
    {sl}:
    s_sub_u32 s{S_BUD}, s{S_BUD}, 1
    s_cbranch_scc1 L_BAIL
    s_sleep 1
    global_load_dwordx4 {vr(STATV)}, v{VW1}, {sp(S_WS)} sc1
    global_load_dwordx2 v[{SFV}:{SFV+1}], v{VW1B}, {sp(S_WS)} sc1
    s_waitcnt vmcnt(0)
    s_branch {bk}
    """)
    ts(a, "g4")
    AL, GA_, SS = STATV, STATV + 2, SFV
    AE = 200
    BN = 204
    BE = [[208, 212], [216, 220]]
    KC_ = [224, 226]
    DL = [228, 230]
    a(f"""
    v_rcp_f32 v198, v{AL}                       ; delta
    v_cvt_pk_bf16_f32 v{AE}, v{SS}, v{SS}       ; S_hi|S_hi
    v_and_b32 v199, 0xffff0000, v{AE}
    v_sub_f32 v199, v{SS}, v199
    v_cvt_pk_bf16_f32 v199, v199, v199          ; S_lo
    v_and_b32 v199, 0xffff, v199
    v_lshl_or_b32 v{AE+1}, v{VB1}, 16, v199     ; S_lo | b1<<16
    v_mov_b32 v{AE+2}, v{VB1}
    v_mov_b32 v{AE+3}, 0
    v_cvt_pk_bf16_f32 v{BN+1}, v{GA_}, v198
    v_lshlrev_b32 v232, 16, v{BN+1}
    v_and_b32 v233, 0xffff0000, v{BN+1}
    v_sub_f32 v232, v{GA_}, v232                ; g_lo
    v_sub_f32 v233, v198, v233                  ; d_lo
    v_cvt_pk_bf16_f32 v{BN}, v{GA_}, v232
    v_cvt_pk_bf16_f32 v{BN+2}, v233, 0          ; d_lo | 0
    """)
    for k in range(3):
        a(f"""
        v_mov_b32 v{BE[0][0]+k}, v{BN+k}
        v_mov_b32 v{BE[0][1]+k}, 0
        v_mov_b32 v{BE[1][0]+k}, 0
        v_mov_b32 v{BE[1][1]+k}, v{BN+k}
        v_permlane32_swap_b32 v{BE[0][0]+k}, v{BE[0][1]+k}
        v_permlane32_swap_b32 v{BE[1][0]+k}, v{BE[1][1]+k}
        """)
    for p in range(2):
        for q in range(2):
            a(f"v_mov_b32 v{BE[p][q]+3}, 0")
    for p in range(2):
        for q in range(2):
            a(f"v_mfma_f32_32x32x16_bf16 {vr(acc(p,q),16)}, {vr(AE)}, {vr(BE[p][q])}, {vr(acc(p,q),16)}")
    C1 = 2.0 * math.sqrt(2.0 / math.pi) * LOG2E
    C2 = C1 * 0.044715
    a(f"""
    v_mul_f32 v232, v{AL}, v{AL}
    v_mul_f32 v232, v232, v{AL}
    v_mul_f32 v{KC_[0]}, {hx(C2)}, v232
    v_mul_f32 v{DL[0]+1}, {hx(C1)}, v{AL}
    v_mov_b32 v{DL[0]}, v198
    v_mov_b32 v{KC_[1]}, v{KC_[0]}
    v_mov_b32 v{DL[1]+1}, v{DL[0]+1}
    v_mov_b32 v{DL[1]}, v198
    v_permlane32_swap_b32 v{KC_[0]}, v{KC_[1]}
    v_permlane32_swap_b32 v{DL[0]+1}, v{DL[1]+1}
    v_permlane32_swap_b32 v{DL[0]}, v{DL[1]}
    """)
    def trr(t, tsrc):
        tt = tsrc % 14
        o = (tt >> 1) * SLOT + (tt & 1) * 8192
        bs = 1 if o >= 65536 - 2048 else 0
        o -= bs * 65536
        r = []
        for db_ in range(2):
            b = W2R + 8 * (t % 14) + 4 * db_
            r.append(f"ds_read_b64_tr_b16 v[{b}:{b+1}], v{VA2[bs][db_]} offset:{o}")
            r.append(f"ds_read_b64_tr_b16 v[{b+2}:{b+3}], v{VA2[bs][db_]} offset:{o+1024}")
        return r
    class Rec:
        def __init__(s): s.l = []
        def __call__(s, t):
            for ln in t.strip("\n").split("\n"):
                if ln.strip(): s.l.append(ln.strip())
    def dma_steps(ts_):
        out = []
        for t in ts_:
            out.append(("dma", t, 0)); out.append(("dma", t, 1))
        return out
    TT = [232, 236]
    PK = [240, 192]
    def gelu_quadrant(p, q, extras, pk):
        A = acc(p, q)
        ex = list(extras)
        def put():
            if ex:
                e = ex.pop(0)
                if isinstance(e, str): a(e)
                else:
                    _, t, j = e
                    w2_dma(a, vm, t, j)
                    if j: w2_adv(a)
        kc, dl = KC_[q], DL[q]
        for pp in range(0, 8, 2):
            X = [A + 2 * pp, A + 2 * pp + 2]
            for i in range(2):
                w = TT[i]; x = X[i]
                a(f"v_pk_mul_f32 v[{w}:{w+1}], v[{x}:{x+1}], v[{x}:{x+1}]")
            for i in range(2):
                w = TT[i]
                a(f"v_pk_fma_f32 v[{w}:{w+1}], v[{w}:{w+1}], v[{kc}:{kc+1}], v[{dl}:{dl+1}] op_sel:[0,0,1] op_sel_hi:[1,0,1]")
            for i in range(2):
                w = TT[i]; x = X[i]
                a(f"v_pk_mul_f32 v[{w}:{w+1}], v[{w}:{w+1}], v[{x}:{x+1}] neg_lo:[1,0] neg_hi:[1,0]")
            for i in range(2):
                w = TT[i]
                a(f"v_exp_f32 v{w}, v{w}"); put()
                a(f"v_exp_f32 v{w+1}, v{w+1}"); put()
            for i in range(2):
                w = TT[i]
                a(f"v_pk_fma_f32 v[{w}:{w+1}], v[{w}:{w+1}], v[{dl}:{dl+1}], v[{dl}:{dl+1}] op_sel:[0,0,0] op_sel_hi:[1,0,0]")
            for i in range(2):
                w = TT[i]
                a(f"v_rcp_f32 v{w}, v{w}"); put()
                a(f"v_rcp_f32 v{w+1}, v{w+1}"); put()
            for i in range(2):
                w = TT[i]; x = X[i]
                a(f"v_pk_mul_f32 v[{w}:{w+1}], v[{x}:{x+1}], v[{w}:{w+1}]")
            for i in range(2):
                w = TT[i]
                a(f"v_cvt_pk_bf16_f32 v{pk+pp+i}, v{w}, v{w+1}")
        while ex: put()
        a(f"s_add_u32 s10, s{S_HS}, {q*112*1024 + p*2048}")
        a(f"buffer_store_dwordx4 {vr(pk)}, v{VH0}, {srd(SRD_WS)}, s10 offen sc1")
        a(f"buffer_store_dwordx4 {vr(pk+4)}, v{VH0}, {srd(SRD_WS)}, s10 offen offset:1024 sc1")
        vm.issue("h"); vm.issue("h")
    vm.wait(a, ("w", 4))
    ex0 = sum([trr(t, t) for t in range(0, 5)], [])
    gelu_quadrant(0, 0, ex0, PK[0])
    a("s_waitcnt lgkmcnt(0)")
    vm.wait(a, ("w", 9))
    ex1 = dma_steps(range(14, 19)) + sum([trr(t, t) for t in range(5, 10)], [])
    gelu_quadrant(0, 1, ex1, PK[1])
    a("s_waitcnt lgkmcnt(0)")
    vm.wait(a, ("w", 13))
    ex2 = dma_steps(range(19, 24)) + sum([trr(t, t) for t in range(10, 14)], [])
    gelu_quadrant(1, 0, ex2, PK[0])
    a("s_waitcnt lgkmcnt(0)")
    ex3 = dma_steps(range(24, 28))
    gelu_quadrant(1, 1, ex3, PK[1])
    ts(a, "g5")
    a(f"""
    s_lshl_b32 s12, s{S_RB}, 4
    s_add_u32 s12, s12, s{S_FT}
    s_lshl_b32 s12, s12, 2
    s_add_u32 s12, s12, {FL_G1}
    """)
    publish(a, CNT_G1, 4, 12, 232, 233)
    ts(a, "g6")
    a.c("---- G2")
    a(f"""
    v_mov_b32 v200, v{VB2R}
    v_mov_b32 v201, 0
    v_mov_b32 v202, 0
    v_mov_b32 v203, 0
    v_mov_b32 v204, 0x3e80
    v_mov_b32 v205, 0
    v_mov_b32 v206, 0
    v_mov_b32 v207, 0
    v_mov_b32 v208, 0
    v_mov_b32 v209, 0
    v_mov_b32 v210, 0
    v_mov_b32 v211, 0
    v_permlane32_swap_b32 v204, v208
    """)
    a(f"""
    v_mov_b32 v208, 0
    v_mov_b32 v212, 0x3e80
    v_permlane32_swap_b32 v208, v212
    """)
    for db_ in range(2):
        for lb_ in range(2):
            B = 204 if db_ == 0 else 208
            a(f"v_mfma_f32_32x32x16_bf16 {vr(acc(db_,lb_),16)}, v[200:203], {vr(B)}, 0")
    a(f"""
    s_mul_i32 s6, s{S_LB}, {2*112}
    s_mul_i32 s7, s3, 28
    s_add_u32 s6, s6, s7
    s_lshl_b32 s6, s6, 10
    s_lshr_b32 s10, s{S_LB}, 1
    s_lshl_b32 s10, s10, 4
    s_mul_i32 s11, s3, 7
    s_lshr_b32 s11, s11, 1
    s_add_u32 s10, s10, s11
    s_lshl_b32 s10, s10, 2
    s_add_u32 s10, s10, {FL_G1}
    v_lshl_add_u32 v1, v0, 2, s10
    """)
    VO, VS_, VSL, VCV = 2, 3, 4, 5
    a(f"""
    v_and_b32 v232, 15, v0
    v_lshrrev_b32 v233, 4, v0
    s_lshl_b32 s10, s{S_LB}, 6
    s_lshl_b32 s11, s3, 4
    s_add_u32 s10, s10, s11
    v_add_u32 v234, s10, v232
    v_mul_u32_u24 v234, 896, v234
    v_lshl_add_u32 v234, v233, 4, v234
    s_lshl_b32 s11, s{S_DB}, 7
    v_add_u32 v{VO}, s11, v234
    v_lshrrev_b32 v234, 3, v0
    v_and_b32 v235, 7, v0
    s_lshl_b32 s10, s{S_DB}, 6
    s_lshl_b32 s11, s3, 4
    s_add_u32 s10, s10, s11                 ; d0 + 16w
    v_add_u32 v236, s10, v234
    v_lshlrev_b32 v236, 12, v236
    v_lshl_add_u32 v{VS_}, v235, 4, v236
    s_mul_i32 s9, s3, {G2_WREG}
    v_mul_u32_u24 v{VSL}, {G2_SSTR}, v234
    v_lshl_add_u32 v{VSL}, v235, 4, v{VSL}
    v_add_u32 v{VSL}, s9, v{VSL}
    s_lshl_b32 s11, s10, 1
    s_add_u32 s11, s11, {FL_CV}
    v_lshl_add_u32 v{VCV}, v0, 2, s11
    """)
    poll_flags(a, 1, 4, 232)
    ts(a, "g7")
    vm2 = VM()
    NH = 7
    def hload(t):
        b = HB + 8 * (t % NH)
        a(f"s_add_u32 s10, s6, s{S_KH}")
        a(f"buffer_load_dwordx4 {vr(b)}, v{VH0}, {srd(SRD_WS)}, s10 offen sc1")
        a(f"buffer_load_dwordx4 {vr(b+4)}, v{VH1}, {srd(SRD_WS)}, s10 offen sc1")
        vm2.issue(("h", t)); vm2.issue(("h", t))
        a(f"s_add_u32 s{S_KH}, s{S_KH}, 1024")
        a(f"s_cmp_eq_u32 s{S_KH}, {28*1024}")
        a(f"s_cselect_b32 s{S_KH}, 0, s{S_KH}")
    for t in range(NH): hload(t)
    VX_ = 24
    for t in range(28):
        vm2.wait(a, ("h", t))
        if t == 14:
            a("s_waitcnt lgkmcnt(0)")
        elif t > 14:
            pass
        for db_ in range(2):
            for lb_ in range(2):
                a(f"v_mfma_f32_32x32x16_bf16 {vr(acc(db_,lb_),16)}, {vr(W2R + 8*(t%14) + 4*db_)}, {vr(HB + 8*(t%NH) + 4*lb_)}, {vr(acc(db_,lb_),16)}")
        if t + NH < 28: hload(t + NH)
        if t < 14:
            for r in trr(t + 14, t + 14): a(r)
        if t == 14:
            a(f"""
            v_mov_b32 v{VCNT}, 100
            ds_write_b32 v{VSIG}, v{VCNT}
            """)
        if t == 21:
            a(f"buffer_load_dwordx4 v[16:19], v{VO}, {srd(SRD_X)}, 0 offen")
            a(f"buffer_load_dwordx4 v[20:23], v{VO}, {srd(SRD_X)}, 0 offen offset:64")
            vm2.issue("x"); vm2.issue("x")
    a(f"ds_read_b32 v{VFV}, v{VFL}")
    ts(a, "g8")
    a(f"""
    s_mul_i32 s9, s3, {G2_WREG}
    v_and_b32 v1, 31, v0
    v_mul_u32_u24 v1, {G2_PSTR}, v1
    v_lshrrev_b32 v7, 5, v0
    v_lshl_add_u32 v1, v7, 4, v1
    v_add_u32 v1, s9, v1
    s_waitcnt lgkmcnt(0)
    """)
    check_flag(a, VFV, VFL, 100)
    poll_flags(a, VCV, 8, 235)
    VS = 24
    a(f"""
    s_lshl_b32 s10, s{S_LB}, 7
    s_add_u32 s10, s10, {ST_OFF}
    buffer_load_dwordx4 {vr(VS)}, v{VS_}, {srd(SRD_WS)}, s10 offen sc1
    s_add_u32 s11, s10, {8*4096}
    buffer_load_dwordx4 {vr(VS+4)}, v{VS_}, {srd(SRD_WS)}, s11 offen sc1
    """)
    for db_ in range(2):
        for lb_ in range(2):
            for q in range(4):
                a(f"ds_write_b128 v1, {vr(acc(db_,lb_)+4*q)} offset:{lb_*32*G2_PSTR + db_*128 + q*32}")
    a(f"""
    s_waitcnt vmcnt(0)
    ds_write_b128 v{VSL}, {vr(VS)} offset:{G2_STILE}
    ds_write_b128 v{VSL}, {vr(VS+4)} offset:{G2_STILE + 8*G2_SSTR}
    v_mov_b32 v{VCNT}, 200
    s_waitcnt lgkmcnt(0)
    ds_write_b32 v{VSIG}, v{VCNT}
    v_and_b32 v1, 15, v0
    v_lshrrev_b32 v7, 4, v0
    s_lshl_b32 s11, s3, 4
    v_add_u32 v6, s11, v1
    v_mul_u32_u24 v6, {G2_PSTR}, v6
    v_lshl_add_u32 v6, v7, 5, v6
    v_lshrrev_b32 v3, 1, v7
    v_mul_u32_u24 v3, {G2_WREG}, v3
    v_and_b32 v4, 1, v7
    v_lshlrev_b32 v4, 3, v4
    v_bfe_u32 v5, v0, 2, 2
    v_add_u32 v4, v4, v5
    v_mul_u32_u24 v4, {G2_SSTR}, v4
    v_add_u32 v3, v3, v4
    v_and_b32 v4, 3, v0
    v_lshl_add_u32 v3, v4, 3, v3
    s_lshl_b32 s11, s3, 5
    v_add_u32 v3, s11, v3
    v_add_u32 v3, {G2_STILE}, v3
    v_add_u32 v4, {2*G2_WREG}, v3
    v_add_u32 v5, {2*G2_WREG}, v6
    """)
    spin_lds(a, VFV, VFL, 0, 200)
    for k in range(2):
        for w in range(4):
            base = 6 if w < 2 else 5
            for hq in range(2):
                a(f"ds_read_b128 {vr(48+32*k+8*w+4*hq)}, v{base} offset:{(w%2)*G2_WREG + k*128 + hq*16}")
        sv = 3 if k == 0 else 4
        a(f"ds_read_b64_tr_b16 v[{112+4*k}:{113+4*k}], v{sv}")
        a(f"ds_read_b64_tr_b16 v[{114+4*k}:{115+4*k}], v{sv} offset:{4*G2_SSTR}")
    a(f"""
    s_mov_b32 s70, {hx(-LOG2E)}
    s_mov_b32 s71, {hx(-LOG2E)}
    s_mov_b32 s72, 1.0
    s_mov_b32 s73, 1.0
    """)
    for k in range(2):
        B = 48 + 32 * k
        a(f"s_waitcnt lgkmcnt({10 if k == 0 else 0})")
        for p in range(4):
            x = B + 2 * p
            t0 = 120 + 8 * (p % 2)
            a(f"""
            v_pk_add_f32 v[{x}:{x+1}], v[{x}:{x+1}], v[{x+8}:{x+9}]
            v_pk_add_f32 v[{x+16}:{x+17}], v[{x+16}:{x+17}], v[{x+24}:{x+25}]
            v_lshlrev_b32 v{t0+2}, 16, v{112+4*k+p}
            v_pk_add_f32 v[{x}:{x+1}], v[{x}:{x+1}], v[{x+16}:{x+17}]
            v_and_b32 v{t0+3}, 0xffff0000, v{112+4*k+p}
            v_pk_mul_f32 v[{t0}:{t0+1}], v[{x}:{x+1}], s[70:71]
            v_exp_f32 v{t0}, v{t0}
            v_exp_f32 v{t0+1}, v{t0+1}
            v_pk_mul_f32 v[{x}:{x+1}], v[{x}:{x+1}], v[{t0+2}:{t0+3}]
            v_pk_add_f32 v[{t0}:{t0+1}], v[{t0}:{t0+1}], s[72:73]
            v_lshlrev_b32 v{t0+4}, 16, v{16+4*k+p}
            v_rcp_f32 v{t0}, v{t0}
            v_rcp_f32 v{t0+1}, v{t0+1}
            v_and_b32 v{t0+5}, 0xffff0000, v{16+4*k+p}
            v_pk_fma_f32 v[{x}:{x+1}], v[{x}:{x+1}], v[{t0}:{t0+1}], v[{t0+4}:{t0+5}]
            v_cvt_pk_bf16_f32 v{136+4*k+p}, v{x}, v{x+1}
            """)
        a(f"buffer_store_dwordx4 {vr(136+4*k)}, v{VO}, {srd(SRD_OUT)}, 0 offen offset:{64*k}")
    a(f"""
    s_or_b32 s10, s2, s3
    s_cmp_lg_u32 s10, 0
    s_cbranch_scc1 G2_NOEP
    s_add_u32 s10, s{S_EPOCH}, 1
    v_mov_b32 v1, {FL_EPOCH}
    v_mov_b32 v2, s10
    s_mov_b64 exec, 1
    global_store_dword v1, v2, {sp(S_WS)}
    s_mov_b64 exec, -1
    G2_NOEP:
    """)
    ts(a, "g9")

def spare_g(a):
    a.c("---- spare G: S_f")
    a(f"""
    s_sub_u32 s4, s{S_YY}, 28
    s_lshl_b32 s4, s4, 3
    s_add_u32 s4, s4, s{S_XX}               ; j
    s_waitcnt lgkmcnt(0)
    """)
    epoch_load(a)
    a(f"""
    s_cmp_lg_u32 s3, 0
    s_cbranch_scc1 SG_SKIP
    s_cmp_ge_u32 s4, 28
    s_cbranch_scc1 SG_SKIP
    """)
    mk_srd(a, SRD_W1, S_W1, W_BYTES)
    a(f"""
    v_lshrrev_b32 v1, 3, v0
    v_mul_u32_u24 v1, 3584, v1
    v_and_b32 v2, 7, v0
    v_lshl_add_u32 v1, v2, 4, v1
    s_lshl_b32 s5, s4, 7
    v_add_u32 v1, s5, v1
    s_mov_b32 s8, 0
    """)
    for i in range(56):
        a(f"buffer_load_dwordx4 {vr(16+4*i)}, v1, {srd(SRD_W1)}, s8 offen")
        if i < 55: a(f"s_add_u32 s8, s8, {8*3584}")
    a(f"""
    v_and_b32 v2, 15, v0
    v_mov_b32 v8, 0
    v_mov_b32 v9, 0
    v_mov_b32 v10, 0
    v_mov_b32 v11, 0
    v_mov_b32 v3, 0x3f80
    v_mov_b32 v4, 0x3f800000
    """)
    for j in range(8):
        a(f"v_cmp_eq_u32 vcc, {j}, v2")
        a(f"v_cndmask_b32 v{8 + j//2}, v{8 + j//2}, v{3 if j % 2 == 0 else 4}, vcc")
    a(f"""
    s_waitcnt lgkmcnt(0)
    SG_SKIP:
    s_waitcnt lgkmcnt(0)
    s_barrier
    s_cmp_lg_u32 s3, 0
    s_cbranch_scc1 L_END
    s_cmp_ge_u32 s4, 28
    s_cbranch_scc1 L_END
    """)
    tag_calc(a)
    for i in range(56):
        a(f"s_waitcnt vmcnt({55-i})")
        c = "0" if i < 2 else vr(240 + 4 * (i % 2))
        a(f"v_mfma_f32_16x16x32_bf16 {vr(240 + 4*(i%2))}, v[8:11], {vr(16+4*i)}, {c}")
    for r in range(4):
        a(f"v_add_f32 v{240+r}, v{240+r}, v{244+r}")
    for r in range(4):
        a(f"v_add_f32_dpp v{240+r}, v{240+r}, v{240+r} row_ror:8 row_mask:0xf bank_mask:0xf")
    a(f"""
    v_mov_b32 v4, v240
    v_mov_b32 v5, s{S_TAG}
    v_mov_b32 v6, v241
    v_mov_b32 v7, s{S_TAG}
    v_mov_b32 v8, v242
    v_mov_b32 v9, s{S_TAG}
    v_mov_b32 v10, v243
    v_mov_b32 v11, s{S_TAG}
    v_and_b32 v1, 7, v0
    v_lshrrev_b32 v2, 4, v0
    v_lshlrev_b32 v1, 6, v1
    v_lshl_add_u32 v1, v2, 5, v1            ; (8n + 4g')*8 bytes
    s_lshl_b32 s5, s4, 9
    s_add_u32 s5, s5, {SF_OFF}
    v_add_u32 v1, s5, v1
    s_mov_b32 exec_lo, 0x00ff00ff
    s_mov_b32 exec_hi, 0
    global_store_dwordx4 v1, v[4:7], {sp(S_WS)} sc1
    global_store_dwordx4 v1, v[8:11], {sp(S_WS)} offset:16 sc1
    s_mov_b64 exec, -1
    s_waitcnt vmcnt(0)
    s_branch L_END
    """)

PRIME = {}
def mkprime(a, y):
    p0, p1 = PRIME[y]
    a(f"v_mov_b32 v{p0}, v{y+1}")
    a(f"v_mov_b32 v{p1}, v{y+3}")
def cmul_n(a, jobs, t0=8):
    for k, (r, x, y, yp) in enumerate(jobs):
        t = t0 + 2 * k
        a(f"v_pk_mul_f32 v[{t}:{t+1}], v[{x}:{x+1}], v[{y}:{y+1}] op_sel:[0,0] op_sel_hi:[1,0]")
    for k, (r, x, y, yp) in enumerate(jobs):
        t = t0 + 2 * k
        assert yp % 2 == 0
        a(f"v_pk_fma_f32 v[{r}:{r+1}], v[{x}:{x+1}], v[{yp}:{yp+1}], v[{t}:{t+1}] op_sel:[1,0,0] op_sel_hi:[0,0,1] neg_lo:[1,0,0]")
def both(r, x, y): return [(r + 2 * c, x + 2 * c, y + 2 * c, PRIME[y][c]) for c in range(2)]
def cm(a, r, x, y): cmul_n(a, both(r, x, y))

def pair_sync(a, val, VMY, VOT, VT):
    lab = a.newlabel("PS")
    a(f"""
    v_mov_b32 v{VT}, {val}
    s_waitcnt lgkmcnt(0)
    ds_write_b32 v{VMY}, v{VT}
    {lab}:
    s_sub_u32 s{S_BUD}, s{S_BUD}, 1
    s_cbranch_scc1 L_BAIL
    ds_read_b32 v{VT}, v{VOT}
    s_waitcnt lgkmcnt(0)
    v_cmp_gt_u32 vcc, {val}, v{VT}
    s_cbranch_vccnz {lab}
    """)

KC_GA = 204
KC_SC = 228
KC_RAW = 233
def kc_path(a):
    a.c("---- KC path")
    GA, SC, RAW = KC_GA, KC_SC, KC_RAW
    XA, XB_ = 32, 36
    a(f"""
    s_sub_u32 s5, s3, 4                     ; k
    s_cmp_lg_u32 s5, 0
    s_cbranch_scc1 KC_NOZ
    v_lshlrev_b32 v1, 2, v0
    v_mov_b32 v2, 0
    v_add_u32 v3, {GFLAG}, v1
    v_add_u32 v4, {GFLAG + CH_SZ}, v1
    s_mov_b64 exec, 0xffffffff
    ds_write_b32 v3, v2
    ds_write_b32 v4, v2
    s_mov_b64 exec, -1
    KC_NOZ:
    s_lshl_b32 s4, s{S_XX}, 5
    s_add_u32 s4, s4, s{S_YY}               ; q
    s_lshl_b32 s6, s4, 3
    s_lshl_b32 s7, s5, 1
    s_add_u32 s6, s6, s7
    v_lshrrev_b32 v1, 5, v0
    v_add_u32 v30, s6, v1                   ; row
    v_mul_u32_u24 v2, 896, v30
    v_and_b32 v3, 31, v0
    v_lshl_add_u32 v2, v3, 4, v2
    v_mov_b32 v{XB_}, 0
    v_mov_b32 v{XB_+1}, 0
    v_mov_b32 v{XB_+2}, 0
    v_mov_b32 v{XB_+3}, 0
    s_waitcnt lgkmcnt(0)
    """)
    ts(a, "kp_karg")
    a(f"""
    global_load_dwordx4 {vr(XA)}, v2, {sp(S_X)}
    s_mov_b32 exec_lo, 0x00ffffff
    s_mov_b32 exec_hi, 0x00ffffff
    global_load_dwordx4 {vr(XB_)}, v2, {sp(S_X)} offset:512
    s_mov_b64 exec, -1
    """)
    epoch_load(a)
    mk_srd(a, SRD_WS, S_WS, WS_SRD_SIZE)
    a(f"""
    s_mul_i32 s4, s{S_XX}, 28
    s_min_u32 s6, s{S_YY}, 27
    s_add_u32 s4, s4, s6                    ; cp
    s_lshr_b32 s6, s5, 1                    ; ch
    s_and_b32 s7, s5, 1                     ; hh
    s_lshl_b32 s8, s4, 1
    s_add_u32 s8, s8, s6                    ; d
    s_mul_i32 s9, s6, {CH_SZ}
    s_add_u32 s9, s9, {AUX_BASE}
    s_lshl_b32 s10, s8, 9
    s_lshl_b32 s11, s7, 8
    s_add_u32 s10, s10, s11
    v_lshl_add_u32 v1, v0, 2, s10
    global_load_dword v{RAW}, v1, {sp(S_LOGA)}
    global_load_dword v{RAW+1}, v1, {sp(S_AIM)}
    global_load_dword v{RAW+2}, v1, {sp(S_CRE)}
    global_load_dword v{RAW+3}, v1, {sp(S_CIM)}
    s_lshl_b32 s10, s4, 2
    s_load_dword s12, {sp(S_LOGDT)}, s10
    s_load_dword s13, {sp(S_DSKIP)}, s10
    """)
    if opt("cpf", 1):
        a(f"""
        s_cmp_lg_u32 s5, 3
        s_cbranch_scc1 KC_NOPF
        s_getpc_b64 s[14:15]
        L_PC:
        s_and_b32 s10, s{S_YY}, 7
        s_lshl_b32 s10, s10, 6
        v_add_u32 v2, s10, v0
        v_lshlrev_b32 v2, 7, v2
        s_sub_u32 s14, s14, (L_PC - L_START)
        s_subb_u32 s15, s15, 0
        v_min_u32 v2, (L_CODE_END - L_START - 4), v2
        v_mov_b32 v3, s15
        v_add_co_u32 v2, vcc, s14, v2
        v_addc_co_u32 v3, vcc, 0, v3, vcc
        global_load_dword v255, v[2:3], off
        KC_NOPF:
        """)
    a(f"""
    v_mov_b32 v12, 0
    v_mov_b32 v13, 0
    v_mov_b32 v14, 0
    v_mov_b32 v15, 0
    v_mov_b32 v1, s9
    s_cmp_lg_u32 s7, 0
    s_cbranch_scc1 KC_Z1
    s_mov_b64 exec, 15
    v_lshl_add_u32 v1, v0, 2, s9
    ds_write_b32 v1, v12 offset:{T0_OFF-16}
    s_mov_b64 exec, -1
    KC_Z1:
    """)
    ts(a, "kp_ga")
    a(f"""
    s_lshl_b32 s10, s7, 10
    s_sub_u32 s10, s10, 4
    v_lshl_add_u32 v16, v0, 3, s10
    s_add_u32 s11, s9, {T1_OFF}
    s_sub_u32 s14, s11, {4*0x4280}
    s_add_u32 s15, s11, 512
    v_cvt_f32_i32 v17, v16
    v_lshl_add_u32 v18, v16, 2, s11
    """)
    for r in range(2):
        for j in range(0, 12, 2):
            o = 512 * r + j
            g0 = GA + 12 * r + j
            a(f"""
            v_add_f32 v20, {hx(float(o))}, v17
            v_add_f32 v21, {hx(float(o+1))}, v17
            v_cvt_pk_bf16_f32 v20, v20, v21
            v_bfe_i32 v21, v20, 0, 16
            v_ashrrev_i32 v20, 16, v20
            v_lshl_add_u32 v21, v21, 2, s14
            v_lshl_add_u32 v20, v20, 2, s14
            v_add_u32 v22, {4*o}, v18
            v_add_u32 v23, {4*(o+1)}, v18
            v_med3_i32 v{g0}, v22, s15, v21
            v_med3_i32 v{g0+1}, v23, s15, v20
            """)
    a(f"""
    s_xor_b32 s10, s7, 1
    s_lshl_b32 s10, s10, 12
    s_add_u32 s11, s11, s10
    v_lshrrev_b32 v4, 4, v0                 ; g
    v_and_b32 v1, 15, v0                    ; c
    v_lshlrev_b32 v20, 4, v1
    v_lshl_add_u32 v20, v4, 2, v20
    v_lshl_add_u32 v{SC}, v20, 2, s11
    v_add_u32 v{SC}, 4, v{SC}
    v_lshlrev_b32 v20, 3, v1
    v_lshl_add_u32 v20, v4, 2, v20
    v_add_u32 v20, 257, v20
    v_lshlrev_b32 v21, 2, v1
    v_lshl_add_u32 v21, v4, 6, v21
    v_add_u32 v21, {385 - 128}, v21
    v_cmp_gt_u32 vcc, 2, v4
    v_cndmask_b32 v20, v21, v20, vcc
    v_lshl_add_u32 v{SC+1}, v20, 2, s11
    v_lshlrev_b32 v20, 1, v1
    v_lshl_add_u32 v20, v4, 6, v20
    v_add_u32 v20, 513, v20
    v_lshl_add_u32 v{SC+2}, v20, 2, s11
    """)
    a(f"""
    s_mov_b32 s70, s4                       ; cp
    s_mov_b32 s71, s5                       ; k
    s_mov_b32 s72, s8                       ; d
    s_mov_b32 s73, s9
    s_mov_b32 s74, s11
    s_mov_b32 s75, s7                       ; hh
    s_waitcnt lgkmcnt(0)
    """)
    tag_calc(a)
    a(f"""
    s_lshl_b32 s10, s6, 4
    s_lshr_b32 s12, s12, s10
    s_lshl_b32 s76, s12, 16                 ; log_dt (f32 bits)
    s_lshr_b32 s13, s13, s10
    s_lshl_b32 s77, s13, 16                 ; D_skip (f32 bits)
    """)
    ts(a, "kp_prebar")
    a("s_barrier")
    ts(a, "k1")
    U = 40
    a("s_waitcnt vmcnt(4)" if not opt("cpf", 1) else "s_waitcnt vmcnt(4)")
    for i in range(8):
        s = XA + i
        a(f"v_lshlrev_b32 v{U+2*i}, 16, v{s}")
        a(f"v_and_b32 v{U+2*i+1}, 0xffff0000, v{s}")
    a(f"v_pk_add_f32 v[8:9], v[{U}:{U+1}], v[{U+2}:{U+3}]")
    a(f"v_pk_mul_f32 v[10:11], v[{U}:{U+1}], v[{U}:{U+1}]")
    a(f"v_pk_add_f32 v[12:13], v[{U+4}:{U+5}], v[{U+6}:{U+7}]")
    a(f"v_pk_mul_f32 v[14:15], v[{U+2}:{U+3}], v[{U+2}:{U+3}]")
    for i in range(2, 8):
        acc_ = 10 if i % 2 == 0 else 14
        a(f"v_pk_fma_f32 v[{acc_}:{acc_+1}], v[{U+2*i}:{U+2*i+1}], v[{U+2*i}:{U+2*i+1}], v[{acc_}:{acc_+1}]")
        if i >= 4:
            acc2 = 8 if i % 2 == 0 else 12
            a(f"v_pk_add_f32 v[{acc2}:{acc2+1}], v[{acc2}:{acc2+1}], v[{U+2*i}:{U+2*i+1}]")
    a("""
    v_pk_add_f32 v[8:9], v[8:9], v[12:13]
    v_pk_add_f32 v[10:11], v[10:11], v[14:15]
    v_add_f32 v8, v8, v9
    v_add_f32 v10, v10, v11
    """)
    for m in ("quad_perm:[1,0,3,2]", "quad_perm:[2,3,0,1]", "row_half_mirror", "row_mirror"):
        for r in (8, 10):
            a(f"v_add_f32_dpp v{r}, v{r}, v{r} {m} row_mask:0xf bank_mask:0xf")
    a("""
    v_mov_b32 v9, v8
    v_mov_b32 v11, v10
    v_permlane16_swap_b32 v8, v9
    v_permlane16_swap_b32 v10, v11
    v_add_f32 v8, v8, v9
    v_add_f32 v10, v10, v11
    """)
    a(f"""
    v_mul_f32 v8, {hx(1.0/448)}, v8         ; mean
    v_mul_f32 v10, {hx(1.0/448)}, v10
    v_fma_f32 v10, -v8, v8, v10             ; var
    v_max_f32 v10, 0, v10
    """)
    bf16r(a, 12, 8)
    bf16r(a, 13, 10)
    a(f"v_add_f32 v13, {hx(1e-5)}, v13")
    bf16r(a, 13, 13)
    a("v_sqrt_f32 v13, v13")
    bf16r(a, 13, 13)
    a("v_rcp_f32 v14, v13")
    a("""
    v_sub_f32 v15, v8, v12
    v_mul_f32 v16, v12, v14
    v_mul_f32 v15, v15, v14
    v_sub_f32 v17, 0, v16
    v_mul_f32 v18, v10, v14
    """)
    for i in range(8):
        a(f"v_pk_fma_f32 v[{U+2*i}:{U+2*i+1}], v[{U+2*i}:{U+2*i+1}], v[14:15], v[16:17] op_sel:[0,0,1] op_sel_hi:[1,0,1]")
        if i == 0:
            bf16r(a, 15, 15)
            a("v_mul_f32 v18, v18, v14")
        if i == 2:
            bf16r(a, 18, 18)
            a(f"v_add_f32 v18, {hx(1e-5)}, v18")
        if i == 4:
            bf16r(a, 18, 18)
            a("v_sqrt_f32 v18, v18")
        if i == 6:
            bf16r(a, 18, 18)
            a("v_rcp_f32 v18, v18")
    for i in range(8):
        a(f"v_cvt_pk_bf16_f32 v{XA+i}, v{U+2*i}, v{U+2*i+1}")
    a(f"""
    v_mul_f32 v20, v14, v18                 ; alpha
    v_fma_f32 v22, v15, v13, v12
    v_sub_f32 v22, 0, v22
    v_mov_b32 v21, s{S_TAG}
    v_mov_b32 v23, s{S_TAG}
    v_lshlrev_b32 v24, 4, v30
    v_add_u32 v24, {STAT_OFF}, v24
    s_mov_b32 exec_lo, 1
    s_mov_b32 exec_hi, 1
    global_store_dwordx4 v24, v[20:23], {sp(S_WS)} sc1
    s_mov_b64 exec, -1
    s_lshr_b32 s6, s71, 1
    s_mul_i32 s6, s6, {CH_SZ}
    s_and_b32 s7, s71, 1
    s_mul_i32 s7, s7, {2*896}
    s_add_u32 s6, s6, s7
    s_add_u32 s6, s6, {AUX_BASE + U_OFF}
    v_lshrrev_b32 v1, 5, v0
    v_mul_u32_u24 v1, 896, v1
    v_and_b32 v2, 31, v0
    v_lshl_add_u32 v1, v2, 4, v1
    v_add_u32 v1, s6, v1
    ds_write_b128 v1, {vr(XA)}
    s_mov_b32 exec_lo, 0x00ffffff
    s_mov_b32 exec_hi, 0x00ffffff
    ds_write_b128 v1, {vr(XB_)} offset:512
    s_mov_b64 exec, 1
    v_mov_b32 v8, {CNT_LNS}
    v_mov_b32 v9, 1
    s_waitcnt lgkmcnt(0)
    ds_add_u32 v8, v9
    s_mov_b64 exec, -1
    v_mov_b32 v8, {CNT_LNS}
    v_lshrrev_b32 v10, 4, v0
    v_bfe_u32 v9, v0, 2, 2
    v_mul_u32_u24 v9, 896, v9
    v_lshl_add_u32 v9, v10, 5, v9
    v_and_b32 v10, 3, v0
    v_lshl_add_u32 v9, v10, 3, v9
    s_lshl_b32 s10, s71, 7
    s_add_u32 s10, s10, {AUX_BASE + U_OFF}
    v_add_u32 v9, s10, v9
    s_lshl_b32 s10, s{S_XX}, 5
    s_add_u32 s10, s10, s{S_YY}
    s_mul_i32 s10, s10, 7168
    s_lshl_b32 s11, s71, 10
    s_add_u32 s10, s10, s11
    s_add_u32 s10, s10, {XB_OFF}
    v_lshlrev_b32 v10, 4, v0
    """)
    spin_lds(a, 11, 8, 0, 4)
    a(f"""
    ds_read_b64_tr_b16 v[12:13], v9
    ds_read_b64_tr_b16 v[14:15], v9 offset:{CH_SZ}
    ds_read_b64_tr_b16 v[16:17], v9 offset:512
    ds_read_b64_tr_b16 v[18:19], v9 offset:{CH_SZ+512}
    s_waitcnt lgkmcnt(2)
    buffer_store_dwordx4 v[12:15], v10, {srd(SRD_WS)}, s10 offen sc1
    s_cmp_eq_u32 s71, 3
    s_cbranch_scc1 LNS_SKIP
    s_add_u32 s10, s10, 4096
    s_waitcnt lgkmcnt(0)
    buffer_store_dwordx4 v[16:19], v10, {srd(SRD_WS)}, s10 offen sc1
    LNS_SKIP:
    s_waitcnt lgkmcnt(0)
    """)
    ts(a, "k2")
    def ln_publish():
        a(f"""
        s_lshl_b32 s10, s{S_XX}, 5
        s_add_u32 s10, s10, s{S_YY}
        s_lshl_b32 s10, s10, 2
        s_add_u32 s10, s10, {FL_LN}
        """)
        publish(a, CNT_LN, 4, 10, 8, 9)
    if opt("wpf", 1):
        a(f"""
        s_lshl_b32 s10, s{S_YY}, 3
        s_lshl_b32 s11, s71, 1
        s_add_u32 s10, s10, s11
        s_mul_i32 s10, s10, {49*128}
        v_lshl_add_u32 v1, v0, 7, s10
        s_mov_b32 exec_lo, -1
        s_mov_b32 exec_hi, 0x1ffff
        """)
    a(f"""
    s_cmp_lt_u32 s{S_YY}, 28
    s_cbranch_scc1 KC_GO
    """)
    if opt("wpf", 1):
        a(f"""
        global_load_dword v251, v1, {sp(S_W2)}
        global_load_dword v253, v1, {sp(S_W2)} offset:0
        """)
        a(f"v_add_u32 v1, {49*128}, v1")
        a(f"global_load_dword v253, v1, {sp(S_W2)}")
    a("s_mov_b64 exec, -1")
    ln_publish()
    a("s_branch L_END")
    a("KC_GO:")
    if opt("nokc", 0):
        a("s_mov_b64 exec, -1")
        ln_publish()
        a(f"""
        s_lshl_b32 s10, s70, 2
        s_add_u32 s10, s10, {FL_CV}
        """)
        publish(a, CNT_CV, 4, 10, 8, 9)
        ts_dump(a)
        a("s_branch L_END")
    a("s_mov_b64 exec, -1")
    Z1, Z2, Z4, Z8, Z16, CHN, C2, A2S, A4S, A8S, Z256, Z512, Z1024, ST_ = 32, 36, 40, 44, 48, 52, 56, 60, 64, 68, 72, 76, 80, 84
    DT = [92, 96, 100]
    RB, RA0, RA1 = 108, 140, 172
    VMY, VOT, VT = 6, 7, 5
    VTR = 3
    VTW = [24, 25, 26, 27]
    CV = 16
    a(f"""
    s_mov_b32 s7, s75
    s_mov_b32 s9, s73
    s_lshl_b32 s10, s7, 2
    s_add_u32 s10, s10, s9
    s_add_u32 s10, s10, {AF_OFF}
    v_mov_b32 v{VMY}, s10
    s_xor_b32 s10, s10, 4
    v_mov_b32 v{VOT}, s10
    s_mul_i32 s10, s7, {TILE_SZ}
    s_add_u32 s10, s10, s9
    v_lshl_add_u32 v{VTW[0]}, v0, 3, s10
    v_add_u32 v{VTW[1]}, {4*TROW}, v{VTW[0]}
    v_add_u32 v{VTW[2]}, {8*TROW}, v{VTW[0]}
    v_add_u32 v{VTW[3]}, {12*TROW}, v{VTW[0]}
    v_and_b32 v1, 15, v0
    v_mul_u32_u24 v{VTR}, {TROW}, v1
    v_lshrrev_b32 v4, 4, v0
    v_lshl_add_u32 v{VTR}, v4, 4, v{VTR}
    v_add_u32 v{VTR}, s10, v{VTR}
    v_mov_b32 v1, {hx(LOG2E)}
    v_mul_f32 v4, s76, v1
    v_exp_f32 v4, v4
    """)
    bf16r(a, 4, 4)
    a(f"""
    s_waitcnt vmcnt(3)
    """)
    a(f"""
    s_waitcnt vmcnt(2)
    v_lshlrev_b32 v12, 16, v{RAW}
    v_and_b32 v13, 0xffff0000, v{RAW}
    v_mul_f32 v12, v12, v1
    v_mul_f32 v13, v13, v1
    v_exp_f32 v12, v12
    v_exp_f32 v13, v13
    v_cvt_pk_bf16_f32 v12, v12, v13
    v_lshlrev_b32 v14, 16, v12
    v_and_b32 v15, 0xffff0000, v12
    v_mul_f32 v14, v14, v4
    v_mul_f32 v15, v15, v4
    v_mul_f32 v14, v14, v1
    v_mul_f32 v15, v15, v1
    v_exp_f32 v14, -v14
    v_exp_f32 v15, -v15
    v_lshlrev_b32 v16, 16, v{RAW+1}
    v_and_b32 v17, 0xffff0000, v{RAW+1}
    v_mul_f32 v16, v16, v4
    v_mul_f32 v17, v17, v4
    v_mul_f32 v16, 0.15915494, v16
    v_mul_f32 v17, 0.15915494, v17
    v_rndne_f32 v18, v16
    v_rndne_f32 v19, v17
    v_sub_f32 v16, v16, v18
    v_sub_f32 v17, v17, v19
    v_cos_f32 v18, v16
    v_sin_f32 v19, v16
    v_cos_f32 v20, v17
    v_sin_f32 v21, v17
    v_mul_f32 v{Z1}, v14, v18
    v_mul_f32 v{Z1+1}, v14, v19
    v_mul_f32 v{Z1+2}, v15, v20
    v_mul_f32 v{Z1+3}, v15, v21
    v_add_f32 v4, v4, v4
    v_lshlrev_b32 v16, 16, v{RAW+2}
    v_and_b32 v17, 0xffff0000, v{RAW+2}
    v_lshlrev_b32 v18, 16, v{RAW+3}
    v_and_b32 v19, 0xffff0000, v{RAW+3}
    v_mul_f32 v{C2}, v16, v4
    v_mul_f32 v{C2+1}, v18, v4
    v_mul_f32 v{C2+2}, v17, v4
    v_mul_f32 v{C2+3}, v19, v4
    """)
    PRIME.update({Z1: (88, 90), Z2: (104, 106), Z4: (238, 240), Z8: (242, 244), Z16: (246, 248), Z256: (250, 252), Z512: (28, 30), Z1024: (254, 232)})
    mkprime(a, Z1); cm(a, Z2, Z1, Z1); mkprime(a, Z2); cm(a, Z4, Z2, Z2); mkprime(a, Z4); cm(a, Z8, Z4, Z4); mkprime(a, Z8); cm(a, Z16, Z8, Z8); mkprime(a, Z16)
    state = {"n": 0}
    def cvt(src, conj, slot):
        neg = "-" if conj else ""
        c = CV + 2 * slot
        a(f"v_cvt_pk_bf16_f32 v{c}, v{src}, {neg}v{src+1}")
        a(f"v_cvt_pk_bf16_f32 v{c+1}, v{src+2}, {neg}v{src+3}")
        return c
    def wr2(r0, c0, r1, c1):
        q = r0 // 4
        o0 = (r0 - 4 * q) * TROW // 8; o1 = (r1 - 4 * q) * TROW // 8
        assert 0 <= o0 <= 255 and 0 <= o1 <= 255
        a(f"ds_write2_b64 v{VTW[q]}, v[{c0}:{c0+1}], v[{c1}:{c1+1}] offset0:{o0} offset1:{o1}")
    def wr1(r, c):
        a(f"ds_write_b64 v{VTW[0]}, v[{c}:{c+1}] offset:{r*TROW}")
    def chain(reg, ratio, rows, conj, save=None, last_mul=False):
        pend = None
        for i, r in enumerate(rows):
            slot = (state["n"] % 4); state["n"] += 1
            c = cvt(reg, conj, slot)
            if save and r in save:
                s = save[r]
                a(f"v_mov_b64 v[{s}:{s+1}], v[{reg}:{reg+1}]")
                a(f"v_mov_b64 v[{s+2}:{s+3}], v[{reg+2}:{reg+3}]")
            if i + 1 < len(rows) or last_mul:
                cm(a, reg, reg, ratio)
            if pend is None:
                if i + 1 < len(rows) and rows[i + 1] // 4 == r // 4 and abs(rows[i + 1] - r) * TROW // 8 <= 255:
                    pend = (r, c)
                else:
                    wr1(r, c)
            else:
                wr2(pend[0], pend[1], r, c); pend = None
        assert pend is None
    def rd(dest):
        for kk in range(8):
            a(f"ds_read_b128 {vr(dest+4*kk)}, v{VTR} offset:{64*kk}")
    def mm(dt, A):
        for kk in range(8):
            c = "0" if kk == 0 else vr(DT[dt])
            a(f"v_mfma_f32_16x16x32_bf16 {vr(DT[dt])}, {vr(A+4*kk)}, {vr(RB+4*kk)}, {c}")
    a(f"""
    v_mov_b32 v{CV+6}, 0x3f80
    v_mov_b32 v{CV+7}, 0x3f80
    v_mov_b64 v[{CHN}:{CHN+1}], v[{Z16}:{Z16+1}]
    v_mov_b64 v[{CHN+2}:{CHN+3}], v[{Z16+2}:{Z16+3}]
    """)
    wr1(0, CV + 6)
    state["n"] = 0
    chain(CHN, Z16, [1], True, last_mul=True)
    chain(CHN, Z16, list(range(2, 16)), True, last_mul=True)
    rd(RB)
    a(f"v_mov_b64 v[{Z256}:{Z256+1}], v[{CHN}:{CHN+1}]")
    a(f"v_mov_b64 v[{Z256+2}:{Z256+3}], v[{CHN+2}:{CHN+3}]")
    mkprime(a, Z256)
    ln_publish()
    if opt("wpf", 1):
        a(f"""
        s_lshl_b32 s10, s{S_YY}, 3
        s_lshl_b32 s11, s71, 1
        s_add_u32 s10, s10, s11
        s_mul_i32 s10, s10, {49*128}
        v_lshl_add_u32 v1, v0, 7, s10
        s_mov_b32 exec_lo, -1
        s_mov_b32 exec_hi, 0x1ffff
        global_load_dword v251, v1, {sp(S_W2)}
        v_add_u32 v1, {49*128}, v1
        global_load_dword v253, v1, {sp(S_W2)}
        s_mov_b64 exec, -1
        """)
    cm(a, CHN, C2, Z1)
    chain(CHN, Z1, list(range(16)), False, save={1: A2S, 3: A4S, 7: A8S})
    rd(RA0)
    cm(a, Z512, Z256, Z256)
    mkprime(a, Z512)
    cm(a, CHN, A2S, Z256)
    cm(a, Z1024, Z512, Z512)
    mkprime(a, Z1024)
    cm(a, ST_, A4S, Z512)
    chain(CHN, Z2, list(range(8)), False)
    a("s_waitcnt lgkmcnt(4)")
    mm(0, RA0)
    cm(a, CHN, ST_, Z256)
    chain(ST_, Z4, list(range(8, 12)), False)
    chain(CHN, Z4, list(range(12, 16)), False)
    rd(RA1)
    cm(a, CHN, A8S, Z1024)
    cm(a, ST_, CHN, Z8)
    def a2():
        for tau in range(4):
            c0 = cvt(CHN, False, (2 * tau) % 4)
            c1 = cvt(ST_, False, (2 * tau + 1) % 4)
            if tau < 3:
                cmul_n(a, both(CHN, CHN, Z256) + both(ST_, ST_, Z256))
            wr2(2 * tau, c0, 2 * tau + 1, c1)
        c = cvt(C2, False, 0)
        wr1(8, c)
    a2()
    rd(RA0)
    a("s_waitcnt lgkmcnt(8)")
    mm(1, RA1)
    a("s_waitcnt lgkmcnt(0)")
    mm(2, RA0)
    ts(a, "k3")
    a(f"""
    ds_write_b128 v{SC}, {vr(DT[0])}
    ds_write_b128 v{SC+1}, {vr(DT[1])}
    s_mov_b32 exec_lo, -1
    s_mov_b32 exec_hi, 0
    ds_write2_b64 v{SC+2}, v[{DT[2]}:{DT[2]+1}], v[{DT[2]+2}:{DT[2]+3}] offset0:0 offset1:16
    s_mov_b32 exec_lo, 0
    s_mov_b32 exec_hi, 1
    v_mov_b32 v1, s74
    ds_write_b32 v1, v{DT[2]}
    s_mov_b64 exec, -1
    v_mov_b32 v12, 0
    v_mov_b32 v13, 0
    v_mov_b32 v14, 0
    v_mov_b32 v15, 0
    s_cmp_eq_u32 s7, 0
    s_cbranch_scc1 KC_Z2
    v_lshl_add_u32 v1, v0, 2, s74
    s_mov_b64 exec, 15
    v_subrev_u32 v1, 16, v1
    ds_write_b32 v1, v12
    s_mov_b64 exec, 0x3fffffff
    v_lshl_add_u32 v1, v0, 4, s9
    ds_write_b128 v1, v[12:15] offset:{U_PAD}
    s_mov_b64 exec, -1
    KC_Z2:
    v_lshlrev_b32 v1, 4, v0
    v_add_u32 v1, {FL_LN}, v1
    """)
    pair_sync(a, 1, VMY, VOT, VT)
    ts(a, "k4")
    for r in range(2):
        G = 32 + 24 * r
        for j in range(12):
            a(f"ds_read2st64_b32 v[{G+2*j}:{G+2*j+1}], v{GA+12*r+j} offset0:0 offset1:16")
    poll_flags(a, 1, 64, 8, wide=True)
    a(f"""
    s_lshl_b32 s10, s7, 7
    v_add_u32 v1, s10, v0
    v_mul_u32_u24 v1, 7168, v1
    s_lshl_b32 s10, s72, 4
    s_add_u32 s10, s10, {XB_OFF}
    buffer_load_dwordx4 v[112:115], v1, {srd(SRD_WS)}, s10 offen sc1
    s_add_u32 s10, s10, {64*7168}
    buffer_load_dwordx4 v[116:119], v1, {srd(SRD_WS)}, s10 offen sc1
    s_lshl_b32 s10, s7, 11
    s_add_u32 s10, s10, s9
    s_add_u32 s10, s10, 32
    v_lshl_add_u32 v2, v0, 4, s10
    v_add_u32 v3, {2*CSTR}, v2
    s_waitcnt lgkmcnt(0)
    """)
    ts(a, "k5")
    for r in range(2):
        G = 32 + 24 * r
        P = 80 + 16 * r
        p = lambda k: {0: P+8, 1: P+4, 2: P+0, 3: P+1, 4: P+2, 5: P+3}[k]
        for j in range(12):
            a(f"v_add_f32 v{G+2*j}, v{G+2*j}, v{G+2*j+1}")
        for k in range(6):
            a(f"v_cvt_pk_bf16_f32 v{p(k)}, v{G+4*k}, v{G+4*k+2}")
        a(f"""
        v_mov_b32 v{P+5}, v{p(2)}
        v_mov_b32 v{P+6}, v{p(3)}
        v_mov_b32 v{P+7}, v{p(4)}
        v_alignbit_b32 v120, v{p(2)}, v{p(1)}, 16
        v_alignbit_b32 v121, v{p(3)}, v{p(2)}, 16
        v_alignbit_b32 v122, v{p(4)}, v{p(3)}, 16
        v_alignbit_b32 v123, v{p(5)}, v{p(4)}, 16
        v_alignbit_b32 v124, v{p(1)}, v{p(0)}, 16
        v_mov_b32 v125, v120
        v_mov_b32 v126, v121
        v_mov_b32 v127, v122
        ds_write_b128 v2, v[{P}:{P+3}] offset:{1024*r}
        ds_write_b128 v2, v[120:123] offset:{1024*r + CSTR}
        ds_write_b128 v3, v[{P+4}:{P+7}] offset:{1024*r}
        ds_write_b128 v3, v[124:127] offset:{1024*r + CSTR}
        """)
    a(f"""
    s_cmp_lg_u32 s7, 0
    s_cbranch_scc1 KC_Z3
    v_lshrrev_b32 v1, 1, v0
    v_mul_u32_u24 v1, {CSTR}, v1
    v_and_b32 v4, 1, v0
    v_lshl_add_u32 v1, v4, 4, v1
    v_add_u32 v1, s9, v1
    v_mov_b32 v12, 0
    v_mov_b32 v13, 0
    v_mov_b32 v14, 0
    v_mov_b32 v15, 0
    s_mov_b64 exec, 0xff
    ds_write_b128 v1, v[12:15]
    s_mov_b64 exec, -1
    KC_Z3:
    """)
    VA_, VB_ = 2, 3
    BR, AR, CACC = 32, 64, 80
    pair_sync(a, 2, VMY, VOT, VT)
    a(f"""
    s_lshl_b32 s10, s7, 11
    s_add_u32 s10, s10, s9
    v_lshl_add_u32 v1, v0, 4, s10
    s_waitcnt vmcnt(0)
    ds_write_b128 v1, v[112:115] offset:{U_OFF}
    ds_write_b128 v1, v[116:119] offset:{U_OFF+1024}
    v_lshrrev_b32 v4, 4, v0
    v_bfe_u32 v8, v0, 2, 2
    v_mul_u32_u24 v8, {CSTR}, v8
    v_and_b32 v9, 3, v0
    v_lshl_add_u32 v8, v9, 3, v8
    v_lshrrev_b32 v9, 1, v4
    v_and_b32 v10, 1, v4
    v_lshlrev_b32 v11, 5, v9
    v_lshlrev_b32 v12, 4, v10
    v_add_u32 v8, v8, v11
    v_sub_u32 v8, v8, v12
    s_lshl_b32 s10, s7, 8
    s_add_u32 s14, s10, s9
    s_add_u32 s14, s14, {32 - 8}
    v_add_u32 v{VA_}, s14, v8
    v_and_b32 v8, 15, v0
    v_lshlrev_b32 v8, 5, v8
    v_sub_u32 v8, v8, v11
    v_add_u32 v8, v8, v12
    s_sub_u32 s14, s9, s10
    s_add_u32 s14, s14, {U_OFF}
    v_add_u32 v{VB_}, s14, v8
    """)
    for i in range(32):
        a(f"v_mov_b32 v{CACC+i}, 0")
    pair_sync(a, 3, VMY, VOT, VT)
    ts(a, "k6")
    def ldA(P):
        buf = AR + 4 * (P % 4)
        off = 512 * (P % 8) + (64 if P >= 8 else 0)
        a(f"ds_read_b64_tr_b16 v[{buf}:{buf+1}], v{VA_} offset:{off+8}")
        a(f"ds_read_b64_tr_b16 v[{buf+2}:{buf+3}], v{VA_} offset:{off}")
    for s in range(7, -1, -1):
        a(f"ds_read_b128 {vr(BR+4*s)}, v{VB_} offset:{512*s}")
    for P in range(3):
        ldA(P)
    a(f"""
    v_subrev_u32 v{VB_}, 64, v{VB_}
    s_mov_b32 s10, 4
    s_waitcnt lgkmcnt(0)
    CONV_LOOP:
    """)
    for P in range(8):
        a("s_waitcnt lgkmcnt(7)")
        ldA(P + 3)
        first = True
        for s in range(7 - P, -1, -1):
            if P == 0 and s <= 2:
                a(f"s_waitcnt lgkmcnt({3*(s+1)})")
            a(f"v_mfma_f32_16x16x32_bf16 {vr(CACC+4*(P+s))}, {vr(AR+4*(P%4))}, {vr(BR+4*s)}, {vr(CACC+4*(P+s))}")
            if first:
                a(f"ds_read_b128 {vr(BR+4*s)}, v{VB_} offset:{512*s}")
                first = False
    a(f"""
    v_add_u32 v{VA_}, 64, v{VA_}
    v_subrev_u32 v{VB_}, 64, v{VB_}
    s_sub_u32 s10, s10, 1
    s_cmp_lg_u32 s10, 0
    s_cbranch_scc1 CONV_LOOP
    """)
    ts(a, "k7")
    pair_sync(a, 4, VMY, VOT, VT)
    a(f"""
    s_lshl_b32 s10, s7, 12
    s_add_u32 s10, s10, s9
    v_lshl_add_u32 v2, v0, 4, s10
    v_xor_b32 v3, 4096, v2
    s_cmp_lg_u32 s7, 0
    s_cbranch_scc1 KC_X1
    """)
    assert AUX_BASE % 8192 == 0 and CH_SZ % 8192 == 0
    for t in range(4):
        a(f"ds_write_b128 v2, {vr(CACC+16+4*t)} offset:{1024*t}")
    a("s_branch KC_X2")
    a.label("KC_X1")
    for t in range(4):
        a(f"ds_write_b128 v2, {vr(CACC+4*t)} offset:{1024*t}")
    for i in range(0, 16, 2):
        a(f"v_mov_b64 v[{CACC+i}:{CACC+i+1}], v[{CACC+16+i}:{CACC+17+i}]")
    a.label("KC_X2")
    a(f"""
    v_and_b32 v8, 15, v0
    v_lshlrev_b32 v8, 5, v8
    v_lshrrev_b32 v4, 4, v0
    v_lshl_add_u32 v8, v4, 3, v8
    s_lshl_b32 s10, s7, 11
    v_add_u32 v8, s10, v8
    s_add_u32 s14, s9, {U_OFF}
    v_add_u32 v9, s14, v8
    """)
    for t in range(4):
        a(f"ds_read_b64 v[{48+2*t}:{49+2*t}], v9 offset:{512*t}")
    pair_sync(a, 5, VMY, VOT, VT)
    for t in range(4):
        a(f"ds_read_b128 {vr(32+4*t)}, v3 offset:{1024*t}")
    a(f"""
    s_lshl_b32 s10, s72, 12
    s_add_u32 s10, s10, {ST_OFF}
    v_mov_b32 v10, s77
    v_mov_b32 v11, s77
    """)
    for t in range(4):
        A = CACC + 4 * t; X = 48 + 2 * t; Pp = 32 + 4 * t
        a(f"""
        v_lshlrev_b32 v12, 16, v{X}
        v_and_b32 v13, 0xffff0000, v{X}
        v_lshlrev_b32 v14, 16, v{X+1}
        v_and_b32 v15, 0xffff0000, v{X+1}
        v_pk_fma_f32 v[{A}:{A+1}], v[12:13], v[10:11], v[{A}:{A+1}]
        v_pk_fma_f32 v[{A+2}:{A+3}], v[14:15], v[10:11], v[{A+2}:{A+3}]
        s_waitcnt lgkmcnt({3-t})
        v_pk_add_f32 v[{A}:{A+1}], v[{A}:{A+1}], v[{Pp}:{Pp+1}]
        v_pk_add_f32 v[{A+2}:{A+3}], v[{A+2}:{A+3}], v[{Pp+2}:{Pp+3}]
        v_cvt_pk_bf16_f32 v{24+2*(t%2)}, v{A}, v{A+1}
        v_cvt_pk_bf16_f32 v{25+2*(t%2)}, v{A+2}, v{A+3}
        buffer_store_dwordx2 v[{24+2*(t%2)}:{25+2*(t%2)}], v8, {srd(SRD_WS)}, s10 offen offset:{512*t} sc1
        """)
    ts(a, "k8")
    a(f"""
    s_lshl_b32 s10, s70, 2
    s_add_u32 s10, s10, {FL_CV}
    """)
    publish(a, CNT_CV, 4, 10, 8, 9)
    ts(a, "k9")

def build():
    a = Asm()
    a.label("L_START")
    prologue(a)
    g_path(a)
    ts_dump(a)
    span_end(a)
    a("s_branch L_END")
    a.label("R_SPARE_G")
    spare_g(a)
    a.label("R_AUX")
    kc_path(a)
    ts_dump(a)
    span_end(a)
    a("s_branch L_END")
    for t in TAIL: a(t)
    return a

def finish(a, name, vgpr=256):
    lines, npad = pad_hazards(a.lines)
    body = "\n".join(("    " + l if not l.endswith(":") else l) for l in lines)
    body = body.replace("L_END", f"{name}_END").replace("L_BAIL", f"{name}_BAIL")
    hdr = open(f"cdna_kernels/{NAME}.s.ref").read().split("; Override launch")[0].rstrip("\n")
    txt = f"""{hdr}
; @launch grid=(256,1,1) block=(512,1,1) lds=163840
.amdgcn_target "amdgcn-amd-amdhsa--gfx950"
.text
.globl {name}
.p2align 8
.type {name},@function
{name}:
{body}
{name}_BAIL:
    s_mov_b64 exec, 1
    v_mov_b32 v1, 0
    v_mov_b32 v2, s2
    v_lshl_or_b32 v2, v2, 4, s3
    v_or_b32 v2, 0xbad00000, v2
    global_store_dword v1, v2, s[42:43]
    s_waitcnt vmcnt(0)
{name}_END:
    s_endpgm
L_CODE_END:
.section .rodata,"a"
.p2align 6
.amdhsa_kernel {name}
  .amdhsa_next_free_vgpr {vgpr}
  .amdhsa_next_free_sgpr 102
  .amdhsa_accum_offset {vgpr}
  .amdhsa_group_segment_fixed_size 0
  .amdhsa_kernarg_size 120
  .amdhsa_user_sgpr_count 2
  .amdhsa_user_sgpr_kernarg_segment_ptr 1
  .amdhsa_system_sgpr_workgroup_id_x 1
.end_amdhsa_kernel
"""
    print(f"{len(lines)} lines, {npad} nops", file=sys.stderr)
    return txt

if __name__ == "__main__":
    out = sys.argv[1]
    if len(sys.argv) > 2 and sys.argv[2] == "ts": TS_ON = True
    a = build()
    open(out, "w").write(finish(a, NAME + "_kernel"))
```

```python
import sys, math, struct, os
sys.path.insert(0, "gen")
from asmlib import Asm, pad_hazards

NAME = "recurrent_scan__ssm_conv_s4d__mixer_channel_mlp__prompt"
L, D, N, F = 2048, 448, 256, 1792
H_OFF, XB_OFF, ST_OFF, FLAG_OFF = 0, 0x700000, 0x8C0000, 0xA80000
FL_LN, FL_G1, FL_CV, FL_EPOCH = FLAG_OFF, FLAG_OFF + 0x1000, FLAG_OFF + 0x2000, FLAG_OFF + 0x3000
STAT_OFF = FLAG_OFF + 0x4000
SF_OFF = FLAG_OFF + 0xC000
TS_OFF = 0xE00000
WS_SRD_SIZE = 0x1000000
X_BYTES = L * D * 2
W_BYTES = D * F * 2
LOG2E = math.log2(math.e)

def f2u(x): return struct.unpack("<I", struct.pack("<f", x))[0]
def hx(x): return hex(f2u(x))

S_X, S_LOGA, S_AIM, S_CRE, S_CIM, S_LOGDT, S_DSKIP, S_BX, S_W1, S_B1, S_W2, S_B2, S_OUT, S_DBG, S_WS = \
    16, 18, 20, 22, 24, 26, 28, 30, 32, 34, 36, 38, 40, 42, 44
S_EPOCH, S_TAG = 46, 47
SRD_W1, SRD_X, SRD_WS, SRD_OUT, SRD_W2 = 48, 52, 56, 60, 64
S_BUD = 69
S_XX, S_YY = 78, 79

def sp(b): return f"s[{b}:{b+1}]"
def srd(b): return f"s[{b}:{b+3}]"
def vr(b, n=4): return f"v[{b}:{b+n-1}]" if n > 1 else f"v{b}"

SLOT = 16384; NSLOT = 7
AUX_BASE = NSLOT * SLOT
CH_SZ = 24576
TILE_SZ = 8704; TROW = 544
CSTR = 4160
U_OFF = 17376; U_PAD = U_OFF - 480
T1_OFF = U_OFF + 28
T0_OFF = T1_OFF + 4096
FREE = 24064
GFLAG = AUX_BASE + FREE
CNT_G1, CNT_LN, CNT_CV, CNT_LNS = GFLAG + 16, GFLAG + 20, GFLAG + 24, GFLAG + 28
G2FLAG = GFLAG + 32
AF_OFF = FREE + 64
DUMMY = AUX_BASE + CH_SZ + FREE + 256
G2_PSTR = 272; G2_WREG = 28672; G2_STILE = 17408; G2_SSTR = 144

OPT = dict(kv.split("=") for kv in os.environ.get("G3OPT", "").split(",") if kv)
def opt(k, d): return int(OPT.get(k, d))

TS_ON = False
TSG = os.environ.get("TSG", "g1,g2,g3,g4,g5,g6,g7,g8,g9").split(",")
TSK = os.environ.get("TSK", "k1,k2,k3,k4,k5,k6,k7,k8,k9").split(",")
def ts(a, name, wait=True):
    if not TS_ON: return
    lst = TSG if name.startswith("g") else TSK
    if name not in lst: return
    i = 1 + lst.index(name)
    assert i <= 9
    a(f"s_memtime s[{80+2*i}:{81+2*i}]")
    if wait and opt("tswait", 1): a("s_waitcnt lgkmcnt(0)")
def ts_dump(a, n=10):
    if not TS_ON: return
    a(f"""
    s_memrealtime s[70:71]
    s_waitcnt lgkmcnt(0)
    s_lshl_b32 s76, s2, 3
    s_add_u32 s76, s76, s3
    s_lshl_b32 s76, s76, 7
    s_add_u32 s76, s76, {TS_OFF}
    s_add_u32 s74, s{S_WS}, s76
    s_addc_u32 s75, s{S_WS+1}, 0
    v_mov_b32 v1, 0
    """)
    for i in range(n):
        a(f"""
        v_mov_b32 v2, s{80+2*i}
        v_mov_b32 v3, s{81+2*i}
        global_store_dwordx2 v1, v[2:3], s[74:75] offset:{8*i}
        """)
    a(f"""
    v_mov_b32 v2, s70
    v_mov_b32 v3, s71
    global_store_dwordx2 v1, v[2:3], s[74:75] offset:{8*n}
    v_mov_b32 v2, s100
    v_mov_b32 v3, s101
    global_store_dwordx2 v1, v[2:3], s[74:75] offset:{8*n+8}
    s_waitcnt vmcnt(0)
    """)

class VM:
    def __init__(self): self.ops = []
    def issue(self, tag): self.ops.append(tag)
    def wait(self, a, tag):
        idx = max(i for i, t in enumerate(self.ops) if t == tag)
        n = len(self.ops) - 1 - idx
        a(f"s_waitcnt vmcnt({min(n, 63)})")
    def all(self, a):
        a("s_waitcnt vmcnt(0)")

def mk_srd(a, dst, base, size):
    a(f"""
    s_mov_b32 s{dst}, s{base}
    s_mov_b32 s{dst+1}, s{base+1}
    s_mov_b32 s{dst+2}, {hex(size)}
    s_mov_b32 s{dst+3}, 0x00020000
    """)

def bf16r(a, dst, src):
    a(f"v_cvt_pk_bf16_f32 v{dst}, v{src}, v{src}")
    a(f"v_and_b32 v{dst}, 0xffff0000, v{dst}")

def budget(a):
    a(f"s_sub_u32 s{S_BUD}, s{S_BUD}, 1")
    a("s_cbranch_scc1 L_BAIL")

TAIL = []
def spin_lds(a, tmp, addr_v, off, target):
    lab = a.newlabel("SPIN")
    a(f"{lab}:")
    budget(a)
    a(f"""
    ds_read_b32 v{tmp}, v{addr_v} offset:{off}
    s_waitcnt lgkmcnt(0)
    v_cmp_gt_u32 vcc, {target}, v{tmp}
    s_cbranch_vccnz {lab}
    """)

def check_flag(a, vval, vaddr, target):
    s = a.newlabel("CF"); b = a.newlabel("CFB")
    a(f"v_cmp_gt_u32 vcc, {target}, v{vval}")
    a(f"s_cbranch_vccnz {s}")
    a(f"{b}:")
    TAIL.append(f"""
    {s}:
    s_sub_u32 s{S_BUD}, s{S_BUD}, 1
    s_cbranch_scc1 L_BAIL
    ds_read_b32 v{vval}, v{vaddr}
    s_waitcnt lgkmcnt(0)
    v_cmp_gt_u32 vcc, {target}, v{vval}
    s_cbranch_vccnz {s}
    s_branch {b}
    """)

def publish(a, cnt_addr, nwaves, flag_off_s, vt0, vt1):
    lab = a.newlabel("PUB")
    a(f"""
    s_waitcnt vmcnt(0)
    v_mov_b32 v{vt0}, {cnt_addr}
    v_mov_b32 v{vt1}, 1
    s_mov_b64 exec, 1
    ds_add_rtn_u32 v{vt1}, v{vt0}, v{vt1}
    s_waitcnt lgkmcnt(0)
    v_cmp_eq_u32 vcc, {nwaves-1}, v{vt1}
    s_cbranch_vccz {lab}
    v_mov_b32 v{vt0}, s{flag_off_s}
    v_mov_b32 v{vt1}, s{S_TAG}
    global_store_dword v{vt0}, v{vt1}, {sp(S_WS)} sc1
    {lab}:
    s_mov_b64 exec, -1
    """)

def poll_flags(a, addr_v, nlanes, vt, wide=False):
    lab = a.newlabel("POLL"); ok = a.newlabel("POLLOK")
    if nlanes < 64:
        a(f"s_mov_b64 exec, {hex((1 << nlanes) - 1)}")
    a(f"{lab}:")
    budget(a)
    if wide:
        a(f"""
        global_load_dwordx4 v[{vt}:{vt+3}], v{addr_v}, {sp(S_WS)} sc1
        s_waitcnt vmcnt(0)
        v_xor_b32 v{vt}, s{S_TAG}, v{vt}
        v_xor_b32 v{vt+1}, s{S_TAG}, v{vt+1}
        v_xor_b32 v{vt+2}, s{S_TAG}, v{vt+2}
        v_xor_b32 v{vt+3}, s{S_TAG}, v{vt+3}
        v_or3_b32 v{vt}, v{vt}, v{vt+1}, v{vt+2}
        v_or_b32 v{vt}, v{vt}, v{vt+3}
        v_cmp_ne_u32 vcc, 0, v{vt}
        """)
    else:
        a(f"""
        global_load_dword v{vt}, v{addr_v}, {sp(S_WS)} sc1
        s_waitcnt vmcnt(0)
        v_cmp_ne_u32 vcc, s{S_TAG}, v{vt}
        """)
    a(f"""
    s_cbranch_vccz {ok}
    s_sleep 1
    s_branch {lab}
    {ok}:
    """)
    if nlanes < 64:
        a("s_mov_b64 exec, -1")

def mod_sub(a, r, t, m, times):
    for k in times:
        a(f"s_cmp_ge_u32 s{r}, {k*m}")
        a(f"s_cselect_b32 s{t}, {k*m}, 0")
        a(f"s_sub_u32 s{r}, s{r}, s{t}")

def span_end(a):
    if not opt("span", 0): return
    lab = a.newlabel("SPN")
    a(f"""
    s_memtime s[96:97]
    s_memrealtime s[94:95]
    s_cmp_lg_u32 s3, 0
    s_cbranch_scc1 {lab}
    s_mul_i32 s92, s2, 37
    s_and_b32 s92, s92, 2047
    s_cmp_lg_u32 s92, 0
    s_cselect_b32 s91, 1, 0
    ; slots: wg 0,53,106,159,212 -> k = wg/53
    s_mul_i32 s92, s2, 1237
    s_lshr_b32 s92, s92, 16
    s_mul_i32 s91, s92, 53
    s_cmp_lg_u32 s91, s2
    s_cbranch_scc1 {lab}
    s_waitcnt lgkmcnt(0)
    s_sub_u32 s96, s96, s98
    s_mul_i32 s92, s92, 12
    v_mov_b32 v1, s92
    v_mov_b32 v2, s100
    v_mov_b32 v3, s94
    v_mov_b32 v4, s96
    s_mov_b64 exec, 1
    global_store_dwordx3 v1, v[2:4], s[42:43] sc1
    s_mov_b64 exec, -1
    s_waitcnt vmcnt(0)
    {lab}:
    """)
def prologue(a):
    if opt("span", 0):
        a("s_memtime s[98:99]")
        a("s_memrealtime s[100:101]")
    if TS_ON:
        a("s_memtime s[80:81]")
        a("s_memrealtime s[100:101]")
    a(f"""
    s_load_dwordx16 s[16:31], s[0:1], 0
    s_load_dwordx8 s[32:39], s[0:1], 64
    s_load_dwordx4 s[40:43], s[0:1], 96
    s_load_dwordx2 s[44:45], s[0:1], 112
    v_lshrrev_b32 v1, 6, v0
    v_and_b32 v0, 63, v0
    s_cmp_ge_u32 s2, 256
    v_readfirstlane_b32 s3, v1
    s_cbranch_scc1 L_END
    s_and_b32 s{S_XX}, s2, 7
    s_lshr_b32 s{S_YY}, s2, 3
    s_mov_b32 s{S_BUD}, 0x40000
    s_cmp_ge_u32 s3, 4
    s_cbranch_scc1 R_AUX
    s_cmp_ge_u32 s{S_YY}, 28
    s_cbranch_scc1 R_SPARE_G
    """)

def epoch_load(a):
    a(f"""
    s_add_u32 s6, s{S_WS}, {FL_EPOCH}
    s_addc_u32 s7, s{S_WS+1}, 0
    s_load_dword s{S_EPOCH}, s[6:7], 0
    """)
def tag_calc(a):
    a(f"""
    s_mul_i32 s{S_TAG}, s{S_EPOCH}, 0x9E3779B1
    s_add_u32 s{S_TAG}, s{S_TAG}, 0x7F4A7C15
    """)

VW1, VW1B, VX, VXB = 2, 3, 4, 5
VA = [[6, 7], [10, 11]]
VB = [[8, 9], [12, 13]]
VSIG, VCNT = 14, 15
VFL, VFV, VB1, VB2R, VW2, VW2B, VT0 = 248, 249, 250, 251, 252, 253, 254
FB = [16, 32, 48, 64]
ACC = 128
W2R = 16
HB = 192
S_RB, S_FT, S_LB, S_DB = 70, 71, 72, 73
S_U, S_KD, S_WO, S_HS, S_KH = 74, 68, 76, 77, 75
def acc(p, q): return ACC + 16 * (2 * p + q)

def g1_dma(a, vm, u, j):
    base = (u % NSLOT) * SLOT
    if j == 0:
        a(f"s_add_u32 m0, s{S_WO}, {base}")
        a(f"buffer_load_dwordx4 v{VW1}, {srd(SRD_W1)}, s8 offen lds")
    elif j == 1:
        a(f"buffer_load_dwordx4 v{VW1B}, {srd(SRD_W1)}, s8 offen offset:1024 lds")
    elif j == 2:
        a(f"s_add_u32 m0, s{S_WO}, {base + 8192}")
        a(f"buffer_load_dwordx4 v{VX}, {srd(SRD_X)}, s9 offen lds")
    else:
        a(f"buffer_load_dwordx4 v{VXB}, {srd(SRD_X)}, s9 offen offset:1024 lds")
    vm.issue(("u", u))
def g1_adv(a):
    a(f"""
    s_add_u32 s{S_U}, s{S_U}, 1
    s_cmp_eq_u32 s{S_U}, 14
    s_cselect_b32 s{S_U}, 0, s{S_U}
    s_mul_i32 s8, s{S_U}, {32*3584}
    s_lshl_b32 s9, s{S_U}, 6
    """)
def w2_dma(a, vm, t, j):
    tt = t % 14
    base = (tt >> 1) * SLOT + (tt & 1) * 8192
    if j == 0:
        a(f"s_add_u32 m0, s{S_WO}, {base}")
        a(f"buffer_load_dwordx4 v{VW2}, {srd(SRD_W2)}, s{S_KD} offen lds")
    else:
        a(f"buffer_load_dwordx4 v{VW2B}, {srd(SRD_W2)}, s{S_KD} offen offset:1024 lds")
    vm.issue(("w", t))
def w2_adv(a):
    a(f"""
    s_add_u32 s{S_KD}, s{S_KD}, {16*896}
    s_cmp_eq_u32 s{S_KD}, {28*16*896}
    s_cselect_b32 s{S_KD}, 0, s{S_KD}
    """)

def g_path(a):
    vm = VM()
    a.c("---- G init")
    a(f"""
    s_mul_i32 s6, s{S_YY}, 37
    s_lshr_b32 s6, s6, 8                    ; yq
    s_mul_i32 s7, s6, 7
    s_sub_u32 s7, s{S_YY}, s7               ; yr
    s_lshr_b32 s4, s{S_XX}, 1
    s_lshl_b32 s{S_RB}, s4, 2
    s_add_u32 s{S_RB}, s{S_RB}, s6
    s_and_b32 s5, s{S_XX}, 1
    s_mul_i32 s{S_FT}, s5, 7
    s_add_u32 s{S_FT}, s{S_FT}, s7
    s_lshl_b32 s{S_LB}, s{S_XX}, 2
    s_add_u32 s{S_LB}, s{S_LB}, s6
    s_mov_b32 s{S_DB}, s7
    s_lshl_b32 s8, s7, 1
    s_lshl_b32 s9, s6, 2
    s_add_u32 s8, s8, s9
    s_and_b32 s9, s4, 1
    s_mul_i32 s9, s9, 7
    s_add_u32 s{S_U}, s8, s9
    """)
    mod_sub(a, S_U, 9, 14, (2, 1))
    a(f"""
    s_mul_i32 s8, s{S_U}, {32*3584}
    s_lshl_b32 s9, s{S_U}, 6
    s_lshl_b32 s{S_WO}, s3, 11
    ; VW1
    v_lshrrev_b32 v1, 4, v0
    v_and_b32 v16, 15, v0
    v_lshlrev_b32 v17, 2, v1
    v_xor_b32 v16, v16, v17
    v_mul_u32_u24 v{VW1}, 3584, v1
    v_lshl_add_u32 v{VW1}, v16, 4, v{VW1}
    s_lshl_b32 s10, s{S_FT}, 8
    s_mul_i32 s11, s3, {8*3584}
    s_add_u32 s10, s10, s11
    v_add_u32 v{VW1}, s10, v{VW1}
    v_add_u32 v{VW1B}, {14336-1024}, v{VW1}
    ; VX
    v_and_b32 v16, 3, v0
    v_and_b32 v17, 3, v1
    v_xor_b32 v16, v16, v17
    v_lshrrev_b32 v17, 2, v0
    v_mul_u32_u24 v17, 896, v17
    v_lshl_add_u32 v{VX}, v16, 4, v17
    s_lshl_b32 s10, s{S_RB}, 7
    s_lshl_b32 s11, s3, 5
    s_add_u32 s10, s10, s11
    s_mul_i32 s10, s10, 896
    v_add_u32 v{VX}, s10, v{VX}
    v_add_u32 v{VXB}, {14336-1024}, v{VX}
    s_waitcnt lgkmcnt(0)
    """)
    ts(a, "gp_karg")
    mk_srd(a, SRD_W1, S_W1, W_BYTES)
    mk_srd(a, SRD_X, S_X, X_BYTES)
    for u in range(6):
        for j in range(4): g1_dma(a, vm, u, j)
        g1_adv(a)
    ts(a, "gp_dma")
    epoch_load(a)
    mk_srd(a, SRD_WS, S_WS, WS_SRD_SIZE)
    mk_srd(a, SRD_W2, S_W2, W_BYTES)
    mk_srd(a, SRD_OUT, S_OUT, X_BYTES)
    a(f"""
    s_and_b32 s6, s3, 1                     ; wf
    s_lshr_b32 s7, s3, 1                    ; wl
    s_lshl_b32 s10, s{S_FT}, 8
    s_lshl_b32 s11, s6, 7
    s_add_u32 s10, s10, s11
    v_lshl_add_u32 v16, v0, 1, s10
    global_load_ushort v{VB1}, v16, {sp(S_B1)}
    s_lshl_b32 s10, s{S_DB}, 7
    v_lshl_add_u32 v16, v0, 1, s10
    global_load_ushort v{VB2R}, v16, {sp(S_B2)}
    """)
    vm.issue("b1"); vm.issue("b2")
    a(f"""
    v_lshrrev_b32 v16, 1, v1                ; hi = g>>1
    v_bfe_u32 v17, v0, 2, 2                 ; r
    v_lshl_add_u32 v18, v16, 3, v17
    v_lshlrev_b32 v18, 8, v18               ; row*256
    v_and_b32 v19, 1, v0
    v_lshl_add_u32 v18, v19, 3, v18
    v_and_b32 v19, 1, v1
    v_lshlrev_b32 v19, 1, v19
    v_bfe_u32 v20, v0, 1, 1
    v_add_u32 v19, v19, v20
    s_lshl_b32 s10, s6, 3
    v_add_u32 v19, s10, v19
    v_lshlrev_b32 v17, 2, v17
    v_xor_b32 v20, v19, v17
    v_lshl_add_u32 v{VA[0][0]}, v20, 4, v18
    v_xor_b32 v{VA[0][1]}, 64, v{VA[0][0]}
    v_add_u32 v{VA[1][0]}, 0x10000, v{VA[0][0]}
    v_add_u32 v{VA[1][1]}, 0x10000, v{VA[0][1]}
    v_and_b32 v16, 31, v0
    v_lshrrev_b32 v17, 5, v0
    v_bfe_u32 v18, v0, 2, 2
    v_xor_b32 v17, v17, v18
    v_lshlrev_b32 v16, 6, v16
    v_lshl_add_u32 v16, v17, 4, v16
    s_lshl_b32 s10, s7, 12
    s_add_u32 s10, s10, 8192
    v_add_u32 v{VB[0][0]}, s10, v16
    v_xor_b32 v{VB[0][1]}, 32, v{VB[0][0]}
    v_add_u32 v{VB[1][0]}, 0x10000, v{VB[0][0]}
    v_add_u32 v{VB[1][1]}, 0x10000, v{VB[0][1]}
    ; flags
    v_and_b32 v16, 3, v0
    v_lshlrev_b32 v16, 2, v16
    v_add_u32 v{VFL}, {GFLAG}, v16
    v_lshlrev_b32 v16, 2, v0
    v_add_u32 v{VSIG}, {DUMMY}, v16
    s_lshl_b32 s10, s3, 2
    s_add_u32 s10, s10, {GFLAG}
    v_writelane_b32 v{VSIG}, s10, 0
    v_mov_b32 v{VCNT}, 1
    ; w2 DMA lane offsets
    v_lshrrev_b32 v16, 3, v0
    v_and_b32 v17, 7, v0
    v_bfe_u32 v18, v0, 4, 1
    v_lshlrev_b32 v18, 2, v18
    v_xor_b32 v17, v17, v18
    v_mul_u32_u24 v16, 896, v16
    v_lshl_add_u32 v{VW2}, v17, 4, v16
    s_mul_i32 s10, s3, {448*896}
    s_lshl_b32 s11, s{S_DB}, 7
    s_add_u32 s10, s10, s11
    v_add_u32 v{VW2}, s10, v{VW2}
    v_add_u32 v{VW2B}, {7168-1024}, v{VW2}
    s_lshl_b32 s10, s{S_DB}, 2
    s_and_b32 s11, s{S_LB}, 3
    s_mul_i32 s11, s11, 7
    s_add_u32 s10, s10, s11
    s_mul_i32 s11, s{S_XX}, 3
    s_add_u32 s10, s10, s11
    """)
    mod_sub(a, 10, 11, 28, (2, 1))
    a(f"""
    s_mul_i32 s{S_KD}, s10, {16*896}
    s_lshl_b32 s{S_KH}, s10, 10
    v_lshrrev_b32 v16, 1, v1
    v_bfe_u32 v17, v0, 2, 2
    v_lshl_add_u32 v18, v16, 2, v17
    v_lshlrev_b32 v18, 7, v18
    v_and_b32 v19, 1, v0
    v_lshl_add_u32 v18, v19, 3, v18
    v_add_u32 v18, s{S_WO}, v18
    v_and_b32 v19, 1, v1
    v_lshlrev_b32 v19, 1, v19
    v_bfe_u32 v20, v0, 1, 1
    v_add_u32 v19, v19, v20
    v_bfe_u32 v20, v0, 3, 1
    v_lshlrev_b32 v20, 2, v20
    v_xor_b32 v19, v19, v20
    v_lshl_add_u32 v{VT0}, v19, 4, v18
    s_lshl_b32 s12, s{S_RB}, 2
    s_lshl_b32 s13, s7, 1
    s_add_u32 s12, s12, s13
    s_mul_i32 s12, s12, 112
    s_lshl_b32 s13, s{S_FT}, 3
    s_add_u32 s12, s12, s13
    s_lshl_b32 s13, s6, 2
    s_add_u32 s12, s12, s13
    s_lshl_b32 s{S_HS}, s12, 10
    s_waitcnt lgkmcnt(0)
    """)
    tag_calc(a)
    ts(a, "gp_prebar")
    if opt("prio", 1): a("s_setprio 2")
    a("s_barrier")
    ts(a, "g1")
    if opt("nog", 0):
        ts_dump(a)
        a("s_branch L_END")
    if opt("gdelay", 0):
        a(f"v_mov_b32 v16, {CNT_LNS}")
        spin_lds(a, 17, 16, 0, 4)
    vm.wait(a, ("u", 1))
    a(f"ds_write_b32 v{VSIG}, v{VCNT}")
    spin_lds(a, VFV, VFL, 0, 1)
    ts(a, "g2")
    def reads(u, ks, fb):
        s = u % NSLOT
        bs = 1 if s >= 4 else 0
        o = s * SLOT - bs * 65536
        r = []
        for fbp in range(2):
            b = FB[fb] + 4 * fbp
            r.append(f"ds_read_b64_tr_b16 v[{b}:{b+1}], v{VA[bs][fbp]} offset:{o + ks*4096}")
            r.append(f"ds_read_b64_tr_b16 v[{b+2}:{b+3}], v{VA[bs][fbp]} offset:{o + ks*4096 + 1024}")
        for lbp in range(2):
            r.append(f"ds_read_b128 {vr(FB[fb] + 8 + 4*lbp)}, v{VB[bs][ks]} offset:{o + lbp*2048}")
        return r
    def mfma(fb, k, first=False):
        fbp, lbp = k >> 1, k & 1
        c = "0" if (first and opt("mz", 1)) else vr(acc(fbp, lbp), 16)
        a(f"v_mfma_f32_32x32x16_bf16 {vr(acc(fbp,lbp),16)}, {vr(FB[fb]+4*fbp)}, {vr(FB[fb]+8+4*lbp)}, {c}")
    if not opt("mz", 1):
        for i in range(64): a(f"v_mov_b32 v{ACC+i}, 0")
    for r in reads(0, 0, 0): a(r)
    for r in reads(0, 1, 1): a(r)
    a(f"ds_read_b32 v{VFV}, v{VFL}")
    STATV, SFV = 192, 196
    for h in range(14):
        c0, c1 = (2 * h) % 4, (2 * h + 1) % 4
        n0, n1 = (2 * h + 2) % 4, (2 * h + 3) % 4
        last = (h == 13)
        un = h + 6
        def dma(j):
            if un < 14:
                g1_dma(a, vm, un, j)
                if j == 3: g1_adv(a)
            else:
                t = 2 * (un - 14) + (j >> 1)
                w2_dma(a, vm, t, j & 1)
                if j & 1: w2_adv(a)
        a("s_waitcnt lgkmcnt(7)")
        mfma(c0, 0, h == 0); mfma(c0, 1, h == 0)
        a("s_waitcnt lgkmcnt(0)")
        check_flag(a, VFV, VFL, h + 1)
        if h + 2 < 14:
            vm.wait(a, ("u", h + 2))
        a(f"v_add_u32 v{VCNT}, 1, v{VCNT}")
        a(f"ds_write_b32 v{VSIG}, v{VCNT}")
        rn0 = [] if last else reads(h + 1, 0, n0)
        rn1 = [] if last else reads(h + 1, 1, n1)
        for r in rn0[:3]: a(r)
        mfma(c0, 2, h == 0)
        for r in rn0[3:]: a(r)
        dma(0)
        mfma(c0, 3, h == 0)
        dma(1)
        for r in rn1[:3]: a(r)
        mfma(c1, 0)
        for r in rn1[3:]: a(r)
        dma(2)
        mfma(c1, 1)
        dma(3)
        if h == 12:
            a(f"""
            s_lshl_b32 s10, s{S_RB}, 7
            s_lshl_b32 s11, s7, 6
            s_add_u32 s10, s10, s11
            s_lshl_b32 s10, s10, 4
            s_add_u32 s10, s10, {STAT_OFF}
            v_lshl_add_u32 v{VW1}, v0, 4, s10
            global_load_dwordx4 {vr(STATV)}, v{VW1}, {sp(S_WS)} sc1
            """)
            vm.issue("stat")
        mfma(c1, 2)
        if h == 12:
            a(f"""
            s_lshl_b32 s10, s{S_FT}, 7
            s_lshl_b32 s11, s6, 6
            s_add_u32 s10, s10, s11
            s_lshl_b32 s10, s10, 3
            s_add_u32 s10, s10, {SF_OFF}
            v_lshl_add_u32 v{VW1B}, v0, 3, s10
            global_load_dwordx2 v[{SFV}:{SFV+1}], v{VW1B}, {sp(S_WS)} sc1
            """)
            vm.issue("sf")
        a(f"ds_read_b32 v{VFV}, v{VFL}")
        mfma(c1, 3)
        if last:
            a("s_nop 0")
    ts(a, "g3")
    a("s_waitcnt lgkmcnt(0)")
    check_flag(a, VFV, VFL, 15)
    for j in range(4):
        w2_dma(a, vm, 12 + (j >> 1), j & 1)
        if j & 1: w2_adv(a)
    VA2 = [[6, 7], [10, 11]]
    VH0, VH1 = 8, 9
    a(f"""
    v_mov_b32 v{VA2[0][0]}, v{VT0}
    v_xor_b32 v{VA2[0][1]}, 64, v{VT0}
    v_add_u32 v{VA2[1][0]}, 0x10000, v{VA2[0][0]}
    v_add_u32 v{VA2[1][1]}, 0x10000, v{VA2[0][1]}
    v_lshlrev_b32 v{VH0}, 4, v0
    v_add_u32 v{VH1}, {112*1024}, v{VH0}
    """)
    vm.wait(a, "sf")
    sl = a.newlabel("STP"); bk = a.newlabel("STB")
    a(f"""
    {bk}:
    v_xor_b32 v198, s{S_TAG}, v{STATV+1}
    v_xor_b32 v199, s{S_TAG}, v{STATV+3}
    v_xor_b32 v200, s{S_TAG}, v{SFV+1}
    v_or3_b32 v198, v198, v199, v200
    v_cmp_ne_u32 vcc, 0, v198
    s_cbranch_vccnz {sl}
    """)
    TAIL.append(f"""
    {sl}:
    s_sub_u32 s{S_BUD}, s{S_BUD}, 1
    s_cbranch_scc1 L_BAIL
    s_sleep 1
    global_load_dwordx4 {vr(STATV)}, v{VW1}, {sp(S_WS)} sc1
    global_load_dwordx2 v[{SFV}:{SFV+1}], v{VW1B}, {sp(S_WS)} sc1
    s_waitcnt vmcnt(0)
    s_branch {bk}
    """)
    ts(a, "g4")
    AL, GA_, SS = STATV, STATV + 2, SFV
    AE = 200
    BN = 204
    BE = [[208, 212], [216, 220]]
    KC_ = [224, 226]
    DL = [228, 230]
    a(f"""
    v_rcp_f32 v198, v{AL}                       ; delta
    v_cvt_pk_bf16_f32 v{AE}, v{SS}, v{SS}       ; S_hi|S_hi
    v_and_b32 v199, 0xffff0000, v{AE}
    v_sub_f32 v199, v{SS}, v199
    v_cvt_pk_bf16_f32 v199, v199, v199          ; S_lo
    v_and_b32 v199, 0xffff, v199
    v_lshl_or_b32 v{AE+1}, v{VB1}, 16, v199     ; S_lo | b1<<16
    v_mov_b32 v{AE+2}, v{VB1}
    v_mov_b32 v{AE+3}, 0
    v_cvt_pk_bf16_f32 v{BN+1}, v{GA_}, v198
    v_lshlrev_b32 v232, 16, v{BN+1}
    v_and_b32 v233, 0xffff0000, v{BN+1}
    v_sub_f32 v232, v{GA_}, v232                ; g_lo
    v_sub_f32 v233, v198, v233                  ; d_lo
    v_cvt_pk_bf16_f32 v{BN}, v{GA_}, v232
    v_cvt_pk_bf16_f32 v{BN+2}, v233, 0          ; d_lo | 0
    """)
    for k in range(3):
        a(f"""
        v_mov_b32 v{BE[0][0]+k}, v{BN+k}
        v_mov_b32 v{BE[0][1]+k}, 0
        v_mov_b32 v{BE[1][0]+k}, 0
        v_mov_b32 v{BE[1][1]+k}, v{BN+k}
        v_permlane32_swap_b32 v{BE[0][0]+k}, v{BE[0][1]+k}
        v_permlane32_swap_b32 v{BE[1][0]+k}, v{BE[1][1]+k}
        """)
    for p in range(2):
        for q in range(2):
            a(f"v_mov_b32 v{BE[p][q]+3}, 0")
    for p in range(2):
        for q in range(2):
            a(f"v_mfma_f32_32x32x16_bf16 {vr(acc(p,q),16)}, {vr(AE)}, {vr(BE[p][q])}, {vr(acc(p,q),16)}")
    C1 = 2.0 * math.sqrt(2.0 / math.pi) * LOG2E
    C2 = C1 * 0.044715
    a(f"""
    v_mul_f32 v232, v{AL}, v{AL}
    v_mul_f32 v232, v232, v{AL}
    v_mul_f32 v{KC_[0]}, {hx(C2)}, v232
    v_mul_f32 v{DL[0]+1}, {hx(C1)}, v{AL}
    v_mov_b32 v{DL[0]}, v198
    v_mov_b32 v{KC_[1]}, v{KC_[0]}
    v_mov_b32 v{DL[1]+1}, v{DL[0]+1}
    v_mov_b32 v{DL[1]}, v198
    v_permlane32_swap_b32 v{KC_[0]}, v{KC_[1]}
    v_permlane32_swap_b32 v{DL[0]+1}, v{DL[1]+1}
    v_permlane32_swap_b32 v{DL[0]}, v{DL[1]}
    """)
    def trr(t, tsrc):
        tt = tsrc % 14
        o = (tt >> 1) * SLOT + (tt & 1) * 8192
        bs = 1 if o >= 65536 - 2048 else 0
        o -= bs * 65536
        r = []
        for db_ in range(2):
            b = W2R + 8 * (t % 14) + 4 * db_
            r.append(f"ds_read_b64_tr_b16 v[{b}:{b+1}], v{VA2[bs][db_]} offset:{o}")
            r.append(f"ds_read_b64_tr_b16 v[{b+2}:{b+3}], v{VA2[bs][db_]} offset:{o+1024}")
        return r
    class Rec:
        def __init__(s): s.l = []
        def __call__(s, t):
            for ln in t.strip("\n").split("\n"):
                if ln.strip(): s.l.append(ln.strip())
    def dma_steps(ts_):
        out = []
        for t in ts_:
            out.append(("dma", t, 0)); out.append(("dma", t, 1))
        return out
    TT = [232, 236]
    PK = [240, 192]
    def gelu_quadrant(p, q, extras, pk):
        A = acc(p, q)
        ex = list(extras)
        def put():
            if ex:
                e = ex.pop(0)
                if isinstance(e, str): a(e)
                else:
                    _, t, j = e
                    w2_dma(a, vm, t, j)
                    if j: w2_adv(a)
        kc, dl = KC_[q], DL[q]
        for pp in range(0, 8, 2):
            X = [A + 2 * pp, A + 2 * pp + 2]
            for i in range(2):
                w = TT[i]; x = X[i]
                a(f"v_pk_mul_f32 v[{w}:{w+1}], v[{x}:{x+1}], v[{x}:{x+1}]")
            for i in range(2):
                w = TT[i]
                a(f"v_pk_fma_f32 v[{w}:{w+1}], v[{w}:{w+1}], v[{kc}:{kc+1}], v[{dl}:{dl+1}] op_sel:[0,0,1] op_sel_hi:[1,0,1]")
            for i in range(2):
                w = TT[i]; x = X[i]
                a(f"v_pk_mul_f32 v[{w}:{w+1}], v[{w}:{w+1}], v[{x}:{x+1}] neg_lo:[1,0] neg_hi:[1,0]")
            for i in range(2):
                w = TT[i]
                a(f"v_exp_f32 v{w}, v{w}"); put()
                a(f"v_exp_f32 v{w+1}, v{w+1}"); put()
            for i in range(2):
                w = TT[i]
                a(f"v_pk_fma_f32 v[{w}:{w+1}], v[{w}:{w+1}], v[{dl}:{dl+1}], v[{dl}:{dl+1}] op_sel:[0,0,0] op_sel_hi:[1,0,0]")
            for i in range(2):
                w = TT[i]
                a(f"v_rcp_f32 v{w}, v{w}"); put()
                a(f"v_rcp_f32 v{w+1}, v{w+1}"); put()
            for i in range(2):
                w = TT[i]; x = X[i]
                a(f"v_pk_mul_f32 v[{w}:{w+1}], v[{x}:{x+1}], v[{w}:{w+1}]")
            for i in range(2):
                w = TT[i]
                a(f"v_cvt_pk_bf16_f32 v{pk+pp+i}, v{w}, v{w+1}")
        while ex: put()
        a(f"s_add_u32 s10, s{S_HS}, {q*112*1024 + p*2048}")
        a(f"buffer_store_dwordx4 {vr(pk)}, v{VH0}, {srd(SRD_WS)}, s10 offen sc1")
        a(f"buffer_store_dwordx4 {vr(pk+4)}, v{VH0}, {srd(SRD_WS)}, s10 offen offset:1024 sc1")
        vm.issue("h"); vm.issue("h")
    vm.wait(a, ("w", 4))
    ex0 = sum([trr(t, t) for t in range(0, 5)], [])
    gelu_quadrant(0, 0, ex0, PK[0])
    a("s_waitcnt lgkmcnt(0)")
    vm.wait(a, ("w", 9))
    ex1 = dma_steps(range(14, 19)) + sum([trr(t, t) for t in range(5, 10)], [])
    gelu_quadrant(0, 1, ex1, PK[1])
    a("s_waitcnt lgkmcnt(0)")
    vm.wait(a, ("w", 13))
    ex2 = dma_steps(range(19, 24)) + sum([trr(t, t) for t in range(10, 14)], [])
    gelu_quadrant(1, 0, ex2, PK[0])
    a("s_waitcnt lgkmcnt(0)")
    ex3 = dma_steps(range(24, 28))
    gelu_quadrant(1, 1, ex3, PK[1])
    ts(a, "g5")
    a(f"""
    s_lshl_b32 s12, s{S_RB}, 4
    s_add_u32 s12, s12, s{S_FT}
    s_lshl_b32 s12, s12, 2
    s_add_u32 s12, s12, {FL_G1}
    """)
    publish(a, CNT_G1, 4, 12, 232, 233)
    ts(a, "g6")
    a.c("---- G2")
    a(f"""
    v_mov_b32 v200, v{VB2R}
    v_mov_b32 v201, 0
    v_mov_b32 v202, 0
    v_mov_b32 v203, 0
    v_mov_b32 v204, 0x3e80
    v_mov_b32 v205, 0
    v_mov_b32 v206, 0
    v_mov_b32 v207, 0
    v_mov_b32 v208, 0
    v_mov_b32 v209, 0
    v_mov_b32 v210, 0
    v_mov_b32 v211, 0
    v_permlane32_swap_b32 v204, v208
    """)
    a(f"""
    v_mov_b32 v208, 0
    v_mov_b32 v212, 0x3e80
    v_permlane32_swap_b32 v208, v212
    """)
    for db_ in range(2):
        for lb_ in range(2):
            B = 204 if db_ == 0 else 208
            a(f"v_mfma_f32_32x32x16_bf16 {vr(acc(db_,lb_),16)}, v[200:203], {vr(B)}, 0")
    a(f"""
    s_mul_i32 s6, s{S_LB}, {2*112}
    s_mul_i32 s7, s3, 28
    s_add_u32 s6, s6, s7
    s_lshl_b32 s6, s6, 10
    s_lshr_b32 s10, s{S_LB}, 1
    s_lshl_b32 s10, s10, 4
    s_mul_i32 s11, s3, 7
    s_lshr_b32 s11, s11, 1
    s_add_u32 s10, s10, s11
    s_lshl_b32 s10, s10, 2
    s_add_u32 s10, s10, {FL_G1}
    v_lshl_add_u32 v1, v0, 2, s10
    """)
    VO, VS_, VSL, VCV = 2, 3, 4, 5
    a(f"""
    v_and_b32 v232, 15, v0
    v_lshrrev_b32 v233, 4, v0
    s_lshl_b32 s10, s{S_LB}, 6
    s_lshl_b32 s11, s3, 4
    s_add_u32 s10, s10, s11
    v_add_u32 v234, s10, v232
    v_mul_u32_u24 v234, 896, v234
    v_lshl_add_u32 v234, v233, 4, v234
    s_lshl_b32 s11, s{S_DB}, 7
    v_add_u32 v{VO}, s11, v234
    v_lshrrev_b32 v234, 3, v0
    v_and_b32 v235, 7, v0
    s_lshl_b32 s10, s{S_DB}, 6
    s_lshl_b32 s11, s3, 4
    s_add_u32 s10, s10, s11                 ; d0 + 16w
    v_add_u32 v236, s10, v234
    v_lshlrev_b32 v236, 12, v236
    v_lshl_add_u32 v{VS_}, v235, 4, v236
    s_mul_i32 s9, s3, {G2_WREG}
    v_mul_u32_u24 v{VSL}, {G2_SSTR}, v234
    v_lshl_add_u32 v{VSL}, v235, 4, v{VSL}
    v_add_u32 v{VSL}, s9, v{VSL}
    s_lshl_b32 s11, s10, 1
    s_add_u32 s11, s11, {FL_CV}
    v_lshl_add_u32 v{VCV}, v0, 2, s11
    """)
    poll_flags(a, 1, 4, 232)
    ts(a, "g7")
    vm2 = VM()
    NH = 7
    def hload(t):
        b = HB + 8 * (t % NH)
        a(f"s_add_u32 s10, s6, s{S_KH}")
        a(f"buffer_load_dwordx4 {vr(b)}, v{VH0}, {srd(SRD_WS)}, s10 offen sc1")
        a(f"buffer_load_dwordx4 {vr(b+4)}, v{VH1}, {srd(SRD_WS)}, s10 offen sc1")
        vm2.issue(("h", t)); vm2.issue(("h", t))
        a(f"s_add_u32 s{S_KH}, s{S_KH}, 1024")
        a(f"s_cmp_eq_u32 s{S_KH}, {28*1024}")
        a(f"s_cselect_b32 s{S_KH}, 0, s{S_KH}")
    for t in range(NH): hload(t)
    VX_ = 24
    for t in range(28):
        vm2.wait(a, ("h", t))
        if t == 14:
            a("s_waitcnt lgkmcnt(0)")
        elif t > 14:
            pass
        for db_ in range(2):
            for lb_ in range(2):
                a(f"v_mfma_f32_32x32x16_bf16 {vr(acc(db_,lb_),16)}, {vr(W2R + 8*(t%14) + 4*db_)}, {vr(HB + 8*(t%NH) + 4*lb_)}, {vr(acc(db_,lb_),16)}")
        if t + NH < 28: hload(t + NH)
        if t < 14:
            for r in trr(t + 14, t + 14): a(r)
        if t == 14:
            a(f"""
            v_mov_b32 v{VCNT}, 100
            ds_write_b32 v{VSIG}, v{VCNT}
            """)
        if t == 21:
            a(f"buffer_load_dwordx4 v[16:19], v{VO}, {srd(SRD_X)}, 0 offen")
            a(f"buffer_load_dwordx4 v[20:23], v{VO}, {srd(SRD_X)}, 0 offen offset:64")
            vm2.issue("x"); vm2.issue("x")
    a(f"ds_read_b32 v{VFV}, v{VFL}")
    ts(a, "g8")
    a(f"""
    s_mul_i32 s9, s3, {G2_WREG}
    v_and_b32 v1, 31, v0
    v_mul_u32_u24 v1, {G2_PSTR}, v1
    v_lshrrev_b32 v7, 5, v0
    v_lshl_add_u32 v1, v7, 4, v1
    v_add_u32 v1, s9, v1
    s_waitcnt lgkmcnt(0)
    """)
    check_flag(a, VFV, VFL, 100)
    poll_flags(a, VCV, 8, 235)
    VS = 24
    a(f"""
    s_lshl_b32 s10, s{S_LB}, 7
    s_add_u32 s10, s10, {ST_OFF}
    buffer_load_dwordx4 {vr(VS)}, v{VS_}, {srd(SRD_WS)}, s10 offen sc1
    s_add_u32 s11, s10, {8*4096}
    buffer_load_dwordx4 {vr(VS+4)}, v{VS_}, {srd(SRD_WS)}, s11 offen sc1
    """)
    for db_ in range(2):
        for lb_ in range(2):
            for q in range(4):
                a(f"ds_write_b128 v1, {vr(acc(db_,lb_)+4*q)} offset:{lb_*32*G2_PSTR + db_*128 + q*32}")
    a(f"""
    s_waitcnt vmcnt(0)
    ds_write_b128 v{VSL}, {vr(VS)} offset:{G2_STILE}
    ds_write_b128 v{VSL}, {vr(VS+4)} offset:{G2_STILE + 8*G2_SSTR}
    v_mov_b32 v{VCNT}, 200
    s_waitcnt lgkmcnt(0)
    ds_write_b32 v{VSIG}, v{VCNT}
    v_and_b32 v1, 15, v0
    v_lshrrev_b32 v7, 4, v0
    s_lshl_b32 s11, s3, 4
    v_add_u32 v6, s11, v1
    v_mul_u32_u24 v6, {G2_PSTR}, v6
    v_lshl_add_u32 v6, v7, 5, v6
    v_lshrrev_b32 v3, 1, v7
    v_mul_u32_u24 v3, {G2_WREG}, v3
    v_and_b32 v4, 1, v7
    v_lshlrev_b32 v4, 3, v4
    v_bfe_u32 v5, v0, 2, 2
    v_add_u32 v4, v4, v5
    v_mul_u32_u24 v4, {G2_SSTR}, v4
    v_add_u32 v3, v3, v4
    v_and_b32 v4, 3, v0
    v_lshl_add_u32 v3, v4, 3, v3
    s_lshl_b32 s11, s3, 5
    v_add_u32 v3, s11, v3
    v_add_u32 v3, {G2_STILE}, v3
    v_add_u32 v4, {2*G2_WREG}, v3
    v_add_u32 v5, {2*G2_WREG}, v6
    """)
    spin_lds(a, VFV, VFL, 0, 200)
    for k in range(2):
        for w in range(4):
            base = 6 if w < 2 else 5
            for hq in range(2):
                a(f"ds_read_b128 {vr(48+32*k+8*w+4*hq)}, v{base} offset:{(w%2)*G2_WREG + k*128 + hq*16}")
        sv = 3 if k == 0 else 4
        a(f"ds_read_b64_tr_b16 v[{112+4*k}:{113+4*k}], v{sv}")
        a(f"ds_read_b64_tr_b16 v[{114+4*k}:{115+4*k}], v{sv} offset:{4*G2_SSTR}")
    a(f"""
    s_mov_b32 s70, {hx(-LOG2E)}
    s_mov_b32 s71, {hx(-LOG2E)}
    s_mov_b32 s72, 1.0
    s_mov_b32 s73, 1.0
    """)
    for k in range(2):
        B = 48 + 32 * k
        a(f"s_waitcnt lgkmcnt({10 if k == 0 else 0})")
        for p in range(4):
            x = B + 2 * p
            t0 = 120 + 8 * (p % 2)
            a(f"""
            v_pk_add_f32 v[{x}:{x+1}], v[{x}:{x+1}], v[{x+8}:{x+9}]
            v_pk_add_f32 v[{x+16}:{x+17}], v[{x+16}:{x+17}], v[{x+24}:{x+25}]
            v_lshlrev_b32 v{t0+2}, 16, v{112+4*k+p}
            v_pk_add_f32 v[{x}:{x+1}], v[{x}:{x+1}], v[{x+16}:{x+17}]
            v_and_b32 v{t0+3}, 0xffff0000, v{112+4*k+p}
            v_pk_mul_f32 v[{t0}:{t0+1}], v[{x}:{x+1}], s[70:71]
            v_exp_f32 v{t0}, v{t0}
            v_exp_f32 v{t0+1}, v{t0+1}
            v_pk_mul_f32 v[{x}:{x+1}], v[{x}:{x+1}], v[{t0+2}:{t0+3}]
            v_pk_add_f32 v[{t0}:{t0+1}], v[{t0}:{t0+1}], s[72:73]
            v_lshlrev_b32 v{t0+4}, 16, v{16+4*k+p}
            v_rcp_f32 v{t0}, v{t0}
            v_rcp_f32 v{t0+1}, v{t0+1}
            v_and_b32 v{t0+5}, 0xffff0000, v{16+4*k+p}
            v_pk_fma_f32 v[{x}:{x+1}], v[{x}:{x+1}], v[{t0}:{t0+1}], v[{t0+4}:{t0+5}]
            v_cvt_pk_bf16_f32 v{136+4*k+p}, v{x}, v{x+1}
            """)
        a(f"buffer_store_dwordx4 {vr(136+4*k)}, v{VO}, {srd(SRD_OUT)}, 0 offen offset:{64*k}")
    a(f"""
    s_or_b32 s10, s2, s3
    s_cmp_lg_u32 s10, 0
    s_cbranch_scc1 G2_NOEP
    s_add_u32 s10, s{S_EPOCH}, 1
    v_mov_b32 v1, {FL_EPOCH}
    v_mov_b32 v2, s10
    s_mov_b64 exec, 1
    global_store_dword v1, v2, {sp(S_WS)}
    s_mov_b64 exec, -1
    G2_NOEP:
    """)
    ts(a, "g9")

def spare_g(a):
    a.c("---- spare G: S_f")
    a(f"""
    s_sub_u32 s4, s{S_YY}, 28
    s_lshl_b32 s4, s4, 3
    s_add_u32 s4, s4, s{S_XX}               ; j
    s_waitcnt lgkmcnt(0)
    """)
    epoch_load(a)
    a(f"""
    s_cmp_lg_u32 s3, 0
    s_cbranch_scc1 SG_SKIP
    s_cmp_ge_u32 s4, 28
    s_cbranch_scc1 SG_SKIP
    """)
    mk_srd(a, SRD_W1, S_W1, W_BYTES)
    a(f"""
    v_lshrrev_b32 v1, 3, v0
    v_mul_u32_u24 v1, 3584, v1
    v_and_b32 v2, 7, v0
    v_lshl_add_u32 v1, v2, 4, v1
    s_lshl_b32 s5, s4, 7
    v_add_u32 v1, s5, v1
    s_mov_b32 s8, 0
    """)
    for i in range(56):
        a(f"buffer_load_dwordx4 {vr(16+4*i)}, v1, {srd(SRD_W1)}, s8 offen")
        if i < 55: a(f"s_add_u32 s8, s8, {8*3584}")
    a(f"""
    v_and_b32 v2, 15, v0
    v_mov_b32 v8, 0
    v_mov_b32 v9, 0
    v_mov_b32 v10, 0
    v_mov_b32 v11, 0
    v_mov_b32 v3, 0x3f80
    v_mov_b32 v4, 0x3f800000
    """)
    for j in range(8):
        a(f"v_cmp_eq_u32 vcc, {j}, v2")
        a(f"v_cndmask_b32 v{8 + j//2}, v{8 + j//2}, v{3 if j % 2 == 0 else 4}, vcc")
    a(f"""
    s_waitcnt lgkmcnt(0)
    SG_SKIP:
    s_waitcnt lgkmcnt(0)
    s_barrier
    s_cmp_lg_u32 s3, 0
    s_cbranch_scc1 L_END
    s_cmp_ge_u32 s4, 28
    s_cbranch_scc1 L_END
    """)
    tag_calc(a)
    for i in range(56):
        a(f"s_waitcnt vmcnt({55-i})")
        c = "0" if i < 2 else vr(240 + 4 * (i % 2))
        a(f"v_mfma_f32_16x16x32_bf16 {vr(240 + 4*(i%2))}, v[8:11], {vr(16+4*i)}, {c}")
    for r in range(4):
        a(f"v_add_f32 v{240+r}, v{240+r}, v{244+r}")
    for r in range(4):
        a(f"v_add_f32_dpp v{240+r}, v{240+r}, v{240+r} row_ror:8 row_mask:0xf bank_mask:0xf")
    a(f"""
    v_mov_b32 v4, v240
    v_mov_b32 v5, s{S_TAG}
    v_mov_b32 v6, v241
    v_mov_b32 v7, s{S_TAG}
    v_mov_b32 v8, v242
    v_mov_b32 v9, s{S_TAG}
    v_mov_b32 v10, v243
    v_mov_b32 v11, s{S_TAG}
    v_and_b32 v1, 7, v0
    v_lshrrev_b32 v2, 4, v0
    v_lshlrev_b32 v1, 6, v1
    v_lshl_add_u32 v1, v2, 5, v1            ; (8n + 4g')*8 bytes
    s_lshl_b32 s5, s4, 9
    s_add_u32 s5, s5, {SF_OFF}
    v_add_u32 v1, s5, v1
    s_mov_b32 exec_lo, 0x00ff00ff
    s_mov_b32 exec_hi, 0
    global_store_dwordx4 v1, v[4:7], {sp(S_WS)} sc1
    global_store_dwordx4 v1, v[8:11], {sp(S_WS)} offset:16 sc1
    s_mov_b64 exec, -1
    s_waitcnt vmcnt(0)
    s_branch L_END
    """)

PRIME = {}
def mkprime(a, y):
    p0, p1 = PRIME[y]
    a(f"v_mov_b32 v{p0}, v{y+1}")
    a(f"v_mov_b32 v{p1}, v{y+3}")
def cmul_n(a, jobs, t0=8):
    for k, (r, x, y, yp) in enumerate(jobs):
        t = t0 + 2 * k
        a(f"v_pk_mul_f32 v[{t}:{t+1}], v[{x}:{x+1}], v[{y}:{y+1}] op_sel:[0,0] op_sel_hi:[1,0]")
    for k, (r, x, y, yp) in enumerate(jobs):
        t = t0 + 2 * k
        assert yp % 2 == 0
        a(f"v_pk_fma_f32 v[{r}:{r+1}], v[{x}:{x+1}], v[{yp}:{yp+1}], v[{t}:{t+1}] op_sel:[1,0,0] op_sel_hi:[0,0,1] neg_lo:[1,0,0]")
def both(r, x, y): return [(r + 2 * c, x + 2 * c, y + 2 * c, PRIME[y][c]) for c in range(2)]
def cm(a, r, x, y): cmul_n(a, both(r, x, y))

def pair_sync(a, val, VMY, VOT, VT):
    lab = a.newlabel("PS")
    a(f"""
    v_mov_b32 v{VT}, {val}
    s_waitcnt lgkmcnt(0)
    ds_write_b32 v{VMY}, v{VT}
    {lab}:
    s_sub_u32 s{S_BUD}, s{S_BUD}, 1
    s_cbranch_scc1 L_BAIL
    ds_read_b32 v{VT}, v{VOT}
    s_waitcnt lgkmcnt(0)
    v_cmp_gt_u32 vcc, {val}, v{VT}
    s_cbranch_vccnz {lab}
    """)

KC_GA = 204
KC_SC = 228
KC_RAW = 233
def kc_path(a):
    a.c("---- KC path")
    GA, SC, RAW = KC_GA, KC_SC, KC_RAW
    XA, XB_ = 32, 36
    a(f"""
    s_sub_u32 s5, s3, 4                     ; k
    s_cmp_lg_u32 s5, 0
    s_cbranch_scc1 KC_NOZ
    v_lshlrev_b32 v1, 2, v0
    v_mov_b32 v2, 0
    v_add_u32 v3, {GFLAG}, v1
    v_add_u32 v4, {GFLAG + CH_SZ}, v1
    s_mov_b64 exec, 0xffffffff
    ds_write_b32 v3, v2
    ds_write_b32 v4, v2
    s_mov_b64 exec, -1
    KC_NOZ:
    s_lshl_b32 s4, s{S_XX}, 5
    s_add_u32 s4, s4, s{S_YY}               ; q
    s_lshl_b32 s6, s4, 3
    s_lshl_b32 s7, s5, 1
    s_add_u32 s6, s6, s7
    v_lshrrev_b32 v1, 5, v0
    v_add_u32 v30, s6, v1                   ; row
    v_mul_u32_u24 v2, 896, v30
    v_and_b32 v3, 31, v0
    v_lshl_add_u32 v2, v3, 4, v2
    v_mov_b32 v{XB_}, 0
    v_mov_b32 v{XB_+1}, 0
    v_mov_b32 v{XB_+2}, 0
    v_mov_b32 v{XB_+3}, 0
    s_waitcnt lgkmcnt(0)
    """)
    ts(a, "kp_karg")
    a(f"""
    global_load_dwordx4 {vr(XA)}, v2, {sp(S_X)}
    s_mov_b32 exec_lo, 0x00ffffff
    s_mov_b32 exec_hi, 0x00ffffff
    global_load_dwordx4 {vr(XB_)}, v2, {sp(S_X)} offset:512
    s_mov_b64 exec, -1
    """)
    epoch_load(a)
    mk_srd(a, SRD_WS, S_WS, WS_SRD_SIZE)
    a(f"""
    s_mul_i32 s4, s{S_XX}, 28
    s_min_u32 s6, s{S_YY}, 27
    s_add_u32 s4, s4, s6                    ; cp
    s_lshr_b32 s6, s5, 1                    ; ch
    s_and_b32 s7, s5, 1                     ; hh
    s_lshl_b32 s8, s4, 1
    s_add_u32 s8, s8, s6                    ; d
    s_mul_i32 s9, s6, {CH_SZ}
    s_add_u32 s9, s9, {AUX_BASE}
    s_lshl_b32 s10, s8, 9
    s_lshl_b32 s11, s7, 8
    s_add_u32 s10, s10, s11
    v_lshl_add_u32 v1, v0, 2, s10
    global_load_dword v{RAW}, v1, {sp(S_LOGA)}
    global_load_dword v{RAW+1}, v1, {sp(S_AIM)}
    global_load_dword v{RAW+2}, v1, {sp(S_CRE)}
    global_load_dword v{RAW+3}, v1, {sp(S_CIM)}
    s_lshl_b32 s10, s4, 2
    s_load_dword s12, {sp(S_LOGDT)}, s10
    s_load_dword s13, {sp(S_DSKIP)}, s10
    """)
    if opt("cpf", 1):
        a(f"""
        s_cmp_lg_u32 s5, 3
        s_cbranch_scc1 KC_NOPF
        s_getpc_b64 s[14:15]
        L_PC:
        s_and_b32 s10, s{S_YY}, 7
        s_lshl_b32 s10, s10, 6
        v_add_u32 v2, s10, v0
        v_lshlrev_b32 v2, 7, v2
        s_sub_u32 s14, s14, (L_PC - L_START)
        s_subb_u32 s15, s15, 0
        v_min_u32 v2, (L_CODE_END - L_START - 4), v2
        v_mov_b32 v3, s15
        v_add_co_u32 v2, vcc, s14, v2
        v_addc_co_u32 v3, vcc, 0, v3, vcc
        global_load_dword v255, v[2:3], off
        KC_NOPF:
        """)
    a(f"""
    v_mov_b32 v12, 0
    v_mov_b32 v13, 0
    v_mov_b32 v14, 0
    v_mov_b32 v15, 0
    v_mov_b32 v1, s9
    s_cmp_lg_u32 s7, 0
    s_cbranch_scc1 KC_Z1
    s_mov_b64 exec, 15
    v_lshl_add_u32 v1, v0, 2, s9
    ds_write_b32 v1, v12 offset:{T0_OFF-16}
    s_mov_b64 exec, -1
    KC_Z1:
    """)
    ts(a, "kp_ga")
    a(f"""
    s_lshl_b32 s10, s7, 10
    s_sub_u32 s10, s10, 4
    v_lshl_add_u32 v16, v0, 3, s10
    s_add_u32 s11, s9, {T1_OFF}
    s_sub_u32 s14, s11, {4*0x4280}
    s_add_u32 s15, s11, 512
    v_cvt_f32_i32 v17, v16
    v_lshl_add_u32 v18, v16, 2, s11
    """)
    for r in range(2):
        for j in range(0, 12, 2):
            o = 512 * r + j
            g0 = GA + 12 * r + j
            a(f"""
            v_add_f32 v20, {hx(float(o))}, v17
            v_add_f32 v21, {hx(float(o+1))}, v17
            v_cvt_pk_bf16_f32 v20, v20, v21
            v_bfe_i32 v21, v20, 0, 16
            v_ashrrev_i32 v20, 16, v20
            v_lshl_add_u32 v21, v21, 2, s14
            v_lshl_add_u32 v20, v20, 2, s14
            v_add_u32 v22, {4*o}, v18
            v_add_u32 v23, {4*(o+1)}, v18
            v_med3_i32 v{g0}, v22, s15, v21
            v_med3_i32 v{g0+1}, v23, s15, v20
            """)
    a(f"""
    s_xor_b32 s10, s7, 1
    s_lshl_b32 s10, s10, 12
    s_add_u32 s11, s11, s10
    v_lshrrev_b32 v4, 4, v0                 ; g
    v_and_b32 v1, 15, v0                    ; c
    v_lshlrev_b32 v20, 4, v1
    v_lshl_add_u32 v20, v4, 2, v20
    v_lshl_add_u32 v{SC}, v20, 2, s11
    v_add_u32 v{SC}, 4, v{SC}
    v_lshlrev_b32 v20, 3, v1
    v_lshl_add_u32 v20, v4, 2, v20
    v_add_u32 v20, 257, v20
    v_lshlrev_b32 v21, 2, v1
    v_lshl_add_u32 v21, v4, 6, v21
    v_add_u32 v21, {385 - 128}, v21
    v_cmp_gt_u32 vcc, 2, v4
    v_cndmask_b32 v20, v21, v20, vcc
    v_lshl_add_u32 v{SC+1}, v20, 2, s11
    v_lshlrev_b32 v20, 1, v1
    v_lshl_add_u32 v20, v4, 6, v20
    v_add_u32 v20, 513, v20
    v_lshl_add_u32 v{SC+2}, v20, 2, s11
    """)
    a(f"""
    s_mov_b32 s70, s4                       ; cp
    s_mov_b32 s71, s5                       ; k
    s_mov_b32 s72, s8                       ; d
    s_mov_b32 s73, s9
    s_mov_b32 s74, s11
    s_mov_b32 s75, s7                       ; hh
    s_waitcnt lgkmcnt(0)
    """)
    tag_calc(a)
    a(f"""
    s_lshl_b32 s10, s6, 4
    s_lshr_b32 s12, s12, s10
    s_lshl_b32 s76, s12, 16                 ; log_dt (f32 bits)
    s_lshr_b32 s13, s13, s10
    s_lshl_b32 s77, s13, 16                 ; D_skip (f32 bits)
    """)
    ts(a, "kp_prebar")
    a("s_barrier")
    ts(a, "k1")
    U = 40
    a("s_waitcnt vmcnt(4)" if not opt("cpf", 1) else "s_waitcnt vmcnt(4)")
    for i in range(8):
        s = XA + i
        a(f"v_lshlrev_b32 v{U+2*i}, 16, v{s}")
        a(f"v_and_b32 v{U+2*i+1}, 0xffff0000, v{s}")
    a(f"v_pk_add_f32 v[8:9], v[{U}:{U+1}], v[{U+2}:{U+3}]")
    a(f"v_pk_mul_f32 v[10:11], v[{U}:{U+1}], v[{U}:{U+1}]")
    a(f"v_pk_add_f32 v[12:13], v[{U+4}:{U+5}], v[{U+6}:{U+7}]")
    a(f"v_pk_mul_f32 v[14:15], v[{U+2}:{U+3}], v[{U+2}:{U+3}]")
    for i in range(2, 8):
        acc_ = 10 if i % 2 == 0 else 14
        a(f"v_pk_fma_f32 v[{acc_}:{acc_+1}], v[{U+2*i}:{U+2*i+1}], v[{U+2*i}:{U+2*i+1}], v[{acc_}:{acc_+1}]")
        if i >= 4:
            acc2 = 8 if i % 2 == 0 else 12
            a(f"v_pk_add_f32 v[{acc2}:{acc2+1}], v[{acc2}:{acc2+1}], v[{U+2*i}:{U+2*i+1}]")
    a("""
    v_pk_add_f32 v[8:9], v[8:9], v[12:13]
    v_pk_add_f32 v[10:11], v[10:11], v[14:15]
    v_add_f32 v8, v8, v9
    v_add_f32 v10, v10, v11
    """)
    for m in ("quad_perm:[1,0,3,2]", "quad_perm:[2,3,0,1]", "row_half_mirror", "row_mirror"):
        for r in (8, 10):
            a(f"v_add_f32_dpp v{r}, v{r}, v{r} {m} row_mask:0xf bank_mask:0xf")
    a("""
    v_mov_b32 v9, v8
    v_mov_b32 v11, v10
    v_permlane16_swap_b32 v8, v9
    v_permlane16_swap_b32 v10, v11
    v_add_f32 v8, v8, v9
    v_add_f32 v10, v10, v11
    """)
    a(f"""
    v_mul_f32 v8, {hx(1.0/448)}, v8         ; mean
    v_mul_f32 v10, {hx(1.0/448)}, v10
    v_fma_f32 v10, -v8, v8, v10             ; var
    v_max_f32 v10, 0, v10
    """)
    bf16r(a, 12, 8)
    bf16r(a, 13, 10)
    a(f"v_add_f32 v13, {hx(1e-5)}, v13")
    bf16r(a, 13, 13)
    a("v_sqrt_f32 v13, v13")
    bf16r(a, 13, 13)
    a("v_rcp_f32 v14, v13")
    a("""
    v_sub_f32 v15, v8, v12
    v_mul_f32 v16, v12, v14
    v_mul_f32 v15, v15, v14
    v_sub_f32 v17, 0, v16
    v_mul_f32 v18, v10, v14
    """)
    for i in range(8):
        a(f"v_pk_fma_f32 v[{U+2*i}:{U+2*i+1}], v[{U+2*i}:{U+2*i+1}], v[14:15], v[16:17] op_sel:[0,0,1] op_sel_hi:[1,0,1]")
        if i == 0:
            bf16r(a, 15, 15)
            a("v_mul_f32 v18, v18, v14")
        if i == 2:
            bf16r(a, 18, 18)
            a(f"v_add_f32 v18, {hx(1e-5)}, v18")
        if i == 4:
            bf16r(a, 18, 18)
            a("v_sqrt_f32 v18, v18")
        if i == 6:
            bf16r(a, 18, 18)
            a("v_rcp_f32 v18, v18")
    for i in range(8):
        a(f"v_cvt_pk_bf16_f32 v{XA+i}, v{U+2*i}, v{U+2*i+1}")
    a(f"""
    v_mul_f32 v20, v14, v18                 ; alpha
    v_fma_f32 v22, v15, v13, v12
    v_sub_f32 v22, 0, v22
    v_mov_b32 v21, s{S_TAG}
    v_mov_b32 v23, s{S_TAG}
    v_lshlrev_b32 v24, 4, v30
    v_add_u32 v24, {STAT_OFF}, v24
    s_mov_b32 exec_lo, 1
    s_mov_b32 exec_hi, 1
    global_store_dwordx4 v24, v[20:23], {sp(S_WS)} sc1
    s_mov_b64 exec, -1
    s_lshr_b32 s6, s71, 1
    s_mul_i32 s6, s6, {CH_SZ}
    s_and_b32 s7, s71, 1
    s_mul_i32 s7, s7, {2*896}
    s_add_u32 s6, s6, s7
    s_add_u32 s6, s6, {AUX_BASE + U_OFF}
    v_lshrrev_b32 v1, 5, v0
    v_mul_u32_u24 v1, 896, v1
    v_and_b32 v2, 31, v0
    v_lshl_add_u32 v1, v2, 4, v1
    v_add_u32 v1, s6, v1
    ds_write_b128 v1, {vr(XA)}
    s_mov_b32 exec_lo, 0x00ffffff
    s_mov_b32 exec_hi, 0x00ffffff
    ds_write_b128 v1, {vr(XB_)} offset:512
    s_mov_b64 exec, 1
    v_mov_b32 v8, {CNT_LNS}
    v_mov_b32 v9, 1
    s_waitcnt lgkmcnt(0)
    ds_add_u32 v8, v9
    s_mov_b64 exec, -1
    v_mov_b32 v8, {CNT_LNS}
    v_lshrrev_b32 v10, 4, v0
    v_bfe_u32 v9, v0, 2, 2
    v_mul_u32_u24 v9, 896, v9
    v_lshl_add_u32 v9, v10, 5, v9
    v_and_b32 v10, 3, v0
    v_lshl_add_u32 v9, v10, 3, v9
    s_lshl_b32 s10, s71, 7
    s_add_u32 s10, s10, {AUX_BASE + U_OFF}
    v_add_u32 v9, s10, v9
    s_lshl_b32 s10, s{S_XX}, 5
    s_add_u32 s10, s10, s{S_YY}
    s_mul_i32 s10, s10, 7168
    s_lshl_b32 s11, s71, 10
    s_add_u32 s10, s10, s11
    s_add_u32 s10, s10, {XB_OFF}
    v_lshlrev_b32 v10, 4, v0
    """)
    spin_lds(a, 11, 8, 0, 4)
    a(f"""
    ds_read_b64_tr_b16 v[12:13], v9
    ds_read_b64_tr_b16 v[14:15], v9 offset:{CH_SZ}
    ds_read_b64_tr_b16 v[16:17], v9 offset:512
    ds_read_b64_tr_b16 v[18:19], v9 offset:{CH_SZ+512}
    s_waitcnt lgkmcnt(2)
    buffer_store_dwordx4 v[12:15], v10, {srd(SRD_WS)}, s10 offen sc1
    s_cmp_eq_u32 s71, 3
    s_cbranch_scc1 LNS_SKIP
    s_add_u32 s10, s10, 4096
    s_waitcnt lgkmcnt(0)
    buffer_store_dwordx4 v[16:19], v10, {srd(SRD_WS)}, s10 offen sc1
    LNS_SKIP:
    s_waitcnt lgkmcnt(0)
    """)
    ts(a, "k2")
    def ln_publish():
        a(f"""
        s_lshl_b32 s10, s{S_XX}, 5
        s_add_u32 s10, s10, s{S_YY}
        s_lshl_b32 s10, s10, 2
        s_add_u32 s10, s10, {FL_LN}
        """)
        publish(a, CNT_LN, 4, 10, 8, 9)
    if opt("wpf", 1):
        a(f"""
        s_lshl_b32 s10, s{S_YY}, 3
        s_lshl_b32 s11, s71, 1
        s_add_u32 s10, s10, s11
        s_mul_i32 s10, s10, {49*128}
        v_lshl_add_u32 v1, v0, 7, s10
        s_mov_b32 exec_lo, -1
        s_mov_b32 exec_hi, 0x1ffff
        """)
    a(f"""
    s_cmp_lt_u32 s{S_YY}, 28
    s_cbranch_scc1 KC_GO
    """)
    if opt("wpf", 1):
        a(f"""
        global_load_dword v251, v1, {sp(S_W2)}
        global_load_dword v253, v1, {sp(S_W2)} offset:0
        """)
        a(f"v_add_u32 v1, {49*128}, v1")
        a(f"global_load_dword v253, v1, {sp(S_W2)}")
    a("s_mov_b64 exec, -1")
    ln_publish()
    a("s_branch L_END")
    a("KC_GO:")
    if opt("nokc", 0):
        a("s_mov_b64 exec, -1")
        ln_publish()
        a(f"""
        s_lshl_b32 s10, s70, 2
        s_add_u32 s10, s10, {FL_CV}
        """)
        publish(a, CNT_CV, 4, 10, 8, 9)
        ts_dump(a)
        a("s_branch L_END")
    a("s_mov_b64 exec, -1")
    Z1, Z2, Z4, Z8, Z16, CHN, C2, A2S, A4S, A8S, Z256, Z512, Z1024, ST_ = 32, 36, 40, 44, 48, 52, 56, 60, 64, 68, 72, 76, 80, 84
    DT = [92, 96, 100]
    RB, RA0, RA1 = 108, 140, 172
    VMY, VOT, VT = 6, 7, 5
    VTR = 3
    VTW = [24, 25, 26, 27]
    CV = 16
    a(f"""
    s_mov_b32 s7, s75
    s_mov_b32 s9, s73
    s_lshl_b32 s10, s7, 2
    s_add_u32 s10, s10, s9
    s_add_u32 s10, s10, {AF_OFF}
    v_mov_b32 v{VMY}, s10
    s_xor_b32 s10, s10, 4
    v_mov_b32 v{VOT}, s10
    s_mul_i32 s10, s7, {TILE_SZ}
    s_add_u32 s10, s10, s9
    v_lshl_add_u32 v{VTW[0]}, v0, 3, s10
    v_add_u32 v{VTW[1]}, {4*TROW}, v{VTW[0]}
    v_add_u32 v{VTW[2]}, {8*TROW}, v{VTW[0]}
    v_add_u32 v{VTW[3]}, {12*TROW}, v{VTW[0]}
    v_and_b32 v1, 15, v0
    v_mul_u32_u24 v{VTR}, {TROW}, v1
    v_lshrrev_b32 v4, 4, v0
    v_lshl_add_u32 v{VTR}, v4, 4, v{VTR}
    v_add_u32 v{VTR}, s10, v{VTR}
    v_mov_b32 v1, {hx(LOG2E)}
    v_mul_f32 v4, s76, v1
    v_exp_f32 v4, v4
    """)
    bf16r(a, 4, 4)
    a(f"""
    s_waitcnt vmcnt(3)
    """)
    a(f"""
    s_waitcnt vmcnt(2)
    v_lshlrev_b32 v12, 16, v{RAW}
    v_and_b32 v13, 0xffff0000, v{RAW}
    v_mul_f32 v12, v12, v1
    v_mul_f32 v13, v13, v1
    v_exp_f32 v12, v12
    v_exp_f32 v13, v13
    v_cvt_pk_bf16_f32 v12, v12, v13
    v_lshlrev_b32 v14, 16, v12
    v_and_b32 v15, 0xffff0000, v12
    v_mul_f32 v14, v14, v4
    v_mul_f32 v15, v15, v4
    v_mul_f32 v14, v14, v1
    v_mul_f32 v15, v15, v1
    v_exp_f32 v14, -v14
    v_exp_f32 v15, -v15
    v_lshlrev_b32 v16, 16, v{RAW+1}
    v_and_b32 v17, 0xffff0000, v{RAW+1}
    v_mul_f32 v16, v16, v4
    v_mul_f32 v17, v17, v4
    v_mul_f32 v16, 0.15915494, v16
    v_mul_f32 v17, 0.15915494, v17
    v_rndne_f32 v18, v16
    v_rndne_f32 v19, v17
    v_sub_f32 v16, v16, v18
    v_sub_f32 v17, v17, v19
    v_cos_f32 v18, v16
    v_sin_f32 v19, v16
    v_cos_f32 v20, v17
    v_sin_f32 v21, v17
    v_mul_f32 v{Z1}, v14, v18
    v_mul_f32 v{Z1+1}, v14, v19
    v_mul_f32 v{Z1+2}, v15, v20
    v_mul_f32 v{Z1+3}, v15, v21
    v_add_f32 v4, v4, v4
    v_lshlrev_b32 v16, 16, v{RAW+2}
    v_and_b32 v17, 0xffff0000, v{RAW+2}
    v_lshlrev_b32 v18, 16, v{RAW+3}
    v_and_b32 v19, 0xffff0000, v{RAW+3}
    v_mul_f32 v{C2}, v16, v4
    v_mul_f32 v{C2+1}, v18, v4
    v_mul_f32 v{C2+2}, v17, v4
    v_mul_f32 v{C2+3}, v19, v4
    """)
    PRIME.update({Z1: (88, 90), Z2: (104, 106), Z4: (238, 240), Z8: (242, 244), Z16: (246, 248), Z256: (250, 252), Z512: (28, 30), Z1024: (254, 232)})
    mkprime(a, Z1); cm(a, Z2, Z1, Z1); mkprime(a, Z2); cm(a, Z4, Z2, Z2); mkprime(a, Z4); cm(a, Z8, Z4, Z4); mkprime(a, Z8); cm(a, Z16, Z8, Z8); mkprime(a, Z16)
    state = {"n": 0}
    def cvt(src, conj, slot):
        neg = "-" if conj else ""
        c = CV + 2 * slot
        a(f"v_cvt_pk_bf16_f32 v{c}, v{src}, {neg}v{src+1}")
        a(f"v_cvt_pk_bf16_f32 v{c+1}, v{src+2}, {neg}v{src+3}")
        return c
    def wr2(r0, c0, r1, c1):
        q = r0 // 4
        o0 = (r0 - 4 * q) * TROW // 8; o1 = (r1 - 4 * q) * TROW // 8
        assert 0 <= o0 <= 255 and 0 <= o1 <= 255
        a(f"ds_write2_b64 v{VTW[q]}, v[{c0}:{c0+1}], v[{c1}:{c1+1}] offset0:{o0} offset1:{o1}")
    def wr1(r, c):
        a(f"ds_write_b64 v{VTW[0]}, v[{c}:{c+1}] offset:{r*TROW}")
    def chain(reg, ratio, rows, conj, save=None, last_mul=False):
        pend = None
        for i, r in enumerate(rows):
            slot = (state["n"] % 4); state["n"] += 1
            c = cvt(reg, conj, slot)
            if save and r in save:
                s = save[r]
                a(f"v_mov_b64 v[{s}:{s+1}], v[{reg}:{reg+1}]")
                a(f"v_mov_b64 v[{s+2}:{s+3}], v[{reg+2}:{reg+3}]")
            if i + 1 < len(rows) or last_mul:
                cm(a, reg, reg, ratio)
            if pend is None:
                if i + 1 < len(rows) and rows[i + 1] // 4 == r // 4 and abs(rows[i + 1] - r) * TROW // 8 <= 255:
                    pend = (r, c)
                else:
                    wr1(r, c)
            else:
                wr2(pend[0], pend[1], r, c); pend = None
        assert pend is None
    def rd(dest):
        for kk in range(8):
            a(f"ds_read_b128 {vr(dest+4*kk)}, v{VTR} offset:{64*kk}")
    def mm(dt, A):
        for kk in range(8):
            c = "0" if kk == 0 else vr(DT[dt])
            a(f"v_mfma_f32_16x16x32_bf16 {vr(DT[dt])}, {vr(A+4*kk)}, {vr(RB+4*kk)}, {c}")
    a(f"""
    v_mov_b32 v{CV+6}, 0x3f80
    v_mov_b32 v{CV+7}, 0x3f80
    v_mov_b64 v[{CHN}:{CHN+1}], v[{Z16}:{Z16+1}]
    v_mov_b64 v[{CHN+2}:{CHN+3}], v[{Z16+2}:{Z16+3}]
    """)
    wr1(0, CV + 6)
    state["n"] = 0
    chain(CHN, Z16, [1], True, last_mul=True)
    chain(CHN, Z16, list(range(2, 16)), True, last_mul=True)
    rd(RB)
    a(f"v_mov_b64 v[{Z256}:{Z256+1}], v[{CHN}:{CHN+1}]")
    a(f"v_mov_b64 v[{Z256+2}:{Z256+3}], v[{CHN+2}:{CHN+3}]")
    mkprime(a, Z256)
    ln_publish()
    if opt("wpf", 1):
        a(f"""
        s_lshl_b32 s10, s{S_YY}, 3
        s_lshl_b32 s11, s71, 1
        s_add_u32 s10, s10, s11
        s_mul_i32 s10, s10, {49*128}
        v_lshl_add_u32 v1, v0, 7, s10
        s_mov_b32 exec_lo, -1
        s_mov_b32 exec_hi, 0x1ffff
        global_load_dword v251, v1, {sp(S_W2)}
        v_add_u32 v1, {49*128}, v1
        global_load_dword v253, v1, {sp(S_W2)}
        s_mov_b64 exec, -1
        """)
    cm(a, CHN, C2, Z1)
    chain(CHN, Z1, list(range(16)), False, save={1: A2S, 3: A4S, 7: A8S})
    rd(RA0)
    cm(a, Z512, Z256, Z256)
    mkprime(a, Z512)
    cm(a, CHN, A2S, Z256)
    cm(a, Z1024, Z512, Z512)
    mkprime(a, Z1024)
    cm(a, ST_, A4S, Z512)
    chain(CHN, Z2, list(range(8)), False)
    a("s_waitcnt lgkmcnt(4)")
    mm(0, RA0)
    cm(a, CHN, ST_, Z256)
    chain(ST_, Z4, list(range(8, 12)), False)
    chain(CHN, Z4, list(range(12, 16)), False)
    rd(RA1)
    cm(a, CHN, A8S, Z1024)
    cm(a, ST_, CHN, Z8)
    def a2():
        for tau in range(4):
            c0 = cvt(CHN, False, (2 * tau) % 4)
            c1 = cvt(ST_, False, (2 * tau + 1) % 4)
            if tau < 3:
                cmul_n(a, both(CHN, CHN, Z256) + both(ST_, ST_, Z256))
            wr2(2 * tau, c0, 2 * tau + 1, c1)
        c = cvt(C2, False, 0)
        wr1(8, c)
    a2()
    rd(RA0)
    a("s_waitcnt lgkmcnt(8)")
    mm(1, RA1)
    a("s_waitcnt lgkmcnt(0)")
    mm(2, RA0)
    ts(a, "k3")
    a(f"""
    ds_write_b128 v{SC}, {vr(DT[0])}
    ds_write_b128 v{SC+1}, {vr(DT[1])}
    s_mov_b32 exec_lo, -1
    s_mov_b32 exec_hi, 0
    ds_write2_b64 v{SC+2}, v[{DT[2]}:{DT[2]+1}], v[{DT[2]+2}:{DT[2]+3}] offset0:0 offset1:16
    s_mov_b32 exec_lo, 0
    s_mov_b32 exec_hi, 1
    v_mov_b32 v1, s74
    ds_write_b32 v1, v{DT[2]}
    s_mov_b64 exec, -1
    v_mov_b32 v12, 0
    v_mov_b32 v13, 0
    v_mov_b32 v14, 0
    v_mov_b32 v15, 0
    s_cmp_eq_u32 s7, 0
    s_cbranch_scc1 KC_Z2
    v_lshl_add_u32 v1, v0, 2, s74
    s_mov_b64 exec, 15
    v_subrev_u32 v1, 16, v1
    ds_write_b32 v1, v12
    s_mov_b64 exec, 0x3fffffff
    v_lshl_add_u32 v1, v0, 4, s9
    ds_write_b128 v1, v[12:15] offset:{U_PAD}
    s_mov_b64 exec, -1
    KC_Z2:
    v_lshlrev_b32 v1, 4, v0
    v_add_u32 v1, {FL_LN}, v1
    """)
    pair_sync(a, 1, VMY, VOT, VT)
    ts(a, "k4")
    for r in range(2):
        G = 32 + 24 * r
        for j in range(12):
            a(f"ds_read2st64_b32 v[{G+2*j}:{G+2*j+1}], v{GA+12*r+j} offset0:0 offset1:16")
    poll_flags(a, 1, 64, 8, wide=True)
    a(f"""
    s_lshl_b32 s10, s7, 7
    v_add_u32 v1, s10, v0
    v_mul_u32_u24 v1, 7168, v1
    s_lshl_b32 s10, s72, 4
    s_add_u32 s10, s10, {XB_OFF}
    buffer_load_dwordx4 v[112:115], v1, {srd(SRD_WS)}, s10 offen sc1
    s_add_u32 s10, s10, {64*7168}
    buffer_load_dwordx4 v[116:119], v1, {srd(SRD_WS)}, s10 offen sc1
    s_lshl_b32 s10, s7, 11
    s_add_u32 s10, s10, s9
    s_add_u32 s10, s10, 32
    v_lshl_add_u32 v2, v0, 4, s10
    v_add_u32 v3, {2*CSTR}, v2
    s_waitcnt lgkmcnt(0)
    """)
    ts(a, "k5")
    for r in range(2):
        G = 32 + 24 * r
        P = 80 + 16 * r
        p = lambda k: {0: P+8, 1: P+4, 2: P+0, 3: P+1, 4: P+2, 5: P+3}[k]
        for j in range(12):
            a(f"v_add_f32 v{G+2*j}, v{G+2*j}, v{G+2*j+1}")
        for k in range(6):
            a(f"v_cvt_pk_bf16_f32 v{p(k)}, v{G+4*k}, v{G+4*k+2}")
        a(f"""
        v_mov_b32 v{P+5}, v{p(2)}
        v_mov_b32 v{P+6}, v{p(3)}
        v_mov_b32 v{P+7}, v{p(4)}
        v_alignbit_b32 v120, v{p(2)}, v{p(1)}, 16
        v_alignbit_b32 v121, v{p(3)}, v{p(2)}, 16
        v_alignbit_b32 v122, v{p(4)}, v{p(3)}, 16
        v_alignbit_b32 v123, v{p(5)}, v{p(4)}, 16
        v_alignbit_b32 v124, v{p(1)}, v{p(0)}, 16
        v_mov_b32 v125, v120
        v_mov_b32 v126, v121
        v_mov_b32 v127, v122
        ds_write_b128 v2, v[{P}:{P+3}] offset:{1024*r}
        ds_write_b128 v2, v[120:123] offset:{1024*r + CSTR}
        ds_write_b128 v3, v[{P+4}:{P+7}] offset:{1024*r}
        ds_write_b128 v3, v[124:127] offset:{1024*r + CSTR}
        """)
    a(f"""
    s_cmp_lg_u32 s7, 0
    s_cbranch_scc1 KC_Z3
    v_lshrrev_b32 v1, 1, v0
    v_mul_u32_u24 v1, {CSTR}, v1
    v_and_b32 v4, 1, v0
    v_lshl_add_u32 v1, v4, 4, v1
    v_add_u32 v1, s9, v1
    v_mov_b32 v12, 0
    v_mov_b32 v13, 0
    v_mov_b32 v14, 0
    v_mov_b32 v15, 0
    s_mov_b64 exec, 0xff
    ds_write_b128 v1, v[12:15]
    s_mov_b64 exec, -1
    KC_Z3:
    """)
    VA_, VB_ = 2, 3
    BR, AR, CACC = 32, 64, 80
    pair_sync(a, 2, VMY, VOT, VT)
    a(f"""
    s_lshl_b32 s10, s7, 11
    s_add_u32 s10, s10, s9
    v_lshl_add_u32 v1, v0, 4, s10
    s_waitcnt vmcnt(0)
    ds_write_b128 v1, v[112:115] offset:{U_OFF}
    ds_write_b128 v1, v[116:119] offset:{U_OFF+1024}
    v_lshrrev_b32 v4, 4, v0
    v_bfe_u32 v8, v0, 2, 2
    v_mul_u32_u24 v8, {CSTR}, v8
    v_and_b32 v9, 3, v0
    v_lshl_add_u32 v8, v9, 3, v8
    v_lshrrev_b32 v9, 1, v4
    v_and_b32 v10, 1, v4
    v_lshlrev_b32 v11, 5, v9
    v_lshlrev_b32 v12, 4, v10
    v_add_u32 v8, v8, v11
    v_sub_u32 v8, v8, v12
    s_lshl_b32 s10, s7, 8
    s_add_u32 s14, s10, s9
    s_add_u32 s14, s14, {32 - 8}
    v_add_u32 v{VA_}, s14, v8
    v_and_b32 v8, 15, v0
    v_lshlrev_b32 v8, 5, v8
    v_sub_u32 v8, v8, v11
    v_add_u32 v8, v8, v12
    s_sub_u32 s14, s9, s10
    s_add_u32 s14, s14, {U_OFF}
    v_add_u32 v{VB_}, s14, v8
    """)
    for i in range(32):
        a(f"v_mov_b32 v{CACC+i}, 0")
    pair_sync(a, 3, VMY, VOT, VT)
    ts(a, "k6")
    def ldA(P):
        buf = AR + 4 * (P % 4)
        off = 512 * (P % 8) + (64 if P >= 8 else 0)
        a(f"ds_read_b64_tr_b16 v[{buf}:{buf+1}], v{VA_} offset:{off+8}")
        a(f"ds_read_b64_tr_b16 v[{buf+2}:{buf+3}], v{VA_} offset:{off}")
    for s in range(7, -1, -1):
        a(f"ds_read_b128 {vr(BR+4*s)}, v{VB_} offset:{512*s}")
    for P in range(3):
        ldA(P)
    a(f"""
    v_subrev_u32 v{VB_}, 64, v{VB_}
    s_mov_b32 s10, 4
    s_waitcnt lgkmcnt(0)
    CONV_LOOP:
    """)
    for P in range(8):
        a("s_waitcnt lgkmcnt(7)")
        ldA(P + 3)
        first = True
        for s in range(7 - P, -1, -1):
            if P == 0 and s <= 2:
                a(f"s_waitcnt lgkmcnt({3*(s+1)})")
            a(f"v_mfma_f32_16x16x32_bf16 {vr(CACC+4*(P+s))}, {vr(AR+4*(P%4))}, {vr(BR+4*s)}, {vr(CACC+4*(P+s))}")
            if first:
                a(f"ds_read_b128 {vr(BR+4*s)}, v{VB_} offset:{512*s}")
                first = False
    a(f"""
    v_add_u32 v{VA_}, 64, v{VA_}
    v_subrev_u32 v{VB_}, 64, v{VB_}
    s_sub_u32 s10, s10, 1
    s_cmp_lg_u32 s10, 0
    s_cbranch_scc1 CONV_LOOP
    """)
    ts(a, "k7")
    pair_sync(a, 4, VMY, VOT, VT)
    a(f"""
    s_lshl_b32 s10, s7, 12
    s_add_u32 s10, s10, s9
    v_lshl_add_u32 v2, v0, 4, s10
    v_xor_b32 v3, 4096, v2
    s_cmp_lg_u32 s7, 0
    s_cbranch_scc1 KC_X1
    """)
    assert AUX_BASE % 8192 == 0 and CH_SZ % 8192 == 0
    for t in range(4):
        a(f"ds_write_b128 v2, {vr(CACC+16+4*t)} offset:{1024*t}")
    a("s_branch KC_X2")
    a.label("KC_X1")
    for t in range(4):
        a(f"ds_write_b128 v2, {vr(CACC+4*t)} offset:{1024*t}")
    for i in range(0, 16, 2):
        a(f"v_mov_b64 v[{CACC+i}:{CACC+i+1}], v[{CACC+16+i}:{CACC+17+i}]")
    a.label("KC_X2")
    a(f"""
    v_and_b32 v8, 15, v0
    v_lshlrev_b32 v8, 5, v8
    v_lshrrev_b32 v4, 4, v0
    v_lshl_add_u32 v8, v4, 3, v8
    s_lshl_b32 s10, s7, 11
    v_add_u32 v8, s10, v8
    s_add_u32 s14, s9, {U_OFF}
    v_add_u32 v9, s14, v8
    """)
    for t in range(4):
        a(f"ds_read_b64 v[{48+2*t}:{49+2*t}], v9 offset:{512*t}")
    pair_sync(a, 5, VMY, VOT, VT)
    for t in range(4):
        a(f"ds_read_b128 {vr(32+4*t)}, v3 offset:{1024*t}")
    a(f"""
    s_lshl_b32 s10, s72, 12
    s_add_u32 s10, s10, {ST_OFF}
    v_mov_b32 v10, s77
    v_mov_b32 v11, s77
    """)
    for t in range(4):
        A = CACC + 4 * t; X = 48 + 2 * t; Pp = 32 + 4 * t
        a(f"""
        v_lshlrev_b32 v12, 16, v{X}
        v_and_b32 v13, 0xffff0000, v{X}
        v_lshlrev_b32 v14, 16, v{X+1}
        v_and_b32 v15, 0xffff0000, v{X+1}
        v_pk_fma_f32 v[{A}:{A+1}], v[12:13], v[10:11], v[{A}:{A+1}]
        v_pk_fma_f32 v[{A+2}:{A+3}], v[14:15], v[10:11], v[{A+2}:{A+3}]
        s_waitcnt lgkmcnt({3-t})
        v_pk_add_f32 v[{A}:{A+1}], v[{A}:{A+1}], v[{Pp}:{Pp+1}]
        v_pk_add_f32 v[{A+2}:{A+3}], v[{A+2}:{A+3}], v[{Pp+2}:{Pp+3}]
        v_cvt_pk_bf16_f32 v{24+2*(t%2)}, v{A}, v{A+1}
        v_cvt_pk_bf16_f32 v{25+2*(t%2)}, v{A+2}, v{A+3}
        buffer_store_dwordx2 v[{24+2*(t%2)}:{25+2*(t%2)}], v8, {srd(SRD_WS)}, s10 offen offset:{512*t} sc1
        """)
    ts(a, "k8")
    a(f"""
    s_lshl_b32 s10, s70, 2
    s_add_u32 s10, s10, {FL_CV}
    """)
    publish(a, CNT_CV, 4, 10, 8, 9)
    ts(a, "k9")

def build():
    a = Asm()
    a.label("L_START")
    prologue(a)
    g_path(a)
    ts_dump(a)
    span_end(a)
    a("s_branch L_END")
    a.label("R_SPARE_G")
    spare_g(a)
    a.label("R_AUX")
    kc_path(a)
    ts_dump(a)
    span_end(a)
    a("s_branch L_END")
    for t in TAIL: a(t)
    return a

def finish(a, name, vgpr=256):
    lines, npad = pad_hazards(a.lines)
    body = "\n".join(("    " + l if not l.endswith(":") else l) for l in lines)
    body = body.replace("L_END", f"{name}_END").replace("L_BAIL", f"{name}_BAIL")
    hdr = open(f"cdna_kernels/{NAME}.s.ref").read().split("; Override launch")[0].rstrip("\n")
    txt = f"""{hdr}
; @launch grid=(256,1,1) block=(512,1,1) lds=163840
.amdgcn_target "amdgcn-amd-amdhsa--gfx950"
.text
.globl {name}
.p2align 8
.type {name},@function
{name}:
{body}
{name}_BAIL:
    s_mov_b64 exec, 1
    v_mov_b32 v1, 0
    v_mov_b32 v2, s2
    v_lshl_or_b32 v2, v2, 4, s3
    v_or_b32 v2, 0xbad00000, v2
    global_store_dword v1, v2, s[42:43]
    s_waitcnt vmcnt(0)
{name}_END:
    s_endpgm
L_CODE_END:
.section .rodata,"a"
.p2align 6
.amdhsa_kernel {name}
  .amdhsa_next_free_vgpr {vgpr}
  .amdhsa_next_free_sgpr 102
  .amdhsa_accum_offset {vgpr}
  .amdhsa_group_segment_fixed_size 0
  .amdhsa_kernarg_size 120
  .amdhsa_user_sgpr_count 2
  .amdhsa_user_sgpr_kernarg_segment_ptr 1
  .amdhsa_system_sgpr_workgroup_id_x 1
.end_amdhsa_kernel
"""
    print(f"{len(lines)} lines, {npad} nops", file=sys.stderr)
    return txt

if __name__ == "__main__":
    out = sys.argv[1]
    if len(sys.argv) > 2 and sys.argv[2] == "ts": TS_ON = True
    a = build()
    open(out, "w").write(finish(a, NAME + "_kernel"))
```

```python
import sys, math, struct, os
sys.path.insert(0, "gen")
from asmlib import Asm, pad_hazards

NAME = "recurrent_scan__ssm_conv_s4d__mixer_channel_mlp__prompt"
L, D, N, F = 2048, 448, 256, 1792
H_OFF, XT_OFF, ST_OFF, FLAG_OFF = 0, 0x700000, 0x8C0000, 0xA80000
FL_LN, FL_G1, FL_CV, FL_EPOCH = FLAG_OFF, FLAG_OFF + 0x1000, FLAG_OFF + 0x3000, FLAG_OFF + 0x3800
STAT_OFF = FLAG_OFF + 0x4000
TS_OFF = 0xE00000
WS_SRD_SIZE = 0x1000000
X_BYTES = L * D * 2
W_BYTES = D * F * 2
LOG2E = math.log2(math.e)

def f2u(x): return struct.unpack("<I", struct.pack("<f", x))[0]
def hx(x): return hex(f2u(x))

S_X, S_LOGA, S_AIM, S_CRE, S_CIM, S_LOGDT, S_DSKIP, S_BX, S_W1, S_B1, S_W2, S_B2, S_OUT, S_DBG, S_WS = \
    16, 18, 20, 22, 24, 26, 28, 30, 32, 34, 36, 38, 40, 42, 44
S_EPOCH, S_TAG = 46, 47
SRD_W1, SRD_X, SRD_WS, SRD_OUT, SRD_W2 = 48, 52, 56, 60, 64
S_BUD = 69
S_XX, S_YY = 78, 79

def sp(b): return f"s[{b}:{b+1}]"
def srd(b): return f"s[{b}:{b+3}]"
def vr(b, n=4): return f"v[{b}:{b+n-1}]" if n > 1 else f"v{b}"

WSLOT = 8192; NWS = 6
XBASE = 49152; XSLOT = 16384; NXS = 4
AUX_BASE = 114688
CH_SZ = 24576
TILE_SZ = 8704; TROW = 544
CSTR = 4160
U_OFF = 17376; U_PAD = U_OFF - 480
T1_OFF = U_OFF + 28
T0_OFF = T1_OFF + 4096
FREE = 24064
GFLAG = AUX_BASE + FREE
CNT_CV = GFLAG + 24
AF_OFF = FREE + 64
DUMMY = AUX_BASE + CH_SZ + FREE + 256
G2_PSTR = 272; G2_WREG = 28672; G2_STILE = 17408; G2_SSTR = 144
SP_CNT = 65536 + 64

OPT = dict(kv.split("=") for kv in os.environ.get("G4OPT", "").split(",") if kv)
def opt(k, d): return int(OPT.get(k, d))

TS_ON = False
TSSEL = os.environ.get("TSSEL", "")
TSMAP = {"g": [], "k": [], "p": []}
def ts(a, name):
    if not TS_ON: return
    if TSSEL and name not in TSSEL.split(","): return
    lst = TSMAP[name[0]]
    lst.append(name)
    i = len(lst)
    assert i <= 29
    a(f"s_memtime s[98:99]")
    a("s_waitcnt lgkmcnt(0)")
    a(f"v_writelane_b32 v255, s98, {i}")
def ts_dump(a):
    if not TS_ON: return
    a(f"""
    s_memrealtime s[94:95]
    s_waitcnt lgkmcnt(0)
    v_writelane_b32 v255, s96, 0
    v_writelane_b32 v255, s100, 30
    v_writelane_b32 v255, s94, 31
    s_lshl_b32 s94, s2, 3
    s_add_u32 s94, s94, s3
    s_lshl_b32 s94, s94, 7
    s_add_u32 s94, s94, {TS_OFF}
    v_mbcnt_lo_u32_b32 v1, -1, 0
    v_lshl_add_u32 v1, v1, 2, s94
    s_mov_b64 exec, 0xffffffff
    global_store_dword v1, v255, {sp(S_WS)}
    s_mov_b64 exec, -1
    s_waitcnt vmcnt(0)
    """)

class Cnt:
    def __init__(self, name, mx): self.ops = []; self.name = name; self.mx = mx
    def issue(self, tag): self.ops.append(tag)
    def left(self, *tags):
        idx = max(i for i, t in enumerate(self.ops) if t in tags)
        return len(self.ops) - 1 - idx
    def wait(self, a, *tags):
        n = self.left(*tags)
        a(f"s_waitcnt {self.name}({min(n, self.mx)})")
    def all(self, a):
        a(f"s_waitcnt {self.name}(0)")
def VM(): return Cnt("vmcnt", 63)
def LG(): return Cnt("lgkmcnt", 15)

def mk_srd(a, dst, base, size):
    a(f"""
    s_mov_b32 s{dst}, s{base}
    s_mov_b32 s{dst+1}, s{base+1}
    s_mov_b32 s{dst+2}, {hex(size)}
    s_mov_b32 s{dst+3}, 0x00020000
    """)

def bf16r(a, dst, src):
    a(f"v_cvt_pk_bf16_f32 v{dst}, v{src}, v{src}")
    a(f"v_and_b32 v{dst}, 0xffff0000, v{dst}")

def budget(a):
    a(f"s_sub_u32 s{S_BUD}, s{S_BUD}, 1")
    a("s_cbranch_scc1 L_BAIL")

TAIL = []
def spin_lds(a, tmp, addr_v, off, target):
    lab = a.newlabel("SPIN")
    a(f"{lab}:")
    budget(a)
    a(f"""
    ds_read_b32 v{tmp}, v{addr_v} offset:{off}
    s_waitcnt lgkmcnt(0)
    v_cmp_gt_u32 vcc, {target}, v{tmp}
    s_cbranch_vccnz {lab}
    """)

def check_flag(a, vval, vaddr, target):
    s = a.newlabel("CF"); b = a.newlabel("CFB")
    a(f"v_cmp_gt_u32 vcc, {target}, v{vval}")
    a(f"s_cbranch_vccnz {s}")
    a(f"{b}:")
    TAIL.append(f"""
    {s}:
    s_sub_u32 s{S_BUD}, s{S_BUD}, 1
    s_cbranch_scc1 L_BAIL
    ds_read_b32 v{vval}, v{vaddr}
    s_waitcnt lgkmcnt(0)
    v_cmp_gt_u32 vcc, {target}, v{vval}
    s_cbranch_vccnz {s}
    s_branch {b}
    """)

def publish(a, cnt_addr, nwaves, flag_off_s, vt0, vt1):
    lab = a.newlabel("PUB")
    a(f"""
    s_waitcnt vmcnt(0)
    v_mov_b32 v{vt0}, {cnt_addr}
    v_mov_b32 v{vt1}, 1
    s_mov_b64 exec, 1
    ds_add_rtn_u32 v{vt1}, v{vt0}, v{vt1}
    s_waitcnt lgkmcnt(0)
    v_cmp_eq_u32 vcc, {nwaves-1}, v{vt1}
    s_cbranch_vccz {lab}
    v_mov_b32 v{vt0}, s{flag_off_s}
    v_mov_b32 v{vt1}, s{S_TAG}
    global_store_dword v{vt0}, v{vt1}, {sp(S_WS)} sc1
    {lab}:
    s_mov_b64 exec, -1
    """)

def epoch_load(a):
    a(f"""
    s_add_u32 s6, s{S_WS}, {FL_EPOCH}
    s_addc_u32 s7, s{S_WS+1}, 0
    s_load_dword s{S_EPOCH}, s[6:7], 0
    """)
def tag_calc(a):
    a(f"""
    s_mul_i32 s{S_TAG}, s{S_EPOCH}, 0x9E3779B1
    s_add_u32 s{S_TAG}, s{S_TAG}, 0x7F4A7C15
    """)

def prologue(a):
    if TS_ON:
        a("s_memtime s[96:97]")
        a("s_memrealtime s[100:101]")
    a(f"""
    s_load_dwordx2 s[{SRD_W1}:{SRD_W1+1}], s[0:1], 64
    s_load_dwordx2 s[{SRD_X}:{SRD_X+1}], s[0:1], 0
    s_load_dwordx16 s[16:31], s[0:1], 0
    s_load_dwordx8 s[32:39], s[0:1], 64
    s_load_dwordx4 s[40:43], s[0:1], 96
    s_load_dwordx2 s[44:45], s[0:1], 112
    v_lshrrev_b32 v1, 6, v0
    v_and_b32 v0, 63, v0
    s_cmp_ge_u32 s2, 256
    v_readfirstlane_b32 s3, v1
    s_cbranch_scc1 L_END
    s_and_b32 s{S_XX}, s2, 7
    s_lshr_b32 s{S_YY}, s2, 3
    s_mov_b32 s{S_BUD}, 0x40000
    """)
    if opt("cpf", 1):
        a(f"""
        s_cmp_lg_u32 s3, 7
        s_cbranch_scc1 L_NOPF
        s_getpc_b64 s[14:15]
        L_PC:
        s_lshl_b32 s10, s{S_YY}, 7
        v_lshl_add_u32 v2, v0, 12, s10
        s_sub_u32 s14, s14, (L_PC - L_START)
        s_subb_u32 s15, s15, 0
        v_min_u32 v2, (L_CODE_END - L_START - 4), v2
        v_mov_b32 v3, s15
        v_add_co_u32 v2, vcc, s14, v2
        v_addc_co_u32 v3, vcc, 0, v3, vcc
        global_load_dword v251, v[2:3], off
        L_NOPF:
        """)
    a(f"""
    s_cmp_ge_u32 s{S_YY}, 28
    s_cbranch_scc1 R_SPARE
    s_cmp_ge_u32 s3, 4
    s_cbranch_scc1 R_KC
    """)

VW1, VW1B = 2, 3
VX = [4, 5, 6, 7]
VA = [8, 9]
VB = [[10, 11], [12, 13]]
VSIG, VCNT = 14, 15
VFL, VFV, VB1, VB2R, VW2, VW2B, VT0 = 248, 249, 250, 251, 252, 253, 254
FB = [16, 32, 48, 64]
SEL = [80, 84]; S16 = 88
ACC = 128
W2R = 16
HB = 192
S_RB, S_FT, S_LB, S_DB = 70, 71, 72, 73
S_WO, S_XO, S_HS = 74, 75, 76
S_WF, S_WL = 77, 68
SJ = [80 + i for i in range(7)]
SH = [87 + i for i in range(7)]
POS = [12, 13, 2, 6, 7, 3, 4, 5, 8, 9, 0, 1, 10, 11]
AVAIL = [8, 8, 9, 10, 10, 10, 11, 12, 12, 12, 13, 14, 14, 14]
def acc(p, q): return ACC + 16 * (2 * p + q)

def dma_w(u):
    r = []
    if u % 2 == 0: r.append(f"s_mul_i32 s8, s{SJ[u >> 1]}, {64*3584}")
    else: r.append(f"s_add_u32 s8, s8, {32*3584}")
    r.append(f"s_add_u32 m0, s{S_WO}, {(u % NWS) * WSLOT}")
    r.append((f"buffer_load_dwordx4 v{VW1}, {srd(SRD_W1)}, s8 offen lds", ("w", u)))
    r.append((f"buffer_load_dwordx4 v{VW1B}, {srd(SRD_W1)}, s8 offen offset:1024 lds", ("w", u)))
    return r
def dma_x(p, half):
    r = []
    if half == 0: r.append(f"s_lshl_b32 s9, s{SJ[p]}, 7")
    r.append(f"s_add_u32 m0, s{S_XO}, {(p % NXS) * XSLOT}")
    for j in (2 * half, 2 * half + 1):
        off = f" offset:{1024*j}" if j else ""
        r.append((f"buffer_load_dwordx4 v{VX[j]}, {srd(SRD_X)}, s9 offen{off} lds", ("x", p)))
    return r
def dma_w2(t):
    g, m = t // 14, t % 14
    i, be = m >> 1, m & 1
    r = []
    r.append(f"s_mul_i32 s11, s{SJ[i]}, {4*14336}")
    o = (2 * g + be) * 14336
    if o: r.append(f"s_add_u32 s11, s11, {o}")
    r.append(f"s_add_u32 m0, s{S_WO}, {POS[m] * 8192}")
    r.append((f"buffer_load_dwordx4 v{VW2}, {srd(SRD_W2)}, s11 offen lds", ("w2", t)))
    r.append((f"buffer_load_dwordx4 v{VW2B}, {srd(SRD_W2)}, s11 offen offset:1024 lds", ("w2", t)))
    return r
def groups(items):
    out = []; cur = []
    for it in items:
        cur.append(it)
        if isinstance(it, tuple):
            out.append(cur); cur = []
    if cur: out.append(cur)
    return out
def emit(a, items, vm=None, lg=None):
    for it in items:
        if isinstance(it, tuple):
            txt, tag = it
            a(txt)
            if txt.startswith("ds_"): lg.issue(tag)
            else: vm.issue(tag)
        elif callable(it): it()
        else: a(it)

def g_path(a):
    vm = VM(); lg = LG()
    a.c("---- G init")
    a(f"""
    s_mul_i32 s6, s{S_YY}, 37
    s_lshr_b32 s6, s6, 8                    ; yq
    s_mul_i32 s7, s6, 7
    s_sub_u32 s7, s{S_YY}, s7               ; yr
    s_lshr_b32 s4, s{S_XX}, 1
    s_lshl_b32 s{S_RB}, s4, 2
    s_add_u32 s{S_RB}, s{S_RB}, s6
    s_and_b32 s5, s{S_XX}, 1
    s_mul_i32 s{S_FT}, s5, 7
    s_add_u32 s{S_FT}, s{S_FT}, s7
    s_lshl_b32 s{S_LB}, s{S_XX}, 2
    s_add_u32 s{S_LB}, s{S_LB}, s6
    s_mov_b32 s{S_DB}, s7
    s_lshl_b32 s8, s6, 1
    s_add_u32 s{SJ[0]}, s8, s7
    s_cmp_ge_u32 s{SJ[0]}, 7
    s_cselect_b32 s9, 7, 0
    s_sub_u32 s{SJ[0]}, s{SJ[0]}, s9
    s_lshl_b32 s{S_WO}, s3, 11
    s_lshl_b32 s{S_XO}, s3, 12
    s_add_u32 s{S_XO}, s{S_XO}, {XBASE}
    s_and_b32 s{S_WF}, s3, 1
    s_lshr_b32 s{S_WL}, s3, 1
    s_mov_b32 s{SRD_W1+2}, {hex(W_BYTES)}
    s_mov_b32 s{SRD_W1+3}, 0x00020000
    s_mov_b32 s{SRD_X+2}, {hex(X_BYTES)}
    s_mov_b32 s{SRD_X+3}, 0x00020000
    ; VW1
    v_lshrrev_b32 v1, 4, v0
    v_and_b32 v16, 15, v0
    v_lshlrev_b32 v17, 2, v1
    v_xor_b32 v16, v16, v17
    v_mul_u32_u24 v{VW1}, 3584, v1
    v_lshl_add_u32 v{VW1}, v16, 4, v{VW1}
    s_lshl_b32 s10, s{S_FT}, 8
    s_mul_i32 s11, s3, {8*3584}
    s_add_u32 s10, s10, s11
    v_add_u32 v{VW1}, s10, v{VW1}
    v_add_u32 v{VW1B}, {14336-1024}, v{VW1}
    ; VX
    v_and_b32 v16, 7, v0
    v_xor_b32 v16, v16, v1
    v_lshrrev_b32 v17, 3, v0
    v_mul_u32_u24 v17, 896, v17
    v_lshl_add_u32 v{VX[0]}, v16, 4, v17
    s_lshl_b32 s10, s{S_RB}, 7
    s_lshl_b32 s11, s3, 5
    s_add_u32 s10, s10, s11
    s_mul_i32 s10, s10, 896
    v_add_u32 v{VX[0]}, s10, v{VX[0]}
    v_xor_b32 v{VX[1]}, 64, v{VX[0]}
    v_add_u32 v{VX[2]}, {14336-2048}, v{VX[0]}
    v_add_u32 v{VX[3]}, {21504-3072}, v{VX[1]}
    v_add_u32 v{VX[1]}, {7168-1024}, v{VX[1]}
    """)
    for i in range(1, 7):
        a(f"""
        s_add_u32 s{SJ[i]}, s{SJ[i-1]}, 1
        s_cmp_eq_u32 s{SJ[i]}, 7
        s_cselect_b32 s{SJ[i]}, 0, s{SJ[i]}
        """)
    a(f"""
    ; b1 (f = 128ft + 64wf + lane), b2 (d = 64db + lane) offsets
    s_lshl_b32 s10, s{S_FT}, 8
    s_lshl_b32 s11, s{S_WF}, 7
    s_add_u32 s10, s10, s11
    v_lshl_add_u32 v20, v0, 1, s10
    s_lshl_b32 s10, s{S_DB}, 7
    v_lshl_add_u32 v21, v0, 1, s10
    v_lshrrev_b32 v16, 1, v1                ; hi = g>>1
    v_bfe_u32 v17, v0, 2, 2                 ; r
    v_lshl_add_u32 v18, v16, 3, v17
    v_lshlrev_b32 v18, 8, v18               ; row*256
    v_and_b32 v19, 1, v0
    v_lshl_add_u32 v18, v19, 3, v18
    v_and_b32 v19, 1, v1
    v_lshlrev_b32 v19, 1, v19
    v_bfe_u32 v22, v0, 1, 1
    v_add_u32 v19, v19, v22
    s_lshl_b32 s10, s{S_WF}, 3
    v_add_u32 v19, s10, v19
    v_lshlrev_b32 v17, 2, v17
    v_xor_b32 v22, v19, v17
    v_lshl_add_u32 v{VA[0]}, v22, 4, v18
    v_xor_b32 v{VA[1]}, 64, v{VA[0]}
    v_and_b32 v16, 31, v0
    v_lshrrev_b32 v17, 5, v0
    v_bfe_u32 v18, v0, 1, 3
    v_xor_b32 v17, v17, v18
    v_lshlrev_b32 v16, 7, v16
    v_lshl_add_u32 v16, v17, 4, v16
    s_lshl_b32 s10, s{S_WL}, 13
    s_add_u32 s10, s10, {XBASE}
    v_add_u32 v{VB[0][0]}, s10, v16
    v_xor_b32 v{VB[0][1]}, 32, v{VB[0][0]}
    v_xor_b32 v{VB[1][0]}, 64, v{VB[0][0]}
    v_xor_b32 v{VB[1][1]}, 96, v{VB[0][0]}
    s_waitcnt lgkmcnt(0)
    """)
    ts(a, "g_karg")
    emit(a, dma_w(0) + dma_x(0, 0) + dma_x(0, 1) + dma_w(1), vm)
    a("s_barrier")
    epoch_load(a)
    emit(a, dma_w(2) + dma_x(1, 0) + dma_x(1, 1) + dma_w(3), vm)
    a(f"""
    global_load_ushort v{VB1}, v20, {sp(S_B1)}
    global_load_ushort v{VB2R}, v21, {sp(S_B2)}
    """)
    vm.issue("b1"); vm.issue("b2")
    ts(a, "g_dma")
    mk_srd(a, SRD_WS, S_WS, WS_SRD_SIZE)
    mk_srd(a, SRD_W2, S_W2, W_BYTES)
    mk_srd(a, SRD_OUT, S_OUT, X_BYTES)
    a(f"""
    ; flags
    v_and_b32 v16, 3, v0
    v_lshlrev_b32 v16, 2, v16
    v_add_u32 v{VFL}, {GFLAG}, v16
    v_lshlrev_b32 v16, 2, v0
    v_add_u32 v{VSIG}, {DUMMY}, v16
    s_lshl_b32 s10, s3, 2
    s_add_u32 s10, s10, {GFLAG}
    v_writelane_b32 v{VSIG}, s10, 0
    v_mov_b32 v{VCNT}, 1
    ; SEL
    v_and_b32 v16, 3, v0
    v_and_b32 v17, 1, v1
    v_xor_b32 v16, v16, v17
    v_mov_b32 v17, 0x3f803f80
    v_cmp_eq_u32 vcc, 0, v16
    v_cndmask_b32 v{SEL[0]}, 0, v17, vcc
    v_cmp_eq_u32 vcc, 2, v16
    v_cndmask_b32 v{SEL[1]}, 0, v17, vcc
    """)
    for k in range(1, 4):
        a(f"v_mov_b32 v{SEL[0]+k}, v{SEL[0]}")
        a(f"v_mov_b32 v{SEL[1]+k}, v{SEL[1]}")
    a(f"""
    ; w2 DMA lane offsets
    v_lshrrev_b32 v16, 3, v0
    v_and_b32 v17, 7, v0
    v_bfe_u32 v18, v0, 4, 1
    v_lshlrev_b32 v18, 2, v18
    v_xor_b32 v17, v17, v18
    v_mul_u32_u24 v16, 896, v16
    v_lshl_add_u32 v{VW2}, v17, 4, v16
    s_mul_i32 s10, s3, {448*896}
    s_lshl_b32 s11, s{S_DB}, 7
    s_add_u32 s10, s10, s11
    v_add_u32 v{VW2}, s10, v{VW2}
    v_add_u32 v{VW2B}, {7168-1024}, v{VW2}
    v_lshrrev_b32 v16, 1, v1
    v_bfe_u32 v17, v0, 2, 2
    v_lshl_add_u32 v18, v16, 2, v17
    v_lshlrev_b32 v18, 7, v18
    v_and_b32 v19, 1, v0
    v_lshl_add_u32 v18, v19, 3, v18
    v_add_u32 v18, s{S_WO}, v18
    v_and_b32 v19, 1, v1
    v_lshlrev_b32 v19, 1, v19
    v_bfe_u32 v20, v0, 1, 1
    v_add_u32 v19, v19, v20
    v_bfe_u32 v20, v0, 3, 1
    v_lshlrev_b32 v20, 2, v20
    v_xor_b32 v19, v19, v20
    v_lshl_add_u32 v{VT0}, v19, 4, v18
    s_lshl_b32 s12, s{S_RB}, 2
    s_lshl_b32 s13, s{S_WL}, 1
    s_add_u32 s12, s12, s13
    s_mul_i32 s12, s12, 112
    s_lshl_b32 s13, s{S_FT}, 3
    s_add_u32 s12, s12, s13
    s_lshl_b32 s13, s{S_WF}, 2
    s_add_u32 s12, s12, s13
    s_lshl_b32 s{S_HS}, s12, 10
    s_mul_i32 s12, s{S_LB}, {2*112}
    s_mul_i32 s13, s3, 28
    s_add_u32 s12, s12, s13
    s_lshl_b32 s12, s12, 10
    """)
    for i in range(7):
        a(f"s_lshl_b32 s13, s{SJ[i]}, 12")
        a(f"s_add_u32 s{SH[i]}, s12, s13")
    a("s_waitcnt lgkmcnt(0)")
    tag_calc(a)
    if opt("prio", 2): a(f"s_setprio {opt('prio', 2)}")
    ts(a, "g_init")
    vm.wait(a, ("w", 1), ("x", 0))
    a(f"ds_write_b32 v{VSIG}, v{VCNT}")
    spin_lds(a, VFV, VFL, 0, 1)
    ts(a, "g_first")
    def reads(u, ks, fb):
        s = u % NWS
        p = u >> 1; b = u & 1
        r = []
        for fbp in range(2):
            bb = FB[fb] + 4 * fbp
            o = s * WSLOT + ks * 4096
            r.append((f"ds_read_b64_tr_b16 v[{bb}:{bb+1}], v{VA[fbp]} offset:{o}", ("f", u, ks)))
            r.append((f"ds_read_b64_tr_b16 v[{bb+2}:{bb+3}], v{VA[fbp]} offset:{o + 1024}", ("f", u, ks)))
        for lbp in range(2):
            r.append((f"ds_read_b128 {vr(FB[fb] + 8 + 4*lbp)}, v{VB[b][ks]} offset:{(p % NXS)*XSLOT + lbp*4096}", ("f", u, ks)))
        return r
    def mfma(fb, k, first=False):
        fbp, lbp = k >> 1, k & 1
        c = "0" if first else vr(acc(fbp, lbp), 16)
        a(f"v_mfma_f32_32x32x16_bf16 {vr(acc(fbp,lbp),16)}, {vr(FB[fb]+4*fbp)}, {vr(FB[fb]+8+4*lbp)}, {c}")
    def smfma(fb, fbp, first=False):
        c = "0" if first else vr(S16)
        a(f"v_mfma_f32_16x16x32_bf16 {vr(S16)}, {vr(SEL[fbp])}, {vr(FB[fb]+4*fbp)}, {c}")
    emit(a, reads(0, 0, 0) + reads(0, 1, 1), vm, lg)
    STATV = 192
    AL, GA_ = STATV, STATV + 2
    SS = 196
    AE = 200
    BN = 204
    BE = [[208, 212], [216, 220]]
    KC_ = [224, 226]
    DL = [228, 230]
    C1 = 2.0 * math.sqrt(2.0 / math.pi) * LOG2E
    C2 = C1 * 0.044715
    def stat_addr():
        return [f"s_lshl_b32 s10, s{S_RB}, 7",
                f"s_lshl_b32 s12, s{S_WL}, 6",
                f"s_add_u32 s10, s10, s12",
                f"s_lshl_b32 s10, s10, 4",
                f"s_add_u32 s10, s10, {STAT_OFF}",
                f"v_lshl_add_u32 v{VW1}, v0, 4, s10"]
    def stat_load():
        return [(f"global_load_dwordx4 {vr(STATV)}, v{VW1}, {sp(S_WS)} sc1", "stat")]
    def stat_check():
        sl = a.newlabel("STP"); bk = a.newlabel("STB")
        vm.wait(a, "stat")
        a(f"""
        {bk}:
        v_xor_b32 v198, s{S_TAG}, v{STATV+1}
        v_xor_b32 v199, s{S_TAG}, v{STATV+3}
        v_or_b32 v198, v198, v199
        v_cmp_ne_u32 vcc, 0, v198
        s_cbranch_vccnz {sl}
        """)
        TAIL.append(f"""
        {sl}:
        s_sub_u32 s{S_BUD}, s{S_BUD}, 1
        s_cbranch_scc1 L_BAIL
        s_sleep 1
        global_load_dwordx4 {vr(STATV)}, v{VW1}, {sp(S_WS)} sc1
        s_waitcnt vmcnt(0)
        s_branch {bk}
        """)
    def consts_b():
        r = f"""
        v_rcp_f32 v198, v{AL}
        v_mul_f32 v232, v{AL}, v{AL}
        v_mul_f32 v{DL[0]+1}, {hx(C1)}, v{AL}
        v_cvt_pk_bf16_f32 v{BN+1}, v{GA_}, v198
        v_mul_f32 v232, v232, v{AL}
        v_lshlrev_b32 v234, 16, v{BN+1}
        v_and_b32 v233, 0xffff0000, v{BN+1}
        v_mul_f32 v{KC_[0]}, {hx(C2)}, v232
        v_sub_f32 v234, v{GA_}, v234
        v_sub_f32 v233, v198, v233
        v_cvt_pk_bf16_f32 v{BN}, v{GA_}, v234
        v_cvt_pk_bf16_f32 v{BN+2}, v233, 0
        v_mov_b32 v{DL[0]}, v198
        v_mov_b32 v{KC_[1]}, v{KC_[0]}
        v_mov_b32 v{DL[1]+1}, v{DL[0]+1}
        v_mov_b32 v{DL[1]}, v198
        v_permlane32_swap_b32 v{KC_[0]}, v{KC_[1]}
        v_permlane32_swap_b32 v{DL[0]+1}, v{DL[1]+1}
        v_permlane32_swap_b32 v{DL[0]}, v{DL[1]}
        """.strip().split("\n")
        r = [x.strip() for x in r]
        for k in range(3):
            r += [f"v_mov_b32 v{BE[0][0]+k}, v{BN+k}",
                  f"v_mov_b32 v{BE[0][1]+k}, 0",
                  f"v_mov_b32 v{BE[1][0]+k}, 0",
                  f"v_mov_b32 v{BE[1][1]+k}, v{BN+k}",
                  f"v_permlane32_swap_b32 v{BE[0][0]+k}, v{BE[0][1]+k}",
                  f"v_permlane32_swap_b32 v{BE[1][0]+k}, v{BE[1][1]+k}"]
        return r
    def consts_zero():
        return [f"v_mov_b32 v{BE[p][q]+3}, 0" for p in range(2) for q in range(2)] + [f"v_mov_b32 v{AE+3}, 0", f"v_mov_b32 v{AE+2}, v{VB1}"]
    def consts_a():
        r = [f"v_mov_b32 v{SS}, v{S16}"]
        for k in range(1, 4):
            r.append(f"v_mov_b32_dpp v{SS}, v{S16+k} quad_perm:[0,1,2,3] row_mask:{hex(1 << k)} bank_mask:0xf")
        r += [f"v_cvt_pk_bf16_f32 v{AE}, v{SS}, v{SS}",
              f"v_and_b32 v199, 0xffff0000, v{AE}",
              f"v_sub_f32 v199, v{SS}, v199",
              f"v_cvt_pk_bf16_f32 v199, v199, v199",
              f"v_and_b32 v199, 0xffff, v199",
              f"v_lshl_or_b32 v{AE+1}, v{VB1}, 16, v199"]
        return r
    VA2 = [[10, 11], [12, 13]]
    VH0, VH1 = 8, 9
    def g2_addr():
        return [f"v_mov_b32 v{VA2[0][0]}, v{VT0}",
                f"v_xor_b32 v{VA2[0][1]}, 64, v{VT0}",
                f"v_add_u32 v{VA2[1][0]}, 0x10000, v{VA2[0][0]}",
                f"v_add_u32 v{VA2[1][1]}, 0x10000, v{VA2[0][1]}",
                f"v_lshlrev_b32 v{VH0}, 4, v0",
                f"v_add_u32 v{VH1}, {112*1024}, v{VH0}"]
    H_ST = opt("hst", 11)
    w2next = [0]
    SL_FLAG, SL_CHECK, SL_SIG = opt("slf", 0), opt("slc", 2), opt("sls", 8)
    for h in range(14):
        c0, c1 = (2 * h) % 4, (2 * h + 1) % 4
        n0, n1 = (2 * h + 2) % 4, (2 * h + 3) % 4
        last = (h == 13)
        post = [[] for _ in range(12)]
        dm = []
        if h + 4 < 14: dm += dma_w(h + 4)
        if h == 0: dm += dma_x(2, 0) + dma_x(2, 1)
        elif h % 2 == 1 and (h + 5) // 2 < 7: dm += dma_x((h + 5) // 2, 0)
        elif h % 2 == 0 and (h + 4) // 2 < 7: dm += dma_x((h + 4) // 2, 1)
        if h == H_ST: dm = stat_load() + dm
        while w2next[0] < 14 and AVAIL[w2next[0]] <= h:
            dm += dma_w2(w2next[0]); w2next[0] += 1
        dg = groups(dm)
        if not last:
            post[SL_FLAG].append((f"ds_read_b32 v{VFV}, v{VFL}", "flag"))
            post[SL_CHECK].append(lambda: lg.wait(a, "flag"))
            post[SL_CHECK].append(lambda h=h: check_flag(a, VFV, VFL, h + 1))
            rn = reads(h + 1, 0, n0) + reads(h + 1, 1, n1)
            for i, r in enumerate(rn): post[SL_CHECK + 1 + i // 2].append(r)
            s0 = SL_CHECK
            for i, g in enumerate(dg):
                post[min(s0 + i, 11)] += g
            sig = []
            if h + 2 < 14:
                sig.append(lambda h=h: vm.wait(a, ("w", h + 2), ("x", (h + 2) >> 1)))
            sig.append(f"v_add_u32 v{VCNT}, 1, v{VCNT}")
            sig.append((f"ds_write_b32 v{VSIG}, v{VCNT}", "sig"))
            post[SL_SIG] += sig
            if h == H_ST - 1:
                for i, x in enumerate(stat_addr()): post[9 + i // 3].append(x)
            order = [("m", c0, 0), ("m", c0, 1), ("s", c0, 0), ("m", c0, 2), ("s", c0, 1), ("m", c0, 3),
                     ("m", c1, 0), ("s", c1, 0), ("m", c1, 1), ("s", c1, 1), ("m", c1, 2), ("m", c1, 3)]
            lg.wait(a, ("f", h, 0))
            for s, (kind, fb, k) in enumerate(order):
                if s == 6: lg.wait(a, ("f", h, 1))
                if kind == "m": mfma(fb, k, h == 0 and fb == c0)
                else: smfma(fb, k, h == 0 and s == 2)
                emit(a, post[s], vm, lg)
        else:
            lg.all(a)
            a(f"v_add_u32 v{VCNT}, 1, v{VCNT}")
            emit(a, [(f"ds_write_b32 v{VSIG}, v{VCNT}", "sig"), (f"ds_read_b32 v{VFV}, v{VFL}", "flag")], vm, lg)
            smfma(c0, 0); smfma(c0, 1); smfma(c1, 0); smfma(c1, 1)
            stat_check()
            cb = consts_zero() + consts_b() + g2_addr()
            ca = consts_a()
            fill = cb[:]
            def take(n):
                for _ in range(n):
                    if fill: a(fill.pop(0))
            mfma(c0, 0); take(6)
            lg.wait(a, "flag")
            check_flag(a, VFV, VFL, 14)
            emit(a, dg[0] + dg[1], vm, lg)
            mfma(c0, 1); take(6)
            emit(a, [(f"ds_read_b32 v{VFV}, v{VFL}", "flag")], vm, lg)
            mfma(c0, 2); take(7)
            mfma(c0, 3); take(7)
            for x in ca[:4]: a(x)
            mfma(c1, 0); take(100)
            for x in ca[4:]: a(x)
            mfma(c1, 1)
            lg.wait(a, "flag")
            check_flag(a, VFV, VFL, 15)
            r = groups(dma_w2(11) + dma_w2(12) + dma_w2(13))
            emit(a, r[0] + r[1], vm, lg)
            a(f"v_mfma_f32_32x32x16_bf16 {vr(acc(0,0),16)}, {vr(AE)}, {vr(BE[0][0])}, {vr(acc(0,0),16)}")
            emit(a, r[2] + r[3], vm, lg)
            mfma(c1, 2)
            emit(a, r[4] + r[5], vm, lg)
            a(f"v_mfma_f32_32x32x16_bf16 {vr(acc(0,1),16)}, {vr(AE)}, {vr(BE[0][1])}, {vr(acc(0,1),16)}")
            mfma(c1, 3)
            a(f"v_mfma_f32_32x32x16_bf16 {vr(acc(1,0),16)}, {vr(AE)}, {vr(BE[1][0])}, {vr(acc(1,0),16)}")
            a(f"v_mfma_f32_32x32x16_bf16 {vr(acc(1,1),16)}, {vr(AE)}, {vr(BE[1][1])}, {vr(acc(1,1),16)}")
        if h in (1, 4, 7, 10, 12): ts(a, f"g_u{h}")
    ts(a, "g_g1end")
    def trr(t):
        o = POS[t % 14] * 8192
        bs = 1 if o >= 65536 - 2048 else 0
        o -= bs * 65536
        r = []
        for db_ in range(2):
            b = W2R + 8 * (t % 14) + 4 * db_
            r.append((f"ds_read_b64_tr_b16 v[{b}:{b+1}], v{VA2[bs][db_]} offset:{o}", ("r", t)))
            r.append((f"ds_read_b64_tr_b16 v[{b+2}:{b+3}], v{VA2[bs][db_]} offset:{o+1024}", ("r", t)))
        return r
    ex = []
    def exr(t):
        g = groups(trr(t))
        g[0] = [lambda t=t: vm.wait(a, ("w2", t))] + g[0]
        return g
    ex += exr(0) + exr(1)
    for t in range(14):
        if t + 2 < 14: ex += exr(t + 2)
        g = groups(dma_w2(t + 14))
        g[0] = [lambda t=t: lg.wait(a, ("r", t))] + g[0]
        ex += g
    TT = [232, 236]
    PK = [240, 192]
    skip = opt("exskip", 1)
    pc = [0]
    def put():
        pc[0] += 1
        if ex and pc[0] % skip == 0:
            emit(a, ex.pop(0), vm, lg)
    VG1F = 1
    def flag_addr():
        a(f"""
        s_lshl_b32 s12, s{S_RB}, 1
        s_add_u32 s12, s12, s{S_WL}
        s_mul_i32 s12, s12, 28
        s_lshl_b32 s13, s{S_FT}, 1
        s_add_u32 s12, s12, s13
        s_add_u32 s12, s12, s{S_WF}
        s_lshl_b32 s12, s12, 3
        s_add_u32 s12, s12, {FL_G1}
        v_mov_b32 v2, s12
        v_mov_b32 v3, s{S_TAG}
        s_mul_i32 s12, s{S_LB}, 28
        s_mul_i32 s13, s3, 7
        s_add_u32 s12, s12, s13
        s_lshl_b32 s12, s12, 3
        s_add_u32 s12, s12, {FL_G1}
        v_min_u32 v{VG1F}, 13, v0
        v_lshl_add_u32 v{VG1F}, v{VG1F}, 2, s12
        """)
    def flag_store(grp):
        a("s_mov_b64 exec, 1")
        a(f"global_store_dword v2, v3, {sp(S_WS)} offset:{4*grp} sc1")
        vm.issue(("fl", grp))
        a("s_mov_b64 exec, -1")
    def gelu_quadrant(p, q, pk):
        A = acc(p, q)
        kc, dl = KC_[q], DL[q]
        for pp in range(0, 8, 2):
            X = [A + 2 * pp, A + 2 * pp + 2]
            for i in range(2):
                w = TT[i]; x = X[i]
                a(f"v_pk_mul_f32 v[{w}:{w+1}], v[{x}:{x+1}], v[{x}:{x+1}]")
            for i in range(2):
                w = TT[i]
                a(f"v_pk_fma_f32 v[{w}:{w+1}], v[{w}:{w+1}], v[{kc}:{kc+1}], v[{dl}:{dl+1}] op_sel:[0,0,1] op_sel_hi:[1,0,1]")
            for i in range(2):
                w = TT[i]; x = X[i]
                a(f"v_pk_mul_f32 v[{w}:{w+1}], v[{w}:{w+1}], v[{x}:{x+1}] neg_lo:[1,0] neg_hi:[1,0]")
            for i in range(2):
                w = TT[i]
                a(f"v_exp_f32 v{w}, v{w}"); put()
                a(f"v_exp_f32 v{w+1}, v{w+1}"); put()
            for i in range(2):
                w = TT[i]
                a(f"v_pk_fma_f32 v[{w}:{w+1}], v[{w}:{w+1}], v[{dl}:{dl+1}], v[{dl}:{dl+1}] op_sel:[0,0,0] op_sel_hi:[1,0,0]")
            for i in range(2):
                w = TT[i]
                a(f"v_rcp_f32 v{w}, v{w}"); put()
                a(f"v_rcp_f32 v{w+1}, v{w+1}"); put()
            for i in range(2):
                w = TT[i]; x = X[i]
                a(f"v_pk_mul_f32 v[{w}:{w+1}], v[{x}:{x+1}], v[{w}:{w+1}]")
            for i in range(2):
                w = TT[i]
                a(f"v_cvt_pk_bf16_f32 v{pk+pp+i}, v{w}, v{w+1}")
        a(f"s_add_u32 s10, s{S_HS}, {q*112*1024 + p*2048}")
        a(f"buffer_store_dwordx4 {vr(pk)}, v{VH0}, {srd(SRD_WS)}, s10 offen sc1")
        a(f"buffer_store_dwordx4 {vr(pk+4)}, v{VH0}, {srd(SRD_WS)}, s10 offen offset:1024 sc1")
        vm.issue(("h", p)); vm.issue(("h", p))
    flag_addr()
    gelu_quadrant(0, 0, PK[0])
    gelu_quadrant(0, 1, PK[1])
    ts(a, "g_q1")
    gelu_quadrant(1, 0, PK[0])
    if opt("fla", 0) == 0:
        vm.wait(a, ("h", 0)); flag_store(0)
    gelu_quadrant(1, 1, PK[1])
    while ex: emit(a, ex.pop(0), vm, lg)
    if opt("fla", 0) == 1:
        vm.wait(a, ("h", 0)); flag_store(0)
    ts(a, "g_gelu")
    a.c("---- G2")
    a(f"global_load_dword v232, v{VG1F}, {sp(S_WS)} sc1")
    vm.issue("pollA")
    a(f"""
    v_mov_b32 v200, v{VB2R}
    v_mov_b32 v201, 0
    v_mov_b32 v202, 0
    v_mov_b32 v203, 0
    v_mov_b32 v204, 0x3e80
    v_mov_b32 v205, 0
    v_mov_b32 v206, 0
    v_mov_b32 v207, 0
    v_mov_b32 v208, 0
    v_mov_b32 v209, 0
    v_mov_b32 v210, 0
    v_mov_b32 v211, 0
    v_permlane32_swap_b32 v204, v208
    v_mov_b32 v208, 0
    v_mov_b32 v212, 0x3e80
    v_permlane32_swap_b32 v208, v212
    """)
    for db_ in range(2):
        for lb_ in range(2):
            B = 204 if db_ == 0 else 208
            a(f"v_mfma_f32_32x32x16_bf16 {vr(acc(db_,lb_),16)}, v[200:203], {vr(B)}, 0")
    VO, VS_, VSL, VCV = 4, 5, 6, 7
    a(f"""
    v_and_b32 v233, 15, v0
    v_lshrrev_b32 v234, 4, v0
    s_lshl_b32 s10, s{S_LB}, 6
    s_lshl_b32 s11, s3, 4
    s_add_u32 s10, s10, s11
    v_add_u32 v235, s10, v233
    v_mul_u32_u24 v235, 896, v235
    v_lshl_add_u32 v235, v234, 4, v235
    s_lshl_b32 s11, s{S_DB}, 7
    v_add_u32 v{VO}, s11, v235
    v_lshrrev_b32 v235, 3, v0
    v_and_b32 v236, 7, v0
    s_lshl_b32 s10, s{S_DB}, 6
    s_lshl_b32 s11, s3, 4
    s_add_u32 s10, s10, s11                 ; d0 + 16w
    v_add_u32 v237, s10, v235
    v_lshlrev_b32 v237, 12, v237
    v_lshl_add_u32 v{VS_}, v236, 4, v237
    s_lshl_b32 s11, s{S_LB}, 7
    s_add_u32 s11, s11, {ST_OFF}
    v_add_u32 v{VS_}, s11, v{VS_}
    s_mul_i32 s9, s3, {G2_WREG}
    v_mul_u32_u24 v{VSL}, {G2_SSTR}, v235
    v_lshl_add_u32 v{VSL}, v236, 4, v{VSL}
    v_add_u32 v{VSL}, s9, v{VSL}
    s_lshl_b32 s11, s10, 1
    s_add_u32 s11, s11, {FL_CV}
    v_lshl_add_u32 v{VCV}, v236, 2, s11
    """)
    vm.wait(a, "pollA")
    flag_store(1)
    pa = a.newlabel("PA"); pab = a.newlabel("PAB")
    a(f"""
    {pab}:
    v_cmp_ne_u32 vcc, s{S_TAG}, v232
    s_and_b32 s10, vcc_lo, 0x1555
    s_cbranch_scc1 {pa}
    """)
    TAIL.append(f"""
    {pa}:
    s_sub_u32 s{S_BUD}, s{S_BUD}, 1
    s_cbranch_scc1 L_BAIL
    global_load_dword v232, v{VG1F}, {sp(S_WS)} sc1
    s_waitcnt vmcnt(0)
    s_branch {pab}
    """)
    ts(a, "g_pollA")
    vm2 = VM(); vm2.issue(("fl", 1))
    NH = 7
    def hload(t):
        g, m = t // 14, t % 14
        i, be = m >> 1, m & 1
        b = HB + 8 * (t % NH)
        o = (2 * g + be) * 1024
        off = f" offset:{o}" if o else ""
        a(f"buffer_load_dwordx4 {vr(b)}, v{VH0}, {srd(SRD_WS)}, s{SH[i]} offen{off} sc1")
        a(f"buffer_load_dwordx4 {vr(b+4)}, v{VH1}, {srd(SRD_WS)}, s{SH[i]} offen{off} sc1")
        vm2.issue(("h", t)); vm2.issue(("h", t))
    for t in range(NH): hload(t)
    T_PB, T_CV, T_CVC = opt("tpb", 1), opt("tcv", 18), opt("tcvc", 22)
    S_NR = 12
    for t in range(28):
        vm2.wait(a, ("h", t))
        if t == 0: lg.wait(a, ("r", 13))
        if t >= 14: lg.wait(a, ("r", t))
        for db_ in range(2):
            for lb_ in range(2):
                a(f"v_mfma_f32_32x32x16_bf16 {vr(acc(db_,lb_),16)}, {vr(W2R + 8*(t%14) + 4*db_)}, {vr(HB + 8*(t%NH) + 4*lb_)}, {vr(acc(db_,lb_),16)}")
        if t + NH == 14:
            vm2.wait(a, "pollB")
            pb = a.newlabel("PB"); pbb = a.newlabel("PBB")
            a(f"""
            {pbb}:
            v_cmp_ne_u32 vcc, s{S_TAG}, v2
            s_and_b32 s10, vcc_lo, 0x2aaa
            s_cbranch_scc1 {pb}
            """)
            TAIL.append(f"""
            {pb}:
            s_sub_u32 s{S_BUD}, s{S_BUD}, 1
            s_cbranch_scc1 L_BAIL
            global_load_dword v2, v{VG1F}, {sp(S_WS)} sc1
            s_waitcnt vmcnt(0)
            s_branch {pbb}
            """)
        if t + NH < 28: hload(t + NH)
        if t == T_PB:
            a(f"global_load_dword v2, v{VG1F}, {sp(S_WS)} sc1"); vm2.issue("pollB")
        if t < 14:
            if t == 0: vm.all(a) if False else None
            emit(a, trr(t + 14), vm, lg)
        if t == 14:
            pass
        if t == 15:
            lg.wait(a, ("r", 27))
            a(f"v_mov_b32 v{VCNT}, 100")
            emit(a, [(f"ds_write_b32 v{VSIG}, v{VCNT}", "sig")], vm, lg)
        if t == T_CV:
            a(f"global_load_dword v3, v{VCV}, {sp(S_WS)} sc1"); vm2.issue("pollCV")
        if t == T_CVC:
            vm2.wait(a, "pollCV")
            a(f"""
            v_cmp_ne_u32 vcc, s{S_TAG}, v3
            s_or_b32 s{S_NR}, vcc_lo, vcc_hi
            buffer_load_dwordx4 v[24:27], v{VS_}, {srd(SRD_WS)}, 0 offen sc1
            s_mov_b32 s11, {8*4096}
            buffer_load_dwordx4 v[28:31], v{VS_}, {srd(SRD_WS)}, s11 offen sc1
            buffer_load_dwordx4 v[16:19], v{VO}, {srd(SRD_X)}, 0 offen
            buffer_load_dwordx4 v[20:23], v{VO}, {srd(SRD_X)}, 0 offen offset:64
            """)
            for _ in range(4): vm2.issue("sx")
        if t in (6, 13, 20): ts(a, f"g_s{t}")
    emit(a, [(f"ds_read_b32 v{VFV}, v{VFL}", "flag")], vm, lg)
    ts(a, "g_g2end")
    a(f"""
    s_mul_i32 s9, s3, {G2_WREG}
    v_and_b32 v1, 31, v0
    v_mul_u32_u24 v1, {G2_PSTR}, v1
    v_lshrrev_b32 v2, 5, v0
    v_lshl_add_u32 v1, v2, 4, v1
    v_add_u32 v1, s9, v1
    s_waitcnt lgkmcnt(0)
    """)
    check_flag(a, VFV, VFL, 100)
    VS = 24
    cvs = a.newlabel("CVS"); cvb = a.newlabel("CVB")
    a(f"""
    s_cmp_lg_u32 s{S_NR}, 0
    s_cbranch_scc1 {cvs}
    {cvb}:
    """)
    TAIL.append(f"""
    {cvs}:
    s_sub_u32 s{S_BUD}, s{S_BUD}, 1
    s_cbranch_scc1 L_BAIL
    global_load_dword v3, v{VCV}, {sp(S_WS)} sc1
    s_waitcnt vmcnt(0)
    v_cmp_ne_u32 vcc, s{S_TAG}, v3
    s_cbranch_vccnz {cvs}
    buffer_load_dwordx4 v[24:27], v{VS_}, {srd(SRD_WS)}, 0 offen sc1
    s_mov_b32 s11, {8*4096}
    buffer_load_dwordx4 v[28:31], v{VS_}, {srd(SRD_WS)}, s11 offen sc1
    s_branch {cvb}
    """)
    for db_ in range(2):
        for lb_ in range(2):
            for q in range(4):
                a(f"ds_write_b128 v1, {vr(acc(db_,lb_)+4*q)} offset:{lb_*32*G2_PSTR + db_*128 + q*32}")
    a(f"""
    s_waitcnt vmcnt(0)
    ds_write_b128 v{VSL}, {vr(VS)} offset:{G2_STILE}
    ds_write_b128 v{VSL}, {vr(VS+4)} offset:{G2_STILE + 8*G2_SSTR}
    v_mov_b32 v{VCNT}, 200
    s_waitcnt lgkmcnt(0)
    ds_write_b32 v{VSIG}, v{VCNT}
    v_and_b32 v1, 15, v0
    v_lshrrev_b32 v7, 4, v0
    s_lshl_b32 s11, s3, 4
    v_add_u32 v6, s11, v1
    v_mul_u32_u24 v6, {G2_PSTR}, v6
    v_lshl_add_u32 v6, v7, 5, v6
    v_lshrrev_b32 v3, 1, v7
    v_mul_u32_u24 v3, {G2_WREG}, v3
    v_and_b32 v2, 1, v7
    v_lshlrev_b32 v2, 3, v2
    v_bfe_u32 v5, v0, 2, 2
    v_add_u32 v2, v2, v5
    v_mul_u32_u24 v2, {G2_SSTR}, v2
    v_add_u32 v3, v3, v2
    v_and_b32 v2, 3, v0
    v_lshl_add_u32 v3, v2, 3, v3
    s_lshl_b32 s11, s3, 5
    v_add_u32 v3, s11, v3
    v_add_u32 v3, {G2_STILE}, v3
    v_add_u32 v2, {2*G2_WREG}, v3
    v_add_u32 v5, {2*G2_WREG}, v6
    """)
    spin_lds(a, VFV, VFL, 0, 200)
    ts(a, "g_red")
    for k in range(2):
        for w in range(4):
            base = 6 if w < 2 else 5
            for hq in range(2):
                a(f"ds_read_b128 {vr(48+32*k+8*w+4*hq)}, v{base} offset:{(w%2)*G2_WREG + k*128 + hq*16}")
        sv = 3 if k == 0 else 2
        a(f"ds_read_b64_tr_b16 v[{112+4*k}:{113+4*k}], v{sv}")
        a(f"ds_read_b64_tr_b16 v[{114+4*k}:{115+4*k}], v{sv} offset:{4*G2_SSTR}")
    a(f"""
    s_mov_b32 s70, {hx(-LOG2E)}
    s_mov_b32 s71, {hx(-LOG2E)}
    s_mov_b32 s72, 1.0
    s_mov_b32 s73, 1.0
    """)
    for k in range(2):
        B = 48 + 32 * k
        a(f"s_waitcnt lgkmcnt({10 if k == 0 else 0})")
        for p in range(4):
            x = B + 2 * p
            t0 = 120 + 8 * (p % 2)
            a(f"""
            v_pk_add_f32 v[{x}:{x+1}], v[{x}:{x+1}], v[{x+8}:{x+9}]
            v_pk_add_f32 v[{x+16}:{x+17}], v[{x+16}:{x+17}], v[{x+24}:{x+25}]
            v_lshlrev_b32 v{t0+2}, 16, v{112+4*k+p}
            v_pk_add_f32 v[{x}:{x+1}], v[{x}:{x+1}], v[{x+16}:{x+17}]
            v_and_b32 v{t0+3}, 0xffff0000, v{112+4*k+p}
            v_pk_mul_f32 v[{t0}:{t0+1}], v[{x}:{x+1}], s[70:71]
            v_exp_f32 v{t0}, v{t0}
            v_exp_f32 v{t0+1}, v{t0+1}
            v_pk_mul_f32 v[{x}:{x+1}], v[{x}:{x+1}], v[{t0+2}:{t0+3}]
            v_pk_add_f32 v[{t0}:{t0+1}], v[{t0}:{t0+1}], s[72:73]
            v_lshlrev_b32 v{t0+4}, 16, v{16+4*k+p}
            v_rcp_f32 v{t0}, v{t0}
            v_rcp_f32 v{t0+1}, v{t0+1}
            v_and_b32 v{t0+5}, 0xffff0000, v{16+4*k+p}
            v_pk_fma_f32 v[{x}:{x+1}], v[{x}:{x+1}], v[{t0}:{t0+1}], v[{t0+4}:{t0+5}]
            v_cvt_pk_bf16_f32 v{136+4*k+p}, v{x}, v{x+1}
            """)
        a(f"buffer_store_dwordx4 {vr(136+4*k)}, v{VO}, {srd(SRD_OUT)}, 0 offen offset:{64*k}")
    a(f"""
    s_or_b32 s10, s2, s3
    s_cmp_lg_u32 s10, 0
    s_cbranch_scc1 G2_NOEP
    s_add_u32 s10, s{S_EPOCH}, 1
    v_mov_b32 v1, {FL_EPOCH}
    v_mov_b32 v2, s10
    s_mov_b64 exec, 1
    global_store_dword v1, v2, {sp(S_WS)}
    s_mov_b64 exec, -1
    G2_NOEP:
    """)
    ts(a, "g_end")

def spare_path(a):
    a.c("---- spare WG: LN")
    XA, XB_ = 16, 32
    a(f"""
    s_lshl_b32 s4, s{S_XX}, 2
    s_add_u32 s4, s4, s{S_YY}
    s_sub_u32 s4, s4, 28                    ; q
    s_lshl_b32 s5, s4, 6
    s_lshl_b32 s6, s3, 3
    s_add_u32 s5, s5, s6
    v_lshrrev_b32 v1, 4, v0                 ; qd
    v_and_b32 v2, 15, v0                    ; c
    v_lshl_add_u32 v3, v1, 1, s5            ; row A
    v_mul_u32_u24 v4, 896, v3
    v_lshl_add_u32 v4, v2, 4, v4
    v_mov_b32 v{XA+12}, 0
    v_mov_b32 v{XA+13}, 0
    v_mov_b32 v{XA+14}, 0
    v_mov_b32 v{XA+15}, 0
    v_mov_b32 v{XB_+12}, 0
    v_mov_b32 v{XB_+13}, 0
    v_mov_b32 v{XB_+14}, 0
    v_mov_b32 v{XB_+15}, 0
    v_mov_b32 v5, {SP_CNT}
    v_mov_b32 v6, 0
    ds_write_b32 v5, v6
    s_waitcnt lgkmcnt(0)
    """)
    ts(a, "p_karg")
    for i in range(3):
        a(f"global_load_dwordx4 {vr(XA+4*i)}, v4, {sp(S_X)} offset:{256*i}")
        a(f"global_load_dwordx4 {vr(XB_+4*i)}, v4, {sp(S_X)} offset:{896+256*i}")
    a(f"""
    s_mov_b32 exec_lo, 0x00ff00ff
    s_mov_b32 exec_hi, 0x00ff00ff
    global_load_dwordx4 {vr(XA+12)}, v4, {sp(S_X)} offset:768
    global_load_dwordx4 {vr(XB_+12)}, v4, {sp(S_X)} offset:{896+768}
    s_mov_b64 exec, -1
    """)
    epoch_load(a)
    if opt("wpf", 1) == 1:
        a(f"""
        s_lshl_b32 s10, s4, 3
        s_add_u32 s10, s10, s3
        s_mul_i32 s10, s10, {49*128}
        v_lshl_add_u32 v7, v0, 7, s10
        s_mov_b32 exec_lo, -1
        s_mov_b32 exec_hi, 0x1ffff
        global_load_dword v250, v7, {sp(S_W2)}
        s_mov_b64 exec, -1
        """)
    npf = 1 if opt("wpf", 1) == 1 else 0
    a(f"""
    s_lshl_b32 s10, s3, 2
    v_and_b32 v8, 7, v2
    v_lshl_add_u32 v8, v8, 2, v1
    v_add_u32 v8, s10, v8
    v_and_b32 v8, 31, v8
    v_lshlrev_b32 v8, 2, v8
    v_lshl_add_u32 v8, v2, 10, v8
    v_add_u32 v9, 16384, v8
    v_add_u32 v10, 32768, v8
    v_add_u32 v11, 49152, v8
    s_mov_b32 s12, 0x3f803f80
    v_mov_b32 v48, 0
    v_mov_b32 v49, 0
    v_mov_b32 v50, 0
    v_mov_b32 v51, 0
    v_mov_b32 v52, 0
    v_mov_b32 v53, 0
    v_mov_b32 v54, 0
    v_mov_b32 v55, 0
    s_waitcnt lgkmcnt(0)
    """)
    tag_calc(a)
    a(f"s_waitcnt vmcnt({npf})")
    ts(a, "p_x")
    for i in range(16):
        k = i & 1
        a(f"v_dot2c_f32_bf16 v{48+k}, s12, v{XA+i}")
        a(f"v_dot2c_f32_bf16 v{52+k}, s12, v{XB_+i}")
        a(f"v_dot2c_f32_bf16 v{50+k}, v{XA+i}, v{XA+i}")
        a(f"v_dot2c_f32_bf16 v{54+k}, v{XB_+i}, v{XB_+i}")
    a("""
    v_add_f32 v48, v48, v49
    v_add_f32 v50, v50, v51
    v_add_f32 v52, v52, v53
    v_add_f32 v54, v54, v55
    """)
    for m in ("quad_perm:[1,0,3,2]", "quad_perm:[2,3,0,1]", "row_half_mirror", "row_mirror"):
        for r in (48, 50, 52, 54):
            a(f"v_add_f32_dpp v{r}, v{r}, v{r} {m} row_mask:0xf bank_mask:0xf")
    rows = [dict(mean=48, var=50, m1=56, sd=57, rs=58, t=59, m2=60, v2=61), dict(mean=52, var=54, m1=62, sd=63, rs=64, t=65, m2=66, v2=67)]
    def both_(f):
        for r in rows:
            for ln in f(r).strip().split("\n"): pass
        ls = [[x.strip() for x in f(r).strip().split("\n")] for r in rows]
        for x, y in zip(*ls): a(x); a(y)
    both_(lambda r: f"""
    v_mul_f32 v{r['mean']}, {hx(1.0/448)}, v{r['mean']}
    v_mul_f32 v{r['var']}, {hx(1.0/448)}, v{r['var']}
    v_fma_f32 v{r['var']}, -v{r['mean']}, v{r['mean']}, v{r['var']}
    v_max_f32 v{r['var']}, 0, v{r['var']}
    v_cvt_pk_bf16_f32 v{r['m1']}, v{r['mean']}, v{r['mean']}
    v_cvt_pk_bf16_f32 v{r['sd']}, v{r['var']}, v{r['var']}
    v_and_b32 v{r['m1']}, 0xffff0000, v{r['m1']}
    v_and_b32 v{r['sd']}, 0xffff0000, v{r['sd']}
    v_add_f32 v{r['sd']}, {hx(1e-5)}, v{r['sd']}
    v_cvt_pk_bf16_f32 v{r['sd']}, v{r['sd']}, v{r['sd']}
    v_and_b32 v{r['sd']}, 0xffff0000, v{r['sd']}
    v_sqrt_f32 v{r['sd']}, v{r['sd']}
    v_cvt_pk_bf16_f32 v{r['sd']}, v{r['sd']}, v{r['sd']}
    v_and_b32 v{r['sd']}, 0xffff0000, v{r['sd']}
    v_rcp_f32 v{r['rs']}, v{r['sd']}
    v_sub_f32 v{r['m2']}, v{r['mean']}, v{r['m1']}
    v_mul_f32 v{r['v2']}, v{r['var']}, v{r['rs']}
    v_mul_f32 v{r['m2']}, v{r['m2']}, v{r['rs']}
    v_mul_f32 v{r['v2']}, v{r['v2']}, v{r['rs']}
    v_cvt_pk_bf16_f32 v{r['m2']}, v{r['m2']}, v{r['m2']}
    v_cvt_pk_bf16_f32 v{r['v2']}, v{r['v2']}, v{r['v2']}
    v_and_b32 v{r['m2']}, 0xffff0000, v{r['m2']}
    v_and_b32 v{r['v2']}, 0xffff0000, v{r['v2']}
    v_add_f32 v{r['v2']}, {hx(1e-5)}, v{r['v2']}
    v_cvt_pk_bf16_f32 v{r['v2']}, v{r['v2']}, v{r['v2']}
    v_and_b32 v{r['v2']}, 0xffff0000, v{r['v2']}
    v_sqrt_f32 v{r['v2']}, v{r['v2']}
    v_cvt_pk_bf16_f32 v{r['v2']}, v{r['v2']}, v{r['v2']}
    v_and_b32 v{r['v2']}, 0xffff0000, v{r['v2']}
    v_rcp_f32 v{r['v2']}, v{r['v2']}
    v_fma_f32 v{r['m2']}, v{r['m2']}, v{r['sd']}, v{r['m1']}
    v_mul_f32 v{r['v2']}, v{r['rs']}, v{r['v2']}
    """)
    A_, B_ = rows
    a(f"""
    v_cmp_eq_u32 vcc, 1, v2
    v_cndmask_b32 v68, v{A_['v2']}, v{B_['v2']}, vcc
    v_cndmask_b32 v70, v{A_['m2']}, v{B_['m2']}, vcc
    v_mov_b32 v69, s{S_TAG}
    v_sub_f32 v70, 0, v70
    v_mov_b32 v71, s{S_TAG}
    v_add_u32 v12, v3, v2
    v_lshlrev_b32 v12, 4, v12
    v_add_u32 v12, {STAT_OFF}, v12
    s_mov_b32 exec_lo, 0x00030003
    s_mov_b32 exec_hi, 0x00030003
    global_store_dwordx4 v12, v[68:71], {sp(S_WS)} sc1
    s_mov_b64 exec, -1
    v_mov_b32 v72, v{A_['rs']}
    v_mov_b32 v73, v{B_['rs']}
    v_mul_f32 v74, v{A_['m1']}, v{A_['rs']}
    v_mul_f32 v75, v{B_['m1']}, v{B_['rs']}
    v_sub_f32 v74, 0, v74
    v_sub_f32 v75, 0, v75
    """)
    ts(a, "p_stat")
    if opt("wpf", 1) == 2:
        a(f"""
        s_lshl_b32 s10, s4, 3
        s_add_u32 s10, s10, s3
        s_mul_i32 s10, s10, {49*128}
        v_lshl_add_u32 v7, v0, 7, s10
        s_mov_b32 exec_lo, -1
        s_mov_b32 exec_hi, 0x1ffff
        global_load_dword v250, v7, {sp(S_W2)}
        s_mov_b64 exec, -1
        """)
    for i in range(4):
        for j in range(4):
            ra, rb = XA + 4 * i + j, XB_ + 4 * i + j
            t = 80 + 8 * (j % 2)
            a(f"""
            v_lshlrev_b32 v{t}, 16, v{ra}
            v_lshlrev_b32 v{t+1}, 16, v{rb}
            v_and_b32 v{t+2}, 0xffff0000, v{ra}
            v_and_b32 v{t+3}, 0xffff0000, v{rb}
            v_pk_fma_f32 v[{t}:{t+1}], v[{t}:{t+1}], v[72:73], v[74:75]
            v_pk_fma_f32 v[{t+2}:{t+3}], v[{t+2}:{t+3}], v[72:73], v[74:75]
            v_cvt_pk_bf16_f32 v{t+4}, v{t}, v{t+1}
            v_cvt_pk_bf16_f32 v{t+5}, v{t+2}, v{t+3}
            ds_write2_b32 v{8+i}, v{t+4}, v{t+5} offset0:{64*j} offset1:{64*j+32}
            """)
    a(f"""
    v_lshrrev_b32 v1, 3, v0
    v_and_b32 v2, 7, v0
    s_mul_i32 s10, s3, 56
    v_add_u32 v3, s10, v1                   ; d (i'=0)
    v_lshlrev_b32 v4, 7, v3                 ; d*128
    s_mul_i32 s11, s3, 7
    v_add_u32 v5, s11, v2                   ; seg + 7w
    v_lshlrev_b32 v6, 12, v3
    v_lshl_add_u32 v6, v2, 4, v6
    s_lshl_b32 s11, s4, 7
    s_add_u32 s11, s11, {XT_OFF}
    v_add_u32 v6, s11, v6
    """)
    for i in range(7):
        a(f"""
        v_add_u32 v{16+i}, {i}, v5
        v_and_b32 v{16+i}, 7, v{16+i}
        v_lshl_add_u32 v{16+i}, v{16+i}, 4, v4
        """)
    a("""
    s_waitcnt lgkmcnt(0)
    s_barrier
    """)
    for i in range(7):
        a(f"ds_read_b128 {vr(32+4*i)}, v{16+i} offset:{1024*i}")
    for i in range(7):
        a(f"s_waitcnt lgkmcnt({6-i})")
        a(f"global_store_dwordx4 v6, {vr(32+4*i)}, {sp(S_WS)} sc1")
        if i < 6: a(f"v_add_u32 v6, {8*4096}, v6")
    ts(a, "p_st")
    a(f"""
    s_lshl_b32 s10, s4, 2
    s_add_u32 s10, s10, {FL_LN}
    """)
    publish(a, SP_CNT, 8, 10, 8, 9)
    ts(a, "p_end")

PRIME = {}
def mkprime(a, y):
    p0, p1 = PRIME[y]
    a(f"v_mov_b32 v{p0}, v{y+1}")
    a(f"v_mov_b32 v{p1}, v{y+3}")
def cmul_n(a, jobs, t0=8):
    for k, (r, x, y, yp) in enumerate(jobs):
        t = t0 + 2 * k
        a(f"v_pk_mul_f32 v[{t}:{t+1}], v[{x}:{x+1}], v[{y}:{y+1}] op_sel:[0,0] op_sel_hi:[1,0]")
    for k, (r, x, y, yp) in enumerate(jobs):
        t = t0 + 2 * k
        assert yp % 2 == 0
        a(f"v_pk_fma_f32 v[{r}:{r+1}], v[{x}:{x+1}], v[{yp}:{yp+1}], v[{t}:{t+1}] op_sel:[1,0,0] op_sel_hi:[0,0,1] neg_lo:[1,0,0]")
def both(r, x, y): return [(r + 2 * c, x + 2 * c, y + 2 * c, PRIME[y][c]) for c in range(2)]
def cm(a, r, x, y): cmul_n(a, both(r, x, y))

def pair_sync(a, val, VMY, VOT, VT):
    lab = a.newlabel("PS")
    a(f"""
    v_mov_b32 v{VT}, {val}
    s_waitcnt lgkmcnt(0)
    ds_write_b32 v{VMY}, v{VT}
    {lab}:
    s_sub_u32 s{S_BUD}, s{S_BUD}, 1
    s_cbranch_scc1 L_BAIL
    ds_read_b32 v{VT}, v{VOT}
    s_waitcnt lgkmcnt(0)
    v_cmp_gt_u32 vcc, {val}, v{VT}
    s_cbranch_vccnz {lab}
    """)

KC_GA = 204
KC_SC = 228
KC_RAW = 233
def kc_path(a):
    a.c("---- KC path")
    GA, SC, RAW = KC_GA, KC_SC, KC_RAW
    a(f"""
    s_sub_u32 s5, s3, 4                     ; k
    ; zero LDS flags
    v_and_b32 v1, 31, v0
    v_lshlrev_b32 v1, 2, v1
    v_lshrrev_b32 v2, 5, v0
    v_mul_u32_u24 v2, {CH_SZ}, v2
    v_add_u32 v1, v1, v2
    v_mov_b32 v2, 0
    ds_write_b32 v1, v2 offset:{GFLAG - 65536}
    """.replace(f"ds_write_b32 v1, v2 offset:{GFLAG - 65536}", f"v_add_u32 v1, {GFLAG}, v1\n ds_write_b32 v1, v2"))
    a(f"""
    s_mul_i32 s4, s{S_XX}, 28
    s_add_u32 s4, s4, s{S_YY}               ; cp
    s_lshr_b32 s6, s5, 1                    ; ch
    s_and_b32 s7, s5, 1                     ; hh
    s_lshl_b32 s8, s4, 1
    s_add_u32 s8, s8, s6                    ; d
    s_mul_i32 s9, s6, {CH_SZ}
    s_add_u32 s9, s9, {AUX_BASE}
    s_lshl_b32 s10, s8, 9
    s_lshl_b32 s11, s7, 8
    s_add_u32 s10, s10, s11
    v_lshl_add_u32 v1, v0, 2, s10
    s_lshl_b32 s10, s4, 2
    s_waitcnt lgkmcnt(0)
    """)
    ts(a, "k_karg")
    a(f"""
    global_load_dword v{RAW}, v1, {sp(S_LOGA)}
    global_load_dword v{RAW+1}, v1, {sp(S_AIM)}
    global_load_dword v{RAW+2}, v1, {sp(S_CRE)}
    global_load_dword v{RAW+3}, v1, {sp(S_CIM)}
    s_barrier
    s_load_dword s12, {sp(S_LOGDT)}, s10
    s_load_dword s13, {sp(S_DSKIP)}, s10
    """)
    a(f"""
    s_mov_b32 s70, s4                       ; cp
    s_mov_b32 s71, s5                       ; k
    s_mov_b32 s72, s8                       ; d
    s_mov_b32 s73, s9
    s_mov_b32 s75, s7                       ; hh
    s_mov_b32 s77, s6
    """)
    epoch_load(a)
    a("s_mov_b32 s7, s75")
    mk_srd(a, SRD_WS, S_WS, WS_SRD_SIZE)
    a(f"""
    v_mov_b32 v12, 0
    s_cmp_lg_u32 s7, 0
    s_cbranch_scc1 KC_Z1
    s_mov_b64 exec, 15
    v_lshl_add_u32 v1, v0, 2, s9
    ds_write_b32 v1, v12 offset:{T0_OFF-16}
    s_mov_b64 exec, -1
    KC_Z1:
    """)
    a(f"""
    s_lshl_b32 s10, s7, 10
    s_sub_u32 s10, s10, 4
    v_lshl_add_u32 v16, v0, 3, s10
    s_add_u32 s11, s9, {T1_OFF}
    s_sub_u32 s14, s11, {4*0x4280}
    s_add_u32 s15, s11, 512
    v_cvt_f32_i32 v17, v16
    v_lshl_add_u32 v18, v16, 2, s11
    """)
    for r in range(2):
        for j in range(0, 12, 2):
            o = 512 * r + j
            g0 = GA + 12 * r + j
            a(f"""
            v_add_f32 v20, {hx(float(o))}, v17
            v_add_f32 v21, {hx(float(o+1))}, v17
            v_cvt_pk_bf16_f32 v20, v20, v21
            v_bfe_i32 v21, v20, 0, 16
            v_ashrrev_i32 v20, 16, v20
            v_lshl_add_u32 v21, v21, 2, s14
            v_lshl_add_u32 v20, v20, 2, s14
            v_add_u32 v22, {4*o}, v18
            v_add_u32 v23, {4*(o+1)}, v18
            v_med3_i32 v{g0}, v22, s15, v21
            v_med3_i32 v{g0+1}, v23, s15, v20
            """)
    a(f"""
    s_xor_b32 s10, s7, 1
    s_lshl_b32 s10, s10, 12
    s_add_u32 s11, s11, s10
    v_lshrrev_b32 v4, 4, v0                 ; g
    v_and_b32 v1, 15, v0                    ; c
    v_lshlrev_b32 v20, 4, v1
    v_lshl_add_u32 v20, v4, 2, v20
    v_lshl_add_u32 v{SC}, v20, 2, s11
    v_add_u32 v{SC}, 4, v{SC}
    v_lshlrev_b32 v20, 3, v1
    v_lshl_add_u32 v20, v4, 2, v20
    v_add_u32 v20, 257, v20
    v_lshlrev_b32 v21, 2, v1
    v_lshl_add_u32 v21, v4, 6, v21
    v_add_u32 v21, {385 - 128}, v21
    v_cmp_gt_u32 vcc, 2, v4
    v_cndmask_b32 v20, v21, v20, vcc
    v_lshl_add_u32 v{SC+1}, v20, 2, s11
    v_lshlrev_b32 v20, 1, v1
    v_lshl_add_u32 v20, v4, 6, v20
    v_add_u32 v20, 513, v20
    v_lshl_add_u32 v{SC+2}, v20, 2, s11
    s_mov_b32 s74, s11
    """)
    Z1, Z2, Z4, Z8, Z16, CHN, C2, A2S, A4S, A8S, Z256, Z512, Z1024, ST_ = 32, 36, 40, 44, 48, 52, 56, 60, 64, 68, 72, 76, 80, 84
    DT = [92, 96, 100]
    RB, RA0, RA1 = 108, 140, 172
    VMY, VOT, VT = 6, 7, 5
    VTR = 3
    VTW = [24, 25, 26, 27]
    CV = 16
    a(f"""
    s_mov_b32 s9, s73
    s_lshl_b32 s10, s7, 2
    s_add_u32 s10, s10, s9
    s_add_u32 s10, s10, {AF_OFF}
    v_mov_b32 v{VMY}, s10
    s_xor_b32 s10, s10, 4
    v_mov_b32 v{VOT}, s10
    s_mul_i32 s10, s7, {TILE_SZ}
    s_add_u32 s10, s10, s9
    v_lshl_add_u32 v{VTW[0]}, v0, 3, s10
    v_add_u32 v{VTW[1]}, {4*TROW}, v{VTW[0]}
    v_add_u32 v{VTW[2]}, {8*TROW}, v{VTW[0]}
    v_add_u32 v{VTW[3]}, {12*TROW}, v{VTW[0]}
    v_and_b32 v1, 15, v0
    v_mul_u32_u24 v{VTR}, {TROW}, v1
    v_lshrrev_b32 v4, 4, v0
    v_lshl_add_u32 v{VTR}, v4, 4, v{VTR}
    v_add_u32 v{VTR}, s10, v{VTR}
    s_waitcnt lgkmcnt(0)
    """)
    tag_calc(a)
    a(f"""
    s_lshl_b32 s10, s77, 4
    s_lshr_b32 s12, s12, s10
    s_lshl_b32 s76, s12, 16                 ; log_dt (f32 bits)
    s_lshr_b32 s13, s13, s10
    s_lshl_b32 s77, s13, 16                 ; D_skip (f32 bits)
    v_mov_b32 v1, {hx(LOG2E)}
    v_mul_f32 v4, s76, v1
    v_exp_f32 v4, v4
    """)
    bf16r(a, 4, 4)
    if opt("kprio", 0): a(f"s_setprio {opt('kprio', 0)}")
    ts(a, "k_init")
    a(f"""
    s_waitcnt vmcnt(0)
    """)
    ts(a, "k_par")
    a(f"""
    v_lshlrev_b32 v12, 16, v{RAW}
    v_and_b32 v13, 0xffff0000, v{RAW}
    v_mul_f32 v12, v12, v1
    v_mul_f32 v13, v13, v1
    v_exp_f32 v12, v12
    v_exp_f32 v13, v13
    v_cvt_pk_bf16_f32 v12, v12, v13
    v_lshlrev_b32 v14, 16, v12
    v_and_b32 v15, 0xffff0000, v12
    v_mul_f32 v14, v14, v4
    v_mul_f32 v15, v15, v4
    v_mul_f32 v14, v14, v1
    v_mul_f32 v15, v15, v1
    v_exp_f32 v14, -v14
    v_exp_f32 v15, -v15
    v_lshlrev_b32 v16, 16, v{RAW+1}
    v_and_b32 v17, 0xffff0000, v{RAW+1}
    v_mul_f32 v16, v16, v4
    v_mul_f32 v17, v17, v4
    v_mul_f32 v16, 0.15915494, v16
    v_mul_f32 v17, 0.15915494, v17
    v_rndne_f32 v18, v16
    v_rndne_f32 v19, v17
    v_sub_f32 v16, v16, v18
    v_sub_f32 v17, v17, v19
    v_cos_f32 v18, v16
    v_sin_f32 v19, v16
    v_cos_f32 v20, v17
    v_sin_f32 v21, v17
    v_mul_f32 v{Z1}, v14, v18
    v_mul_f32 v{Z1+1}, v14, v19
    v_mul_f32 v{Z1+2}, v15, v20
    v_mul_f32 v{Z1+3}, v15, v21
    v_add_f32 v4, v4, v4
    v_lshlrev_b32 v16, 16, v{RAW+2}
    v_and_b32 v17, 0xffff0000, v{RAW+2}
    v_lshlrev_b32 v18, 16, v{RAW+3}
    v_and_b32 v19, 0xffff0000, v{RAW+3}
    v_mul_f32 v{C2}, v16, v4
    v_mul_f32 v{C2+1}, v18, v4
    v_mul_f32 v{C2+2}, v17, v4
    v_mul_f32 v{C2+3}, v19, v4
    """)
    PRIME.update({Z1: (88, 90), Z2: (104, 106), Z4: (238, 240), Z8: (242, 244), Z16: (246, 248), Z256: (250, 252), Z512: (28, 30), Z1024: (254, 232)})
    mkprime(a, Z1); cm(a, Z2, Z1, Z1); mkprime(a, Z2); cm(a, Z4, Z2, Z2); mkprime(a, Z4); cm(a, Z8, Z4, Z4); mkprime(a, Z8); cm(a, Z16, Z8, Z8); mkprime(a, Z16)
    state = {"n": 0}
    def cvt(src, conj, slot):
        neg = "-" if conj else ""
        c = CV + 2 * slot
        a(f"v_cvt_pk_bf16_f32 v{c}, v{src}, {neg}v{src+1}")
        a(f"v_cvt_pk_bf16_f32 v{c+1}, v{src+2}, {neg}v{src+3}")
        return c
    def wr2(r0, c0, r1, c1):
        q = r0 // 4
        o0 = (r0 - 4 * q) * TROW // 8; o1 = (r1 - 4 * q) * TROW // 8
        assert 0 <= o0 <= 255 and 0 <= o1 <= 255
        a(f"ds_write2_b64 v{VTW[q]}, v[{c0}:{c0+1}], v[{c1}:{c1+1}] offset0:{o0} offset1:{o1}")
    def wr1(r, c):
        a(f"ds_write_b64 v{VTW[0]}, v[{c}:{c+1}] offset:{r*TROW}")
    def chain(reg, ratio, rows, conj, save=None, last_mul=False):
        pend = None
        for i, r in enumerate(rows):
            slot = (state["n"] % 4); state["n"] += 1
            c = cvt(reg, conj, slot)
            if save and r in save:
                s = save[r]
                a(f"v_mov_b64 v[{s}:{s+1}], v[{reg}:{reg+1}]")
                a(f"v_mov_b64 v[{s+2}:{s+3}], v[{reg+2}:{reg+3}]")
            if i + 1 < len(rows) or last_mul:
                cm(a, reg, reg, ratio)
            if pend is None:
                if i + 1 < len(rows) and rows[i + 1] // 4 == r // 4 and abs(rows[i + 1] - r) * TROW // 8 <= 255:
                    pend = (r, c)
                else:
                    wr1(r, c)
            else:
                wr2(pend[0], pend[1], r, c); pend = None
        assert pend is None
    def rd(dest):
        for kk in range(8):
            a(f"ds_read_b128 {vr(dest+4*kk)}, v{VTR} offset:{64*kk}")
    def mm(dt, A):
        for kk in range(8):
            c = "0" if kk == 0 else vr(DT[dt])
            a(f"v_mfma_f32_16x16x32_bf16 {vr(DT[dt])}, {vr(A+4*kk)}, {vr(RB+4*kk)}, {c}")
    a(f"""
    v_mov_b32 v{CV+6}, 0x3f80
    v_mov_b32 v{CV+7}, 0x3f80
    v_mov_b64 v[{CHN}:{CHN+1}], v[{Z16}:{Z16+1}]
    v_mov_b64 v[{CHN+2}:{CHN+3}], v[{Z16+2}:{Z16+3}]
    """)
    wr1(0, CV + 6)
    state["n"] = 0
    chain(CHN, Z16, [1], True, last_mul=True)
    chain(CHN, Z16, list(range(2, 16)), True, last_mul=True)
    rd(RB)
    a(f"v_mov_b64 v[{Z256}:{Z256+1}], v[{CHN}:{CHN+1}]")
    a(f"v_mov_b64 v[{Z256+2}:{Z256+3}], v[{CHN+2}:{CHN+3}]")
    mkprime(a, Z256)
    ts(a, "k_b")
    cm(a, CHN, C2, Z1)
    chain(CHN, Z1, list(range(16)), False, save={1: A2S, 3: A4S, 7: A8S})
    rd(RA0)
    cm(a, Z512, Z256, Z256)
    mkprime(a, Z512)
    cm(a, CHN, A2S, Z256)
    cm(a, Z1024, Z512, Z512)
    mkprime(a, Z1024)
    cm(a, ST_, A4S, Z512)
    chain(CHN, Z2, list(range(8)), False)
    a("s_waitcnt lgkmcnt(4)")
    mm(0, RA0)
    cm(a, CHN, ST_, Z256)
    chain(ST_, Z4, list(range(8, 12)), False)
    chain(CHN, Z4, list(range(12, 16)), False)
    rd(RA1)
    cm(a, CHN, A8S, Z1024)
    cm(a, ST_, CHN, Z8)
    VLN = 2
    a(f"""
    v_and_b32 v{VLN}, 31, v0
    v_lshlrev_b32 v{VLN}, 2, v{VLN}
    v_add_u32 v{VLN}, {FL_LN}, v{VLN}
    global_load_dword v237, v{VLN}, {sp(S_WS)} sc1
    """)
    def a2():
        for tau in range(4):
            c0 = cvt(CHN, False, (2 * tau) % 4)
            c1 = cvt(ST_, False, (2 * tau + 1) % 4)
            if tau < 3:
                cmul_n(a, both(CHN, CHN, Z256) + both(ST_, ST_, Z256))
            wr2(2 * tau, c0, 2 * tau + 1, c1)
        c = cvt(C2, False, 0)
        wr1(8, c)
    a2()
    rd(RA0)
    a("s_waitcnt lgkmcnt(8)")
    mm(1, RA1)
    a("s_waitcnt lgkmcnt(0)")
    mm(2, RA0)
    ts(a, "k_kgen")
    UR = RA1
    lns = a.newlabel("LNS"); lnb = a.newlabel("LNB")
    a(f"""
    s_waitcnt vmcnt(0)
    {lnb}:
    v_cmp_ne_u32 vcc, s{S_TAG}, v237
    s_cbranch_vccnz {lns}
    s_lshl_b32 s10, s72, 12
    s_lshl_b32 s11, s7, 11
    s_add_u32 s10, s10, s11
    s_add_u32 s10, s10, {XT_OFF}
    v_lshlrev_b32 v1, 4, v0
    buffer_load_dwordx4 {vr(UR)}, v1, {srd(SRD_WS)}, s10 offen sc1
    buffer_load_dwordx4 {vr(UR+4)}, v1, {srd(SRD_WS)}, s10 offen offset:1024 sc1
    """)
    TAIL.append(f"""
    {lns}:
    s_sub_u32 s{S_BUD}, s{S_BUD}, 1
    s_cbranch_scc1 L_BAIL
    s_sleep 1
    global_load_dword v237, v{VLN}, {sp(S_WS)} sc1
    s_waitcnt vmcnt(0)
    s_branch {lnb}
    """)
    ts(a, "k_ln")
    a(f"""
    ds_write_b128 v{SC}, {vr(DT[0])}
    ds_write_b128 v{SC+1}, {vr(DT[1])}
    s_mov_b32 exec_lo, -1
    s_mov_b32 exec_hi, 0
    ds_write2_b64 v{SC+2}, v[{DT[2]}:{DT[2]+1}], v[{DT[2]+2}:{DT[2]+3}] offset0:0 offset1:16
    s_mov_b32 exec_lo, 0
    s_mov_b32 exec_hi, 1
    v_mov_b32 v1, s74
    ds_write_b32 v1, v{DT[2]}
    s_mov_b64 exec, -1
    v_mov_b32 v12, 0
    v_mov_b32 v13, 0
    v_mov_b32 v14, 0
    v_mov_b32 v15, 0
    s_cmp_eq_u32 s7, 0
    s_cbranch_scc1 KC_Z2
    v_lshl_add_u32 v1, v0, 2, s74
    s_mov_b64 exec, 15
    v_subrev_u32 v1, 16, v1
    ds_write_b32 v1, v12
    s_mov_b64 exec, 0x3fffffff
    v_lshl_add_u32 v1, v0, 4, s9
    ds_write_b128 v1, v[12:15] offset:{U_PAD}
    s_mov_b64 exec, -1
    KC_Z2:
    """)
    pair_sync(a, 1, VMY, VOT, VT)
    ts(a, "k_tab")
    for r in range(2):
        G = 32 + 24 * r
        for j in range(12):
            a(f"ds_read2st64_b32 v[{G+2*j}:{G+2*j+1}], v{GA+12*r+j} offset0:0 offset1:16")
    a(f"""
    s_lshl_b32 s10, s7, 11
    s_add_u32 s10, s10, s9
    s_add_u32 s10, s10, 32
    v_lshl_add_u32 v2, v0, 4, s10
    v_add_u32 v3, {2*CSTR}, v2
    s_waitcnt lgkmcnt(0)
    """)
    for r in range(2):
        G = 32 + 24 * r
        P = 80 + 16 * r
        p = lambda k: {0: P+8, 1: P+4, 2: P+0, 3: P+1, 4: P+2, 5: P+3}[k]
        for j in range(12):
            a(f"v_add_f32 v{G+2*j}, v{G+2*j}, v{G+2*j+1}")
        for k in range(6):
            a(f"v_cvt_pk_bf16_f32 v{p(k)}, v{G+4*k}, v{G+4*k+2}")
        a(f"""
        v_mov_b32 v{P+5}, v{p(2)}
        v_mov_b32 v{P+6}, v{p(3)}
        v_mov_b32 v{P+7}, v{p(4)}
        v_alignbit_b32 v120, v{p(2)}, v{p(1)}, 16
        v_alignbit_b32 v121, v{p(3)}, v{p(2)}, 16
        v_alignbit_b32 v122, v{p(4)}, v{p(3)}, 16
        v_alignbit_b32 v123, v{p(5)}, v{p(4)}, 16
        v_alignbit_b32 v124, v{p(1)}, v{p(0)}, 16
        v_mov_b32 v125, v120
        v_mov_b32 v126, v121
        v_mov_b32 v127, v122
        ds_write_b128 v2, v[{P}:{P+3}] offset:{1024*r}
        ds_write_b128 v2, v[120:123] offset:{1024*r + CSTR}
        ds_write_b128 v3, v[{P+4}:{P+7}] offset:{1024*r}
        ds_write_b128 v3, v[124:127] offset:{1024*r + CSTR}
        """)
    a(f"""
    s_cmp_lg_u32 s7, 0
    s_cbranch_scc1 KC_Z3
    v_lshrrev_b32 v1, 1, v0
    v_mul_u32_u24 v1, {CSTR}, v1
    v_and_b32 v4, 1, v0
    v_lshl_add_u32 v1, v4, 4, v1
    v_add_u32 v1, s9, v1
    v_mov_b32 v12, 0
    v_mov_b32 v13, 0
    v_mov_b32 v14, 0
    v_mov_b32 v15, 0
    s_mov_b64 exec, 0xff
    ds_write_b128 v1, v[12:15]
    s_mov_b64 exec, -1
    KC_Z3:
    """)
    VA_, VB_ = 2, 3
    BR, AR, CACC = 32, 64, 80
    pair_sync(a, 2, VMY, VOT, VT)
    ts(a, "k_cop")
    a(f"""
    s_lshl_b32 s10, s7, 11
    s_add_u32 s10, s10, s9
    v_lshl_add_u32 v1, v0, 4, s10
    s_waitcnt vmcnt(0)
    ds_write_b128 v1, {vr(UR)} offset:{U_OFF}
    ds_write_b128 v1, {vr(UR+4)} offset:{U_OFF+1024}
    v_lshrrev_b32 v4, 4, v0
    v_bfe_u32 v8, v0, 2, 2
    v_mul_u32_u24 v8, {CSTR}, v8
    v_and_b32 v9, 3, v0
    v_lshl_add_u32 v8, v9, 3, v8
    v_lshrrev_b32 v9, 1, v4
    v_and_b32 v10, 1, v4
    v_lshlrev_b32 v11, 5, v9
    v_lshlrev_b32 v12, 4, v10
    v_add_u32 v8, v8, v11
    v_sub_u32 v8, v8, v12
    s_lshl_b32 s10, s7, 8
    s_add_u32 s14, s10, s9
    s_add_u32 s14, s14, {32 - 8}
    v_add_u32 v{VA_}, s14, v8
    v_and_b32 v8, 15, v0
    v_lshlrev_b32 v8, 5, v8
    v_sub_u32 v8, v8, v11
    v_add_u32 v8, v8, v12
    s_sub_u32 s14, s9, s10
    s_add_u32 s14, s14, {U_OFF}
    v_add_u32 v{VB_}, s14, v8
    """)
    for i in range(32):
        a(f"v_mov_b32 v{CACC+i}, 0")
    pair_sync(a, 3, VMY, VOT, VT)
    ts(a, "k_u")
    def ldA(P):
        buf = AR + 4 * (P % 4)
        off = 512 * (P % 8) + (64 if P >= 8 else 0)
        a(f"ds_read_b64_tr_b16 v[{buf}:{buf+1}], v{VA_} offset:{off+8}")
        a(f"ds_read_b64_tr_b16 v[{buf+2}:{buf+3}], v{VA_} offset:{off}")
    for s in range(7, -1, -1):
        a(f"ds_read_b128 {vr(BR+4*s)}, v{VB_} offset:{512*s}")
    for P in range(3):
        ldA(P)
    a(f"""
    v_subrev_u32 v{VB_}, 64, v{VB_}
    s_mov_b32 s10, 4
    s_waitcnt lgkmcnt(0)
    CONV_LOOP:
    """)
    for P in range(8):
        a("s_waitcnt lgkmcnt(7)")
        ldA(P + 3)
        first = True
        for s in range(7 - P, -1, -1):
            if P == 0 and s <= 2:
                a(f"s_waitcnt lgkmcnt({3*(s+1)})")
            a(f"v_mfma_f32_16x16x32_bf16 {vr(CACC+4*(P+s))}, {vr(AR+4*(P%4))}, {vr(BR+4*s)}, {vr(CACC+4*(P+s))}")
            if first:
                a(f"ds_read_b128 {vr(BR+4*s)}, v{VB_} offset:{512*s}")
                first = False
    a(f"""
    v_add_u32 v{VA_}, 64, v{VA_}
    v_subrev_u32 v{VB_}, 64, v{VB_}
    s_sub_u32 s10, s10, 1
    s_cmp_lg_u32 s10, 0
    s_cbranch_scc1 CONV_LOOP
    """)
    ts(a, "k_conv")
    pair_sync(a, 4, VMY, VOT, VT)
    a(f"""
    s_lshl_b32 s10, s7, 12
    s_add_u32 s10, s10, s9
    v_lshl_add_u32 v2, v0, 4, s10
    v_xor_b32 v3, 4096, v2
    s_cmp_lg_u32 s7, 0
    s_cbranch_scc1 KC_X1
    """)
    assert AUX_BASE % 8192 == 0 and CH_SZ % 8192 == 0
    for t in range(4):
        a(f"ds_write_b128 v2, {vr(CACC+16+4*t)} offset:{1024*t}")
    a("s_branch KC_X2")
    a.label("KC_X1")
    for t in range(4):
        a(f"ds_write_b128 v2, {vr(CACC+4*t)} offset:{1024*t}")
    for i in range(0, 16, 2):
        a(f"v_mov_b64 v[{CACC+i}:{CACC+i+1}], v[{CACC+16+i}:{CACC+17+i}]")
    a.label("KC_X2")
    a(f"""
    v_and_b32 v8, 15, v0
    v_lshlrev_b32 v8, 5, v8
    v_lshrrev_b32 v4, 4, v0
    v_lshl_add_u32 v8, v4, 3, v8
    s_lshl_b32 s10, s7, 11
    v_add_u32 v8, s10, v8
    s_add_u32 s14, s9, {U_OFF}
    v_add_u32 v9, s14, v8
    """)
    for t in range(4):
        a(f"ds_read_b64 v[{48+2*t}:{49+2*t}], v9 offset:{512*t}")
    pair_sync(a, 5, VMY, VOT, VT)
    for t in range(4):
        a(f"ds_read_b128 {vr(32+4*t)}, v3 offset:{1024*t}")
    a(f"""
    s_lshl_b32 s10, s72, 12
    s_add_u32 s10, s10, {ST_OFF}
    v_mov_b32 v10, s77
    v_mov_b32 v11, s77
    """)
    for t in range(4):
        A = CACC + 4 * t; X = 48 + 2 * t; Pp = 32 + 4 * t
        a(f"""
        v_lshlrev_b32 v12, 16, v{X}
        v_and_b32 v13, 0xffff0000, v{X}
        v_lshlrev_b32 v14, 16, v{X+1}
        v_and_b32 v15, 0xffff0000, v{X+1}
        v_pk_fma_f32 v[{A}:{A+1}], v[12:13], v[10:11], v[{A}:{A+1}]
        v_pk_fma_f32 v[{A+2}:{A+3}], v[14:15], v[10:11], v[{A+2}:{A+3}]
        s_waitcnt lgkmcnt({3-t})
        v_pk_add_f32 v[{A}:{A+1}], v[{A}:{A+1}], v[{Pp}:{Pp+1}]
        v_pk_add_f32 v[{A+2}:{A+3}], v[{A+2}:{A+3}], v[{Pp+2}:{Pp+3}]
        v_cvt_pk_bf16_f32 v{24+2*(t%2)}, v{A}, v{A+1}
        v_cvt_pk_bf16_f32 v{25+2*(t%2)}, v{A+2}, v{A+3}
        buffer_store_dwordx2 v[{24+2*(t%2)}:{25+2*(t%2)}], v8, {srd(SRD_WS)}, s10 offen offset:{512*t} sc1
        """)
    ts(a, "k_st")
    a(f"""
    s_lshl_b32 s10, s70, 2
    s_add_u32 s10, s10, {FL_CV}
    """)
    publish(a, CNT_CV, 4, 10, 8, 9)
    ts(a, "k_end")

def build():
    a = Asm()
    a.label("L_START")
    prologue(a)
    g_path(a)
    ts_dump(a)
    a("s_branch L_END")
    a.label("R_KC")
    kc_path(a)
    ts_dump(a)
    a("s_branch L_END")
    a.label("R_SPARE")
    spare_path(a)
    ts_dump(a)
    a("s_branch L_END")
    for t in TAIL: a(t)
    return a

def finish(a, name, vgpr=256):
    lines, npad = pad_hazards(a.lines)
    body = "\n".join(("    " + l if not l.endswith(":") else l) for l in lines)
    body = body.replace("L_END", f"{name}_END").replace("L_BAIL", f"{name}_BAIL")
    hdr = open(f"cdna_kernels/{NAME}.s.ref").read().split("; Override launch")[0].rstrip("\n")
    txt = f"""{hdr}
; @launch grid=(256,1,1) block=(512,1,1) lds=163840
.amdgcn_target "amdgcn-amd-amdhsa--gfx950"
.text
.globl {name}
.p2align 8
.type {name},@function
{name}:
{body}
{name}_BAIL:
    s_mov_b64 exec, 1
    v_mov_b32 v1, 0
    v_mov_b32 v2, s2
    v_lshl_or_b32 v2, v2, 4, s3
    v_or_b32 v2, 0xbad00000, v2
    global_store_dword v1, v2, s[42:43]
    s_waitcnt vmcnt(0)
{name}_END:
    s_endpgm
L_CODE_END:
.section .rodata,"a"
.p2align 6
.amdhsa_kernel {name}
  .amdhsa_next_free_vgpr {vgpr}
  .amdhsa_next_free_sgpr 102
  .amdhsa_accum_offset {vgpr}
  .amdhsa_group_segment_fixed_size 0
  .amdhsa_kernarg_size 120
  .amdhsa_user_sgpr_count 2
  .amdhsa_user_sgpr_kernarg_segment_ptr 1
  .amdhsa_system_sgpr_workgroup_id_x 1
.end_amdhsa_kernel
"""
    print(f"{len(lines)} lines, {npad} nops", file=sys.stderr)
    if TS_ON: print("TSMAP", TSMAP, file=sys.stderr)
    return txt

if __name__ == "__main__":
    out = sys.argv[1]
    if len(sys.argv) > 2 and sys.argv[2] == "ts": TS_ON = True
    a = build()
    open(out, "w").write(finish(a, NAME + "_kernel"))
    if TS_ON:
        import json
        json.dump(TSMAP, open(out + ".tsmap", "w"))
```

```python
import sys, math, struct, os
sys.path.insert(0, "gen")
from asmlib import Asm, pad_hazards

NAME = "recurrent_scan__ssm_conv_s4d__mixer_channel_mlp__prompt"
L, D, N, F = 2048, 448, 256, 1792
H_OFF, XT_OFF, ST_OFF, FLAG_OFF = 0, 0x700000, 0x8C0000, 0xA80000
FL_LN, FL_G1, FL_CV, FL_EPOCH = FLAG_OFF, FLAG_OFF + 0x1000, FLAG_OFF + 0x3000, FLAG_OFF + 0x3800
STAT_OFF = FLAG_OFF + 0x4000
TS_OFF = 0xE00000
WS_SRD_SIZE = 0x1000000
X_BYTES = L * D * 2
W_BYTES = D * F * 2
LOG2E = math.log2(math.e)

def f2u(x): return struct.unpack("<I", struct.pack("<f", x))[0]
def hx(x): return hex(f2u(x))

S_X, S_LOGA, S_AIM, S_CRE, S_CIM, S_LOGDT, S_DSKIP, S_BX, S_W1, S_B1, S_W2, S_B2, S_OUT, S_DBG, S_WS = \
    16, 18, 20, 22, 24, 26, 28, 30, 32, 34, 36, 38, 40, 42, 44
S_EPOCH, S_TAG = 46, 47
SRD_W1, SRD_X, SRD_WS, SRD_OUT, SRD_W2 = 48, 52, 56, 60, 64
S_BUD = 69
S_XX, S_YY = 78, 79

def sp(b): return f"s[{b}:{b+1}]"
def srd(b): return f"s[{b}:{b+3}]"
def vr(b, n=4): return f"v[{b}:{b+n-1}]" if n > 1 else f"v{b}"

WSLOT = 8192; NWS = 6
XBASE = 49152; XSLOT = 16384; NXS = 4
AUX_BASE = 114688
CH_SZ = 24576
TILE_SZ = 8704; TROW = 544
CSTR = 4160
U_OFF = 17376; U_PAD = U_OFF - 480
T1_OFF = U_OFF + 28
T0_OFF = T1_OFF + 4096
FREE = 24064
GFLAG = AUX_BASE + FREE
CNT_CV = GFLAG + 24
AF_OFF = FREE + 64
DUMMY = AUX_BASE + CH_SZ + FREE + 256
G2_PSTR = 272; G2_WREG = 28672; G2_STILE = 17408; G2_SSTR = 144
SP_CNT = 65536 + 64

OPT = dict(kv.split("=") for kv in os.environ.get("G4OPT", "").split(",") if kv)
def opt(k, d): return int(OPT.get(k, d))

TS_ON = False
TSSEL = os.environ.get("TSSEL", "")
TSMAP = {"g": [], "k": [], "p": []}
def ts(a, name):
    if not TS_ON: return
    if TSSEL and name not in TSSEL.split(","): return
    lst = TSMAP[name[0]]
    lst.append(name)
    i = len(lst)
    assert i <= 29
    a(f"s_memtime s[98:99]")
    a("s_waitcnt lgkmcnt(0)")
    a(f"v_writelane_b32 v255, s98, {i}")
def ts_dump(a):
    if not TS_ON: return
    a(f"""
    s_memrealtime s[94:95]
    s_waitcnt lgkmcnt(0)
    v_writelane_b32 v255, s96, 0
    v_writelane_b32 v255, s100, 30
    v_writelane_b32 v255, s94, 31
    s_lshl_b32 s94, s2, 3
    s_add_u32 s94, s94, s3
    s_lshl_b32 s94, s94, 7
    s_add_u32 s94, s94, {TS_OFF}
    v_mbcnt_lo_u32_b32 v1, -1, 0
    v_lshl_add_u32 v1, v1, 2, s94
    s_mov_b64 exec, 0xffffffff
    global_store_dword v1, v255, {sp(S_WS)}
    s_mov_b64 exec, -1
    s_waitcnt vmcnt(0)
    """)

class Cnt:
    def __init__(self, name, mx): self.ops = []; self.name = name; self.mx = mx
    def issue(self, tag): self.ops.append(tag)
    def left(self, *tags):
        idx = max(i for i, t in enumerate(self.ops) if t in tags)
        return len(self.ops) - 1 - idx
    def wait(self, a, *tags):
        n = self.left(*tags)
        a(f"s_waitcnt {self.name}({min(n, self.mx)})")
    def all(self, a):
        a(f"s_waitcnt {self.name}(0)")
def VM(): return Cnt("vmcnt", 63)
def LG(): return Cnt("lgkmcnt", 15)

def mk_srd(a, dst, base, size):
    a(f"""
    s_mov_b32 s{dst}, s{base}
    s_mov_b32 s{dst+1}, s{base+1}
    s_mov_b32 s{dst+2}, {hex(size)}
    s_mov_b32 s{dst+3}, 0x00020000
    """)

def bf16r(a, dst, src):
    a(f"v_cvt_pk_bf16_f32 v{dst}, v{src}, v{src}")
    a(f"v_and_b32 v{dst}, 0xffff0000, v{dst}")

def budget(a):
    a(f"s_sub_u32 s{S_BUD}, s{S_BUD}, 1")
    a("s_cbranch_scc1 L_BAIL")

TAIL = []
def spin_lds(a, tmp, addr_v, off, target):
    lab = a.newlabel("SPIN")
    a(f"{lab}:")
    budget(a)
    a(f"""
    ds_read_b32 v{tmp}, v{addr_v} offset:{off}
    s_waitcnt lgkmcnt(0)
    v_cmp_gt_u32 vcc, {target}, v{tmp}
    s_cbranch_vccnz {lab}
    """)

def check_flag(a, vval, vaddr, target):
    s = a.newlabel("CF"); b = a.newlabel("CFB")
    a(f"v_cmp_gt_u32 vcc, {target}, v{vval}")
    a(f"s_cbranch_vccnz {s}")
    a(f"{b}:")
    TAIL.append(f"""
    {s}:
    s_sub_u32 s{S_BUD}, s{S_BUD}, 1
    s_cbranch_scc1 L_BAIL
    ds_read_b32 v{vval}, v{vaddr}
    s_waitcnt lgkmcnt(0)
    v_cmp_gt_u32 vcc, {target}, v{vval}
    s_cbranch_vccnz {s}
    s_branch {b}
    """)

def publish(a, cnt_addr, nwaves, flag_off_s, vt0, vt1):
    lab = a.newlabel("PUB")
    a(f"""
    s_waitcnt vmcnt(0)
    v_mov_b32 v{vt0}, {cnt_addr}
    v_mov_b32 v{vt1}, 1
    s_mov_b64 exec, 1
    ds_add_rtn_u32 v{vt1}, v{vt0}, v{vt1}
    s_waitcnt lgkmcnt(0)
    v_cmp_eq_u32 vcc, {nwaves-1}, v{vt1}
    s_cbranch_vccz {lab}
    v_mov_b32 v{vt0}, s{flag_off_s}
    v_mov_b32 v{vt1}, s{S_TAG}
    global_store_dword v{vt0}, v{vt1}, {sp(S_WS)} sc1
    {lab}:
    s_mov_b64 exec, -1
    """)

def epoch_load(a):
    a(f"""
    s_add_u32 s6, s{S_WS}, {FL_EPOCH}
    s_addc_u32 s7, s{S_WS+1}, 0
    s_load_dword s{S_EPOCH}, s[6:7], 0
    """)
def tag_calc(a):
    a(f"""
    s_mul_i32 s{S_TAG}, s{S_EPOCH}, 0x9E3779B1
    s_add_u32 s{S_TAG}, s{S_TAG}, 0x7F4A7C15
    """)

def prologue(a):
    if TS_ON:
        a("s_memtime s[96:97]")
        a("s_memrealtime s[100:101]")
    a(f"""
    s_load_dwordx2 s[{SRD_W1}:{SRD_W1+1}], s[0:1], 64
    s_load_dwordx2 s[{SRD_X}:{SRD_X+1}], s[0:1], 0
    s_load_dwordx16 s[16:31], s[0:1], 0
    s_load_dwordx8 s[32:39], s[0:1], 64
    s_load_dwordx4 s[40:43], s[0:1], 96
    s_load_dwordx2 s[44:45], s[0:1], 112
    v_lshrrev_b32 v1, 6, v0
    v_and_b32 v0, 63, v0
    s_cmp_ge_u32 s2, 256
    v_readfirstlane_b32 s3, v1
    s_cbranch_scc1 L_END
    s_and_b32 s{S_XX}, s2, 7
    s_lshr_b32 s{S_YY}, s2, 3
    s_mov_b32 s{S_BUD}, 0x40000
    """)
    if opt("cpf", 1):
        a(f"""
        s_cmp_lg_u32 s3, 7
        s_cbranch_scc1 L_NOPF
        s_getpc_b64 s[14:15]
        L_PC:
        s_lshl_b32 s10, s{S_YY}, 7
        v_lshl_add_u32 v2, v0, 12, s10
        s_sub_u32 s14, s14, (L_PC - L_START)
        s_subb_u32 s15, s15, 0
        v_min_u32 v2, (L_CODE_END - L_START - 4), v2
        v_mov_b32 v3, s15
        v_add_co_u32 v2, vcc, s14, v2
        v_addc_co_u32 v3, vcc, 0, v3, vcc
        global_load_dword v251, v[2:3], off
        L_NOPF:
        """)
    a(f"""
    s_cmp_ge_u32 s{S_YY}, 28
    s_cbranch_scc1 R_SPARE
    s_cmp_ge_u32 s3, 4
    s_cbranch_scc1 R_KC
    """)

VW1, VW1B = 2, 3
VX = [4, 5, 6, 7]
VA = [8, 9]
VB = [[10, 11], [12, 13]]
VSIG, VCNT = 14, 15
VFL, VFV, VB1, VB2R, VW2, VW2B, VT0 = 248, 249, 250, 251, 252, 253, 254
FB = [16, 32, 48, 64]
SEL = [80, 84]; S16 = 88
ACC = 128
W2R = 16
HB = 192
S_RB, S_FT, S_LB, S_DB = 70, 71, 72, 73
S_WO, S_XO, S_HS = 74, 75, 76
S_WF, S_WL = 77, 68
SJ = [80 + i for i in range(7)]
SH = [87 + i for i in range(7)]
POS = [12, 13, 2, 6, 7, 3, 4, 5, 8, 9, 0, 1, 10, 11]
AVAIL = [8, 8, 9, 10, 10, 10, 11, 12, 12, 12, 13, 14, 14, 14]
def acc(p, q): return ACC + 16 * (2 * p + q)

def dma_w(u):
    r = []
    if u % 2 == 0: r.append(f"s_mul_i32 s8, s{SJ[u >> 1]}, {64*3584}")
    else: r.append(f"s_add_u32 s8, s8, {32*3584}")
    r.append(f"s_add_u32 m0, s{S_WO}, {(u % NWS) * WSLOT}")
    r.append((f"buffer_load_dwordx4 v{VW1}, {srd(SRD_W1)}, s8 offen lds", ("w", u)))
    r.append((f"buffer_load_dwordx4 v{VW1B}, {srd(SRD_W1)}, s8 offen offset:1024 lds", ("w", u)))
    return r
def dma_x(p, half):
    r = []
    if half == 0: r.append(f"s_lshl_b32 s9, s{SJ[p]}, 7")
    r.append(f"s_add_u32 m0, s{S_XO}, {(p % NXS) * XSLOT}")
    for j in (2 * half, 2 * half + 1):
        off = f" offset:{1024*j}" if j else ""
        r.append((f"buffer_load_dwordx4 v{VX[j]}, {srd(SRD_X)}, s9 offen{off} lds", ("x", p)))
    return r
def dma_w2(t):
    g, m = t // 14, t % 14
    i, be = m >> 1, m & 1
    r = []
    r.append(f"s_mul_i32 s11, s{SJ[i]}, {4*14336}")
    o = (2 * g + be) * 14336
    if o: r.append(f"s_add_u32 s11, s11, {o}")
    r.append(f"s_add_u32 m0, s{S_WO}, {POS[m] * 8192}")
    r.append((f"buffer_load_dwordx4 v{VW2}, {srd(SRD_W2)}, s11 offen lds", ("w2", t)))
    r.append((f"buffer_load_dwordx4 v{VW2B}, {srd(SRD_W2)}, s11 offen offset:1024 lds", ("w2", t)))
    return r
def groups(items):
    out = []; cur = []
    for it in items:
        cur.append(it)
        if isinstance(it, tuple):
            out.append(cur); cur = []
    if cur: out.append(cur)
    return out
def emit(a, items, vm=None, lg=None):
    for it in items:
        if isinstance(it, tuple):
            txt, tag = it
            a(txt)
            if txt.startswith("ds_"): lg.issue(tag)
            else: vm.issue(tag)
        elif callable(it): it()
        else: a(it)

def g_path(a):
    vm = VM(); lg = LG()
    a.c("---- G init")
    a(f"""
    s_mul_i32 s6, s{S_YY}, 37
    s_lshr_b32 s6, s6, 8                    ; yq
    s_mul_i32 s7, s6, 7
    s_sub_u32 s7, s{S_YY}, s7               ; yr
    s_lshr_b32 s4, s{S_XX}, 1
    s_lshl_b32 s{S_RB}, s4, 2
    s_add_u32 s{S_RB}, s{S_RB}, s6
    s_and_b32 s5, s{S_XX}, 1
    s_mul_i32 s{S_FT}, s5, 7
    s_add_u32 s{S_FT}, s{S_FT}, s7
    s_lshl_b32 s{S_LB}, s{S_XX}, 2
    s_add_u32 s{S_LB}, s{S_LB}, s6
    s_mov_b32 s{S_DB}, s7
    s_lshl_b32 s8, s6, 1
    s_add_u32 s{SJ[0]}, s8, s7
    s_cmp_ge_u32 s{SJ[0]}, 7
    s_cselect_b32 s9, 7, 0
    s_sub_u32 s{SJ[0]}, s{SJ[0]}, s9
    s_lshl_b32 s{S_WO}, s3, 11
    s_lshl_b32 s{S_XO}, s3, 12
    s_add_u32 s{S_XO}, s{S_XO}, {XBASE}
    s_and_b32 s{S_WF}, s3, 1
    s_lshr_b32 s{S_WL}, s3, 1
    s_mov_b32 s{SRD_W1+2}, {hex(W_BYTES)}
    s_mov_b32 s{SRD_W1+3}, 0x00020000
    s_mov_b32 s{SRD_X+2}, {hex(X_BYTES)}
    s_mov_b32 s{SRD_X+3}, 0x00020000
    ; VW1
    v_lshrrev_b32 v1, 4, v0
    v_and_b32 v16, 15, v0
    v_lshlrev_b32 v17, 2, v1
    v_xor_b32 v16, v16, v17
    v_mul_u32_u24 v{VW1}, 3584, v1
    v_lshl_add_u32 v{VW1}, v16, 4, v{VW1}
    s_lshl_b32 s10, s{S_FT}, 8
    s_mul_i32 s11, s3, {8*3584}
    s_add_u32 s10, s10, s11
    v_add_u32 v{VW1}, s10, v{VW1}
    v_add_u32 v{VW1B}, {14336-1024}, v{VW1}
    ; VX
    v_and_b32 v16, 7, v0
    v_xor_b32 v16, v16, v1
    v_lshrrev_b32 v17, 3, v0
    v_mul_u32_u24 v17, 896, v17
    v_lshl_add_u32 v{VX[0]}, v16, 4, v17
    s_lshl_b32 s10, s{S_RB}, 7
    s_lshl_b32 s11, s3, 5
    s_add_u32 s10, s10, s11
    s_mul_i32 s10, s10, 896
    v_add_u32 v{VX[0]}, s10, v{VX[0]}
    v_xor_b32 v{VX[1]}, 64, v{VX[0]}
    v_add_u32 v{VX[2]}, {14336-2048}, v{VX[0]}
    v_add_u32 v{VX[3]}, {21504-3072}, v{VX[1]}
    v_add_u32 v{VX[1]}, {7168-1024}, v{VX[1]}
    """)
    for i in range(1, 7):
        a(f"""
        s_add_u32 s{SJ[i]}, s{SJ[i-1]}, 1
        s_cmp_eq_u32 s{SJ[i]}, 7
        s_cselect_b32 s{SJ[i]}, 0, s{SJ[i]}
        """)
    a(f"""
    ; b1 (f = 128ft + 64wf + lane), b2 (d = 64db + lane) offsets
    s_lshl_b32 s10, s{S_FT}, 8
    s_lshl_b32 s11, s{S_WF}, 7
    s_add_u32 s10, s10, s11
    v_lshl_add_u32 v20, v0, 1, s10
    s_lshl_b32 s10, s{S_DB}, 7
    v_lshl_add_u32 v21, v0, 1, s10
    v_lshrrev_b32 v16, 1, v1                ; hi = g>>1
    v_bfe_u32 v17, v0, 2, 2                 ; r
    v_lshl_add_u32 v18, v16, 3, v17
    v_lshlrev_b32 v18, 8, v18               ; row*256
    v_and_b32 v19, 1, v0
    v_lshl_add_u32 v18, v19, 3, v18
    v_and_b32 v19, 1, v1
    v_lshlrev_b32 v19, 1, v19
    v_bfe_u32 v22, v0, 1, 1
    v_add_u32 v19, v19, v22
    s_lshl_b32 s10, s{S_WF}, 3
    v_add_u32 v19, s10, v19
    v_lshlrev_b32 v17, 2, v17
    v_xor_b32 v22, v19, v17
    v_lshl_add_u32 v{VA[0]}, v22, 4, v18
    v_xor_b32 v{VA[1]}, 64, v{VA[0]}
    v_and_b32 v16, 31, v0
    v_lshrrev_b32 v17, 5, v0
    v_bfe_u32 v18, v0, 1, 3
    v_xor_b32 v17, v17, v18
    v_lshlrev_b32 v16, 7, v16
    v_lshl_add_u32 v16, v17, 4, v16
    s_lshl_b32 s10, s{S_WL}, 13
    s_add_u32 s10, s10, {XBASE}
    v_add_u32 v{VB[0][0]}, s10, v16
    v_xor_b32 v{VB[0][1]}, 32, v{VB[0][0]}
    v_xor_b32 v{VB[1][0]}, 64, v{VB[0][0]}
    v_xor_b32 v{VB[1][1]}, 96, v{VB[0][0]}
    s_waitcnt lgkmcnt(0)
    """)
    ts(a, "g_karg")
    emit(a, dma_w(0) + dma_x(0, 0) + dma_x(0, 1) + dma_w(1), vm)
    a("s_barrier")
    epoch_load(a)
    emit(a, dma_w(2) + dma_x(1, 0) + dma_x(1, 1) + dma_w(3), vm)
    a(f"""
    global_load_ushort v{VB1}, v20, {sp(S_B1)}
    global_load_ushort v{VB2R}, v21, {sp(S_B2)}
    """)
    vm.issue("b1"); vm.issue("b2")
    ts(a, "g_dma")
    mk_srd(a, SRD_WS, S_WS, WS_SRD_SIZE)
    mk_srd(a, SRD_W2, S_W2, W_BYTES)
    mk_srd(a, SRD_OUT, S_OUT, X_BYTES)
    a(f"""
    ; flags
    v_and_b32 v16, 3, v0
    v_lshlrev_b32 v16, 2, v16
    v_add_u32 v{VFL}, {GFLAG}, v16
    v_lshlrev_b32 v16, 2, v0
    v_add_u32 v{VSIG}, {DUMMY}, v16
    s_lshl_b32 s10, s3, 2
    s_add_u32 s10, s10, {GFLAG}
    v_writelane_b32 v{VSIG}, s10, 0
    v_mov_b32 v{VCNT}, 1
    ; SEL
    v_and_b32 v16, 3, v0
    v_and_b32 v17, 1, v1
    v_xor_b32 v16, v16, v17
    v_mov_b32 v17, 0x3f803f80
    v_cmp_eq_u32 vcc, 0, v16
    v_cndmask_b32 v{SEL[0]}, 0, v17, vcc
    v_cmp_eq_u32 vcc, 2, v16
    v_cndmask_b32 v{SEL[1]}, 0, v17, vcc
    """)
    for k in range(1, 4):
        a(f"v_mov_b32 v{SEL[0]+k}, v{SEL[0]}")
        a(f"v_mov_b32 v{SEL[1]+k}, v{SEL[1]}")
    a(f"""
    ; w2 DMA lane offsets
    v_lshrrev_b32 v16, 3, v0
    v_and_b32 v17, 7, v0
    v_bfe_u32 v18, v0, 4, 1
    v_lshlrev_b32 v18, 2, v18
    v_xor_b32 v17, v17, v18
    v_mul_u32_u24 v16, 896, v16
    v_lshl_add_u32 v{VW2}, v17, 4, v16
    s_mul_i32 s10, s3, {448*896}
    s_lshl_b32 s11, s{S_DB}, 7
    s_add_u32 s10, s10, s11
    v_add_u32 v{VW2}, s10, v{VW2}
    v_add_u32 v{VW2B}, {7168-1024}, v{VW2}
    v_lshrrev_b32 v16, 1, v1
    v_bfe_u32 v17, v0, 2, 2
    v_lshl_add_u32 v18, v16, 2, v17
    v_lshlrev_b32 v18, 7, v18
    v_and_b32 v19, 1, v0
    v_lshl_add_u32 v18, v19, 3, v18
    v_add_u32 v18, s{S_WO}, v18
    v_and_b32 v19, 1, v1
    v_lshlrev_b32 v19, 1, v19
    v_bfe_u32 v20, v0, 1, 1
    v_add_u32 v19, v19, v20
    v_bfe_u32 v20, v0, 3, 1
    v_lshlrev_b32 v20, 2, v20
    v_xor_b32 v19, v19, v20
    v_lshl_add_u32 v{VT0}, v19, 4, v18
    s_lshl_b32 s12, s{S_RB}, 2
    s_lshl_b32 s13, s{S_WL}, 1
    s_add_u32 s12, s12, s13
    s_mul_i32 s12, s12, 112
    s_lshl_b32 s13, s{S_FT}, 3
    s_add_u32 s12, s12, s13
    s_lshl_b32 s13, s{S_WF}, 2
    s_add_u32 s12, s12, s13
    s_lshl_b32 s{S_HS}, s12, 10
    s_mul_i32 s12, s{S_LB}, {2*112}
    s_mul_i32 s13, s3, 28
    s_add_u32 s12, s12, s13
    s_lshl_b32 s12, s12, 10
    """)
    for i in range(7):
        a(f"s_lshl_b32 s13, s{SJ[i]}, 12")
        a(f"s_add_u32 s{SH[i]}, s12, s13")
    a("s_waitcnt lgkmcnt(0)")
    tag_calc(a)
    if opt("prio", 2): a(f"s_setprio {opt('prio', 2)}")
    ts(a, "g_init")
    vm.wait(a, ("w", 1), ("x", 0))
    a(f"ds_write_b32 v{VSIG}, v{VCNT}")
    spin_lds(a, VFV, VFL, 0, 1)
    ts(a, "g_first")
    def reads(u, ks, fb):
        s = u % NWS
        p = u >> 1; b = u & 1
        r = []
        for fbp in range(2):
            bb = FB[fb] + 4 * fbp
            o = s * WSLOT + ks * 4096
            r.append((f"ds_read_b64_tr_b16 v[{bb}:{bb+1}], v{VA[fbp]} offset:{o}", ("f", u, ks)))
            r.append((f"ds_read_b64_tr_b16 v[{bb+2}:{bb+3}], v{VA[fbp]} offset:{o + 1024}", ("f", u, ks)))
        for lbp in range(2):
            r.append((f"ds_read_b128 {vr(FB[fb] + 8 + 4*lbp)}, v{VB[b][ks]} offset:{(p % NXS)*XSLOT + lbp*4096}", ("f", u, ks)))
        return r
    def mfma(fb, k, first=False):
        fbp, lbp = k >> 1, k & 1
        c = "0" if first else vr(acc(fbp, lbp), 16)
        a(f"v_mfma_f32_32x32x16_bf16 {vr(acc(fbp,lbp),16)}, {vr(FB[fb]+4*fbp)}, {vr(FB[fb]+8+4*lbp)}, {c}")
    def smfma(fb, fbp, first=False):
        c = "0" if first else vr(S16)
        a(f"v_mfma_f32_16x16x32_bf16 {vr(S16)}, {vr(SEL[fbp])}, {vr(FB[fb]+4*fbp)}, {c}")
    emit(a, reads(0, 0, 0) + reads(0, 1, 1), vm, lg)
    STATV = 192
    AL, GA_ = STATV, STATV + 2
    SS = 196
    AE = 200
    BN = 204
    BE = [[208, 212], [216, 220]]
    KC_ = [224, 226]
    DL = [228, 230]
    C1 = 2.0 * math.sqrt(2.0 / math.pi) * LOG2E
    C2 = C1 * 0.044715
    def stat_addr():
        return [f"s_lshl_b32 s10, s{S_RB}, 7",
                f"s_lshl_b32 s12, s{S_WL}, 6",
                f"s_add_u32 s10, s10, s12",
                f"s_lshl_b32 s10, s10, 4",
                f"s_add_u32 s10, s10, {STAT_OFF}",
                f"v_lshl_add_u32 v{VW1}, v0, 4, s10"]
    def stat_load():
        return [(f"global_load_dwordx4 {vr(STATV)}, v{VW1}, {sp(S_WS)} sc1", "stat")]
    def stat_check():
        sl = a.newlabel("STP"); bk = a.newlabel("STB")
        vm.wait(a, "stat")
        a(f"""
        {bk}:
        v_xor_b32 v198, s{S_TAG}, v{STATV+1}
        v_xor_b32 v199, s{S_TAG}, v{STATV+3}
        v_or_b32 v198, v198, v199
        v_cmp_ne_u32 vcc, 0, v198
        s_cbranch_vccnz {sl}
        """)
        TAIL.append(f"""
        {sl}:
        s_sub_u32 s{S_BUD}, s{S_BUD}, 1
        s_cbranch_scc1 L_BAIL
        s_sleep 1
        global_load_dwordx4 {vr(STATV)}, v{VW1}, {sp(S_WS)} sc1
        s_waitcnt vmcnt(0)
        s_branch {bk}
        """)
    def consts_b():
        r = f"""
        v_rcp_f32 v198, v{AL}
        v_mul_f32 v232, v{AL}, v{AL}
        v_mul_f32 v{DL[0]+1}, {hx(C1)}, v{AL}
        v_cvt_pk_bf16_f32 v{BN+1}, v{GA_}, v198
        v_mul_f32 v232, v232, v{AL}
        v_lshlrev_b32 v234, 16, v{BN+1}
        v_and_b32 v233, 0xffff0000, v{BN+1}
        v_mul_f32 v{KC_[0]}, {hx(C2)}, v232
        v_sub_f32 v234, v{GA_}, v234
        v_sub_f32 v233, v198, v233
        v_cvt_pk_bf16_f32 v{BN}, v{GA_}, v234
        v_cvt_pk_bf16_f32 v{BN+2}, v233, 0
        v_mov_b32 v{DL[0]}, v198
        v_mov_b32 v{KC_[1]}, v{KC_[0]}
        v_mov_b32 v{DL[1]+1}, v{DL[0]+1}
        v_mov_b32 v{DL[1]}, v198
        v_permlane32_swap_b32 v{KC_[0]}, v{KC_[1]}
        v_permlane32_swap_b32 v{DL[0]+1}, v{DL[1]+1}
        v_permlane32_swap_b32 v{DL[0]}, v{DL[1]}
        """.strip().split("\n")
        r = [x.strip() for x in r]
        for k in range(3):
            r += [f"v_mov_b32 v{BE[0][0]+k}, v{BN+k}",
                  f"v_mov_b32 v{BE[0][1]+k}, 0",
                  f"v_mov_b32 v{BE[1][0]+k}, 0",
                  f"v_mov_b32 v{BE[1][1]+k}, v{BN+k}",
                  f"v_permlane32_swap_b32 v{BE[0][0]+k}, v{BE[0][1]+k}",
                  f"v_permlane32_swap_b32 v{BE[1][0]+k}, v{BE[1][1]+k}"]
        return r
    def consts_zero():
        return [f"v_mov_b32 v{BE[p][q]+3}, 0" for p in range(2) for q in range(2)] + [f"v_mov_b32 v{AE+3}, 0", f"v_mov_b32 v{AE+2}, v{VB1}"]
    def consts_a():
        r = [f"v_mov_b32 v{SS}, v{S16}"]
        for k in range(1, 4):
            r.append(f"v_mov_b32_dpp v{SS}, v{S16+k} quad_perm:[0,1,2,3] row_mask:{hex(1 << k)} bank_mask:0xf")
        r += [f"v_cvt_pk_bf16_f32 v{AE}, v{SS}, v{SS}",
              f"v_and_b32 v199, 0xffff0000, v{AE}",
              f"v_sub_f32 v199, v{SS}, v199",
              f"v_cvt_pk_bf16_f32 v199, v199, v199",
              f"v_and_b32 v199, 0xffff, v199",
              f"v_lshl_or_b32 v{AE+1}, v{VB1}, 16, v199"]
        return r
    VA2 = [[10, 11], [12, 13]]
    VH0, VH1 = 8, 9
    def g2_addr():
        return [f"v_mov_b32 v{VA2[0][0]}, v{VT0}",
                f"v_xor_b32 v{VA2[0][1]}, 64, v{VT0}",
                f"v_add_u32 v{VA2[1][0]}, 0x10000, v{VA2[0][0]}",
                f"v_add_u32 v{VA2[1][1]}, 0x10000, v{VA2[0][1]}",
                f"v_lshlrev_b32 v{VH0}, 4, v0",
                f"v_add_u32 v{VH1}, {112*1024}, v{VH0}"]
    H_ST = opt("hst", 11)
    w2next = [0]
    SL_FLAG, SL_CHECK, SL_SIG = opt("slf", 0), opt("slc", 2), opt("sls", 8)
    for h in range(14):
        c0, c1 = (2 * h) % 4, (2 * h + 1) % 4
        n0, n1 = (2 * h + 2) % 4, (2 * h + 3) % 4
        last = (h == 13)
        post = [[] for _ in range(12)]
        dm = []
        if h + 4 < 14: dm += dma_w(h + 4)
        if h == 0: dm += dma_x(2, 0) + dma_x(2, 1)
        elif h % 2 == 1 and (h + 5) // 2 < 7: dm += dma_x((h + 5) // 2, 0)
        elif h % 2 == 0 and (h + 4) // 2 < 7: dm += dma_x((h + 4) // 2, 1)
        if h == H_ST: dm = stat_load() + dm
        while w2next[0] < 14 and AVAIL[w2next[0]] <= h:
            dm += dma_w2(w2next[0]); w2next[0] += 1
        if opt("nodma", 0) and h < 8: dm = []
        dg = groups(dm)
        if not last:
            post[SL_FLAG].append((f"ds_read_b32 v{VFV}, v{VFL}", "flag"))
            post[SL_CHECK].append(lambda: lg.wait(a, "flag"))
            if not opt("nosync", 0): post[SL_CHECK].append(lambda h=h: check_flag(a, VFV, VFL, h + 1))
            rn = reads(h + 1, 0, n0) + reads(h + 1, 1, n1)
            if opt("nord", 0): rn = rn[:1] + rn[6:7]
            for i, r in enumerate(rn): post[SL_CHECK + 1 + i // 2].append(r)
            s0 = SL_CHECK
            for i, g in enumerate(dg):
                post[min(s0 + i, 11)] += g
            sig = []
            if h + 2 < 14 and not (opt("nodma", 0) and h < 10) and not opt("novw", 0):
                sig.append(lambda h=h: vm.wait(a, ("w", h + 2), ("x", (h + 2) >> 1)))
            sig.append(f"v_add_u32 v{VCNT}, 1, v{VCNT}")
            sig.append((f"ds_write_b32 v{VSIG}, v{VCNT}", "sig"))
            post[SL_SIG] += sig
            if h == H_ST - 1:
                for i, x in enumerate(stat_addr()): post[9 + i // 3].append(x)
            order = [("m", c0, 0), ("m", c0, 1), ("s", c0, 0), ("m", c0, 2), ("s", c0, 1), ("m", c0, 3),
                     ("m", c1, 0), ("s", c1, 0), ("m", c1, 1), ("s", c1, 1), ("m", c1, 2), ("m", c1, 3)]
            lg.wait(a, ("f", h, 0))
            for s, (kind, fb, k) in enumerate(order):
                if s == 6: lg.wait(a, ("f", h, 1))
                if kind == "m": mfma(fb, k, h == 0 and fb == c0)
                elif not opt("nos", 0): smfma(fb, k, h == 0 and s == 2)
                emit(a, post[s], vm, lg)
        else:
            lg.all(a)
            a(f"v_add_u32 v{VCNT}, 1, v{VCNT}")
            emit(a, [(f"ds_write_b32 v{VSIG}, v{VCNT}", "sig"), (f"ds_read_b32 v{VFV}, v{VFL}", "flag")], vm, lg)
            smfma(c0, 0); smfma(c0, 1); smfma(c1, 0); smfma(c1, 1)
            stat_check()
            cb = consts_zero() + consts_b() + g2_addr()
            ca = consts_a()
            fill = cb[:]
            def take(n):
                for _ in range(n):
                    if fill: a(fill.pop(0))
            mfma(c0, 0); take(6)
            lg.wait(a, "flag")
            check_flag(a, VFV, VFL, 14)
            emit(a, dg[0] + dg[1], vm, lg)
            mfma(c0, 1); take(6)
            emit(a, [(f"ds_read_b32 v{VFV}, v{VFL}", "flag")], vm, lg)
            mfma(c0, 2); take(7)
            mfma(c0, 3); take(7)
            for x in ca[:4]: a(x)
            mfma(c1, 0); take(100)
            for x in ca[4:]: a(x)
            mfma(c1, 1)
            lg.wait(a, "flag")
            check_flag(a, VFV, VFL, 15)
            r = groups(dma_w2(11) + dma_w2(12) + dma_w2(13))
            emit(a, r[0] + r[1], vm, lg)
            a(f"v_mfma_f32_32x32x16_bf16 {vr(acc(0,0),16)}, {vr(AE)}, {vr(BE[0][0])}, {vr(acc(0,0),16)}")
            emit(a, r[2] + r[3], vm, lg)
            mfma(c1, 2)
            emit(a, r[4] + r[5], vm, lg)
            a(f"v_mfma_f32_32x32x16_bf16 {vr(acc(0,1),16)}, {vr(AE)}, {vr(BE[0][1])}, {vr(acc(0,1),16)}")
            mfma(c1, 3)
            a(f"v_mfma_f32_32x32x16_bf16 {vr(acc(1,0),16)}, {vr(AE)}, {vr(BE[1][0])}, {vr(acc(1,0),16)}")
            a(f"v_mfma_f32_32x32x16_bf16 {vr(acc(1,1),16)}, {vr(AE)}, {vr(BE[1][1])}, {vr(acc(1,1),16)}")
        if h in (1, 4, 7, 10, 12): ts(a, f"g_u{h}")
    ts(a, "g_g1end")
    def trr(t):
        o = POS[t % 14] * 8192
        bs = 1 if o >= 65536 - 2048 else 0
        o -= bs * 65536
        r = []
        for db_ in range(2):
            b = W2R + 8 * (t % 14) + 4 * db_
            r.append((f"ds_read_b64_tr_b16 v[{b}:{b+1}], v{VA2[bs][db_]} offset:{o}", ("r", t)))
            r.append((f"ds_read_b64_tr_b16 v[{b+2}:{b+3}], v{VA2[bs][db_]} offset:{o+1024}", ("r", t)))
        return r
    ex = []
    def exr(t):
        g = groups(trr(t))
        g[0] = [lambda t=t: vm.wait(a, ("w2", t))] + g[0]
        return g
    ex += exr(0) + exr(1)
    for t in range(14):
        if t + 2 < 14: ex += exr(t + 2)
        g = groups(dma_w2(t + 14))
        if opt("now2b", 0): g = [[(f"s_nop 0", ("w2", t + 14))]] if False else [[]]
        g[0] = [lambda t=t: lg.wait(a, ("r", t))] + g[0]
        ex += g
    TT = [232, 236]
    PK = [240, 192]
    skip = opt("exskip", 1)
    pc = [0]
    def put():
        pc[0] += 1
        if ex and pc[0] % skip == 0:
            emit(a, ex.pop(0), vm, lg)
    VG1F = 1
    def flag_addr():
        a(f"""
        s_lshl_b32 s12, s{S_RB}, 1
        s_add_u32 s12, s12, s{S_WL}
        s_mul_i32 s12, s12, 28
        s_lshl_b32 s13, s{S_FT}, 1
        s_add_u32 s12, s12, s13
        s_add_u32 s12, s12, s{S_WF}
        s_lshl_b32 s12, s12, 3
        s_add_u32 s12, s12, {FL_G1}
        v_mov_b32 v2, s12
        v_mov_b32 v3, s{S_TAG}
        s_mul_i32 s12, s{S_LB}, 28
        s_mul_i32 s13, s3, 7
        s_add_u32 s12, s12, s13
        s_lshl_b32 s12, s12, 3
        s_add_u32 s12, s12, {FL_G1}
        v_min_u32 v{VG1F}, 13, v0
        v_lshl_add_u32 v{VG1F}, v{VG1F}, 2, s12
        """)
    def flag_store(grp):
        a("s_mov_b64 exec, 1")
        a(f"global_store_dword v2, v3, {sp(S_WS)} offset:{4*grp} sc1")
        vm.issue(("fl", grp))
        a("s_mov_b64 exec, -1")
    def gelu_quadrant(p, q, pk):
        A = acc(p, q)
        kc, dl = KC_[q], DL[q]
        for pp in range(0, 8, 2):
            X = [A + 2 * pp, A + 2 * pp + 2]
            for i in range(2):
                w = TT[i]; x = X[i]
                a(f"v_pk_mul_f32 v[{w}:{w+1}], v[{x}:{x+1}], v[{x}:{x+1}]")
            for i in range(2):
                w = TT[i]
                a(f"v_pk_fma_f32 v[{w}:{w+1}], v[{w}:{w+1}], v[{kc}:{kc+1}], v[{dl}:{dl+1}] op_sel:[0,0,1] op_sel_hi:[1,0,1]")
            for i in range(2):
                w = TT[i]; x = X[i]
                a(f"v_pk_mul_f32 v[{w}:{w+1}], v[{w}:{w+1}], v[{x}:{x+1}] neg_lo:[1,0] neg_hi:[1,0]")
            for i in range(2):
                w = TT[i]
                a(f"v_exp_f32 v{w}, v{w}"); put()
                a(f"v_exp_f32 v{w+1}, v{w+1}"); put()
            for i in range(2):
                w = TT[i]
                a(f"v_pk_fma_f32 v[{w}:{w+1}], v[{w}:{w+1}], v[{dl}:{dl+1}], v[{dl}:{dl+1}] op_sel:[0,0,0] op_sel_hi:[1,0,0]")
            for i in range(2):
                w = TT[i]
                a(f"v_rcp_f32 v{w}, v{w}"); put()
                a(f"v_rcp_f32 v{w+1}, v{w+1}"); put()
            for i in range(2):
                w = TT[i]; x = X[i]
                a(f"v_pk_mul_f32 v[{w}:{w+1}], v[{x}:{x+1}], v[{w}:{w+1}]")
            for i in range(2):
                w = TT[i]
                a(f"v_cvt_pk_bf16_f32 v{pk+pp+i}, v{w}, v{w+1}")
        a(f"s_add_u32 s10, s{S_HS}, {q*112*1024 + p*2048}")
        hf = "" if opt("hplain", 0) else "sc1"
        if not opt("hnost", 0):
            a(f"buffer_store_dwordx4 {vr(pk)}, v{VH0}, {srd(SRD_WS)}, s10 offen {hf}")
            a(f"buffer_store_dwordx4 {vr(pk+4)}, v{VH0}, {srd(SRD_WS)}, s10 offen offset:1024 {hf}")
            vm.issue(("h", p)); vm.issue(("h", p))
        else:
            a(f"buffer_store_dword v{pk}, v{VH0}, {srd(SRD_WS)}, s10 offen {hf}")
            vm.issue(("h", p))
        if opt("hwait", 0):
            ts(a, f"g_hs{p}{q}")
            vm.all(a)
            ts(a, f"g_ha{p}{q}")
    flag_addr()
    gelu_quadrant(0, 0, PK[0])
    gelu_quadrant(0, 1, PK[1])
    ts(a, "g_q1")
    gelu_quadrant(1, 0, PK[0])
    if opt("fla", 0) == 0:
        ts(a, "g_q2")
        vm.wait(a, ("h", 0)); flag_store(0)
        ts(a, "g_flA")
    gelu_quadrant(1, 1, PK[1])
    while ex: emit(a, ex.pop(0), vm, lg)
    if opt("fla", 0) == 1:
        vm.wait(a, ("h", 0)); flag_store(0)
    ts(a, "g_gelu")
    a.c("---- G2")
    a(f"global_load_dword v232, v{VG1F}, {sp(S_WS)} sc1")
    vm.issue("pollA")
    a(f"""
    v_mov_b32 v200, v{VB2R}
    v_mov_b32 v201, 0
    v_mov_b32 v202, 0
    v_mov_b32 v203, 0
    v_mov_b32 v204, 0x3e80
    v_mov_b32 v205, 0
    v_mov_b32 v206, 0
    v_mov_b32 v207, 0
    v_mov_b32 v208, 0
    v_mov_b32 v209, 0
    v_mov_b32 v210, 0
    v_mov_b32 v211, 0
    v_permlane32_swap_b32 v204, v208
    v_mov_b32 v208, 0
    v_mov_b32 v212, 0x3e80
    v_permlane32_swap_b32 v208, v212
    """)
    for db_ in range(2):
        for lb_ in range(2):
            B = 204 if db_ == 0 else 208
            a(f"v_mfma_f32_32x32x16_bf16 {vr(acc(db_,lb_),16)}, v[200:203], {vr(B)}, 0")
    VO, VS_, VSL, VCV = 4, 5, 6, 7
    a(f"""
    v_and_b32 v233, 15, v0
    v_lshrrev_b32 v234, 4, v0
    s_lshl_b32 s10, s{S_LB}, 6
    s_lshl_b32 s11, s3, 4
    s_add_u32 s10, s10, s11
    v_add_u32 v235, s10, v233
    v_mul_u32_u24 v235, 896, v235
    v_lshl_add_u32 v235, v234, 4, v235
    s_lshl_b32 s11, s{S_DB}, 7
    v_add_u32 v{VO}, s11, v235
    v_lshrrev_b32 v235, 3, v0
    v_and_b32 v236, 7, v0
    s_lshl_b32 s10, s{S_DB}, 6
    s_lshl_b32 s11, s3, 4
    s_add_u32 s10, s10, s11                 ; d0 + 16w
    v_add_u32 v237, s10, v235
    v_lshlrev_b32 v237, 12, v237
    v_lshl_add_u32 v{VS_}, v236, 4, v237
    s_lshl_b32 s11, s{S_LB}, 7
    s_add_u32 s11, s11, {ST_OFF}
    v_add_u32 v{VS_}, s11, v{VS_}
    s_mul_i32 s9, s3, {G2_WREG}
    v_mul_u32_u24 v{VSL}, {G2_SSTR}, v235
    v_lshl_add_u32 v{VSL}, v236, 4, v{VSL}
    v_add_u32 v{VSL}, s9, v{VSL}
    s_lshl_b32 s11, s10, 1
    s_add_u32 s11, s11, {FL_CV}
    v_lshl_add_u32 v{VCV}, v236, 2, s11
    """)
    ts(a, "g_prep")
    vm.wait(a, "pollA")
    ts(a, "g_pret")
    flag_store(1)
    pa = a.newlabel("PA"); pab = a.newlabel("PAB")
    a(f"""
    {pab}:
    v_cmp_ne_u32 vcc, s{S_TAG}, v232
    s_and_b32 s10, vcc_lo, 0x1555
    s_cbranch_scc1 {pa}
    """)
    TAIL.append(f"""
    {pa}:
    s_sub_u32 s{S_BUD}, s{S_BUD}, 1
    s_cbranch_scc1 L_BAIL
    global_load_dword v232, v{VG1F}, {sp(S_WS)} sc1
    s_waitcnt vmcnt(0)
    s_branch {pab}
    """)
    ts(a, "g_pollA")
    vm2 = VM(); vm2.issue(("fl", 1))
    NH = 7
    def hload(t):
        g, m = t // 14, t % 14
        i, be = m >> 1, m & 1
        b = HB + 8 * (t % NH)
        o = (2 * g + be) * 1024
        off = f" offset:{o}" if o else ""
        a(f"buffer_load_dwordx4 {vr(b)}, v{VH0}, {srd(SRD_WS)}, s{SH[i]} offen{off} sc1")
        a(f"buffer_load_dwordx4 {vr(b+4)}, v{VH1}, {srd(SRD_WS)}, s{SH[i]} offen{off} sc1")
        vm2.issue(("h", t)); vm2.issue(("h", t))
    for t in range(NH): hload(t)
    T_PB, T_CV, T_CVC = opt("tpb", 1), opt("tcv", 18), opt("tcvc", 22)
    S_NR = 12
    for t in range(28):
        vm2.wait(a, ("h", t))
        if t == 0: lg.wait(a, ("r", 13))
        if t >= 14: lg.wait(a, ("r", t))
        for db_ in range(2):
            for lb_ in range(2):
                a(f"v_mfma_f32_32x32x16_bf16 {vr(acc(db_,lb_),16)}, {vr(W2R + 8*(t%14) + 4*db_)}, {vr(HB + 8*(t%NH) + 4*lb_)}, {vr(acc(db_,lb_),16)}")
        if t + NH == 14:
            vm2.wait(a, "pollB")
            pb = a.newlabel("PB"); pbb = a.newlabel("PBB")
            a(f"""
            {pbb}:
            v_cmp_ne_u32 vcc, s{S_TAG}, v2
            s_and_b32 s10, vcc_lo, 0x2aaa
            s_cbranch_scc1 {pb}
            """)
            TAIL.append(f"""
            {pb}:
            s_sub_u32 s{S_BUD}, s{S_BUD}, 1
            s_cbranch_scc1 L_BAIL
            global_load_dword v2, v{VG1F}, {sp(S_WS)} sc1
            s_waitcnt vmcnt(0)
            s_branch {pbb}
            """)
        if t + NH < 28: hload(t + NH)
        if t == T_PB:
            a(f"global_load_dword v2, v{VG1F}, {sp(S_WS)} sc1"); vm2.issue("pollB")
        if t < 14:
            if t == 0: vm.all(a) if False else None
            emit(a, trr(t + 14), vm, lg)
        if t == 14:
            pass
        if t == 15:
            lg.wait(a, ("r", 27))
            a(f"v_mov_b32 v{VCNT}, 100")
            emit(a, [(f"ds_write_b32 v{VSIG}, v{VCNT}", "sig")], vm, lg)
        if t == T_CV:
            a(f"global_load_dword v3, v{VCV}, {sp(S_WS)} sc1"); vm2.issue("pollCV")
        if t == T_CVC:
            vm2.wait(a, "pollCV")
            a(f"""
            v_cmp_ne_u32 vcc, s{S_TAG}, v3
            s_or_b32 s{S_NR}, vcc_lo, vcc_hi
            buffer_load_dwordx4 v[24:27], v{VS_}, {srd(SRD_WS)}, 0 offen sc1
            s_mov_b32 s11, {8*4096}
            buffer_load_dwordx4 v[28:31], v{VS_}, {srd(SRD_WS)}, s11 offen sc1
            buffer_load_dwordx4 v[16:19], v{VO}, {srd(SRD_X)}, 0 offen
            buffer_load_dwordx4 v[20:23], v{VO}, {srd(SRD_X)}, 0 offen offset:64
            """)
            for _ in range(4): vm2.issue("sx")
        if t in (6, 13, 20): ts(a, f"g_s{t}")
    emit(a, [(f"ds_read_b32 v{VFV}, v{VFL}", "flag")], vm, lg)
    ts(a, "g_g2end")
    a(f"""
    s_mul_i32 s9, s3, {G2_WREG}
    v_and_b32 v1, 31, v0
    v_mul_u32_u24 v1, {G2_PSTR}, v1
    v_lshrrev_b32 v2, 5, v0
    v_lshl_add_u32 v1, v2, 4, v1
    v_add_u32 v1, s9, v1
    s_waitcnt lgkmcnt(0)
    """)
    check_flag(a, VFV, VFL, 100)
    VS = 24
    cvs = a.newlabel("CVS"); cvb = a.newlabel("CVB")
    a(f"""
    s_cmp_lg_u32 s{S_NR}, 0
    s_cbranch_scc1 {cvs}
    {cvb}:
    """)
    TAIL.append(f"""
    {cvs}:
    s_sub_u32 s{S_BUD}, s{S_BUD}, 1
    s_cbranch_scc1 L_BAIL
    global_load_dword v3, v{VCV}, {sp(S_WS)} sc1
    s_waitcnt vmcnt(0)
    v_cmp_ne_u32 vcc, s{S_TAG}, v3
    s_cbranch_vccnz {cvs}
    buffer_load_dwordx4 v[24:27], v{VS_}, {srd(SRD_WS)}, 0 offen sc1
    s_mov_b32 s11, {8*4096}
    buffer_load_dwordx4 v[28:31], v{VS_}, {srd(SRD_WS)}, s11 offen sc1
    s_branch {cvb}
    """)
    for db_ in range(2):
        for lb_ in range(2):
            for q in range(4):
                a(f"ds_write_b128 v1, {vr(acc(db_,lb_)+4*q)} offset:{lb_*32*G2_PSTR + db_*128 + q*32}")
    a(f"""
    s_waitcnt vmcnt(0)
    ds_write_b128 v{VSL}, {vr(VS)} offset:{G2_STILE}
    ds_write_b128 v{VSL}, {vr(VS+4)} offset:{G2_STILE + 8*G2_SSTR}
    v_mov_b32 v{VCNT}, 200
    s_waitcnt lgkmcnt(0)
    ds_write_b32 v{VSIG}, v{VCNT}
    v_and_b32 v1, 15, v0
    v_lshrrev_b32 v7, 4, v0
    s_lshl_b32 s11, s3, 4
    v_add_u32 v6, s11, v1
    v_mul_u32_u24 v6, {G2_PSTR}, v6
    v_lshl_add_u32 v6, v7, 5, v6
    v_lshrrev_b32 v3, 1, v7
    v_mul_u32_u24 v3, {G2_WREG}, v3
    v_and_b32 v2, 1, v7
    v_lshlrev_b32 v2, 3, v2
    v_bfe_u32 v5, v0, 2, 2
    v_add_u32 v2, v2, v5
    v_mul_u32_u24 v2, {G2_SSTR}, v2
    v_add_u32 v3, v3, v2
    v_and_b32 v2, 3, v0
    v_lshl_add_u32 v3, v2, 3, v3
    s_lshl_b32 s11, s3, 5
    v_add_u32 v3, s11, v3
    v_add_u32 v3, {G2_STILE}, v3
    v_add_u32 v2, {2*G2_WREG}, v3
    v_add_u32 v5, {2*G2_WREG}, v6
    """)
    spin_lds(a, VFV, VFL, 0, 200)
    ts(a, "g_red")
    for k in range(2):
        for w in range(4):
            base = 6 if w < 2 else 5
            for hq in range(2):
                a(f"ds_read_b128 {vr(48+32*k+8*w+4*hq)}, v{base} offset:{(w%2)*G2_WREG + k*128 + hq*16}")
        sv = 3 if k == 0 else 2
        a(f"ds_read_b64_tr_b16 v[{112+4*k}:{113+4*k}], v{sv}")
        a(f"ds_read_b64_tr_b16 v[{114+4*k}:{115+4*k}], v{sv} offset:{4*G2_SSTR}")
    a(f"""
    s_mov_b32 s70, {hx(-LOG2E)}
    s_mov_b32 s71, {hx(-LOG2E)}
    s_mov_b32 s72, 1.0
    s_mov_b32 s73, 1.0
    """)
    for k in range(2):
        B = 48 + 32 * k
        a(f"s_waitcnt lgkmcnt({10 if k == 0 else 0})")
        for p in range(4):
            x = B + 2 * p
            t0 = 120 + 8 * (p % 2)
            a(f"""
            v_pk_add_f32 v[{x}:{x+1}], v[{x}:{x+1}], v[{x+8}:{x+9}]
            v_pk_add_f32 v[{x+16}:{x+17}], v[{x+16}:{x+17}], v[{x+24}:{x+25}]
            v_lshlrev_b32 v{t0+2}, 16, v{112+4*k+p}
            v_pk_add_f32 v[{x}:{x+1}], v[{x}:{x+1}], v[{x+16}:{x+17}]
            v_and_b32 v{t0+3}, 0xffff0000, v{112+4*k+p}
            v_pk_mul_f32 v[{t0}:{t0+1}], v[{x}:{x+1}], s[70:71]
            v_exp_f32 v{t0}, v{t0}
            v_exp_f32 v{t0+1}, v{t0+1}
            v_pk_mul_f32 v[{x}:{x+1}], v[{x}:{x+1}], v[{t0+2}:{t0+3}]
            v_pk_add_f32 v[{t0}:{t0+1}], v[{t0}:{t0+1}], s[72:73]
            v_lshlrev_b32 v{t0+4}, 16, v{16+4*k+p}
            v_rcp_f32 v{t0}, v{t0}
            v_rcp_f32 v{t0+1}, v{t0+1}
            v_and_b32 v{t0+5}, 0xffff0000, v{16+4*k+p}
            v_pk_fma_f32 v[{x}:{x+1}], v[{x}:{x+1}], v[{t0}:{t0+1}], v[{t0+4}:{t0+5}]
            v_cvt_pk_bf16_f32 v{136+4*k+p}, v{x}, v{x+1}
            """)
        a(f"buffer_store_dwordx4 {vr(136+4*k)}, v{VO}, {srd(SRD_OUT)}, 0 offen offset:{64*k}")
    a(f"""
    s_or_b32 s10, s2, s3
    s_cmp_lg_u32 s10, 0
    s_cbranch_scc1 G2_NOEP
    s_add_u32 s10, s{S_EPOCH}, 1
    v_mov_b32 v1, {FL_EPOCH}
    v_mov_b32 v2, s10
    s_mov_b64 exec, 1
    global_store_dword v1, v2, {sp(S_WS)}
    s_mov_b64 exec, -1
    G2_NOEP:
    """)
    ts(a, "g_end")

def spare_path(a):
    a.c("---- spare WG: LN")
    XA, XB_ = 16, 32
    a(f"""
    s_lshl_b32 s4, s{S_XX}, 2
    s_add_u32 s4, s4, s{S_YY}
    s_sub_u32 s4, s4, 28                    ; q
    s_lshl_b32 s5, s4, 6
    s_lshl_b32 s6, s3, 3
    s_add_u32 s5, s5, s6
    v_lshrrev_b32 v1, 4, v0                 ; qd
    v_and_b32 v2, 15, v0                    ; c
    v_lshl_add_u32 v3, v1, 1, s5            ; row A
    v_mul_u32_u24 v4, 896, v3
    v_lshl_add_u32 v4, v2, 4, v4
    v_mov_b32 v{XA+12}, 0
    v_mov_b32 v{XA+13}, 0
    v_mov_b32 v{XA+14}, 0
    v_mov_b32 v{XA+15}, 0
    v_mov_b32 v{XB_+12}, 0
    v_mov_b32 v{XB_+13}, 0
    v_mov_b32 v{XB_+14}, 0
    v_mov_b32 v{XB_+15}, 0
    v_mov_b32 v5, {SP_CNT}
    v_mov_b32 v6, 0
    ds_write_b32 v5, v6
    s_waitcnt lgkmcnt(0)
    """)
    ts(a, "p_karg")
    for i in range(3):
        a(f"global_load_dwordx4 {vr(XA+4*i)}, v4, {sp(S_X)} offset:{256*i}")
        a(f"global_load_dwordx4 {vr(XB_+4*i)}, v4, {sp(S_X)} offset:{896+256*i}")
    a(f"""
    s_mov_b32 exec_lo, 0x00ff00ff
    s_mov_b32 exec_hi, 0x00ff00ff
    global_load_dwordx4 {vr(XA+12)}, v4, {sp(S_X)} offset:768
    global_load_dwordx4 {vr(XB_+12)}, v4, {sp(S_X)} offset:{896+768}
    s_mov_b64 exec, -1
    """)
    epoch_load(a)
    if opt("wpf", 1) == 1:
        a(f"""
        s_lshl_b32 s10, s4, 3
        s_add_u32 s10, s10, s3
        s_mul_i32 s10, s10, {49*128}
        v_lshl_add_u32 v7, v0, 7, s10
        s_mov_b32 exec_lo, -1
        s_mov_b32 exec_hi, 0x1ffff
        global_load_dword v250, v7, {sp(S_W2)}
        s_mov_b64 exec, -1
        """)
    npf = 1 if opt("wpf", 1) == 1 else 0
    a(f"""
    s_lshl_b32 s10, s3, 2
    v_and_b32 v8, 7, v2
    v_lshl_add_u32 v8, v8, 2, v1
    v_add_u32 v8, s10, v8
    v_and_b32 v8, 31, v8
    v_lshlrev_b32 v8, 2, v8
    v_lshl_add_u32 v8, v2, 10, v8
    v_add_u32 v9, 16384, v8
    v_add_u32 v10, 32768, v8
    v_add_u32 v11, 49152, v8
    s_mov_b32 s12, 0x3f803f80
    v_mov_b32 v48, 0
    v_mov_b32 v49, 0
    v_mov_b32 v50, 0
    v_mov_b32 v51, 0
    v_mov_b32 v52, 0
    v_mov_b32 v53, 0
    v_mov_b32 v54, 0
    v_mov_b32 v55, 0
    s_waitcnt lgkmcnt(0)
    """)
    tag_calc(a)
    a(f"s_waitcnt vmcnt({npf})")
    ts(a, "p_x")
    for i in range(16):
        k = i & 1
        a(f"v_dot2c_f32_bf16 v{48+k}, s12, v{XA+i}")
        a(f"v_dot2c_f32_bf16 v{52+k}, s12, v{XB_+i}")
        a(f"v_dot2c_f32_bf16 v{50+k}, v{XA+i}, v{XA+i}")
        a(f"v_dot2c_f32_bf16 v{54+k}, v{XB_+i}, v{XB_+i}")
    a("""
    v_add_f32 v48, v48, v49
    v_add_f32 v50, v50, v51
    v_add_f32 v52, v52, v53
    v_add_f32 v54, v54, v55
    """)
    for m in ("quad_perm:[1,0,3,2]", "quad_perm:[2,3,0,1]", "row_half_mirror", "row_mirror"):
        for r in (48, 50, 52, 54):
            a(f"v_add_f32_dpp v{r}, v{r}, v{r} {m} row_mask:0xf bank_mask:0xf")
    rows = [dict(mean=48, var=50, m1=56, sd=57, rs=58, t=59, m2=60, v2=61), dict(mean=52, var=54, m1=62, sd=63, rs=64, t=65, m2=66, v2=67)]
    def both_(f):
        for r in rows:
            for ln in f(r).strip().split("\n"): pass
        ls = [[x.strip() for x in f(r).strip().split("\n")] for r in rows]
        for x, y in zip(*ls): a(x); a(y)
    both_(lambda r: f"""
    v_mul_f32 v{r['mean']}, {hx(1.0/448)}, v{r['mean']}
    v_mul_f32 v{r['var']}, {hx(1.0/448)}, v{r['var']}
    v_fma_f32 v{r['var']}, -v{r['mean']}, v{r['mean']}, v{r['var']}
    v_max_f32 v{r['var']}, 0, v{r['var']}
    v_cvt_pk_bf16_f32 v{r['m1']}, v{r['mean']}, v{r['mean']}
    v_cvt_pk_bf16_f32 v{r['sd']}, v{r['var']}, v{r['var']}
    v_and_b32 v{r['m1']}, 0xffff0000, v{r['m1']}
    v_and_b32 v{r['sd']}, 0xffff0000, v{r['sd']}
    v_add_f32 v{r['sd']}, {hx(1e-5)}, v{r['sd']}
    v_cvt_pk_bf16_f32 v{r['sd']}, v{r['sd']}, v{r['sd']}
    v_and_b32 v{r['sd']}, 0xffff0000, v{r['sd']}
    v_sqrt_f32 v{r['sd']}, v{r['sd']}
    v_cvt_pk_bf16_f32 v{r['sd']}, v{r['sd']}, v{r['sd']}
    v_and_b32 v{r['sd']}, 0xffff0000, v{r['sd']}
    v_rcp_f32 v{r['rs']}, v{r['sd']}
    v_sub_f32 v{r['m2']}, v{r['mean']}, v{r['m1']}
    v_mul_f32 v{r['v2']}, v{r['var']}, v{r['rs']}
    v_mul_f32 v{r['m2']}, v{r['m2']}, v{r['rs']}
    v_mul_f32 v{r['v2']}, v{r['v2']}, v{r['rs']}
    v_cvt_pk_bf16_f32 v{r['m2']}, v{r['m2']}, v{r['m2']}
    v_cvt_pk_bf16_f32 v{r['v2']}, v{r['v2']}, v{r['v2']}
    v_and_b32 v{r['m2']}, 0xffff0000, v{r['m2']}
    v_and_b32 v{r['v2']}, 0xffff0000, v{r['v2']}
    v_add_f32 v{r['v2']}, {hx(1e-5)}, v{r['v2']}
    v_cvt_pk_bf16_f32 v{r['v2']}, v{r['v2']}, v{r['v2']}
    v_and_b32 v{r['v2']}, 0xffff0000, v{r['v2']}
    v_sqrt_f32 v{r['v2']}, v{r['v2']}
    v_cvt_pk_bf16_f32 v{r['v2']}, v{r['v2']}, v{r['v2']}
    v_and_b32 v{r['v2']}, 0xffff0000, v{r['v2']}
    v_rcp_f32 v{r['v2']}, v{r['v2']}
    v_fma_f32 v{r['m2']}, v{r['m2']}, v{r['sd']}, v{r['m1']}
    v_mul_f32 v{r['v2']}, v{r['rs']}, v{r['v2']}
    """)
    A_, B_ = rows
    a(f"""
    v_cmp_eq_u32 vcc, 1, v2
    v_cndmask_b32 v68, v{A_['v2']}, v{B_['v2']}, vcc
    v_cndmask_b32 v70, v{A_['m2']}, v{B_['m2']}, vcc
    v_mov_b32 v69, s{S_TAG}
    v_sub_f32 v70, 0, v70
    v_mov_b32 v71, s{S_TAG}
    v_add_u32 v12, v3, v2
    v_lshlrev_b32 v12, 4, v12
    v_add_u32 v12, {STAT_OFF}, v12
    s_mov_b32 exec_lo, 0x00030003
    s_mov_b32 exec_hi, 0x00030003
    global_store_dwordx4 v12, v[68:71], {sp(S_WS)} sc1
    s_mov_b64 exec, -1
    v_mov_b32 v72, v{A_['rs']}
    v_mov_b32 v73, v{B_['rs']}
    v_mul_f32 v74, v{A_['m1']}, v{A_['rs']}
    v_mul_f32 v75, v{B_['m1']}, v{B_['rs']}
    v_sub_f32 v74, 0, v74
    v_sub_f32 v75, 0, v75
    """)
    ts(a, "p_stat")
    if opt("wpf", 1) == 2:
        a(f"""
        s_lshl_b32 s10, s4, 3
        s_add_u32 s10, s10, s3
        s_mul_i32 s10, s10, {49*128}
        v_lshl_add_u32 v7, v0, 7, s10
        s_mov_b32 exec_lo, -1
        s_mov_b32 exec_hi, 0x1ffff
        global_load_dword v250, v7, {sp(S_W2)}
        s_mov_b64 exec, -1
        """)
    for i in range(4):
        for j in range(4):
            ra, rb = XA + 4 * i + j, XB_ + 4 * i + j
            t = 80 + 8 * (j % 2)
            a(f"""
            v_lshlrev_b32 v{t}, 16, v{ra}
            v_lshlrev_b32 v{t+1}, 16, v{rb}
            v_and_b32 v{t+2}, 0xffff0000, v{ra}
            v_and_b32 v{t+3}, 0xffff0000, v{rb}
            v_pk_fma_f32 v[{t}:{t+1}], v[{t}:{t+1}], v[72:73], v[74:75]
            v_pk_fma_f32 v[{t+2}:{t+3}], v[{t+2}:{t+3}], v[72:73], v[74:75]
            v_cvt_pk_bf16_f32 v{t+4}, v{t}, v{t+1}
            v_cvt_pk_bf16_f32 v{t+5}, v{t+2}, v{t+3}
            ds_write2_b32 v{8+i}, v{t+4}, v{t+5} offset0:{64*j} offset1:{64*j+32}
            """)
    a(f"""
    v_lshrrev_b32 v1, 3, v0
    v_and_b32 v2, 7, v0
    s_mul_i32 s10, s3, 56
    v_add_u32 v3, s10, v1                   ; d (i'=0)
    v_lshlrev_b32 v4, 7, v3                 ; d*128
    s_mul_i32 s11, s3, 7
    v_add_u32 v5, s11, v2                   ; seg + 7w
    v_lshlrev_b32 v6, 12, v3
    v_lshl_add_u32 v6, v2, 4, v6
    s_lshl_b32 s11, s4, 7
    s_add_u32 s11, s11, {XT_OFF}
    v_add_u32 v6, s11, v6
    """)
    for i in range(7):
        a(f"""
        v_add_u32 v{16+i}, {i}, v5
        v_and_b32 v{16+i}, 7, v{16+i}
        v_lshl_add_u32 v{16+i}, v{16+i}, 4, v4
        """)
    a("""
    s_waitcnt lgkmcnt(0)
    s_barrier
    """)
    for i in range(7):
        a(f"ds_read_b128 {vr(32+4*i)}, v{16+i} offset:{1024*i}")
    for i in range(7):
        a(f"s_waitcnt lgkmcnt({6-i})")
        a(f"global_store_dwordx4 v6, {vr(32+4*i)}, {sp(S_WS)} sc1")
        if i < 6: a(f"v_add_u32 v6, {8*4096}, v6")
    ts(a, "p_st")
    a(f"""
    s_lshl_b32 s10, s4, 2
    s_add_u32 s10, s10, {FL_LN}
    """)
    publish(a, SP_CNT, 8, 10, 8, 9)
    ts(a, "p_end")

PRIME = {}
def mkprime(a, y):
    p0, p1 = PRIME[y]
    a(f"v_mov_b32 v{p0}, v{y+1}")
    a(f"v_mov_b32 v{p1}, v{y+3}")
def cmul_n(a, jobs, t0=8):
    for k, (r, x, y, yp) in enumerate(jobs):
        t = t0 + 2 * k
        a(f"v_pk_mul_f32 v[{t}:{t+1}], v[{x}:{x+1}], v[{y}:{y+1}] op_sel:[0,0] op_sel_hi:[1,0]")
    for k, (r, x, y, yp) in enumerate(jobs):
        t = t0 + 2 * k
        assert yp % 2 == 0
        a(f"v_pk_fma_f32 v[{r}:{r+1}], v[{x}:{x+1}], v[{yp}:{yp+1}], v[{t}:{t+1}] op_sel:[1,0,0] op_sel_hi:[0,0,1] neg_lo:[1,0,0]")
def both(r, x, y): return [(r + 2 * c, x + 2 * c, y + 2 * c, PRIME[y][c]) for c in range(2)]
def cm(a, r, x, y): cmul_n(a, both(r, x, y))

def pair_sync(a, val, VMY, VOT, VT):
    lab = a.newlabel("PS")
    a(f"""
    v_mov_b32 v{VT}, {val}
    s_waitcnt lgkmcnt(0)
    ds_write_b32 v{VMY}, v{VT}
    {lab}:
    s_sub_u32 s{S_BUD}, s{S_BUD}, 1
    s_cbranch_scc1 L_BAIL
    ds_read_b32 v{VT}, v{VOT}
    s_waitcnt lgkmcnt(0)
    v_cmp_gt_u32 vcc, {val}, v{VT}
    s_cbranch_vccnz {lab}
    """)

KC_GA = 204
KC_SC = 228
KC_RAW = 233
def kc_path(a):
    a.c("---- KC path")
    GA, SC, RAW = KC_GA, KC_SC, KC_RAW
    a(f"""
    s_sub_u32 s5, s3, 4                     ; k
    ; zero LDS flags
    v_and_b32 v1, 31, v0
    v_lshlrev_b32 v1, 2, v1
    v_lshrrev_b32 v2, 5, v0
    v_mul_u32_u24 v2, {CH_SZ}, v2
    v_add_u32 v1, v1, v2
    v_mov_b32 v2, 0
    ds_write_b32 v1, v2 offset:{GFLAG - 65536}
    """.replace(f"ds_write_b32 v1, v2 offset:{GFLAG - 65536}", f"v_add_u32 v1, {GFLAG}, v1\n ds_write_b32 v1, v2"))
    a(f"""
    s_mul_i32 s4, s{S_XX}, 28
    s_add_u32 s4, s4, s{S_YY}               ; cp
    s_lshr_b32 s6, s5, 1                    ; ch
    s_and_b32 s7, s5, 1                     ; hh
    s_lshl_b32 s8, s4, 1
    s_add_u32 s8, s8, s6                    ; d
    s_mul_i32 s9, s6, {CH_SZ}
    s_add_u32 s9, s9, {AUX_BASE}
    s_lshl_b32 s10, s8, 9
    s_lshl_b32 s11, s7, 8
    s_add_u32 s10, s10, s11
    v_lshl_add_u32 v1, v0, 2, s10
    s_lshl_b32 s10, s4, 2
    s_waitcnt lgkmcnt(0)
    """)
    ts(a, "k_karg")
    a(f"""
    global_load_dword v{RAW}, v1, {sp(S_LOGA)}
    global_load_dword v{RAW+1}, v1, {sp(S_AIM)}
    global_load_dword v{RAW+2}, v1, {sp(S_CRE)}
    global_load_dword v{RAW+3}, v1, {sp(S_CIM)}
    s_barrier
    s_load_dword s12, {sp(S_LOGDT)}, s10
    s_load_dword s13, {sp(S_DSKIP)}, s10
    """)
    a(f"""
    s_mov_b32 s70, s4                       ; cp
    s_mov_b32 s71, s5                       ; k
    s_mov_b32 s72, s8                       ; d
    s_mov_b32 s73, s9
    s_mov_b32 s75, s7                       ; hh
    s_mov_b32 s77, s6
    """)
    epoch_load(a)
    a("s_mov_b32 s7, s75")
    mk_srd(a, SRD_WS, S_WS, WS_SRD_SIZE)
    if opt("nokc", 0):
        a("s_waitcnt lgkmcnt(0)")
        tag_calc(a)
        a(f"""
        s_lshl_b32 s10, s70, 2
        s_add_u32 s10, s10, {FL_CV}
        """)
        publish(a, CNT_CV, 4, 10, 8, 9)
        for nm in ("k_init","k_par","k_b","k_kgen","k_ln","k_tab","k_cop","k_u","k_conv","k_st","k_end"): ts(a, nm)
        return
    a(f"""
    v_mov_b32 v12, 0
    s_cmp_lg_u32 s7, 0
    s_cbranch_scc1 KC_Z1
    s_mov_b64 exec, 15
    v_lshl_add_u32 v1, v0, 2, s9
    ds_write_b32 v1, v12 offset:{T0_OFF-16}
    s_mov_b64 exec, -1
    KC_Z1:
    """)
    a(f"""
    s_lshl_b32 s10, s7, 10
    s_sub_u32 s10, s10, 4
    v_lshl_add_u32 v16, v0, 3, s10
    s_add_u32 s11, s9, {T1_OFF}
    s_sub_u32 s14, s11, {4*0x4280}
    s_add_u32 s15, s11, 512
    v_cvt_f32_i32 v17, v16
    v_lshl_add_u32 v18, v16, 2, s11
    """)
    for r in range(2):
        for j in range(0, 12, 2):
            o = 512 * r + j
            g0 = GA + 12 * r + j
            a(f"""
            v_add_f32 v20, {hx(float(o))}, v17
            v_add_f32 v21, {hx(float(o+1))}, v17
            v_cvt_pk_bf16_f32 v20, v20, v21
            v_bfe_i32 v21, v20, 0, 16
            v_ashrrev_i32 v20, 16, v20
            v_lshl_add_u32 v21, v21, 2, s14
            v_lshl_add_u32 v20, v20, 2, s14
            v_add_u32 v22, {4*o}, v18
            v_add_u32 v23, {4*(o+1)}, v18
            v_med3_i32 v{g0}, v22, s15, v21
            v_med3_i32 v{g0+1}, v23, s15, v20
            """)
    a(f"""
    s_xor_b32 s10, s7, 1
    s_lshl_b32 s10, s10, 12
    s_add_u32 s11, s11, s10
    v_lshrrev_b32 v4, 4, v0                 ; g
    v_and_b32 v1, 15, v0                    ; c
    v_lshlrev_b32 v20, 4, v1
    v_lshl_add_u32 v20, v4, 2, v20
    v_lshl_add_u32 v{SC}, v20, 2, s11
    v_add_u32 v{SC}, 4, v{SC}
    v_lshlrev_b32 v20, 3, v1
    v_lshl_add_u32 v20, v4, 2, v20
    v_add_u32 v20, 257, v20
    v_lshlrev_b32 v21, 2, v1
    v_lshl_add_u32 v21, v4, 6, v21
    v_add_u32 v21, {385 - 128}, v21
    v_cmp_gt_u32 vcc, 2, v4
    v_cndmask_b32 v20, v21, v20, vcc
    v_lshl_add_u32 v{SC+1}, v20, 2, s11
    v_lshlrev_b32 v20, 1, v1
    v_lshl_add_u32 v20, v4, 6, v20
    v_add_u32 v20, 513, v20
    v_lshl_add_u32 v{SC+2}, v20, 2, s11
    s_mov_b32 s74, s11
    """)
    Z1, Z2, Z4, Z8, Z16, CHN, C2, A2S, A4S, A8S, Z256, Z512, Z1024, ST_ = 32, 36, 40, 44, 48, 52, 56, 60, 64, 68, 72, 76, 80, 84
    DT = [92, 96, 100]
    RB, RA0, RA1 = 108, 140, 172
    VMY, VOT, VT = 6, 7, 5
    VTR = 3
    VTW = [24, 25, 26, 27]
    CV = 16
    a(f"""
    s_mov_b32 s9, s73
    s_lshl_b32 s10, s7, 2
    s_add_u32 s10, s10, s9
    s_add_u32 s10, s10, {AF_OFF}
    v_mov_b32 v{VMY}, s10
    s_xor_b32 s10, s10, 4
    v_mov_b32 v{VOT}, s10
    s_mul_i32 s10, s7, {TILE_SZ}
    s_add_u32 s10, s10, s9
    v_lshl_add_u32 v{VTW[0]}, v0, 3, s10
    v_add_u32 v{VTW[1]}, {4*TROW}, v{VTW[0]}
    v_add_u32 v{VTW[2]}, {8*TROW}, v{VTW[0]}
    v_add_u32 v{VTW[3]}, {12*TROW}, v{VTW[0]}
    v_and_b32 v1, 15, v0
    v_mul_u32_u24 v{VTR}, {TROW}, v1
    v_lshrrev_b32 v4, 4, v0
    v_lshl_add_u32 v{VTR}, v4, 4, v{VTR}
    v_add_u32 v{VTR}, s10, v{VTR}
    s_waitcnt lgkmcnt(0)
    """)
    tag_calc(a)
    a(f"""
    s_lshl_b32 s10, s77, 4
    s_lshr_b32 s12, s12, s10
    s_lshl_b32 s76, s12, 16                 ; log_dt (f32 bits)
    s_lshr_b32 s13, s13, s10
    s_lshl_b32 s77, s13, 16                 ; D_skip (f32 bits)
    v_mov_b32 v1, {hx(LOG2E)}
    v_mul_f32 v4, s76, v1
    v_exp_f32 v4, v4
    """)
    bf16r(a, 4, 4)
    if opt("kprio", 0): a(f"s_setprio {opt('kprio', 0)}")
    ts(a, "k_init")
    a(f"""
    s_waitcnt vmcnt(0)
    """)
    ts(a, "k_par")
    a(f"""
    v_lshlrev_b32 v12, 16, v{RAW}
    v_and_b32 v13, 0xffff0000, v{RAW}
    v_mul_f32 v12, v12, v1
    v_mul_f32 v13, v13, v1
    v_exp_f32 v12, v12
    v_exp_f32 v13, v13
    v_cvt_pk_bf16_f32 v12, v12, v13
    v_lshlrev_b32 v14, 16, v12
    v_and_b32 v15, 0xffff0000, v12
    v_mul_f32 v14, v14, v4
    v_mul_f32 v15, v15, v4
    v_mul_f32 v14, v14, v1
    v_mul_f32 v15, v15, v1
    v_exp_f32 v14, -v14
    v_exp_f32 v15, -v15
    v_lshlrev_b32 v16, 16, v{RAW+1}
    v_and_b32 v17, 0xffff0000, v{RAW+1}
    v_mul_f32 v16, v16, v4
    v_mul_f32 v17, v17, v4
    v_mul_f32 v16, 0.15915494, v16
    v_mul_f32 v17, 0.15915494, v17
    v_rndne_f32 v18, v16
    v_rndne_f32 v19, v17
    v_sub_f32 v16, v16, v18
    v_sub_f32 v17, v17, v19
    v_cos_f32 v18, v16
    v_sin_f32 v19, v16
    v_cos_f32 v20, v17
    v_sin_f32 v21, v17
    v_mul_f32 v{Z1}, v14, v18
    v_mul_f32 v{Z1+1}, v14, v19
    v_mul_f32 v{Z1+2}, v15, v20
    v_mul_f32 v{Z1+3}, v15, v21
    v_add_f32 v4, v4, v4
    v_lshlrev_b32 v16, 16, v{RAW+2}
    v_and_b32 v17, 0xffff0000, v{RAW+2}
    v_lshlrev_b32 v18, 16, v{RAW+3}
    v_and_b32 v19, 0xffff0000, v{RAW+3}
    v_mul_f32 v{C2}, v16, v4
    v_mul_f32 v{C2+1}, v18, v4
    v_mul_f32 v{C2+2}, v17, v4
    v_mul_f32 v{C2+3}, v19, v4
    """)
    PRIME.update({Z1: (88, 90), Z2: (104, 106), Z4: (238, 240), Z8: (242, 244), Z16: (246, 248), Z256: (250, 252), Z512: (28, 30), Z1024: (254, 232)})
    mkprime(a, Z1); cm(a, Z2, Z1, Z1); mkprime(a, Z2); cm(a, Z4, Z2, Z2); mkprime(a, Z4); cm(a, Z8, Z4, Z4); mkprime(a, Z8); cm(a, Z16, Z8, Z8); mkprime(a, Z16)
    state = {"n": 0}
    def cvt(src, conj, slot):
        neg = "-" if conj else ""
        c = CV + 2 * slot
        a(f"v_cvt_pk_bf16_f32 v{c}, v{src}, {neg}v{src+1}")
        a(f"v_cvt_pk_bf16_f32 v{c+1}, v{src+2}, {neg}v{src+3}")
        return c
    def wr2(r0, c0, r1, c1):
        q = r0 // 4
        o0 = (r0 - 4 * q) * TROW // 8; o1 = (r1 - 4 * q) * TROW // 8
        assert 0 <= o0 <= 255 and 0 <= o1 <= 255
        a(f"ds_write2_b64 v{VTW[q]}, v[{c0}:{c0+1}], v[{c1}:{c1+1}] offset0:{o0} offset1:{o1}")
    def wr1(r, c):
        a(f"ds_write_b64 v{VTW[0]}, v[{c}:{c+1}] offset:{r*TROW}")
    def chain(reg, ratio, rows, conj, save=None, last_mul=False):
        pend = None
        for i, r in enumerate(rows):
            slot = (state["n"] % 4); state["n"] += 1
            c = cvt(reg, conj, slot)
            if save and r in save:
                s = save[r]
                a(f"v_mov_b64 v[{s}:{s+1}], v[{reg}:{reg+1}]")
                a(f"v_mov_b64 v[{s+2}:{s+3}], v[{reg+2}:{reg+3}]")
            if i + 1 < len(rows) or last_mul:
                cm(a, reg, reg, ratio)
            if pend is None:
                if i + 1 < len(rows) and rows[i + 1] // 4 == r // 4 and abs(rows[i + 1] - r) * TROW // 8 <= 255:
                    pend = (r, c)
                else:
                    wr1(r, c)
            else:
                wr2(pend[0], pend[1], r, c); pend = None
        assert pend is None
    def rd(dest):
        for kk in range(8):
            a(f"ds_read_b128 {vr(dest+4*kk)}, v{VTR} offset:{64*kk}")
    def mm(dt, A):
        for kk in range(8):
            c = "0" if kk == 0 else vr(DT[dt])
            a(f"v_mfma_f32_16x16x32_bf16 {vr(DT[dt])}, {vr(A+4*kk)}, {vr(RB+4*kk)}, {c}")
    a(f"""
    v_mov_b32 v{CV+6}, 0x3f80
    v_mov_b32 v{CV+7}, 0x3f80
    v_mov_b64 v[{CHN}:{CHN+1}], v[{Z16}:{Z16+1}]
    v_mov_b64 v[{CHN+2}:{CHN+3}], v[{Z16+2}:{Z16+3}]
    """)
    wr1(0, CV + 6)
    state["n"] = 0
    chain(CHN, Z16, [1], True, last_mul=True)
    chain(CHN, Z16, list(range(2, 16)), True, last_mul=True)
    rd(RB)
    a(f"v_mov_b64 v[{Z256}:{Z256+1}], v[{CHN}:{CHN+1}]")
    a(f"v_mov_b64 v[{Z256+2}:{Z256+3}], v[{CHN+2}:{CHN+3}]")
    mkprime(a, Z256)
    ts(a, "k_b")
    cm(a, CHN, C2, Z1)
    chain(CHN, Z1, list(range(16)), False, save={1: A2S, 3: A4S, 7: A8S})
    rd(RA0)
    cm(a, Z512, Z256, Z256)
    mkprime(a, Z512)
    cm(a, CHN, A2S, Z256)
    cm(a, Z1024, Z512, Z512)
    mkprime(a, Z1024)
    cm(a, ST_, A4S, Z512)
    chain(CHN, Z2, list(range(8)), False)
    a("s_waitcnt lgkmcnt(4)")
    mm(0, RA0)
    cm(a, CHN, ST_, Z256)
    chain(ST_, Z4, list(range(8, 12)), False)
    chain(CHN, Z4, list(range(12, 16)), False)
    rd(RA1)
    cm(a, CHN, A8S, Z1024)
    cm(a, ST_, CHN, Z8)
    VLN = 2
    a(f"""
    v_and_b32 v{VLN}, 31, v0
    v_lshlrev_b32 v{VLN}, 2, v{VLN}
    v_add_u32 v{VLN}, {FL_LN}, v{VLN}
    global_load_dword v237, v{VLN}, {sp(S_WS)} sc1
    """)
    def a2():
        for tau in range(4):
            c0 = cvt(CHN, False, (2 * tau) % 4)
            c1 = cvt(ST_, False, (2 * tau + 1) % 4)
            if tau < 3:
                cmul_n(a, both(CHN, CHN, Z256) + both(ST_, ST_, Z256))
            wr2(2 * tau, c0, 2 * tau + 1, c1)
        c = cvt(C2, False, 0)
        wr1(8, c)
    a2()
    rd(RA0)
    a("s_waitcnt lgkmcnt(8)")
    mm(1, RA1)
    a("s_waitcnt lgkmcnt(0)")
    mm(2, RA0)
    ts(a, "k_kgen")
    UR = RA1
    lns = a.newlabel("LNS"); lnb = a.newlabel("LNB")
    a(f"""
    s_waitcnt vmcnt(0)
    {lnb}:
    v_cmp_ne_u32 vcc, s{S_TAG}, v237
    s_cbranch_vccnz {lns}
    s_lshl_b32 s10, s72, 12
    s_lshl_b32 s11, s7, 11
    s_add_u32 s10, s10, s11
    s_add_u32 s10, s10, {XT_OFF}
    v_lshlrev_b32 v1, 4, v0
    buffer_load_dwordx4 {vr(UR)}, v1, {srd(SRD_WS)}, s10 offen sc1
    buffer_load_dwordx4 {vr(UR+4)}, v1, {srd(SRD_WS)}, s10 offen offset:1024 sc1
    """)
    TAIL.append(f"""
    {lns}:
    s_sub_u32 s{S_BUD}, s{S_BUD}, 1
    s_cbranch_scc1 L_BAIL
    s_sleep 1
    global_load_dword v237, v{VLN}, {sp(S_WS)} sc1
    s_waitcnt vmcnt(0)
    s_branch {lnb}
    """)
    ts(a, "k_ln")
    a(f"""
    ds_write_b128 v{SC}, {vr(DT[0])}
    ds_write_b128 v{SC+1}, {vr(DT[1])}
    s_mov_b32 exec_lo, -1
    s_mov_b32 exec_hi, 0
    ds_write2_b64 v{SC+2}, v[{DT[2]}:{DT[2]+1}], v[{DT[2]+2}:{DT[2]+3}] offset0:0 offset1:16
    s_mov_b32 exec_lo, 0
    s_mov_b32 exec_hi, 1
    v_mov_b32 v1, s74
    ds_write_b32 v1, v{DT[2]}
    s_mov_b64 exec, -1
    v_mov_b32 v12, 0
    v_mov_b32 v13, 0
    v_mov_b32 v14, 0
    v_mov_b32 v15, 0
    s_cmp_eq_u32 s7, 0
    s_cbranch_scc1 KC_Z2
    v_lshl_add_u32 v1, v0, 2, s74
    s_mov_b64 exec, 15
    v_subrev_u32 v1, 16, v1
    ds_write_b32 v1, v12
    s_mov_b64 exec, 0x3fffffff
    v_lshl_add_u32 v1, v0, 4, s9
    ds_write_b128 v1, v[12:15] offset:{U_PAD}
    s_mov_b64 exec, -1
    KC_Z2:
    """)
    pair_sync(a, 1, VMY, VOT, VT)
    ts(a, "k_tab")
    for r in range(2):
        G = 32 + 24 * r
        for j in range(12):
            a(f"ds_read2st64_b32 v[{G+2*j}:{G+2*j+1}], v{GA+12*r+j} offset0:0 offset1:16")
    a(f"""
    s_lshl_b32 s10, s7, 11
    s_add_u32 s10, s10, s9
    s_add_u32 s10, s10, 32
    v_lshl_add_u32 v2, v0, 4, s10
    v_add_u32 v3, {2*CSTR}, v2
    s_waitcnt lgkmcnt(0)
    """)
    for r in range(2):
        G = 32 + 24 * r
        P = 80 + 16 * r
        p = lambda k: {0: P+8, 1: P+4, 2: P+0, 3: P+1, 4: P+2, 5: P+3}[k]
        for j in range(12):
            a(f"v_add_f32 v{G+2*j}, v{G+2*j}, v{G+2*j+1}")
        for k in range(6):
            a(f"v_cvt_pk_bf16_f32 v{p(k)}, v{G+4*k}, v{G+4*k+2}")
        a(f"""
        v_mov_b32 v{P+5}, v{p(2)}
        v_mov_b32 v{P+6}, v{p(3)}
        v_mov_b32 v{P+7}, v{p(4)}
        v_alignbit_b32 v120, v{p(2)}, v{p(1)}, 16
        v_alignbit_b32 v121, v{p(3)}, v{p(2)}, 16
        v_alignbit_b32 v122, v{p(4)}, v{p(3)}, 16
        v_alignbit_b32 v123, v{p(5)}, v{p(4)}, 16
        v_alignbit_b32 v124, v{p(1)}, v{p(0)}, 16
        v_mov_b32 v125, v120
        v_mov_b32 v126, v121
        v_mov_b32 v127, v122
        ds_write_b128 v2, v[{P}:{P+3}] offset:{1024*r}
        ds_write_b128 v2, v[120:123] offset:{1024*r + CSTR}
        ds_write_b128 v3, v[{P+4}:{P+7}] offset:{1024*r}
        ds_write_b128 v3, v[124:127] offset:{1024*r + CSTR}
        """)
    a(f"""
    s_cmp_lg_u32 s7, 0
    s_cbranch_scc1 KC_Z3
    v_lshrrev_b32 v1, 1, v0
    v_mul_u32_u24 v1, {CSTR}, v1
    v_and_b32 v4, 1, v0
    v_lshl_add_u32 v1, v4, 4, v1
    v_add_u32 v1, s9, v1
    v_mov_b32 v12, 0
    v_mov_b32 v13, 0
    v_mov_b32 v14, 0
    v_mov_b32 v15, 0
    s_mov_b64 exec, 0xff
    ds_write_b128 v1, v[12:15]
    s_mov_b64 exec, -1
    KC_Z3:
    """)
    VA_, VB_ = 2, 3
    BR, AR, CACC = 32, 64, 80
    pair_sync(a, 2, VMY, VOT, VT)
    ts(a, "k_cop")
    a(f"""
    s_lshl_b32 s10, s7, 11
    s_add_u32 s10, s10, s9
    v_lshl_add_u32 v1, v0, 4, s10
    s_waitcnt vmcnt(0)
    ds_write_b128 v1, {vr(UR)} offset:{U_OFF}
    ds_write_b128 v1, {vr(UR+4)} offset:{U_OFF+1024}
    v_lshrrev_b32 v4, 4, v0
    v_bfe_u32 v8, v0, 2, 2
    v_mul_u32_u24 v8, {CSTR}, v8
    v_and_b32 v9, 3, v0
    v_lshl_add_u32 v8, v9, 3, v8
    v_lshrrev_b32 v9, 1, v4
    v_and_b32 v10, 1, v4
    v_lshlrev_b32 v11, 5, v9
    v_lshlrev_b32 v12, 4, v10
    v_add_u32 v8, v8, v11
    v_sub_u32 v8, v8, v12
    s_lshl_b32 s10, s7, 8
    s_add_u32 s14, s10, s9
    s_add_u32 s14, s14, {32 - 8}
    v_add_u32 v{VA_}, s14, v8
    v_and_b32 v8, 15, v0
    v_lshlrev_b32 v8, 5, v8
    v_sub_u32 v8, v8, v11
    v_add_u32 v8, v8, v12
    s_sub_u32 s14, s9, s10
    s_add_u32 s14, s14, {U_OFF}
    v_add_u32 v{VB_}, s14, v8
    """)
    for i in range(32):
        a(f"v_mov_b32 v{CACC+i}, 0")
    pair_sync(a, 3, VMY, VOT, VT)
    ts(a, "k_u")
    def ldA(P):
        buf = AR + 4 * (P % 4)
        off = 512 * (P % 8) + (64 if P >= 8 else 0)
        a(f"ds_read_b64_tr_b16 v[{buf}:{buf+1}], v{VA_} offset:{off+8}")
        a(f"ds_read_b64_tr_b16 v[{buf+2}:{buf+3}], v{VA_} offset:{off}")
    for s in range(7, -1, -1):
        a(f"ds_read_b128 {vr(BR+4*s)}, v{VB_} offset:{512*s}")
    for P in range(3):
        ldA(P)
    a(f"""
    v_subrev_u32 v{VB_}, 64, v{VB_}
    s_mov_b32 s10, 4
    s_waitcnt lgkmcnt(0)
    CONV_LOOP:
    """)
    for P in range(8):
        a("s_waitcnt lgkmcnt(7)")
        ldA(P + 3)
        first = True
        for s in range(7 - P, -1, -1):
            if P == 0 and s <= 2:
                a(f"s_waitcnt lgkmcnt({3*(s+1)})")
            a(f"v_mfma_f32_16x16x32_bf16 {vr(CACC+4*(P+s))}, {vr(AR+4*(P%4))}, {vr(BR+4*s)}, {vr(CACC+4*(P+s))}")
            if first:
                a(f"ds_read_b128 {vr(BR+4*s)}, v{VB_} offset:{512*s}")
                first = False
    a(f"""
    v_add_u32 v{VA_}, 64, v{VA_}
    v_subrev_u32 v{VB_}, 64, v{VB_}
    s_sub_u32 s10, s10, 1
    s_cmp_lg_u32 s10, 0
    s_cbranch_scc1 CONV_LOOP
    """)
    ts(a, "k_conv")
    pair_sync(a, 4, VMY, VOT, VT)
    a(f"""
    s_lshl_b32 s10, s7, 12
    s_add_u32 s10, s10, s9
    v_lshl_add_u32 v2, v0, 4, s10
    v_xor_b32 v3, 4096, v2
    s_cmp_lg_u32 s7, 0
    s_cbranch_scc1 KC_X1
    """)
    assert AUX_BASE % 8192 == 0 and CH_SZ % 8192 == 0
    for t in range(4):
        a(f"ds_write_b128 v2, {vr(CACC+16+4*t)} offset:{1024*t}")
    a("s_branch KC_X2")
    a.label("KC_X1")
    for t in range(4):
        a(f"ds_write_b128 v2, {vr(CACC+4*t)} offset:{1024*t}")
    for i in range(0, 16, 2):
        a(f"v_mov_b64 v[{CACC+i}:{CACC+i+1}], v[{CACC+16+i}:{CACC+17+i}]")
    a.label("KC_X2")
    a(f"""
    v_and_b32 v8, 15, v0
    v_lshlrev_b32 v8, 5, v8
    v_lshrrev_b32 v4, 4, v0
    v_lshl_add_u32 v8, v4, 3, v8
    s_lshl_b32 s10, s7, 11
    v_add_u32 v8, s10, v8
    s_add_u32 s14, s9, {U_OFF}
    v_add_u32 v9, s14, v8
    """)
    for t in range(4):
        a(f"ds_read_b64 v[{48+2*t}:{49+2*t}], v9 offset:{512*t}")
    pair_sync(a, 5, VMY, VOT, VT)
    for t in range(4):
        a(f"ds_read_b128 {vr(32+4*t)}, v3 offset:{1024*t}")
    a(f"""
    s_lshl_b32 s10, s72, 12
    s_add_u32 s10, s10, {ST_OFF}
    v_mov_b32 v10, s77
    v_mov_b32 v11, s77
    """)
    for t in range(4):
        A = CACC + 4 * t; X = 48 + 2 * t; Pp = 32 + 4 * t
        a(f"""
        v_lshlrev_b32 v12, 16, v{X}
        v_and_b32 v13, 0xffff0000, v{X}
        v_lshlrev_b32 v14, 16, v{X+1}
        v_and_b32 v15, 0xffff0000, v{X+1}
        v_pk_fma_f32 v[{A}:{A+1}], v[12:13], v[10:11], v[{A}:{A+1}]
        v_pk_fma_f32 v[{A+2}:{A+3}], v[14:15], v[10:11], v[{A+2}:{A+3}]
        s_waitcnt lgkmcnt({3-t})
        v_pk_add_f32 v[{A}:{A+1}], v[{A}:{A+1}], v[{Pp}:{Pp+1}]
        v_pk_add_f32 v[{A+2}:{A+3}], v[{A+2}:{A+3}], v[{Pp+2}:{Pp+3}]
        v_cvt_pk_bf16_f32 v{24+2*(t%2)}, v{A}, v{A+1}
        v_cvt_pk_bf16_f32 v{25+2*(t%2)}, v{A+2}, v{A+3}
        buffer_store_dwordx2 v[{24+2*(t%2)}:{25+2*(t%2)}], v8, {srd(SRD_WS)}, s10 offen offset:{512*t} sc1
        """)
    ts(a, "k_st")
    a(f"""
    s_lshl_b32 s10, s70, 2
    s_add_u32 s10, s10, {FL_CV}
    """)
    publish(a, CNT_CV, 4, 10, 8, 9)
    ts(a, "k_end")

def build():
    a = Asm()
    a.label("L_START")
    prologue(a)
    g_path(a)
    ts_dump(a)
    a("s_branch L_END")
    a.label("R_KC")
    kc_path(a)
    ts_dump(a)
    a("s_branch L_END")
    a.label("R_SPARE")
    spare_path(a)
    ts_dump(a)
    a("s_branch L_END")
    for t in TAIL: a(t)
    return a

def finish(a, name, vgpr=256):
    lines, npad = pad_hazards(a.lines)
    body = "\n".join(("    " + l if not l.endswith(":") else l) for l in lines)
    body = body.replace("L_END", f"{name}_END").replace("L_BAIL", f"{name}_BAIL")
    hdr = open(f"cdna_kernels/{NAME}.s.ref").read().split("; Override launch")[0].rstrip("\n")
    txt = f"""{hdr}
; @launch grid=(256,1,1) block=(512,1,1) lds=163840
.amdgcn_target "amdgcn-amd-amdhsa--gfx950"
.text
.globl {name}
.p2align 8
.type {name},@function
{name}:
{body}
{name}_BAIL:
    s_mov_b64 exec, 1
    v_mov_b32 v1, 0
    v_mov_b32 v2, s2
    v_lshl_or_b32 v2, v2, 4, s3
    v_or_b32 v2, 0xbad00000, v2
    global_store_dword v1, v2, s[42:43]
    s_waitcnt vmcnt(0)
{name}_END:
    s_endpgm
L_CODE_END:
.section .rodata,"a"
.p2align 6
.amdhsa_kernel {name}
  .amdhsa_next_free_vgpr {vgpr}
  .amdhsa_next_free_sgpr 102
  .amdhsa_accum_offset {vgpr}
  .amdhsa_group_segment_fixed_size 0
  .amdhsa_kernarg_size 120
  .amdhsa_user_sgpr_count 2
  .amdhsa_user_sgpr_kernarg_segment_ptr 1
  .amdhsa_system_sgpr_workgroup_id_x 1
.end_amdhsa_kernel
"""
    print(f"{len(lines)} lines, {npad} nops", file=sys.stderr)
    if TS_ON: print("TSMAP", TSMAP, file=sys.stderr)
    return txt

if __name__ == "__main__":
    out = sys.argv[1]
    if len(sys.argv) > 2 and sys.argv[2] == "ts": TS_ON = True
    a = build()
    open(out, "w").write(finish(a, NAME + "_kernel"))
    if TS_ON:
        import json
        json.dump(TSMAP, open(out + ".tsmap", "w"))
```

```python
import sys, math, struct, os
sys.path.insert(0, "gen")
from asmlib import Asm, pad_hazards

NAME = "recurrent_scan__ssm_conv_s4d__mixer_channel_mlp__prompt"
L, D, N, F = 2048, 448, 256, 1792
H_OFF, XT_OFF, ST_OFF, FLAG_OFF = 0, 0x700000, 0x8C0000, 0xA80000
FL_LN, FL_G1, FL_CV, FL_EPOCH = FLAG_OFF, FLAG_OFF + 0x1000, FLAG_OFF + 0x3000, FLAG_OFF + 0x3800
STAT_OFF = FLAG_OFF + 0x4000
FL_XCC = FLAG_OFF + 0xC000
FL_CVC = FLAG_OFF + 0xD000
FL_CVD = FLAG_OFF + 0xE000
DBG_LN = 128
TS_OFF = 0xE00000
WS_SRD_SIZE = 0x1000000
X_BYTES = L * D * 2
W_BYTES = D * F * 2
LOG2E = math.log2(math.e)

def f2u(x): return struct.unpack("<I", struct.pack("<f", x))[0]
def hx(x): return hex(f2u(x))

S_X, S_LOGA, S_AIM, S_CRE, S_CIM, S_LOGDT, S_DSKIP, S_BX, S_W1, S_B1, S_W2, S_B2, S_OUT, S_DBG, S_WS = \
    16, 18, 20, 22, 24, 26, 28, 30, 32, 34, 36, 38, 40, 42, 44
S_EPOCH, S_TAG = 46, 47
SRD_W1, SRD_X, SRD_WS, SRD_OUT, SRD_W2 = 48, 52, 56, 60, 64
S_BUD = 69
S_XX, S_YY = 78, 79

def sp(b): return f"s[{b}:{b+1}]"
def srd(b): return f"s[{b}:{b+3}]"
def vr(b, n=4): return f"v[{b}:{b+n-1}]" if n > 1 else f"v{b}"

WSLOT = 8192; NWS = 6
XBASE = 49152; XSLOT = 16384; NXS = 4
AUX_BASE = 114688
CH_SZ = 24576
TILE_SZ = 8704; TROW = 544
CSTR = 4160
U_OFF = 17376; U_PAD = U_OFF - 480
T1_OFF = U_OFF + 28
T0_OFF = T1_OFF + 4096
FREE = 24064
GFLAG = AUX_BASE + FREE
CNT_CV = GFLAG + 24
AF_OFF = FREE + 64
DUMMY = AUX_BASE + CH_SZ + FREE + 256
G2_PSTR = 272; G2_WREG = 28672; G2_STILE = 17408; G2_SSTR = 144
SP_CNT = 65536 + 64

S_FAST, S_XCC = 14, 15
OPT = dict(kv.split("=") for kv in os.environ.get("G4OPT", "").split(",") if kv)
def opt(k, d): return int(OPT.get(k, d))

TS_ON = False
TSSEL = os.environ.get("TSSEL", "")
TSMAP = {"g": [], "k": [], "p": []}
def ts(a, name):
    if not TS_ON: return
    if TSSEL and name not in TSSEL.split(","): return
    lst = TSMAP[name[0]]
    lst.append(name)
    i = len(lst)
    assert i <= 29
    a(f"s_memtime s[98:99]")
    a("s_waitcnt lgkmcnt(0)")
    a(f"v_writelane_b32 v255, s98, {i}")
def ts_dump(a):
    if not TS_ON: return
    a(f"""
    s_memrealtime s[94:95]
    s_waitcnt lgkmcnt(0)
    v_writelane_b32 v255, s96, 0
    v_writelane_b32 v255, s100, 30
    v_writelane_b32 v255, s94, 31
    s_lshl_b32 s94, s2, 3
    s_add_u32 s94, s94, s3
    s_lshl_b32 s94, s94, 7
    s_add_u32 s94, s94, {TS_OFF}
    v_mbcnt_lo_u32_b32 v1, -1, 0
    v_lshl_add_u32 v1, v1, 2, s94
    s_mov_b64 exec, 0xffffffff
    global_store_dword v1, v255, {sp(S_WS)}
    s_mov_b64 exec, -1
    s_waitcnt vmcnt(0)
    """)

class Cnt:
    def __init__(self, name, mx): self.ops = []; self.name = name; self.mx = mx
    def issue(self, tag): self.ops.append(tag)
    def left(self, *tags):
        idx = max(i for i, t in enumerate(self.ops) if t in tags)
        return len(self.ops) - 1 - idx
    def wait(self, a, *tags):
        if not any(t in tags for t in self.ops): return
        n = self.left(*tags)
        a(f"s_waitcnt {self.name}({min(n, self.mx)})")
    def all(self, a):
        a(f"s_waitcnt {self.name}(0)")
def VM(): return Cnt("vmcnt", 63)
def LG(): return Cnt("lgkmcnt", 15)

def mk_srd(a, dst, base, size):
    a(f"""
    s_mov_b32 s{dst}, s{base}
    s_mov_b32 s{dst+1}, s{base+1}
    s_mov_b32 s{dst+2}, {hex(size)}
    s_mov_b32 s{dst+3}, 0x00020000
    """)

def bf16r(a, dst, src):
    a(f"v_cvt_pk_bf16_f32 v{dst}, v{src}, v{src}")
    a(f"v_and_b32 v{dst}, 0xffff0000, v{dst}")

def budget(a):
    a(f"s_sub_u32 s{S_BUD}, s{S_BUD}, 1")
    a("s_cbranch_scc1 L_BAIL")

TAIL = []
def spin_lds(a, tmp, addr_v, off, target):
    lab = a.newlabel("SPIN")
    a(f"{lab}:")
    budget(a)
    a(f"""
    ds_read_b32 v{tmp}, v{addr_v} offset:{off}
    s_waitcnt lgkmcnt(0)
    v_cmp_gt_u32 vcc, {target}, v{tmp}
    s_cbranch_vccnz {lab}
    """)

def check_flag(a, vval, vaddr, target):
    s = a.newlabel("CF"); b = a.newlabel("CFB")
    a(f"v_cmp_gt_u32 vcc, {target}, v{vval}")
    a(f"s_cbranch_vccnz {s}")
    a(f"{b}:")
    TAIL.append(f"""
    {s}:
    s_sub_u32 s{S_BUD}, s{S_BUD}, 1
    s_cbranch_scc1 L_BAIL
    ds_read_b32 v{vval}, v{vaddr}
    s_waitcnt lgkmcnt(0)
    v_cmp_gt_u32 vcc, {target}, v{vval}
    s_cbranch_vccnz {s}
    s_branch {b}
    """)

def publish(a, cnt_addr, nwaves, flag_off_s, vt0, vt1):
    lab = a.newlabel("PUB")
    a(f"""
    s_waitcnt vmcnt(0)
    v_mov_b32 v{vt0}, {cnt_addr}
    v_mov_b32 v{vt1}, 1
    s_mov_b64 exec, 1
    ds_add_rtn_u32 v{vt1}, v{vt0}, v{vt1}
    s_waitcnt lgkmcnt(0)
    v_cmp_eq_u32 vcc, {nwaves-1}, v{vt1}
    s_cbranch_vccz {lab}
    v_mov_b32 v{vt0}, s{flag_off_s}
    v_mov_b32 v{vt1}, s{S_TAG}
    global_store_dword v{vt0}, v{vt1}, {sp(S_WS)} sc1
    {lab}:
    s_mov_b64 exec, -1
    """)

def publish_cnt(a, cnt_addr, nwaves, base, off_s, total, rep_off_s, nrep, vt0, vt1):
    lab = a.newlabel("PUB")
    a(f"""
    s_waitcnt vmcnt(0)
    v_mov_b32 v{vt0}, {cnt_addr}
    v_mov_b32 v{vt1}, 1
    s_mov_b64 exec, 1
    ds_add_rtn_u32 v{vt1}, v{vt0}, v{vt1}
    s_waitcnt lgkmcnt(0)
    v_cmp_eq_u32 vcc, {nwaves-1}, v{vt1}
    s_cbranch_vccz {lab}
    v_mov_b32 v{vt0}, s{off_s}
    v_mov_b32 v{vt1}, 1
    global_atomic_add v{vt1}, v{vt0}, v{vt1}, {sp(base)} sc0
    s_waitcnt vmcnt(0)
    v_and_b32 v{vt1}, {total-1}, v{vt1}
    v_cmp_eq_u32 vcc, {total-1}, v{vt1}
    s_cbranch_vccz {lab}
    s_mov_b64 exec, {hex((1 << nrep) - 1)}
    v_mbcnt_lo_u32_b32 v{vt0}, -1, 0
    v_lshl_add_u32 v{vt0}, v{vt0}, 7, s{rep_off_s}
    v_mov_b32 v{vt1}, s{S_TAG}
    global_store_dword v{vt0}, v{vt1}, {sp(S_WS)} sc1
    {lab}:
    s_mov_b64 exec, -1
    """)

def epoch_load(a):
    a(f"""
    s_add_u32 s6, s{S_WS}, {FL_EPOCH}
    s_addc_u32 s7, s{S_WS+1}, 0
    s_load_dword s{S_EPOCH}, s[6:7], 0
    """)
def tag_calc(a):
    a(f"""
    s_mul_i32 s{S_TAG}, s{S_EPOCH}, 0x9E3779B1
    s_add_u32 s{S_TAG}, s{S_TAG}, 0x7F4A7C15
    """)

def prologue(a):
    if TS_ON:
        a("s_memtime s[96:97]")
        a("s_memrealtime s[100:101]")
    a(f"""
    s_load_dwordx2 s[{SRD_W1}:{SRD_W1+1}], s[0:1], 64
    s_load_dwordx2 s[{SRD_X}:{SRD_X+1}], s[0:1], 0
    s_load_dwordx16 s[16:31], s[0:1], 0
    s_load_dwordx8 s[32:39], s[0:1], 64
    s_load_dwordx4 s[40:43], s[0:1], 96
    s_load_dwordx2 s[44:45], s[0:1], 112
    v_lshrrev_b32 v1, 6, v0
    v_and_b32 v0, 63, v0
    s_cmp_ge_u32 s2, 256
    v_readfirstlane_b32 s3, v1
    s_cbranch_scc1 L_END
    s_and_b32 s{S_XX}, s2, 7
    s_lshr_b32 s{S_YY}, s2, 3
    s_mov_b32 s{S_BUD}, 0x40000
    """)
    if opt("cpf", 1):
        a(f"""
        s_cmp_lg_u32 s3, 7
        s_cbranch_scc1 L_NOPF
        s_getpc_b64 s[14:15]
        L_PC:
        s_lshl_b32 s10, s{S_YY}, 7
        v_lshl_add_u32 v2, v0, 12, s10
        s_sub_u32 s14, s14, (L_PC - L_START)
        s_subb_u32 s15, s15, 0
        v_min_u32 v2, (L_CODE_END - L_START - 4), v2
        v_mov_b32 v3, s15
        v_add_co_u32 v2, vcc, s14, v2
        v_addc_co_u32 v3, vcc, 0, v3, vcc
        global_load_dword v251, v[2:3], off
        L_NOPF:
        """)
    a(f"""
    s_cmp_ge_u32 s{S_YY}, 28
    s_cbranch_scc1 R_SPARE
    s_cmp_ge_u32 s3, 4
    s_cbranch_scc1 R_KC
    """)

VW1, VW1B = 2, 3
VX = [4, 5, 6, 7]
VA = [8, 9]
VB = [[10, 11], [12, 13]]
VSIG, VCNT = 14, 15
VFL, VFV, VB1, VB2R, VW2, VW2B, VT0 = 248, 249, 250, 251, 252, 253, 254
FB = [16, 32, 48, 64]
SEL = [80, 84]; S16 = 88
ACC = 128
W2R = 16
HB = 192
S_RB, S_FT, S_LB, S_DB = 70, 71, 72, 73
S_WO, S_XO, S_HS = 74, 75, 76
S_WF, S_WL = 77, 68
SJ = [80 + i for i in range(7)]
SH = [87 + i for i in range(7)]
POS = [12, 13, 2, 6, 7, 3, 4, 5, 8, 9, 0, 1, 10, 11]
AVAIL = [8, 8, 9, 10, 10, 10, 11, 12, 12, 12, 13, 14, 14, 14]
def acc(p, q): return ACC + 16 * (2 * p + q)

def dma_w(u):
    r = []
    if u % 2 == 0: r.append(f"s_mul_i32 s8, s{SJ[u >> 1]}, {64*3584}")
    else: r.append(f"s_add_u32 s8, s8, {32*3584}")
    r.append(f"s_add_u32 m0, s{S_WO}, {(u % NWS) * WSLOT}")
    r.append((f"buffer_load_dwordx4 v{VW1}, {srd(SRD_W1)}, s8 offen lds", ("w", u)))
    r.append((f"buffer_load_dwordx4 v{VW1B}, {srd(SRD_W1)}, s8 offen offset:1024 lds", ("w", u)))
    return r
def dma_x(p, half):
    r = []
    if half == 0: r.append(f"s_lshl_b32 s9, s{SJ[p]}, 7")
    r.append(f"s_add_u32 m0, s{S_XO}, {(p % NXS) * XSLOT}")
    for j in (2 * half, 2 * half + 1):
        off = f" offset:{1024*j}" if j else ""
        r.append((f"buffer_load_dwordx4 v{VX[j]}, {srd(SRD_X)}, s9 offen{off} lds", ("x", p)))
    return r
def dma_w2(t):
    g, m = t // 14, t % 14
    i, be = m >> 1, m & 1
    r = []
    r.append(f"s_mul_i32 s11, s{SJ[i]}, {4*14336}")
    o = (2 * g + be) * 14336
    if o: r.append(f"s_add_u32 s11, s11, {o}")
    r.append(f"s_add_u32 m0, s{S_WO}, {POS[m] * 8192}")
    r.append((f"buffer_load_dwordx4 v{VW2}, {srd(SRD_W2)}, s11 offen lds", ("w2", t)))
    r.append((f"buffer_load_dwordx4 v{VW2B}, {srd(SRD_W2)}, s11 offen offset:1024 lds", ("w2", t)))
    return r
def groups(items):
    out = []; cur = []
    for it in items:
        cur.append(it)
        if isinstance(it, tuple):
            out.append(cur); cur = []
    if cur: out.append(cur)
    return out
def emit(a, items, vm=None, lg=None):
    for it in items:
        if isinstance(it, tuple):
            txt, tag = it
            a(txt)
            if txt.startswith("ds_"): lg.issue(tag)
            else: vm.issue(tag)
        elif callable(it): it()
        else: a(it)

def g_path(a):
    vm = VM(); lg = LG()
    a.c("---- G init")
    a(f"""
    s_mul_i32 s6, s{S_YY}, 37
    s_lshr_b32 s6, s6, 8                    ; yq
    s_mul_i32 s7, s6, 7
    s_sub_u32 s7, s{S_YY}, s7               ; yr
    s_lshr_b32 s4, s6, 1
    s_lshl_b32 s{S_RB}, s{S_XX}, 1
    s_add_u32 s{S_RB}, s{S_RB}, s4
    s_and_b32 s5, s6, 1
    s_mul_i32 s{S_FT}, s5, 7
    s_add_u32 s{S_FT}, s{S_FT}, s7
    s_lshl_b32 s{S_LB}, s{S_XX}, 2
    s_add_u32 s{S_LB}, s{S_LB}, s6
    s_mov_b32 s{S_DB}, s7
    s_lshl_b32 s8, s6, 1
    s_add_u32 s{SJ[0]}, s8, s7
    s_cmp_ge_u32 s{SJ[0]}, 7
    s_cselect_b32 s9, 7, 0
    s_sub_u32 s{SJ[0]}, s{SJ[0]}, s9
    s_lshl_b32 s{S_WO}, s3, 11
    s_lshl_b32 s{S_XO}, s3, 12
    s_add_u32 s{S_XO}, s{S_XO}, {XBASE}
    s_and_b32 s{S_WF}, s3, 1
    s_lshr_b32 s{S_WL}, s3, 1
    s_mov_b32 s{SRD_W1+2}, {hex(W_BYTES)}
    s_mov_b32 s{SRD_W1+3}, 0x00020000
    s_mov_b32 s{SRD_X+2}, {hex(X_BYTES)}
    s_mov_b32 s{SRD_X+3}, 0x00020000
    ; VW1
    v_lshrrev_b32 v1, 4, v0
    v_and_b32 v16, 15, v0
    v_lshlrev_b32 v17, 2, v1
    v_xor_b32 v16, v16, v17
    v_mul_u32_u24 v{VW1}, 3584, v1
    v_lshl_add_u32 v{VW1}, v16, 4, v{VW1}
    s_lshl_b32 s10, s{S_FT}, 8
    s_mul_i32 s11, s3, {8*3584}
    s_add_u32 s10, s10, s11
    v_add_u32 v{VW1}, s10, v{VW1}
    v_add_u32 v{VW1B}, {14336-1024}, v{VW1}
    ; VX
    v_and_b32 v16, 7, v0
    v_xor_b32 v16, v16, v1
    v_lshrrev_b32 v17, 3, v0
    v_mul_u32_u24 v17, 896, v17
    v_lshl_add_u32 v{VX[0]}, v16, 4, v17
    s_lshl_b32 s10, s{S_RB}, 7
    s_lshl_b32 s11, s3, 5
    s_add_u32 s10, s10, s11
    s_mul_i32 s10, s10, 896
    v_add_u32 v{VX[0]}, s10, v{VX[0]}
    v_xor_b32 v{VX[1]}, 64, v{VX[0]}
    v_add_u32 v{VX[2]}, {14336-2048}, v{VX[0]}
    v_add_u32 v{VX[3]}, {21504-3072}, v{VX[1]}
    v_add_u32 v{VX[1]}, {7168-1024}, v{VX[1]}
    """)
    for i in range(1, 7):
        a(f"""
        s_add_u32 s{SJ[i]}, s{SJ[i-1]}, 1
        s_cmp_eq_u32 s{SJ[i]}, 7
        s_cselect_b32 s{SJ[i]}, 0, s{SJ[i]}
        """)
    a(f"""
    ; b1 (f = 128ft + 64wf + lane), b2 (d = 64db + lane) offsets
    s_lshl_b32 s10, s{S_FT}, 8
    s_lshl_b32 s11, s{S_WF}, 7
    s_add_u32 s10, s10, s11
    v_lshl_add_u32 v20, v0, 1, s10
    s_lshl_b32 s10, s{S_DB}, 7
    v_lshl_add_u32 v21, v0, 1, s10
    v_lshrrev_b32 v16, 1, v1                ; hi = g>>1
    v_bfe_u32 v17, v0, 2, 2                 ; r
    v_lshl_add_u32 v18, v16, 3, v17
    v_lshlrev_b32 v18, 8, v18               ; row*256
    v_and_b32 v19, 1, v0
    v_lshl_add_u32 v18, v19, 3, v18
    v_and_b32 v19, 1, v1
    v_lshlrev_b32 v19, 1, v19
    v_bfe_u32 v22, v0, 1, 1
    v_add_u32 v19, v19, v22
    s_lshl_b32 s10, s{S_WF}, 3
    v_add_u32 v19, s10, v19
    v_lshlrev_b32 v17, 2, v17
    v_xor_b32 v22, v19, v17
    v_lshl_add_u32 v{VA[0]}, v22, 4, v18
    v_xor_b32 v{VA[1]}, 64, v{VA[0]}
    v_and_b32 v16, 31, v0
    v_lshrrev_b32 v17, 5, v0
    v_bfe_u32 v18, v0, 1, 3
    v_xor_b32 v17, v17, v18
    v_lshlrev_b32 v16, 7, v16
    v_lshl_add_u32 v16, v17, 4, v16
    s_lshl_b32 s10, s{S_WL}, 13
    s_add_u32 s10, s10, {XBASE}
    v_add_u32 v{VB[0][0]}, s10, v16
    v_xor_b32 v{VB[0][1]}, 32, v{VB[0][0]}
    v_xor_b32 v{VB[1][0]}, 64, v{VB[0][0]}
    v_xor_b32 v{VB[1][1]}, 96, v{VB[0][0]}
    s_waitcnt lgkmcnt(0)
    """)
    ts(a, "g_karg")
    emit(a, dma_w(0) + dma_x(0, 0) + dma_x(0, 1) + dma_w(1), vm)
    a("s_barrier")
    epoch_load(a)
    emit(a, dma_w(2) + dma_x(1, 0) + dma_x(1, 1) + dma_w(3), vm)
    a(f"""
    global_load_ushort v{VB1}, v20, {sp(S_B1)}
    global_load_ushort v{VB2R}, v21, {sp(S_B2)}
    """)
    vm.issue("b1"); vm.issue("b2")
    ts(a, "g_dma")
    mk_srd(a, SRD_WS, S_WS, WS_SRD_SIZE)
    mk_srd(a, SRD_W2, S_W2, W_BYTES)
    mk_srd(a, SRD_OUT, S_OUT, X_BYTES)
    a(f"""
    ; flags
    v_and_b32 v16, 3, v0
    v_lshlrev_b32 v16, 2, v16
    v_add_u32 v{VFL}, {GFLAG}, v16
    v_lshlrev_b32 v16, 2, v0
    v_add_u32 v{VSIG}, {DUMMY}, v16
    s_lshl_b32 s10, s3, 2
    s_add_u32 s10, s10, {GFLAG}
    v_writelane_b32 v{VSIG}, s10, 0
    v_mov_b32 v{VCNT}, 1
    ; SEL
    v_and_b32 v16, 3, v0
    v_and_b32 v17, 1, v1
    v_xor_b32 v16, v16, v17
    v_mov_b32 v17, 0x3f803f80
    v_cmp_eq_u32 vcc, 0, v16
    v_cndmask_b32 v{SEL[0]}, 0, v17, vcc
    v_cmp_eq_u32 vcc, 2, v16
    v_cndmask_b32 v{SEL[1]}, 0, v17, vcc
    """)
    for k in range(1, 4):
        a(f"v_mov_b32 v{SEL[0]+k}, v{SEL[0]}")
        a(f"v_mov_b32 v{SEL[1]+k}, v{SEL[1]}")
    a(f"""
    ; w2 DMA lane offsets
    v_lshrrev_b32 v16, 3, v0
    v_and_b32 v17, 7, v0
    v_bfe_u32 v18, v0, 4, 1
    v_lshlrev_b32 v18, 2, v18
    v_xor_b32 v17, v17, v18
    v_mul_u32_u24 v16, 896, v16
    v_lshl_add_u32 v{VW2}, v17, 4, v16
    s_mul_i32 s10, s3, {448*896}
    s_lshl_b32 s11, s{S_DB}, 7
    s_add_u32 s10, s10, s11
    v_add_u32 v{VW2}, s10, v{VW2}
    v_add_u32 v{VW2B}, {7168-1024}, v{VW2}
    v_lshrrev_b32 v16, 1, v1
    v_bfe_u32 v17, v0, 2, 2
    v_lshl_add_u32 v18, v16, 2, v17
    v_lshlrev_b32 v18, 7, v18
    v_and_b32 v19, 1, v0
    v_lshl_add_u32 v18, v19, 3, v18
    v_add_u32 v18, s{S_WO}, v18
    v_and_b32 v19, 1, v1
    v_lshlrev_b32 v19, 1, v19
    v_bfe_u32 v20, v0, 1, 1
    v_add_u32 v19, v19, v20
    v_bfe_u32 v20, v0, 3, 1
    v_lshlrev_b32 v20, 2, v20
    v_xor_b32 v19, v19, v20
    v_lshl_add_u32 v{VT0}, v19, 4, v18
    s_lshl_b32 s12, s{S_RB}, 2
    s_lshl_b32 s13, s{S_WL}, 1
    s_add_u32 s12, s12, s13
    s_mul_i32 s12, s12, 112
    s_lshl_b32 s13, s{S_FT}, 3
    s_add_u32 s12, s12, s13
    s_lshl_b32 s13, s{S_WF}, 2
    s_add_u32 s12, s12, s13
    s_lshl_b32 s{S_HS}, s12, 10
    s_mul_i32 s12, s{S_LB}, {2*112}
    s_mul_i32 s13, s3, 28
    s_add_u32 s12, s12, s13
    s_lshl_b32 s12, s12, 10
    """)
    for i in range(7):
        a(f"s_lshl_b32 s13, s{SJ[i]}, 12")
        a(f"s_add_u32 s{SH[i]}, s12, s13")
    a("s_waitcnt lgkmcnt(0)")
    tag_calc(a)
    a(f"""
    s_getreg_b32 s{S_XCC}, hwreg(HW_REG_XCC_ID)
    s_lshl_b32 s10, s{S_XX}, 8
    s_add_u32 s10, s10, {FL_XCC}
    s_lshl_b32 s11, s{S_YY}, 3
    s_add_u32 s11, s11, s10
    v_mov_b32 v16, s11
    v_mov_b32 v18, s{S_TAG}
    v_mov_b32 v19, s{S_XCC}
    v_min_u32 v234, 27, v0
    v_lshl_add_u32 v234, v234, 3, s10
    s_mov_b64 exec, 1
    global_store_dwordx2 v16, v[18:19], {sp(S_WS)} sc1
    s_mov_b64 exec, -1
    """)
    vm.issue("xccst")
    if opt("prio", 2): a(f"s_setprio {opt('prio', 2)}")
    ts(a, "g_init")
    vm.wait(a, ("w", 1), ("x", 0))
    a(f"ds_write_b32 v{VSIG}, v{VCNT}")
    spin_lds(a, VFV, VFL, 0, 1)
    ts(a, "g_first")
    def reads(u, ks, fb):
        s = u % NWS
        p = u >> 1; b = u & 1
        r = []
        for fbp in range(2):
            bb = FB[fb] + 4 * fbp
            o = s * WSLOT + ks * 4096
            r.append((f"ds_read_b64_tr_b16 v[{bb}:{bb+1}], v{VA[fbp]} offset:{o}", ("f", u, ks)))
            r.append((f"ds_read_b64_tr_b16 v[{bb+2}:{bb+3}], v{VA[fbp]} offset:{o + 1024}", ("f", u, ks)))
        for lbp in range(2):
            r.append((f"ds_read_b128 {vr(FB[fb] + 8 + 4*lbp)}, v{VB[b][ks]} offset:{(p % NXS)*XSLOT + lbp*4096}", ("f", u, ks)))
        return r
    def mfma(fb, k, first=False):
        fbp, lbp = k >> 1, k & 1
        c = "0" if first else vr(acc(fbp, lbp), 16)
        a(f"v_mfma_f32_32x32x16_bf16 {vr(acc(fbp,lbp),16)}, {vr(FB[fb]+4*fbp)}, {vr(FB[fb]+8+4*lbp)}, {c}")
    def smfma(fb, fbp, first=False):
        c = "0" if first else vr(S16)
        a(f"v_mfma_f32_16x16x32_bf16 {vr(S16)}, {vr(SEL[fbp])}, {vr(FB[fb]+4*fbp)}, {c}")
    emit(a, reads(0, 0, 0) + reads(0, 1, 1), vm, lg)
    STATV = 192
    AL, GA_ = STATV, STATV + 2
    SS = 196
    AE = 200
    BN = 204
    BE = [[208, 212], [216, 220]]
    KC_ = [224, 226]
    DL = [228, 230]
    C1 = 2.0 * math.sqrt(2.0 / math.pi) * LOG2E
    C2 = C1 * 0.044715
    def stat_addr():
        return [f"s_lshl_b32 s10, s{S_RB}, 7",
                f"s_lshl_b32 s12, s{S_WL}, 6",
                f"s_add_u32 s10, s10, s12",
                f"s_lshl_b32 s10, s10, 4",
                f"s_add_u32 s10, s10, {STAT_OFF}",
                f"v_lshl_add_u32 v{VW1}, v0, 4, s10"]
    def stat_load():
        return [(f"global_load_dwordx2 v[232:233], v234, {sp(S_WS)} sc1", "xcc"),
                (f"global_load_dwordx4 {vr(STATV)}, v{VW1}, {sp(S_WS)} sc1", "stat")]
    def stat_check():
        sl = a.newlabel("STP"); bk = a.newlabel("STB")
        vm.wait(a, "stat")
        a(f"""
        v_cmp_ne_u32 vcc, s{S_TAG}, v232
        s_or_b32 s10, vcc_lo, vcc_hi
        v_cmp_ne_u32 vcc, s{S_XCC}, v233
        s_or_b32 s10, s10, vcc_lo
        s_or_b32 s10, s10, vcc_hi
        s_cmp_eq_u32 s10, 0
        s_cselect_b32 s{S_FAST}, {opt("fast", 1)}, 0
        {bk}:
        v_xor_b32 v198, s{S_TAG}, v{STATV+1}
        v_xor_b32 v199, s{S_TAG}, v{STATV+3}
        v_or_b32 v198, v198, v199
        v_cmp_ne_u32 vcc, 0, v198
        s_cbranch_vccnz {sl}
        """)
        TAIL.append(f"""
        {sl}:
        s_sub_u32 s{S_BUD}, s{S_BUD}, 1
        s_cbranch_scc1 L_BAIL
        s_sleep 1
        global_load_dwordx4 {vr(STATV)}, v{VW1}, {sp(S_WS)} sc1
        s_waitcnt vmcnt(0)
        s_branch {bk}
        """)
    def consts_b():
        r = f"""
        v_rcp_f32 v198, v{AL}
        v_mul_f32 v232, v{AL}, v{AL}
        v_mul_f32 v{DL[0]+1}, {hx(C1)}, v{AL}
        v_cvt_pk_bf16_f32 v{BN+1}, v{GA_}, v198
        v_mul_f32 v232, v232, v{AL}
        v_lshlrev_b32 v234, 16, v{BN+1}
        v_and_b32 v233, 0xffff0000, v{BN+1}
        v_mul_f32 v{KC_[0]}, {hx(C2)}, v232
        v_sub_f32 v234, v{GA_}, v234
        v_sub_f32 v233, v198, v233
        v_cvt_pk_bf16_f32 v{BN}, v{GA_}, v234
        v_cvt_pk_bf16_f32 v{BN+2}, v233, 0
        v_mov_b32 v{DL[0]}, v198
        v_mov_b32 v{KC_[1]}, v{KC_[0]}
        v_mov_b32 v{DL[1]+1}, v{DL[0]+1}
        v_mov_b32 v{DL[1]}, v198
        v_permlane32_swap_b32 v{KC_[0]}, v{KC_[1]}
        v_permlane32_swap_b32 v{DL[0]+1}, v{DL[1]+1}
        v_permlane32_swap_b32 v{DL[0]}, v{DL[1]}
        """.strip().split("\n")
        r = [x.strip() for x in r]
        for k in range(3):
            r += [f"v_mov_b32 v{BE[0][0]+k}, v{BN+k}",
                  f"v_mov_b32 v{BE[0][1]+k}, 0",
                  f"v_mov_b32 v{BE[1][0]+k}, 0",
                  f"v_mov_b32 v{BE[1][1]+k}, v{BN+k}",
                  f"v_permlane32_swap_b32 v{BE[0][0]+k}, v{BE[0][1]+k}",
                  f"v_permlane32_swap_b32 v{BE[1][0]+k}, v{BE[1][1]+k}"]
        return r
    def consts_zero():
        return [f"v_mov_b32 v{BE[p][q]+3}, 0" for p in range(2) for q in range(2)] + [f"v_mov_b32 v{AE+3}, 0", f"v_mov_b32 v{AE+2}, v{VB1}"]
    def consts_a():
        r = [f"v_mov_b32 v{SS}, v{S16}"]
        for k in range(1, 4):
            r.append(f"v_mov_b32_dpp v{SS}, v{S16+k} quad_perm:[0,1,2,3] row_mask:{hex(1 << k)} bank_mask:0xf")
        r += [f"v_cvt_pk_bf16_f32 v{AE}, v{SS}, v{SS}",
              f"v_and_b32 v199, 0xffff0000, v{AE}",
              f"v_sub_f32 v199, v{SS}, v199",
              f"v_cvt_pk_bf16_f32 v199, v199, v199",
              f"v_and_b32 v199, 0xffff, v199",
              f"v_lshl_or_b32 v{AE+1}, v{VB1}, 16, v199"]
        return r
    VA2 = [[10, 11], [12, 13]]
    VH0, VH1 = 8, 9
    def g2_addr():
        return [f"v_mov_b32 v{VA2[0][0]}, v{VT0}",
                f"v_xor_b32 v{VA2[0][1]}, 64, v{VT0}",
                f"v_add_u32 v{VA2[1][0]}, 0x10000, v{VA2[0][0]}",
                f"v_add_u32 v{VA2[1][1]}, 0x10000, v{VA2[0][1]}",
                f"v_lshlrev_b32 v{VH0}, 4, v0",
                f"v_add_u32 v{VH1}, {112*1024}, v{VH0}"]
    H_ST = opt("hst", 11)
    w2next = [0]
    SL_FLAG, SL_CHECK, SL_SIG = opt("slf", 0), opt("slc", 2), opt("sls", 8)
    for h in range(14):
        c0, c1 = (2 * h) % 4, (2 * h + 1) % 4
        n0, n1 = (2 * h + 2) % 4, (2 * h + 3) % 4
        last = (h == 13)
        post = [[] for _ in range(12)]
        dm = []
        if h + 4 < 14: dm += dma_w(h + 4)
        if h == 0: dm += dma_x(2, 0) + dma_x(2, 1)
        elif h % 2 == 1 and (h + 5) // 2 < 7: dm += dma_x((h + 5) // 2, 0)
        elif h % 2 == 0 and (h + 4) // 2 < 7: dm += dma_x((h + 4) // 2, 1)
        if h == H_ST: dm = stat_load() + dm
        while w2next[0] < 14 and AVAIL[w2next[0]] <= h:
            if not (opt("now2a", 0) and w2next[0] < 10): dm += dma_w2(w2next[0])
            w2next[0] += 1
        if opt("nodma", 0) and h < 8: dm = []
        dg = groups(dm)
        if not last:
            post[SL_FLAG].append((f"ds_read_b32 v{VFV}, v{VFL}", "flag"))
            post[SL_CHECK].append(lambda: lg.wait(a, "flag"))
            if not opt("nosync", 0): post[SL_CHECK].append(lambda h=h: check_flag(a, VFV, VFL, h + 1))
            rn = reads(h + 1, 0, n0) + reads(h + 1, 1, n1)
            if opt("nord", 0): rn = rn[:1] + rn[6:7]
            for i, r in enumerate(rn): post[SL_CHECK + 1 + i // 2].append(r)
            s0 = SL_CHECK
            for i, g in enumerate(dg):
                post[min(s0 + i, 11)] += g
            sig = []
            if h + 2 < 14 and not (opt("nodma", 0) and h < 10) and not opt("novw", 0):
                sig.append(lambda h=h: vm.wait(a, ("w", h + 2), ("x", (h + 2) >> 1)))
            sig.append(f"v_add_u32 v{VCNT}, 1, v{VCNT}")
            sig.append((f"ds_write_b32 v{VSIG}, v{VCNT}", "sig"))
            post[SL_SIG] += sig
            if h == H_ST - 1:
                for i, x in enumerate(stat_addr()): post[9 + i // 3].append(x)
            order = [("m", c0, 0), ("m", c0, 1), ("s", c0, 0), ("m", c0, 2), ("s", c0, 1), ("m", c0, 3),
                     ("m", c1, 0), ("s", c1, 0), ("m", c1, 1), ("s", c1, 1), ("m", c1, 2), ("m", c1, 3)]
            lg.wait(a, ("f", h, 0))
            for s, (kind, fb, k) in enumerate(order):
                if s == 6: lg.wait(a, ("f", h, 1))
                if kind == "m": mfma(fb, k, h == 0 and fb == c0)
                elif not opt("nos", 0): smfma(fb, k, h == 0 and s == 2)
                emit(a, post[s], vm, lg)
        else:
            lg.all(a)
            a(f"v_add_u32 v{VCNT}, 1, v{VCNT}")
            emit(a, [(f"ds_write_b32 v{VSIG}, v{VCNT}", "sig"), (f"ds_read_b32 v{VFV}, v{VFL}", "flag")], vm, lg)
            smfma(c0, 0); smfma(c0, 1); smfma(c1, 0); smfma(c1, 1)
            stat_check()
            cb = consts_zero() + consts_b() + g2_addr()
            ca = consts_a()
            fill = cb[:]
            def take(n):
                for _ in range(n):
                    if fill: a(fill.pop(0))
            mfma(c0, 0); take(6)
            lg.wait(a, "flag")
            check_flag(a, VFV, VFL, 14)
            emit(a, dg[0] + dg[1], vm, lg)
            mfma(c0, 1); take(6)
            emit(a, [(f"ds_read_b32 v{VFV}, v{VFL}", "flag")], vm, lg)
            mfma(c0, 2); take(7)
            mfma(c0, 3); take(7)
            for x in ca[:4]: a(x)
            mfma(c1, 0); take(100)
            for x in ca[4:]: a(x)
            mfma(c1, 1)
            lg.wait(a, "flag")
            check_flag(a, VFV, VFL, 15)
            r = groups(dma_w2(11) + dma_w2(12) + dma_w2(13))
            emit(a, r[0] + r[1], vm, lg)
            a(f"v_mfma_f32_32x32x16_bf16 {vr(acc(0,0),16)}, {vr(AE)}, {vr(BE[0][0])}, {vr(acc(0,0),16)}")
            emit(a, r[2] + r[3], vm, lg)
            mfma(c1, 2)
            emit(a, r[4] + r[5], vm, lg)
            a(f"v_mfma_f32_32x32x16_bf16 {vr(acc(0,1),16)}, {vr(AE)}, {vr(BE[0][1])}, {vr(acc(0,1),16)}")
            mfma(c1, 3)
            a(f"v_mfma_f32_32x32x16_bf16 {vr(acc(1,0),16)}, {vr(AE)}, {vr(BE[1][0])}, {vr(acc(1,0),16)}")
            a(f"v_mfma_f32_32x32x16_bf16 {vr(acc(1,1),16)}, {vr(AE)}, {vr(BE[1][1])}, {vr(acc(1,1),16)}")
        if h in (1, 4, 7, 10, 12) or (TSSEL and h < 13): ts(a, f"g_u{h}")
    ts(a, "g_g1end")
    def trr(t):
        o = POS[t % 14] * 8192
        bs = 1 if o >= 65536 - 2048 else 0
        o -= bs * 65536
        r = []
        for db_ in range(2):
            b = W2R + 8 * (t % 14) + 4 * db_
            r.append((f"ds_read_b64_tr_b16 v[{b}:{b+1}], v{VA2[bs][db_]} offset:{o}", ("r", t)))
            r.append((f"ds_read_b64_tr_b16 v[{b+2}:{b+3}], v{VA2[bs][db_]} offset:{o+1024}", ("r", t)))
        return r
    ex = []
    def exr(t):
        g = groups(trr(t))
        g[0] = [lambda t=t: vm.wait(a, ("w2", t))] + g[0]
        return g
    ex += exr(0) + exr(1)
    for t in range(14):
        if t + 2 < 14: ex += exr(t + 2)
        g = groups(dma_w2(t + 14))
        if opt("now2b", 0): g = [[(f"s_nop 0", ("w2", t + 14))]] if False else [[]]
        g[0] = [lambda t=t: lg.wait(a, ("r", t))] + g[0]
        ex += g
    TT = [232, 236]
    PK = [240, 192]
    skip = opt("exskip", 1)
    pc = [0]
    def put():
        pc[0] += 1
        if ex and pc[0] % skip == 0:
            emit(a, ex.pop(0), vm, lg)
    VG1F = 1
    def flag_addr():
        a(f"""
        s_lshl_b32 s12, s{S_RB}, 1
        s_add_u32 s12, s12, s{S_WL}
        s_lshl_b32 s12, s12, 5
        s_lshl_b32 s13, s{S_FT}, 1
        s_add_u32 s12, s12, s13
        s_add_u32 s12, s12, s{S_WF}
        s_lshl_b32 s12, s12, 3
        s_add_u32 s12, s12, {FL_G1}
        v_mov_b32 v2, s12
        v_mov_b32 v3, s{S_TAG}
        s_lshl_b32 s12, s{S_LB}, 5
        s_mul_i32 s13, s3, 7
        s_add_u32 s12, s12, s13
        s_lshl_b32 s12, s12, 3
        s_add_u32 s12, s12, {FL_G1}
        v_min_u32 v{VG1F}, 13, v0
        v_lshl_add_u32 v{VG1F}, v{VG1F}, 2, s12
        """)
    def flag_store(grp):
        sl = a.newlabel("FS"); bk = a.newlabel("FSB")
        a("s_mov_b64 exec, 1")
        a(f"s_cmp_eq_u32 s{S_FAST}, 0")
        a(f"s_cbranch_scc1 {sl}")
        a(f"global_store_dword v2, v3, {sp(S_WS)} offset:{4*grp}")
        a(f"{bk}:")
        TAIL.append(f"""
        {sl}:
        global_store_dword v2, v3, {sp(S_WS)} offset:{4*grp} sc1
        s_branch {bk}
        """)
        vm.issue(("fl", grp))
        a("s_mov_b64 exec, -1")
    def gelu_quadrant(p, q, pk):
        A = acc(p, q)
        kc, dl = KC_[q], DL[q]
        for pp in range(0, 8, 2):
            X = [A + 2 * pp, A + 2 * pp + 2]
            for i in range(2):
                w = TT[i]; x = X[i]
                a(f"v_pk_mul_f32 v[{w}:{w+1}], v[{x}:{x+1}], v[{x}:{x+1}]")
            for i in range(2):
                w = TT[i]
                a(f"v_pk_fma_f32 v[{w}:{w+1}], v[{w}:{w+1}], v[{kc}:{kc+1}], v[{dl}:{dl+1}] op_sel:[0,0,1] op_sel_hi:[1,0,1]")
            for i in range(2):
                w = TT[i]; x = X[i]
                a(f"v_pk_mul_f32 v[{w}:{w+1}], v[{w}:{w+1}], v[{x}:{x+1}] neg_lo:[1,0] neg_hi:[1,0]")
            for i in range(2):
                w = TT[i]
                a(f"v_exp_f32 v{w}, v{w}"); put()
                a(f"v_exp_f32 v{w+1}, v{w+1}"); put()
            for i in range(2):
                w = TT[i]
                a(f"v_pk_fma_f32 v[{w}:{w+1}], v[{w}:{w+1}], v[{dl}:{dl+1}], v[{dl}:{dl+1}] op_sel:[0,0,0] op_sel_hi:[1,0,0]")
            for i in range(2):
                w = TT[i]
                a(f"v_rcp_f32 v{w}, v{w}"); put()
                a(f"v_rcp_f32 v{w+1}, v{w+1}"); put()
            for i in range(2):
                w = TT[i]; x = X[i]
                a(f"v_pk_mul_f32 v[{w}:{w+1}], v[{x}:{x+1}], v[{w}:{w+1}]")
            for i in range(2):
                w = TT[i]
                a(f"v_cvt_pk_bf16_f32 v{pk+pp+i}, v{w}, v{w+1}")
        a(f"s_add_u32 s10, s{S_HS}, {q*112*1024 + p*2048}")
        sl = a.newlabel("HS"); bk = a.newlabel("HSB")
        a(f"s_cmp_eq_u32 s{S_FAST}, 0")
        a(f"s_cbranch_scc1 {sl}")
        a(f"buffer_store_dwordx4 {vr(pk)}, v{VH0}, {srd(SRD_WS)}, s10 offen")
        a(f"buffer_store_dwordx4 {vr(pk+4)}, v{VH0}, {srd(SRD_WS)}, s10 offen offset:1024")
        a(f"{bk}:")
        TAIL.append(f"""
        {sl}:
        buffer_store_dwordx4 {vr(pk)}, v{VH0}, {srd(SRD_WS)}, s10 offen sc1
        buffer_store_dwordx4 {vr(pk+4)}, v{VH0}, {srd(SRD_WS)}, s10 offen offset:1024 sc1
        s_branch {bk}
        """)
        vm.issue(("h", p)); vm.issue(("h", p))
        if opt("hwait", 0):
            ts(a, f"g_hs{p}{q}")
            vm.all(a)
            ts(a, f"g_ha{p}{q}")
    flag_addr()
    gelu_quadrant(0, 0, PK[0])
    gelu_quadrant(0, 1, PK[1])
    ts(a, "g_q1")
    gelu_quadrant(1, 0, PK[0])
    if opt("fla", 0) == 0:
        ts(a, "g_q2")
        vm.wait(a, ("h", 0)); flag_store(0)
        ts(a, "g_flA")
    gelu_quadrant(1, 1, PK[1])
    while ex: emit(a, ex.pop(0), vm, lg)
    if opt("fla", 0) == 1:
        vm.wait(a, ("h", 0)); flag_store(0)
    ts(a, "g_gelu")
    a.c("---- G2")
    a(f"global_load_dword v232, v{VG1F}, {sp(S_WS)} sc1")
    vm.issue("pollA")
    a(f"""
    v_mov_b32 v200, v{VB2R}
    v_mov_b32 v201, 0
    v_mov_b32 v202, 0
    v_mov_b32 v203, 0
    v_mov_b32 v204, 0x3e80
    v_mov_b32 v205, 0
    v_mov_b32 v206, 0
    v_mov_b32 v207, 0
    v_mov_b32 v208, 0
    v_mov_b32 v209, 0
    v_mov_b32 v210, 0
    v_mov_b32 v211, 0
    v_permlane32_swap_b32 v204, v208
    v_mov_b32 v208, 0
    v_mov_b32 v212, 0x3e80
    v_permlane32_swap_b32 v208, v212
    """)
    for db_ in range(2):
        for lb_ in range(2):
            B = 204 if db_ == 0 else 208
            a(f"v_mfma_f32_32x32x16_bf16 {vr(acc(db_,lb_),16)}, v[200:203], {vr(B)}, 0")
    VO, VS_, VSL, VCV = 4, 5, 6, 7
    a(f"""
    v_and_b32 v233, 15, v0
    v_lshrrev_b32 v234, 4, v0
    s_lshl_b32 s10, s{S_LB}, 6
    s_lshl_b32 s11, s3, 4
    s_add_u32 s10, s10, s11
    v_add_u32 v235, s10, v233
    v_mul_u32_u24 v235, 896, v235
    v_lshl_add_u32 v235, v234, 4, v235
    s_lshl_b32 s11, s{S_DB}, 7
    v_add_u32 v{VO}, s11, v235
    v_lshrrev_b32 v235, 3, v0
    v_and_b32 v236, 7, v0
    s_lshl_b32 s10, s{S_DB}, 6
    s_lshl_b32 s11, s3, 4
    s_add_u32 s10, s10, s11                 ; d0 + 16w
    v_add_u32 v237, s10, v235
    v_lshlrev_b32 v237, 12, v237
    v_lshl_add_u32 v{VS_}, v236, 4, v237
    s_lshl_b32 s11, s{S_LB}, 7
    s_add_u32 s11, s11, {ST_OFF}
    v_add_u32 v{VS_}, s11, v{VS_}
    s_mul_i32 s9, s3, {G2_WREG}
    v_mul_u32_u24 v{VSL}, {G2_SSTR}, v235
    v_lshl_add_u32 v{VSL}, v236, 4, v{VSL}
    v_add_u32 v{VSL}, s9, v{VSL}
    s_lshl_b32 s11, s{S_DB}, 3
    s_add_u32 s11, s11, s{S_XX}
    s_lshl_b32 s11, s11, 7
    s_add_u32 s11, s11, {FL_CVD}
    v_mov_b32 v{VCV}, s11
    """)
    ts(a, "g_prep")
    vm.wait(a, "pollA")
    ts(a, "g_pret")
    flag_store(1)
    pa = a.newlabel("PA"); pab = a.newlabel("PAB")
    a(f"""
    {pab}:
    v_cmp_ne_u32 vcc, s{S_TAG}, v232
    s_and_b32 s10, vcc_lo, 0x1555
    s_cbranch_scc1 {pa}
    """)
    TAIL.append(f"""
    {pa}:
    s_sub_u32 s{S_BUD}, s{S_BUD}, 1
    s_cbranch_scc1 L_BAIL
    global_load_dword v232, v{VG1F}, {sp(S_WS)} sc1
    s_waitcnt vmcnt(0)
    s_branch {pab}
    """)
    ts(a, "g_pollA")
    vm2 = VM(); vm2.issue(("fl", 1))
    NH = 7
    def hload(t):
        g, m = t // 14, t % 14
        i, be = m >> 1, m & 1
        b = HB + 8 * (t % NH)
        o = (2 * g + be) * 1024
        off = f" offset:{o}" if o else ""
        a(f"buffer_load_dwordx4 {vr(b)}, v{VH0}, {srd(SRD_WS)}, s{SH[i]} offen{off} sc1")
        a(f"buffer_load_dwordx4 {vr(b+4)}, v{VH1}, {srd(SRD_WS)}, s{SH[i]} offen{off} sc1")
        vm2.issue(("h", t)); vm2.issue(("h", t))
    for t in range(NH): hload(t)
    T_PB, T_CV, T_CVC = opt("tpb", 1), opt("tcv", 18), opt("tcvc", 22)
    S_NR = 12
    for t in range(28):
        vm2.wait(a, ("h", t))
        if t == 0: lg.wait(a, ("r", 13))
        if t >= 14: lg.wait(a, ("r", t))
        for db_ in range(2):
            for lb_ in range(2):
                a(f"v_mfma_f32_32x32x16_bf16 {vr(acc(db_,lb_),16)}, {vr(W2R + 8*(t%14) + 4*db_)}, {vr(HB + 8*(t%NH) + 4*lb_)}, {vr(acc(db_,lb_),16)}")
        if t + NH == 14:
            vm2.wait(a, "pollB")
            pb = a.newlabel("PB"); pbb = a.newlabel("PBB")
            a(f"""
            {pbb}:
            v_cmp_ne_u32 vcc, s{S_TAG}, v2
            s_and_b32 s10, vcc_lo, 0x2aaa
            s_cbranch_scc1 {pb}
            """)
            TAIL.append(f"""
            {pb}:
            s_sub_u32 s{S_BUD}, s{S_BUD}, 1
            s_cbranch_scc1 L_BAIL
            global_load_dword v2, v{VG1F}, {sp(S_WS)} sc1
            s_waitcnt vmcnt(0)
            s_branch {pbb}
            """)
        if t + NH < 28: hload(t + NH)
        if t == T_PB:
            a(f"global_load_dword v2, v{VG1F}, {sp(S_WS)} sc1"); vm2.issue("pollB")
        if t < 14:
            if t == 0: vm.all(a) if False else None
            emit(a, trr(t + 14), vm, lg)
        if t == 14:
            pass
        if t == 15:
            lg.wait(a, ("r", 27))
            a(f"v_mov_b32 v{VCNT}, 100")
            emit(a, [(f"ds_write_b32 v{VSIG}, v{VCNT}", "sig")], vm, lg)
        if t == T_CV:
            a(f"global_load_dword v3, v{VCV}, {sp(S_WS)} sc1"); vm2.issue("pollCV")
        if t == T_CVC:
            vm2.wait(a, "pollCV")
            a(f"""
            v_cmp_ne_u32 vcc, s{S_TAG}, v3
            s_or_b32 s{S_NR}, vcc_lo, vcc_hi
            buffer_load_dwordx4 v[24:27], v{VS_}, {srd(SRD_WS)}, 0 offen sc1
            s_mov_b32 s11, {8*4096}
            buffer_load_dwordx4 v[28:31], v{VS_}, {srd(SRD_WS)}, s11 offen sc1
            buffer_load_dwordx4 v[16:19], v{VO}, {srd(SRD_X)}, 0 offen
            buffer_load_dwordx4 v[20:23], v{VO}, {srd(SRD_X)}, 0 offen offset:64
            """)
            for _ in range(4): vm2.issue("sx")
        if t in (6, 13, 20): ts(a, f"g_s{t}")
    emit(a, [(f"ds_read_b32 v{VFV}, v{VFL}", "flag")], vm, lg)
    ts(a, "g_g2end")
    a(f"""
    s_mul_i32 s9, s3, {G2_WREG}
    v_and_b32 v1, 31, v0
    v_mul_u32_u24 v1, {G2_PSTR}, v1
    v_lshrrev_b32 v2, 5, v0
    v_lshl_add_u32 v1, v2, 4, v1
    v_add_u32 v1, s9, v1
    s_waitcnt lgkmcnt(0)
    """)
    check_flag(a, VFV, VFL, 100)
    VS = 24
    cvs = a.newlabel("CVS"); cvb = a.newlabel("CVB")
    a(f"""
    s_cmp_lg_u32 s{S_NR}, 0
    s_cbranch_scc1 {cvs}
    {cvb}:
    """)
    TAIL.append(f"""
    {cvs}:
    s_sub_u32 s{S_BUD}, s{S_BUD}, 1
    s_cbranch_scc1 L_BAIL
    global_load_dword v3, v{VCV}, {sp(S_WS)} sc1
    s_waitcnt vmcnt(0)
    v_cmp_ne_u32 vcc, s{S_TAG}, v3
    s_cbranch_vccnz {cvs}
    buffer_load_dwordx4 v[24:27], v{VS_}, {srd(SRD_WS)}, 0 offen sc1
    s_mov_b32 s11, {8*4096}
    buffer_load_dwordx4 v[28:31], v{VS_}, {srd(SRD_WS)}, s11 offen sc1
    s_branch {cvb}
    """)
    for db_ in range(2):
        for lb_ in range(2):
            for q in range(4):
                a(f"ds_write_b128 v1, {vr(acc(db_,lb_)+4*q)} offset:{lb_*32*G2_PSTR + db_*128 + q*32}")
    a(f"""
    s_waitcnt vmcnt(0)
    ds_write_b128 v{VSL}, {vr(VS)} offset:{G2_STILE}
    ds_write_b128 v{VSL}, {vr(VS+4)} offset:{G2_STILE + 8*G2_SSTR}
    v_mov_b32 v{VCNT}, 200
    s_waitcnt lgkmcnt(0)
    ds_write_b32 v{VSIG}, v{VCNT}
    v_and_b32 v1, 15, v0
    v_lshrrev_b32 v7, 4, v0
    s_lshl_b32 s11, s3, 4
    v_add_u32 v6, s11, v1
    v_mul_u32_u24 v6, {G2_PSTR}, v6
    v_lshl_add_u32 v6, v7, 5, v6
    v_lshrrev_b32 v3, 1, v7
    v_mul_u32_u24 v3, {G2_WREG}, v3
    v_and_b32 v2, 1, v7
    v_lshlrev_b32 v2, 3, v2
    v_bfe_u32 v5, v0, 2, 2
    v_add_u32 v2, v2, v5
    v_mul_u32_u24 v2, {G2_SSTR}, v2
    v_add_u32 v3, v3, v2
    v_and_b32 v2, 3, v0
    v_lshl_add_u32 v3, v2, 3, v3
    s_lshl_b32 s11, s3, 5
    v_add_u32 v3, s11, v3
    v_add_u32 v3, {G2_STILE}, v3
    v_add_u32 v2, {2*G2_WREG}, v3
    v_add_u32 v5, {2*G2_WREG}, v6
    """)
    spin_lds(a, VFV, VFL, 0, 200)
    ts(a, "g_red")
    for k in range(2):
        for w in range(4):
            base = 6 if w < 2 else 5
            for hq in range(2):
                a(f"ds_read_b128 {vr(48+32*k+8*w+4*hq)}, v{base} offset:{(w%2)*G2_WREG + k*128 + hq*16}")
        sv = 3 if k == 0 else 2
        a(f"ds_read_b64_tr_b16 v[{112+4*k}:{113+4*k}], v{sv}")
        a(f"ds_read_b64_tr_b16 v[{114+4*k}:{115+4*k}], v{sv} offset:{4*G2_SSTR}")
    a(f"""
    s_mov_b32 s70, {hx(-LOG2E)}
    s_mov_b32 s71, {hx(-LOG2E)}
    s_mov_b32 s72, 1.0
    s_mov_b32 s73, 1.0
    """)
    for k in range(2):
        B = 48 + 32 * k
        a(f"s_waitcnt lgkmcnt({10 if k == 0 else 0})")
        for p in range(4):
            x = B + 2 * p
            t0 = 120 + 8 * (p % 2)
            a(f"""
            v_pk_add_f32 v[{x}:{x+1}], v[{x}:{x+1}], v[{x+8}:{x+9}]
            v_pk_add_f32 v[{x+16}:{x+17}], v[{x+16}:{x+17}], v[{x+24}:{x+25}]
            v_lshlrev_b32 v{t0+2}, 16, v{112+4*k+p}
            v_pk_add_f32 v[{x}:{x+1}], v[{x}:{x+1}], v[{x+16}:{x+17}]
            v_and_b32 v{t0+3}, 0xffff0000, v{112+4*k+p}
            v_pk_mul_f32 v[{t0}:{t0+1}], v[{x}:{x+1}], s[70:71]
            v_exp_f32 v{t0}, v{t0}
            v_exp_f32 v{t0+1}, v{t0+1}
            v_pk_mul_f32 v[{x}:{x+1}], v[{x}:{x+1}], v[{t0+2}:{t0+3}]
            v_pk_add_f32 v[{t0}:{t0+1}], v[{t0}:{t0+1}], s[72:73]
            v_lshlrev_b32 v{t0+4}, 16, v{16+4*k+p}
            v_rcp_f32 v{t0}, v{t0}
            v_rcp_f32 v{t0+1}, v{t0+1}
            v_and_b32 v{t0+5}, 0xffff0000, v{16+4*k+p}
            v_pk_fma_f32 v[{x}:{x+1}], v[{x}:{x+1}], v[{t0}:{t0+1}], v[{t0+4}:{t0+5}]
            v_cvt_pk_bf16_f32 v{136+4*k+p}, v{x}, v{x+1}
            """)
        a(f"buffer_store_dwordx4 {vr(136+4*k)}, v{VO}, {srd(SRD_OUT)}, 0 offen offset:{64*k}")
    a(f"""
    s_or_b32 s10, s2, s3
    s_cmp_lg_u32 s10, 0
    s_cbranch_scc1 G2_NOEP
    s_add_u32 s10, s{S_EPOCH}, 1
    v_mov_b32 v1, {FL_EPOCH}
    v_mov_b32 v2, s10
    s_mov_b64 exec, 1
    global_store_dword v1, v2, {sp(S_WS)}
    s_mov_b64 exec, -1
    G2_NOEP:
    """)
    ts(a, "g_end")

def spare_path(a):
    a.c("---- spare WG: LN")
    XA, XB_ = 16, 32
    a(f"""
    s_lshl_b32 s4, s{S_XX}, 2
    s_add_u32 s4, s4, s{S_YY}
    s_sub_u32 s4, s4, 28                    ; q
    s_lshl_b32 s5, s4, 6
    s_lshl_b32 s6, s3, 3
    s_add_u32 s5, s5, s6
    v_lshrrev_b32 v1, 4, v0                 ; qd
    v_and_b32 v2, 15, v0                    ; c
    v_lshl_add_u32 v3, v1, 1, s5            ; row A
    v_mul_u32_u24 v4, 896, v3
    v_lshl_add_u32 v4, v2, 4, v4
    v_mov_b32 v{XA+12}, 0
    v_mov_b32 v{XA+13}, 0
    v_mov_b32 v{XA+14}, 0
    v_mov_b32 v{XA+15}, 0
    v_mov_b32 v{XB_+12}, 0
    v_mov_b32 v{XB_+13}, 0
    v_mov_b32 v{XB_+14}, 0
    v_mov_b32 v{XB_+15}, 0
    v_mov_b32 v5, {SP_CNT}
    v_mov_b32 v6, 0
    ds_write_b32 v5, v6
    s_waitcnt lgkmcnt(0)
    """)
    ts(a, "p_karg")
    for i in range(3):
        a(f"global_load_dwordx4 {vr(XA+4*i)}, v4, {sp(S_X)} offset:{256*i}")
        a(f"global_load_dwordx4 {vr(XB_+4*i)}, v4, {sp(S_X)} offset:{896+256*i}")
    a(f"""
    s_mov_b32 exec_lo, 0x00ff00ff
    s_mov_b32 exec_hi, 0x00ff00ff
    global_load_dwordx4 {vr(XA+12)}, v4, {sp(S_X)} offset:768
    global_load_dwordx4 {vr(XB_+12)}, v4, {sp(S_X)} offset:{896+768}
    s_mov_b64 exec, -1
    """)
    epoch_load(a)
    if opt("wpf", 2) == 1:
        a(f"""
        s_lshl_b32 s10, s4, 3
        s_add_u32 s10, s10, s3
        s_mul_i32 s10, s10, {49*128}
        v_lshl_add_u32 v7, v0, 7, s10
        s_mov_b32 exec_lo, -1
        s_mov_b32 exec_hi, 0x1ffff
        global_load_dword v250, v7, {sp(S_W2)}
        s_mov_b64 exec, -1
        """)
    npf = 1 if opt("wpf", 2) == 1 else 0
    a(f"""
    s_lshl_b32 s10, s3, 2
    v_and_b32 v8, 7, v2
    v_lshl_add_u32 v8, v8, 2, v1
    v_add_u32 v8, s10, v8
    v_and_b32 v8, 31, v8
    v_lshlrev_b32 v8, 2, v8
    v_lshl_add_u32 v8, v2, 10, v8
    v_add_u32 v9, 16384, v8
    v_add_u32 v10, 32768, v8
    v_add_u32 v11, 49152, v8
    s_mov_b32 s12, 0x3f803f80
    v_mov_b32 v48, 0
    v_mov_b32 v49, 0
    v_mov_b32 v50, 0
    v_mov_b32 v51, 0
    v_mov_b32 v52, 0
    v_mov_b32 v53, 0
    v_mov_b32 v54, 0
    v_mov_b32 v55, 0
    s_waitcnt lgkmcnt(0)
    """)
    tag_calc(a)
    a(f"s_waitcnt vmcnt({npf})")
    ts(a, "p_x")
    for i in range(16):
        k = i & 1
        a(f"v_dot2c_f32_bf16 v{48+k}, s12, v{XA+i}")
        a(f"v_dot2c_f32_bf16 v{52+k}, s12, v{XB_+i}")
        a(f"v_dot2c_f32_bf16 v{50+k}, v{XA+i}, v{XA+i}")
        a(f"v_dot2c_f32_bf16 v{54+k}, v{XB_+i}, v{XB_+i}")
    a("""
    v_add_f32 v48, v48, v49
    v_add_f32 v50, v50, v51
    v_add_f32 v52, v52, v53
    v_add_f32 v54, v54, v55
    """)
    for m in ("quad_perm:[1,0,3,2]", "quad_perm:[2,3,0,1]", "row_half_mirror", "row_mirror"):
        for r in (48, 50, 52, 54):
            a(f"v_add_f32_dpp v{r}, v{r}, v{r} {m} row_mask:0xf bank_mask:0xf")
    rows = [dict(mean=48, var=50, m1=56, sd=57, rs=58, t=59, m2=60, v2=61), dict(mean=52, var=54, m1=62, sd=63, rs=64, t=65, m2=66, v2=67)]
    def both_(f):
        for r in rows:
            for ln in f(r).strip().split("\n"): pass
        ls = [[x.strip() for x in f(r).strip().split("\n")] for r in rows]
        for x, y in zip(*ls): a(x); a(y)
    both_(lambda r: f"""
    v_mul_f32 v{r['mean']}, {hx(1.0/448)}, v{r['mean']}
    v_mul_f32 v{r['var']}, {hx(1.0/448)}, v{r['var']}
    v_fma_f32 v{r['var']}, -v{r['mean']}, v{r['mean']}, v{r['var']}
    v_max_f32 v{r['var']}, 0, v{r['var']}
    v_cvt_pk_bf16_f32 v{r['m1']}, v{r['mean']}, v{r['mean']}
    v_cvt_pk_bf16_f32 v{r['sd']}, v{r['var']}, v{r['var']}
    v_and_b32 v{r['m1']}, 0xffff0000, v{r['m1']}
    v_and_b32 v{r['sd']}, 0xffff0000, v{r['sd']}
    v_add_f32 v{r['sd']}, {hx(1e-5)}, v{r['sd']}
    v_cvt_pk_bf16_f32 v{r['sd']}, v{r['sd']}, v{r['sd']}
    v_and_b32 v{r['sd']}, 0xffff0000, v{r['sd']}
    v_sqrt_f32 v{r['sd']}, v{r['sd']}
    v_cvt_pk_bf16_f32 v{r['sd']}, v{r['sd']}, v{r['sd']}
    v_and_b32 v{r['sd']}, 0xffff0000, v{r['sd']}
    v_rcp_f32 v{r['rs']}, v{r['sd']}
    v_sub_f32 v{r['m2']}, v{r['mean']}, v{r['m1']}
    v_mul_f32 v{r['v2']}, v{r['var']}, v{r['rs']}
    v_mul_f32 v{r['m2']}, v{r['m2']}, v{r['rs']}
    v_mul_f32 v{r['v2']}, v{r['v2']}, v{r['rs']}
    v_cvt_pk_bf16_f32 v{r['m2']}, v{r['m2']}, v{r['m2']}
    v_cvt_pk_bf16_f32 v{r['v2']}, v{r['v2']}, v{r['v2']}
    v_and_b32 v{r['m2']}, 0xffff0000, v{r['m2']}
    v_and_b32 v{r['v2']}, 0xffff0000, v{r['v2']}
    v_add_f32 v{r['v2']}, {hx(1e-5)}, v{r['v2']}
    v_cvt_pk_bf16_f32 v{r['v2']}, v{r['v2']}, v{r['v2']}
    v_and_b32 v{r['v2']}, 0xffff0000, v{r['v2']}
    v_sqrt_f32 v{r['v2']}, v{r['v2']}
    v_cvt_pk_bf16_f32 v{r['v2']}, v{r['v2']}, v{r['v2']}
    v_and_b32 v{r['v2']}, 0xffff0000, v{r['v2']}
    v_rcp_f32 v{r['v2']}, v{r['v2']}
    v_fma_f32 v{r['m2']}, v{r['m2']}, v{r['sd']}, v{r['m1']}
    v_mul_f32 v{r['v2']}, v{r['rs']}, v{r['v2']}
    """)
    A_, B_ = rows
    a(f"""
    v_cmp_eq_u32 vcc, 1, v2
    v_cndmask_b32 v68, v{A_['v2']}, v{B_['v2']}, vcc
    v_cndmask_b32 v70, v{A_['m2']}, v{B_['m2']}, vcc
    v_mov_b32 v69, s{S_TAG}
    v_sub_f32 v70, 0, v70
    v_mov_b32 v71, s{S_TAG}
    v_add_u32 v12, v3, v2
    v_lshlrev_b32 v12, 4, v12
    v_add_u32 v12, {STAT_OFF}, v12
    s_mov_b32 exec_lo, 0x00030003
    s_mov_b32 exec_hi, 0x00030003
    global_store_dwordx4 v12, v[68:71], {sp(S_WS)} sc1
    s_mov_b64 exec, -1
    v_mov_b32 v72, v{A_['rs']}
    v_mov_b32 v73, v{B_['rs']}
    v_mul_f32 v74, v{A_['m1']}, v{A_['rs']}
    v_mul_f32 v75, v{B_['m1']}, v{B_['rs']}
    v_sub_f32 v74, 0, v74
    v_sub_f32 v75, 0, v75
    """)
    ts(a, "p_stat")
    if opt("wpf", 2) == 2:
        a(f"""
        s_lshl_b32 s10, s4, 3
        s_add_u32 s10, s10, s3
        s_mul_i32 s10, s10, {49*128}
        v_lshl_add_u32 v7, v0, 7, s10
        s_mov_b32 exec_lo, -1
        s_mov_b32 exec_hi, 0x1ffff
        global_load_dword v250, v7, {sp(S_W2)}
        s_mov_b64 exec, -1
        """)
    for i in range(4):
        for j in range(4):
            ra, rb = XA + 4 * i + j, XB_ + 4 * i + j
            t = 80 + 8 * (j % 2)
            a(f"""
            v_lshlrev_b32 v{t}, 16, v{ra}
            v_lshlrev_b32 v{t+1}, 16, v{rb}
            v_and_b32 v{t+2}, 0xffff0000, v{ra}
            v_and_b32 v{t+3}, 0xffff0000, v{rb}
            v_pk_fma_f32 v[{t}:{t+1}], v[{t}:{t+1}], v[72:73], v[74:75]
            v_pk_fma_f32 v[{t+2}:{t+3}], v[{t+2}:{t+3}], v[72:73], v[74:75]
            v_cvt_pk_bf16_f32 v{t+4}, v{t}, v{t+1}
            v_cvt_pk_bf16_f32 v{t+5}, v{t+2}, v{t+3}
            ds_write2_b32 v{8+i}, v{t+4}, v{t+5} offset0:{64*j} offset1:{64*j+32}
            """)
    a(f"""
    v_lshrrev_b32 v1, 3, v0
    v_and_b32 v2, 7, v0
    s_mul_i32 s10, s3, 56
    v_add_u32 v3, s10, v1                   ; d (i'=0)
    v_lshlrev_b32 v4, 7, v3                 ; d*128
    s_mul_i32 s11, s3, 7
    v_add_u32 v5, s11, v2                   ; seg + 7w
    v_lshlrev_b32 v6, 12, v3
    v_lshl_add_u32 v6, v2, 4, v6
    s_lshl_b32 s11, s4, 7
    s_add_u32 s11, s11, {XT_OFF}
    v_add_u32 v6, s11, v6
    """)
    for i in range(7):
        a(f"""
        v_add_u32 v{16+i}, {i}, v5
        v_and_b32 v{16+i}, 7, v{16+i}
        v_lshl_add_u32 v{16+i}, v{16+i}, 4, v4
        """)
    a("""
    s_waitcnt lgkmcnt(0)
    s_barrier
    """)
    a(f"""
    s_cmp_ge_u32 s4, 7
    s_cbranch_scc1 SP_NOZ
    s_cmp_lg_u32 s3, 0
    s_cbranch_scc1 SP_NOZ
    s_lshl_b32 s10, s4, 7
    s_add_u32 s10, s10, {FL_CVC}
    v_mov_b32 v8, s10
    v_mov_b32 v9, 0
    s_mov_b64 exec, 1
    global_store_dword v8, v9, {sp(S_WS)} sc1
    s_mov_b64 exec, -1
    SP_NOZ:
    """)
    for i in range(7):
        a(f"ds_read_b128 {vr(32+4*i)}, v{16+i} offset:{1024*i}")
    for i in range(7):
        a(f"s_waitcnt lgkmcnt({6-i})")
        a(f"global_store_dwordx4 v6, {vr(32+4*i)}, {sp(S_WS)} sc1")
        if i < 6: a(f"v_add_u32 v6, {8*4096}, v6")
    ts(a, "p_st")
    a(f"""
    s_mov_b32 s10, {DBG_LN}
    s_mov_b32 s11, {FL_LN}
    """)
    publish_cnt(a, SP_CNT, 8, S_DBG, 10, 32, 11, 32, 8, 9)
    ts(a, "p_end")
    if opt("l2pf", 1):
        a(f"""
        s_sub_u32 s10, s{S_YY}, 28
        s_lshl_b32 s10, s10, 3
        s_add_u32 s10, s10, s3
        s_min_u32 s10, s10, 27
        s_mul_i32 s10, s10, 57344
        v_lshl_add_u32 v7, v0, 7, s10
        """)
        for i in range(7):
            if i == 4: a("s_barrier")
            a(f"global_load_dword v{240+i}, v7, {sp(S_W2)}")
            if i < 6: a("v_add_u32 v7, 8192, v7")
        a("s_waitcnt vmcnt(0)")
        ts(a, "p_pf")

PRIME = {}
def mkprime(a, y):
    p0, p1 = PRIME[y]
    a(f"v_mov_b32 v{p0}, v{y+1}")
    a(f"v_mov_b32 v{p1}, v{y+3}")
def cmul_n(a, jobs, t0=8):
    for k, (r, x, y, yp) in enumerate(jobs):
        t = t0 + 2 * k
        a(f"v_pk_mul_f32 v[{t}:{t+1}], v[{x}:{x+1}], v[{y}:{y+1}] op_sel:[0,0] op_sel_hi:[1,0]")
    for k, (r, x, y, yp) in enumerate(jobs):
        t = t0 + 2 * k
        assert yp % 2 == 0
        a(f"v_pk_fma_f32 v[{r}:{r+1}], v[{x}:{x+1}], v[{yp}:{yp+1}], v[{t}:{t+1}] op_sel:[1,0,0] op_sel_hi:[0,0,1] neg_lo:[1,0,0]")
def both(r, x, y): return [(r + 2 * c, x + 2 * c, y + 2 * c, PRIME[y][c]) for c in range(2)]
def cm(a, r, x, y): cmul_n(a, both(r, x, y))

def pair_sync(a, val, VMY, VOT, VT):
    lab = a.newlabel("PS")
    a(f"""
    v_mov_b32 v{VT}, {val}
    s_waitcnt lgkmcnt(0)
    ds_write_b32 v{VMY}, v{VT}
    {lab}:
    s_sub_u32 s{S_BUD}, s{S_BUD}, 1
    s_cbranch_scc1 L_BAIL
    ds_read_b32 v{VT}, v{VOT}
    s_waitcnt lgkmcnt(0)
    v_cmp_gt_u32 vcc, {val}, v{VT}
    s_cbranch_vccnz {lab}
    """)

KC_GA = 204
KC_SC = 228
KC_RAW = 233
def kc_path(a):
    a.c("---- KC path")
    GA, SC, RAW = KC_GA, KC_SC, KC_RAW
    a(f"""
    s_sub_u32 s5, s3, 4                     ; k
    ; zero LDS flags
    v_and_b32 v1, 31, v0
    v_lshlrev_b32 v1, 2, v1
    v_lshrrev_b32 v2, 5, v0
    v_mul_u32_u24 v2, {CH_SZ}, v2
    v_add_u32 v1, v1, v2
    v_mov_b32 v2, 0
    ds_write_b32 v1, v2 offset:{GFLAG - 65536}
    """.replace(f"ds_write_b32 v1, v2 offset:{GFLAG - 65536}", f"v_add_u32 v1, {GFLAG}, v1\n ds_write_b32 v1, v2"))
    a(f"""
    s_mul_i32 s4, s{S_XX}, 28
    s_add_u32 s4, s4, s{S_YY}               ; cp
    s_lshr_b32 s6, s5, 1                    ; ch
    s_and_b32 s7, s5, 1                     ; hh
    s_lshl_b32 s8, s4, 1
    s_add_u32 s8, s8, s6                    ; d
    s_mul_i32 s9, s6, {CH_SZ}
    s_add_u32 s9, s9, {AUX_BASE}
    s_lshl_b32 s10, s8, 9
    s_lshl_b32 s11, s7, 8
    s_add_u32 s10, s10, s11
    v_lshl_add_u32 v1, v0, 2, s10
    s_lshl_b32 s10, s4, 2
    s_waitcnt lgkmcnt(0)
    """)
    ts(a, "k_karg")
    a(f"""
    global_load_dword v{RAW}, v1, {sp(S_LOGA)}
    global_load_dword v{RAW+1}, v1, {sp(S_AIM)}
    global_load_dword v{RAW+2}, v1, {sp(S_CRE)}
    global_load_dword v{RAW+3}, v1, {sp(S_CIM)}
    s_barrier
    s_load_dword s12, {sp(S_LOGDT)}, s10
    s_load_dword s13, {sp(S_DSKIP)}, s10
    """)
    a(f"""
    s_mov_b32 s70, s4                       ; cp
    s_mov_b32 s71, s5                       ; k
    s_mov_b32 s72, s8                       ; d
    s_mov_b32 s73, s9
    s_mov_b32 s75, s7                       ; hh
    s_mov_b32 s77, s6
    s_and_b32 s80, s2, 31
    s_lshl_b32 s80, s80, 7
    s_add_u32 s80, s80, {FL_LN}
    """)
    epoch_load(a)
    a("s_mov_b32 s7, s75")
    mk_srd(a, SRD_WS, S_WS, WS_SRD_SIZE)
    if opt("nokc", 0):
        a("s_waitcnt lgkmcnt(0)")
        tag_calc(a)
        a(f"""
        s_lshr_b32 s10, s70, 5
        s_lshl_b32 s11, s10, 10
        s_add_u32 s11, s11, {FL_CVD}
        s_lshl_b32 s10, s10, 7
        s_add_u32 s10, s10, {FL_CVC}
        v_mov_b32 v1, s80
        KC_NK:
        global_load_dword v237, v1, {sp(S_WS)} sc1
        s_waitcnt vmcnt(0)
        v_cmp_ne_u32 vcc, s{S_TAG}, v237
        s_sleep 8
        s_cbranch_vccnz KC_NK
        """)
        publish_cnt(a, CNT_CV, 4, S_WS, 10, 32, 11, 8, 8, 9)
        for nm in ("k_init","k_par","k_b","k_kgen","k_ln","k_tab","k_cop","k_u","k_conv","k_st","k_end"): ts(a, nm)
        return
    a(f"""
    v_mov_b32 v12, 0
    s_cmp_lg_u32 s7, 0
    s_cbranch_scc1 KC_Z1
    s_mov_b64 exec, 15
    v_lshl_add_u32 v1, v0, 2, s9
    ds_write_b32 v1, v12 offset:{T0_OFF-16}
    s_mov_b64 exec, -1
    KC_Z1:
    """)
    a(f"""
    s_lshl_b32 s10, s7, 10
    s_sub_u32 s10, s10, 4
    v_lshl_add_u32 v16, v0, 3, s10
    s_add_u32 s11, s9, {T1_OFF}
    s_sub_u32 s14, s11, {4*0x4280}
    s_add_u32 s15, s11, 512
    v_cvt_f32_i32 v17, v16
    v_lshl_add_u32 v18, v16, 2, s11
    """)
    for r in range(2):
        for j in range(0, 12, 2):
            o = 512 * r + j
            g0 = GA + 12 * r + j
            a(f"""
            v_add_f32 v20, {hx(float(o))}, v17
            v_add_f32 v21, {hx(float(o+1))}, v17
            v_cvt_pk_bf16_f32 v20, v20, v21
            v_bfe_i32 v21, v20, 0, 16
            v_ashrrev_i32 v20, 16, v20
            v_lshl_add_u32 v21, v21, 2, s14
            v_lshl_add_u32 v20, v20, 2, s14
            v_add_u32 v22, {4*o}, v18
            v_add_u32 v23, {4*(o+1)}, v18
            v_med3_i32 v{g0}, v22, s15, v21
            v_med3_i32 v{g0+1}, v23, s15, v20
            """)
    a(f"""
    s_xor_b32 s10, s7, 1
    s_lshl_b32 s10, s10, 12
    s_add_u32 s11, s11, s10
    v_lshrrev_b32 v4, 4, v0                 ; g
    v_and_b32 v1, 15, v0                    ; c
    v_lshlrev_b32 v20, 4, v1
    v_lshl_add_u32 v20, v4, 2, v20
    v_lshl_add_u32 v{SC}, v20, 2, s11
    v_add_u32 v{SC}, 4, v{SC}
    v_lshlrev_b32 v20, 3, v1
    v_lshl_add_u32 v20, v4, 2, v20
    v_add_u32 v20, 257, v20
    v_lshlrev_b32 v21, 2, v1
    v_lshl_add_u32 v21, v4, 6, v21
    v_add_u32 v21, {385 - 128}, v21
    v_cmp_gt_u32 vcc, 2, v4
    v_cndmask_b32 v20, v21, v20, vcc
    v_lshl_add_u32 v{SC+1}, v20, 2, s11
    v_lshlrev_b32 v20, 1, v1
    v_lshl_add_u32 v20, v4, 6, v20
    v_add_u32 v20, 513, v20
    v_lshl_add_u32 v{SC+2}, v20, 2, s11
    s_mov_b32 s74, s11
    """)
    Z1, Z2, Z4, Z8, Z16, CHN, C2, A2S, A4S, A8S, Z256, Z512, Z1024, ST_ = 32, 36, 40, 44, 48, 52, 56, 60, 64, 68, 72, 76, 80, 84
    DT = [92, 96, 100]
    RB, RA0, RA1 = 108, 140, 172
    VMY, VOT, VT = 6, 7, 5
    VTR = 3
    VTW = [24, 25, 26, 27]
    CV = 16
    a(f"""
    s_mov_b32 s9, s73
    s_lshl_b32 s10, s7, 2
    s_add_u32 s10, s10, s9
    s_add_u32 s10, s10, {AF_OFF}
    v_mov_b32 v{VMY}, s10
    s_xor_b32 s10, s10, 4
    v_mov_b32 v{VOT}, s10
    s_mul_i32 s10, s7, {TILE_SZ}
    s_add_u32 s10, s10, s9
    v_lshl_add_u32 v{VTW[0]}, v0, 3, s10
    v_add_u32 v{VTW[1]}, {4*TROW}, v{VTW[0]}
    v_add_u32 v{VTW[2]}, {8*TROW}, v{VTW[0]}
    v_add_u32 v{VTW[3]}, {12*TROW}, v{VTW[0]}
    v_and_b32 v1, 15, v0
    v_mul_u32_u24 v{VTR}, {TROW}, v1
    v_lshrrev_b32 v4, 4, v0
    v_lshl_add_u32 v{VTR}, v4, 4, v{VTR}
    v_add_u32 v{VTR}, s10, v{VTR}
    s_waitcnt lgkmcnt(0)
    """)
    tag_calc(a)
    a(f"""
    s_lshl_b32 s10, s77, 4
    s_lshr_b32 s12, s12, s10
    s_lshl_b32 s76, s12, 16                 ; log_dt (f32 bits)
    s_lshr_b32 s13, s13, s10
    s_lshl_b32 s77, s13, 16                 ; D_skip (f32 bits)
    v_mov_b32 v1, {hx(LOG2E)}
    v_mul_f32 v4, s76, v1
    v_exp_f32 v4, v4
    """)
    bf16r(a, 4, 4)
    if opt("kprio", 0): a(f"s_setprio {opt('kprio', 0)}")
    ts(a, "k_init")
    a(f"""
    s_waitcnt vmcnt(0)
    """)
    ts(a, "k_par")
    a(f"""
    v_lshlrev_b32 v12, 16, v{RAW}
    v_and_b32 v13, 0xffff0000, v{RAW}
    v_mul_f32 v12, v12, v1
    v_mul_f32 v13, v13, v1
    v_exp_f32 v12, v12
    v_exp_f32 v13, v13
    v_cvt_pk_bf16_f32 v12, v12, v13
    v_lshlrev_b32 v14, 16, v12
    v_and_b32 v15, 0xffff0000, v12
    v_mul_f32 v14, v14, v4
    v_mul_f32 v15, v15, v4
    v_mul_f32 v14, v14, v1
    v_mul_f32 v15, v15, v1
    v_exp_f32 v14, -v14
    v_exp_f32 v15, -v15
    v_lshlrev_b32 v16, 16, v{RAW+1}
    v_and_b32 v17, 0xffff0000, v{RAW+1}
    v_mul_f32 v16, v16, v4
    v_mul_f32 v17, v17, v4
    v_mul_f32 v16, 0.15915494, v16
    v_mul_f32 v17, 0.15915494, v17
    v_rndne_f32 v18, v16
    v_rndne_f32 v19, v17
    v_sub_f32 v16, v16, v18
    v_sub_f32 v17, v17, v19
    v_cos_f32 v18, v16
    v_sin_f32 v19, v16
    v_cos_f32 v20, v17
    v_sin_f32 v21, v17
    v_mul_f32 v{Z1}, v14, v18
    v_mul_f32 v{Z1+1}, v14, v19
    v_mul_f32 v{Z1+2}, v15, v20
    v_mul_f32 v{Z1+3}, v15, v21
    v_add_f32 v4, v4, v4
    v_lshlrev_b32 v16, 16, v{RAW+2}
    v_and_b32 v17, 0xffff0000, v{RAW+2}
    v_lshlrev_b32 v18, 16, v{RAW+3}
    v_and_b32 v19, 0xffff0000, v{RAW+3}
    v_mul_f32 v{C2}, v16, v4
    v_mul_f32 v{C2+1}, v18, v4
    v_mul_f32 v{C2+2}, v17, v4
    v_mul_f32 v{C2+3}, v19, v4
    """)
    PRIME.update({Z1: (88, 90), Z2: (104, 106), Z4: (238, 240), Z8: (242, 244), Z16: (246, 248), Z256: (250, 252), Z512: (28, 30), Z1024: (254, 232)})
    mkprime(a, Z1); cm(a, Z2, Z1, Z1); mkprime(a, Z2); cm(a, Z4, Z2, Z2); mkprime(a, Z4); cm(a, Z8, Z4, Z4); mkprime(a, Z8); cm(a, Z16, Z8, Z8); mkprime(a, Z16)
    state = {"n": 0}
    def cvt(src, conj, slot):
        neg = "-" if conj else ""
        c = CV + 2 * slot
        a(f"v_cvt_pk_bf16_f32 v{c}, v{src}, {neg}v{src+1}")
        a(f"v_cvt_pk_bf16_f32 v{c+1}, v{src+2}, {neg}v{src+3}")
        return c
    def wr2(r0, c0, r1, c1):
        q = r0 // 4
        o0 = (r0 - 4 * q) * TROW // 8; o1 = (r1 - 4 * q) * TROW // 8
        assert 0 <= o0 <= 255 and 0 <= o1 <= 255
        a(f"ds_write2_b64 v{VTW[q]}, v[{c0}:{c0+1}], v[{c1}:{c1+1}] offset0:{o0} offset1:{o1}")
    def wr1(r, c):
        a(f"ds_write_b64 v{VTW[0]}, v[{c}:{c+1}] offset:{r*TROW}")
    def chain(reg, ratio, rows, conj, save=None, last_mul=False):
        pend = None
        for i, r in enumerate(rows):
            slot = (state["n"] % 4); state["n"] += 1
            c = cvt(reg, conj, slot)
            if save and r in save:
                s = save[r]
                a(f"v_mov_b64 v[{s}:{s+1}], v[{reg}:{reg+1}]")
                a(f"v_mov_b64 v[{s+2}:{s+3}], v[{reg+2}:{reg+3}]")
            if i + 1 < len(rows) or last_mul:
                cm(a, reg, reg, ratio)
            if pend is None:
                if i + 1 < len(rows) and rows[i + 1] // 4 == r // 4 and abs(rows[i + 1] - r) * TROW // 8 <= 255:
                    pend = (r, c)
                else:
                    wr1(r, c)
            else:
                wr2(pend[0], pend[1], r, c); pend = None
        assert pend is None
    def rd(dest):
        for kk in range(8):
            a(f"ds_read_b128 {vr(dest+4*kk)}, v{VTR} offset:{64*kk}")
    def mm(dt, A):
        for kk in range(8):
            c = "0" if kk == 0 else vr(DT[dt])
            a(f"v_mfma_f32_16x16x32_bf16 {vr(DT[dt])}, {vr(A+4*kk)}, {vr(RB+4*kk)}, {c}")
    a(f"""
    v_mov_b32 v{CV+6}, 0x3f80
    v_mov_b32 v{CV+7}, 0x3f80
    v_mov_b64 v[{CHN}:{CHN+1}], v[{Z16}:{Z16+1}]
    v_mov_b64 v[{CHN+2}:{CHN+3}], v[{Z16+2}:{Z16+3}]
    """)
    wr1(0, CV + 6)
    state["n"] = 0
    chain(CHN, Z16, [1], True, last_mul=True)
    chain(CHN, Z16, list(range(2, 16)), True, last_mul=True)
    rd(RB)
    a(f"v_mov_b64 v[{Z256}:{Z256+1}], v[{CHN}:{CHN+1}]")
    a(f"v_mov_b64 v[{Z256+2}:{Z256+3}], v[{CHN+2}:{CHN+3}]")
    mkprime(a, Z256)
    ts(a, "k_b")
    cm(a, CHN, C2, Z1)
    chain(CHN, Z1, list(range(16)), False, save={1: A2S, 3: A4S, 7: A8S})
    rd(RA0)
    cm(a, Z512, Z256, Z256)
    mkprime(a, Z512)
    cm(a, CHN, A2S, Z256)
    cm(a, Z1024, Z512, Z512)
    mkprime(a, Z1024)
    cm(a, ST_, A4S, Z512)
    chain(CHN, Z2, list(range(8)), False)
    a("s_waitcnt lgkmcnt(4)")
    mm(0, RA0)
    cm(a, CHN, ST_, Z256)
    chain(ST_, Z4, list(range(8, 12)), False)
    chain(CHN, Z4, list(range(12, 16)), False)
    rd(RA1)
    cm(a, CHN, A8S, Z1024)
    cm(a, ST_, CHN, Z8)
    VLN = 2
    a(f"""
    v_mov_b32 v{VLN}, s80
    global_load_dword v237, v{VLN}, {sp(S_WS)} sc1
    """)
    def a2():
        for tau in range(4):
            c0 = cvt(CHN, False, (2 * tau) % 4)
            c1 = cvt(ST_, False, (2 * tau + 1) % 4)
            if tau < 3:
                cmul_n(a, both(CHN, CHN, Z256) + both(ST_, ST_, Z256))
            wr2(2 * tau, c0, 2 * tau + 1, c1)
        c = cvt(C2, False, 0)
        wr1(8, c)
    a2()
    rd(RA0)
    a("s_waitcnt lgkmcnt(8)")
    mm(1, RA1)
    a("s_waitcnt lgkmcnt(0)")
    mm(2, RA0)
    ts(a, "k_kgen")
    UR = RA1
    uld = f"""
    s_lshl_b32 s10, s72, 12
    s_lshl_b32 s11, s7, 11
    s_add_u32 s10, s10, s11
    s_add_u32 s10, s10, {XT_OFF}
    v_lshlrev_b32 v1, 4, v0
    buffer_load_dwordx4 {vr(UR)}, v1, {srd(SRD_WS)}, s10 offen sc1
    buffer_load_dwordx4 {vr(UR+4)}, v1, {srd(SRD_WS)}, s10 offen offset:1024 sc1
    """
    a(f"""
    s_waitcnt vmcnt(0)
    v_cmp_ne_u32 vcc, s{S_TAG}, v237
    s_or_b32 s79, vcc_lo, vcc_hi
    s_cbranch_scc1 KC_NOU
    {uld}
    KC_NOU:
    """)
    ts(a, "k_ln")
    a(f"""
    ds_write_b128 v{SC}, {vr(DT[0])}
    ds_write_b128 v{SC+1}, {vr(DT[1])}
    s_mov_b32 exec_lo, -1
    s_mov_b32 exec_hi, 0
    ds_write2_b64 v{SC+2}, v[{DT[2]}:{DT[2]+1}], v[{DT[2]+2}:{DT[2]+3}] offset0:0 offset1:16
    s_mov_b32 exec_lo, 0
    s_mov_b32 exec_hi, 1
    v_mov_b32 v1, s74
    ds_write_b32 v1, v{DT[2]}
    s_mov_b64 exec, -1
    v_mov_b32 v12, 0
    v_mov_b32 v13, 0
    v_mov_b32 v14, 0
    v_mov_b32 v15, 0
    s_cmp_eq_u32 s7, 0
    s_cbranch_scc1 KC_Z2
    v_lshl_add_u32 v1, v0, 2, s74
    s_mov_b64 exec, 15
    v_subrev_u32 v1, 16, v1
    ds_write_b32 v1, v12
    s_mov_b64 exec, 0x3fffffff
    v_lshl_add_u32 v1, v0, 4, s9
    ds_write_b128 v1, v[12:15] offset:{U_PAD}
    s_mov_b64 exec, -1
    KC_Z2:
    """)
    pair_sync(a, 1, VMY, VOT, VT)
    ts(a, "k_tab")
    for r in range(2):
        G = 32 + 24 * r
        for j in range(12):
            a(f"ds_read2st64_b32 v[{G+2*j}:{G+2*j+1}], v{GA+12*r+j} offset0:0 offset1:16")
    a(f"""
    s_lshl_b32 s10, s7, 11
    s_add_u32 s10, s10, s9
    s_add_u32 s10, s10, 32
    v_lshl_add_u32 v2, v0, 4, s10
    v_add_u32 v3, {2*CSTR}, v2
    s_waitcnt lgkmcnt(0)
    """)
    for r in range(2):
        G = 32 + 24 * r
        P = 80 + 16 * r
        p = lambda k: {0: P+8, 1: P+4, 2: P+0, 3: P+1, 4: P+2, 5: P+3}[k]
        for j in range(12):
            a(f"v_add_f32 v{G+2*j}, v{G+2*j}, v{G+2*j+1}")
        for k in range(6):
            a(f"v_cvt_pk_bf16_f32 v{p(k)}, v{G+4*k}, v{G+4*k+2}")
        a(f"""
        v_mov_b32 v{P+5}, v{p(2)}
        v_mov_b32 v{P+6}, v{p(3)}
        v_mov_b32 v{P+7}, v{p(4)}
        v_alignbit_b32 v120, v{p(2)}, v{p(1)}, 16
        v_alignbit_b32 v121, v{p(3)}, v{p(2)}, 16
        v_alignbit_b32 v122, v{p(4)}, v{p(3)}, 16
        v_alignbit_b32 v123, v{p(5)}, v{p(4)}, 16
        v_alignbit_b32 v124, v{p(1)}, v{p(0)}, 16
        v_mov_b32 v125, v120
        v_mov_b32 v126, v121
        v_mov_b32 v127, v122
        ds_write_b128 v2, v[{P}:{P+3}] offset:{1024*r}
        ds_write_b128 v2, v[120:123] offset:{1024*r + CSTR}
        ds_write_b128 v3, v[{P+4}:{P+7}] offset:{1024*r}
        ds_write_b128 v3, v[124:127] offset:{1024*r + CSTR}
        """)
    a(f"""
    s_cmp_lg_u32 s7, 0
    s_cbranch_scc1 KC_Z3
    v_lshrrev_b32 v1, 1, v0
    v_mul_u32_u24 v1, {CSTR}, v1
    v_and_b32 v4, 1, v0
    v_lshl_add_u32 v1, v4, 4, v1
    v_add_u32 v1, s9, v1
    v_mov_b32 v12, 0
    v_mov_b32 v13, 0
    v_mov_b32 v14, 0
    v_mov_b32 v15, 0
    s_mov_b64 exec, 0xff
    ds_write_b128 v1, v[12:15]
    s_mov_b64 exec, -1
    KC_Z3:
    """)
    VA_, VB_ = 2, 3
    BR, AR, CACC = 32, 64, 80
    pair_sync(a, 2, VMY, VOT, VT)
    ts(a, "k_cop")
    TAIL.append(f"""
    KC_LNS:
    s_sub_u32 s{S_BUD}, s{S_BUD}, 1
    s_cbranch_scc1 L_BAIL
    v_mov_b32 v1, s80
    global_load_dword v237, v1, {sp(S_WS)} sc1
    s_waitcnt vmcnt(0)
    v_cmp_ne_u32 vcc, s{S_TAG}, v237
    s_cbranch_vccz KC_LNOK
    s_sleep {opt("lnslp", 4)}
    s_branch KC_LNS
    KC_LNOK:
    {uld}
    s_branch KC_HAVEU
    """)
    a(f"""
    s_cmp_lg_u32 s79, 0
    s_cbranch_scc1 KC_LNS
    KC_HAVEU:
    """)
    ts(a, "k_lnok")
    a(f"""
    s_lshl_b32 s10, s7, 11
    s_add_u32 s10, s10, s9
    v_lshl_add_u32 v1, v0, 4, s10
    s_waitcnt vmcnt(0)
    ds_write_b128 v1, {vr(UR)} offset:{U_OFF}
    ds_write_b128 v1, {vr(UR+4)} offset:{U_OFF+1024}
    v_lshrrev_b32 v4, 4, v0
    v_bfe_u32 v8, v0, 2, 2
    v_mul_u32_u24 v8, {CSTR}, v8
    v_and_b32 v9, 3, v0
    v_lshl_add_u32 v8, v9, 3, v8
    v_lshrrev_b32 v9, 1, v4
    v_and_b32 v10, 1, v4
    v_lshlrev_b32 v11, 5, v9
    v_lshlrev_b32 v12, 4, v10
    v_add_u32 v8, v8, v11
    v_sub_u32 v8, v8, v12
    s_lshl_b32 s10, s7, 8
    s_add_u32 s14, s10, s9
    s_add_u32 s14, s14, {32 - 8}
    v_add_u32 v{VA_}, s14, v8
    v_and_b32 v8, 15, v0
    v_lshlrev_b32 v8, 5, v8
    v_sub_u32 v8, v8, v11
    v_add_u32 v8, v8, v12
    s_sub_u32 s14, s9, s10
    s_add_u32 s14, s14, {U_OFF}
    v_add_u32 v{VB_}, s14, v8
    """)
    for i in range(32):
        a(f"v_mov_b32 v{CACC+i}, 0")
    pair_sync(a, 3, VMY, VOT, VT)
    ts(a, "k_u")
    def ldA(P):
        buf = AR + 4 * (P % 4)
        off = 512 * (P % 8) + (64 if P >= 8 else 0)
        a(f"ds_read_b64_tr_b16 v[{buf}:{buf+1}], v{VA_} offset:{off+8}")
        a(f"ds_read_b64_tr_b16 v[{buf+2}:{buf+3}], v{VA_} offset:{off}")
    for s in range(7, -1, -1):
        a(f"ds_read_b128 {vr(BR+4*s)}, v{VB_} offset:{512*s}")
    for P in range(3):
        ldA(P)
    a(f"""
    v_subrev_u32 v{VB_}, 64, v{VB_}
    s_mov_b32 s10, 4
    s_waitcnt lgkmcnt(0)
    CONV_LOOP:
    """)
    for P in range(8):
        a("s_waitcnt lgkmcnt(7)")
        ldA(P + 3)
        first = True
        for s in range(7 - P, -1, -1):
            if P == 0 and s <= 2:
                a(f"s_waitcnt lgkmcnt({3*(s+1)})")
            a(f"v_mfma_f32_16x16x32_bf16 {vr(CACC+4*(P+s))}, {vr(AR+4*(P%4))}, {vr(BR+4*s)}, {vr(CACC+4*(P+s))}")
            if first:
                a(f"ds_read_b128 {vr(BR+4*s)}, v{VB_} offset:{512*s}")
                first = False
    a(f"""
    v_add_u32 v{VA_}, 64, v{VA_}
    v_subrev_u32 v{VB_}, 64, v{VB_}
    s_sub_u32 s10, s10, 1
    s_cmp_lg_u32 s10, 0
    s_cbranch_scc1 CONV_LOOP
    """)
    ts(a, "k_conv")
    pair_sync(a, 4, VMY, VOT, VT)
    a(f"""
    s_lshl_b32 s10, s7, 12
    s_add_u32 s10, s10, s9
    v_lshl_add_u32 v2, v0, 4, s10
    v_xor_b32 v3, 4096, v2
    s_cmp_lg_u32 s7, 0
    s_cbranch_scc1 KC_X1
    """)
    assert AUX_BASE % 8192 == 0 and CH_SZ % 8192 == 0
    for t in range(4):
        a(f"ds_write_b128 v2, {vr(CACC+16+4*t)} offset:{1024*t}")
    a("s_branch KC_X2")
    a.label("KC_X1")
    for t in range(4):
        a(f"ds_write_b128 v2, {vr(CACC+4*t)} offset:{1024*t}")
    for i in range(0, 16, 2):
        a(f"v_mov_b64 v[{CACC+i}:{CACC+i+1}], v[{CACC+16+i}:{CACC+17+i}]")
    a.label("KC_X2")
    a(f"""
    v_and_b32 v8, 15, v0
    v_lshlrev_b32 v8, 5, v8
    v_lshrrev_b32 v4, 4, v0
    v_lshl_add_u32 v8, v4, 3, v8
    s_lshl_b32 s10, s7, 11
    v_add_u32 v8, s10, v8
    s_add_u32 s14, s9, {U_OFF}
    v_add_u32 v9, s14, v8
    """)
    for t in range(4):
        a(f"ds_read_b64 v[{48+2*t}:{49+2*t}], v9 offset:{512*t}")
    pair_sync(a, 5, VMY, VOT, VT)
    for t in range(4):
        a(f"ds_read_b128 {vr(32+4*t)}, v3 offset:{1024*t}")
    a(f"""
    s_lshl_b32 s10, s72, 12
    s_add_u32 s10, s10, {ST_OFF}
    v_mov_b32 v10, s77
    v_mov_b32 v11, s77
    """)
    for t in range(4):
        A = CACC + 4 * t; X = 48 + 2 * t; Pp = 32 + 4 * t
        a(f"""
        v_lshlrev_b32 v12, 16, v{X}
        v_and_b32 v13, 0xffff0000, v{X}
        v_lshlrev_b32 v14, 16, v{X+1}
        v_and_b32 v15, 0xffff0000, v{X+1}
        v_pk_fma_f32 v[{A}:{A+1}], v[12:13], v[10:11], v[{A}:{A+1}]
        v_pk_fma_f32 v[{A+2}:{A+3}], v[14:15], v[10:11], v[{A+2}:{A+3}]
        s_waitcnt lgkmcnt({3-t})
        v_pk_add_f32 v[{A}:{A+1}], v[{A}:{A+1}], v[{Pp}:{Pp+1}]
        v_pk_add_f32 v[{A+2}:{A+3}], v[{A+2}:{A+3}], v[{Pp+2}:{Pp+3}]
        v_cvt_pk_bf16_f32 v{24+2*(t%2)}, v{A}, v{A+1}
        v_cvt_pk_bf16_f32 v{25+2*(t%2)}, v{A+2}, v{A+3}
        buffer_store_dwordx2 v[{24+2*(t%2)}:{25+2*(t%2)}], v8, {srd(SRD_WS)}, s10 offen offset:{512*t} sc1
        """)
    ts(a, "k_st")
    a(f"""
    s_lshr_b32 s10, s70, 5
    s_lshl_b32 s11, s10, 10
    s_add_u32 s11, s11, {FL_CVD}
    s_lshl_b32 s10, s10, 7
    s_add_u32 s10, s10, {FL_CVC}
    """)
    publish_cnt(a, CNT_CV, 4, S_WS, 10, 32, 11, 8, 8, 9)
    ts(a, "k_end")

def build():
    a = Asm()
    a.label("L_START")
    prologue(a)
    g_path(a)
    ts_dump(a)
    a("s_branch L_END")
    a.label("R_KC")
    kc_path(a)
    ts_dump(a)
    a("s_branch L_END")
    a.label("R_SPARE")
    spare_path(a)
    ts_dump(a)
    a("s_branch L_END")
    for t in TAIL: a(t)
    return a

def finish(a, name, vgpr=256):
    lines, npad = pad_hazards(a.lines)
    body = "\n".join(("    " + l if not l.endswith(":") else l) for l in lines)
    body = body.replace("L_END", f"{name}_END").replace("L_BAIL", f"{name}_BAIL")
    hdr = open(f"cdna_kernels/{NAME}.s.ref").read().split("; Override launch")[0].rstrip("\n")
    txt = f"""{hdr}
; @launch grid=(256,1,1) block=(512,1,1) lds=163840
.amdgcn_target "amdgcn-amd-amdhsa--gfx950"
.text
.globl {name}
.p2align 8
.type {name},@function
{name}:
{body}
{name}_BAIL:
    s_mov_b64 exec, 1
    v_mov_b32 v1, 0
    v_mov_b32 v2, s2
    v_lshl_or_b32 v2, v2, 4, s3
    v_or_b32 v2, 0xbad00000, v2
    global_store_dword v1, v2, s[42:43]
    s_waitcnt vmcnt(0)
{name}_END:
    s_endpgm
L_CODE_END:
.section .rodata,"a"
.p2align 6
.amdhsa_kernel {name}
  .amdhsa_next_free_vgpr {vgpr}
  .amdhsa_next_free_sgpr 102
  .amdhsa_accum_offset {vgpr}
  .amdhsa_group_segment_fixed_size 0
  .amdhsa_kernarg_size 120
  .amdhsa_user_sgpr_count 2
  .amdhsa_user_sgpr_kernarg_segment_ptr 1
  .amdhsa_system_sgpr_workgroup_id_x 1
.end_amdhsa_kernel
"""
    print(f"{len(lines)} lines, {npad} nops", file=sys.stderr)
    if TS_ON: print("TSMAP", TSMAP, file=sys.stderr)
    return txt

if __name__ == "__main__":
    out = sys.argv[1]
    if len(sys.argv) > 2 and sys.argv[2] == "ts": TS_ON = True
    a = build()
    open(out, "w").write(finish(a, NAME + "_kernel"))
    if TS_ON:
        import json
        json.dump(TSMAP, open(out + ".tsmap", "w"))
```

```python
import sys, math, struct, os
sys.path.insert(0, "gen")
from asmlib import Asm, pad_hazards

NAME = "recurrent_scan__ssm_conv_s4d__mixer_channel_mlp__prompt"
L, D, N, F = 2048, 448, 256, 1792
H_OFF, XT_OFF, ST_OFF, FLAG_OFF = 0, 0x700000, 0x8C0000, 0xA80000
FL_LN, FL_G1, FL_CV, FL_EPOCH = FLAG_OFF, FLAG_OFF + 0x1000, FLAG_OFF + 0x3000, FLAG_OFF + 0x3800
STAT_OFF = FLAG_OFF + 0x4000
FL_XCC = FLAG_OFF + 0xC000
FL_CVC = FLAG_OFF + 0xD000
FL_CVD = FLAG_OFF + 0xE000
DBG_LN = 128
TS_OFF = 0xE00000
WS_SRD_SIZE = 0x1000000
X_BYTES = L * D * 2
W_BYTES = D * F * 2
LOG2E = math.log2(math.e)

def f2u(x): return struct.unpack("<I", struct.pack("<f", x))[0]
def hx(x): return hex(f2u(x))

S_X, S_LOGA, S_AIM, S_CRE, S_CIM, S_LOGDT, S_DSKIP, S_BX, S_W1, S_B1, S_W2, S_B2, S_OUT, S_DBG, S_WS = \
    16, 18, 20, 22, 24, 26, 28, 30, 32, 34, 36, 38, 40, 42, 44
S_EPOCH, S_TAG = 46, 47
SRD_W1, SRD_X, SRD_WS, SRD_OUT, SRD_W2 = 48, 52, 56, 60, 64
S_BUD = 69
S_XX, S_YY = 78, 79

def sp(b): return f"s[{b}:{b+1}]"
def srd(b): return f"s[{b}:{b+3}]"
def vr(b, n=4): return f"v[{b}:{b+n-1}]" if n > 1 else f"v{b}"

WSLOT = 8192; NWS = 6
XBASE = 49152; XSLOT = 16384; NXS = 4
AUX_BASE = 114688
CH_SZ = 24576
TILE_SZ = 8704; TROW = 544
CSTR = 4160
U_OFF = 17376; U_PAD = U_OFF - 480
T1_OFF = U_OFF + 28
T0_OFF = T1_OFF + 4096
FREE = 24064
GFLAG = AUX_BASE + FREE
CNT_CV = GFLAG + 24
AF_OFF = FREE + 64
DUMMY = AUX_BASE + CH_SZ + FREE + 256
G2_PSTR = 272; G2_WREG = 28672; G2_STILE = 17408; G2_SSTR = 144
SP_CNT = 65536 + 64

S_FAST, S_XCC = 14, 15
OPT = dict(kv.split("=") for kv in os.environ.get("G4OPT", "").split(",") if kv)
def opt(k, d): return int(OPT.get(k, d))

TS_ON = False
TSSEL = os.environ.get("TSSEL", "")
TSMAP = {"g": [], "k": [], "p": []}
def ts(a, name):
    if not TS_ON: return
    if TSSEL and name not in TSSEL.split(","): return
    lst = TSMAP[name[0]]
    lst.append(name)
    i = len(lst)
    assert i <= 29
    a(f"s_memtime s[98:99]")
    a("s_waitcnt lgkmcnt(0)")
    a(f"v_writelane_b32 v255, s98, {i}")
def ts_dump(a):
    if not TS_ON: return
    a(f"""
    s_memrealtime s[94:95]
    s_waitcnt lgkmcnt(0)
    v_writelane_b32 v255, s96, 0
    v_writelane_b32 v255, s100, 30
    v_writelane_b32 v255, s94, 31
    s_lshl_b32 s94, s2, 3
    s_add_u32 s94, s94, s3
    s_lshl_b32 s94, s94, 7
    s_add_u32 s94, s94, {TS_OFF}
    v_mbcnt_lo_u32_b32 v1, -1, 0
    v_lshl_add_u32 v1, v1, 2, s94
    s_mov_b64 exec, 0xffffffff
    global_store_dword v1, v255, {sp(S_WS)}
    s_mov_b64 exec, -1
    s_waitcnt vmcnt(0)
    """)

class Cnt:
    def __init__(self, name, mx): self.ops = []; self.name = name; self.mx = mx
    def issue(self, tag): self.ops.append(tag)
    def left(self, *tags):
        idx = max(i for i, t in enumerate(self.ops) if t in tags)
        return len(self.ops) - 1 - idx
    def wait(self, a, *tags):
        if not any(t in tags for t in self.ops): return
        n = self.left(*tags)
        a(f"s_waitcnt {self.name}({min(n, self.mx)})")
    def all(self, a):
        a(f"s_waitcnt {self.name}(0)")
def VM(): return Cnt("vmcnt", 63)
def LG(): return Cnt("lgkmcnt", 15)

def mk_srd(a, dst, base, size):
    a(f"""
    s_mov_b32 s{dst}, s{base}
    s_mov_b32 s{dst+1}, s{base+1}
    s_mov_b32 s{dst+2}, {hex(size)}
    s_mov_b32 s{dst+3}, 0x00020000
    """)

def bf16r(a, dst, src):
    a(f"v_cvt_pk_bf16_f32 v{dst}, v{src}, v{src}")
    a(f"v_and_b32 v{dst}, 0xffff0000, v{dst}")

def budget(a):
    a(f"s_sub_u32 s{S_BUD}, s{S_BUD}, 1")
    a("s_cbranch_scc1 L_BAIL")

TAIL = []
def spin_lds(a, tmp, addr_v, off, target):
    lab = a.newlabel("SPIN")
    a(f"{lab}:")
    budget(a)
    a(f"""
    ds_read_b32 v{tmp}, v{addr_v} offset:{off}
    s_waitcnt lgkmcnt(0)
    v_cmp_gt_u32 vcc, {target}, v{tmp}
    s_cbranch_vccnz {lab}
    """)

def check_flag(a, vval, vaddr, target):
    s = a.newlabel("CF"); b = a.newlabel("CFB")
    a(f"v_cmp_gt_u32 vcc, {target}, v{vval}")
    a(f"s_cbranch_vccnz {s}")
    a(f"{b}:")
    TAIL.append(f"""
    {s}:
    s_sub_u32 s{S_BUD}, s{S_BUD}, 1
    s_cbranch_scc1 L_BAIL
    ds_read_b32 v{vval}, v{vaddr}
    s_waitcnt lgkmcnt(0)
    v_cmp_gt_u32 vcc, {target}, v{vval}
    s_cbranch_vccnz {s}
    s_branch {b}
    """)

def publish(a, cnt_addr, nwaves, flag_off_s, vt0, vt1):
    lab = a.newlabel("PUB")
    a(f"""
    s_waitcnt vmcnt(0)
    v_mov_b32 v{vt0}, {cnt_addr}
    v_mov_b32 v{vt1}, 1
    s_mov_b64 exec, 1
    ds_add_rtn_u32 v{vt1}, v{vt0}, v{vt1}
    s_waitcnt lgkmcnt(0)
    v_cmp_eq_u32 vcc, {nwaves-1}, v{vt1}
    s_cbranch_vccz {lab}
    v_mov_b32 v{vt0}, s{flag_off_s}
    v_mov_b32 v{vt1}, s{S_TAG}
    global_store_dword v{vt0}, v{vt1}, {sp(S_WS)} sc1
    {lab}:
    s_mov_b64 exec, -1
    """)

def publish_cnt(a, cnt_addr, nwaves, base, off_s, total, rep_off_s, nrep, vt0, vt1):
    lab = a.newlabel("PUB")
    a(f"""
    s_waitcnt vmcnt(0)
    v_mov_b32 v{vt0}, {cnt_addr}
    v_mov_b32 v{vt1}, 1
    s_mov_b64 exec, 1
    ds_add_rtn_u32 v{vt1}, v{vt0}, v{vt1}
    s_waitcnt lgkmcnt(0)
    v_cmp_eq_u32 vcc, {nwaves-1}, v{vt1}
    s_cbranch_vccz {lab}
    v_mov_b32 v{vt0}, s{off_s}
    v_mov_b32 v{vt1}, 1
    global_atomic_add v{vt1}, v{vt0}, v{vt1}, {sp(base)} sc0
    s_waitcnt vmcnt(0)
    v_and_b32 v{vt1}, {total-1}, v{vt1}
    v_cmp_eq_u32 vcc, {total-1}, v{vt1}
    s_cbranch_vccz {lab}
    s_mov_b64 exec, {hex((1 << nrep) - 1)}
    v_mbcnt_lo_u32_b32 v{vt0}, -1, 0
    v_lshl_add_u32 v{vt0}, v{vt0}, 7, s{rep_off_s}
    v_mov_b32 v{vt1}, s{S_TAG}
    global_store_dword v{vt0}, v{vt1}, {sp(S_WS)} sc1
    {lab}:
    s_mov_b64 exec, -1
    """)

def epoch_load(a):
    a(f"""
    s_add_u32 s6, s{S_WS}, {FL_EPOCH}
    s_addc_u32 s7, s{S_WS+1}, 0
    s_load_dword s{S_EPOCH}, s[6:7], 0
    """)
def tag_calc(a):
    a(f"""
    s_mul_i32 s{S_TAG}, s{S_EPOCH}, 0x9E3779B1
    s_add_u32 s{S_TAG}, s{S_TAG}, 0x7F4A7C15
    """)

def prologue(a):
    if TS_ON:
        a("s_memtime s[96:97]")
        a("s_memrealtime s[100:101]")
    a(f"""
    s_load_dwordx2 s[{SRD_W1}:{SRD_W1+1}], s[0:1], 64
    s_load_dwordx2 s[{SRD_X}:{SRD_X+1}], s[0:1], 0
    s_load_dwordx16 s[16:31], s[0:1], 0
    s_load_dwordx8 s[32:39], s[0:1], 64
    s_load_dwordx4 s[40:43], s[0:1], 96
    s_load_dwordx2 s[44:45], s[0:1], 112
    v_lshrrev_b32 v1, 6, v0
    v_and_b32 v0, 63, v0
    s_cmp_ge_u32 s2, 256
    v_readfirstlane_b32 s3, v1
    s_cbranch_scc1 L_END
    s_and_b32 s{S_XX}, s2, 7
    s_lshr_b32 s{S_YY}, s2, 3
    s_mov_b32 s{S_BUD}, 0x40000
    """)
    if opt("cpf", 1):
        a(f"""
        s_cmp_lg_u32 s3, 7
        s_cbranch_scc1 L_NOPF
        s_getpc_b64 s[14:15]
        L_PC:
        s_lshl_b32 s10, s{S_YY}, 7
        v_lshl_add_u32 v2, v0, 12, s10
        s_sub_u32 s14, s14, (L_PC - L_START)
        s_subb_u32 s15, s15, 0
        v_min_u32 v2, (L_CODE_END - L_START - 4), v2
        v_mov_b32 v3, s15
        v_add_co_u32 v2, vcc, s14, v2
        v_addc_co_u32 v3, vcc, 0, v3, vcc
        global_load_dword v251, v[2:3], off
        L_NOPF:
        """)
    a(f"""
    s_cmp_ge_u32 s{S_YY}, 28
    s_cbranch_scc1 R_SPARE
    s_cmp_ge_u32 s3, 4
    s_cbranch_scc1 R_KC
    """)

VW1, VW1B = 2, 3
VX = [4, 5, 6, 7]
VA = [8, 9]
VB = [[10, 11], [12, 13]]
VSIG, VCNT = 14, 15
VFL, VFV, VB1, VB2R, VW2, VW2B, VT0 = 248, 249, 250, 251, 252, 253, 254
FB = [16, 32, 48, 64]
SEL = [80, 84]; S16 = 88
ACC = 128
W2R = 16
HB = 192
S_RB, S_FT, S_LB, S_DB = 70, 71, 72, 73
S_WO, S_XO, S_HS = 74, 75, 76
S_WF, S_WL = 77, 68
SJ = [80 + i for i in range(7)]
SH = [87 + i for i in range(7)]
POS = [12, 13, 2, 6, 7, 3, 4, 5, 8, 9, 0, 1, 10, 11]
AVAIL = [8, 8, 9, 10, 10, 10, 11, 12, 12, 12, 13, 14, 14, 14]
def acc(p, q): return ACC + 16 * (2 * p + q)

def dma_w(u):
    r = []
    if u % 2 == 0: r.append(f"s_mul_i32 s8, s{SJ[u >> 1]}, {64*3584}")
    else: r.append(f"s_add_u32 s8, s8, {32*3584}")
    r.append(f"s_add_u32 m0, s{S_WO}, {(u % NWS) * WSLOT}")
    r.append((f"buffer_load_dwordx4 v{VW1}, {srd(SRD_W1)}, s8 offen lds", ("w", u)))
    r.append((f"buffer_load_dwordx4 v{VW1B}, {srd(SRD_W1)}, s8 offen offset:1024 lds", ("w", u)))
    return r
def dma_x(p, half):
    r = []
    if half == 0: r.append(f"s_lshl_b32 s9, s{SJ[p]}, 7")
    r.append(f"s_add_u32 m0, s{S_XO}, {(p % NXS) * XSLOT}")
    for j in (2 * half, 2 * half + 1):
        off = f" offset:{1024*j}" if j else ""
        r.append((f"buffer_load_dwordx4 v{VX[j]}, {srd(SRD_X)}, s9 offen{off} lds", ("x", p)))
    return r
def dma_w2(t):
    g, m = t // 14, t % 14
    i, be = m >> 1, m & 1
    r = []
    r.append(f"s_mul_i32 s11, s{SJ[i]}, {4*14336}")
    o = (2 * g + be) * 14336
    if o: r.append(f"s_add_u32 s11, s11, {o}")
    r.append(f"s_add_u32 m0, s{S_WO}, {POS[m] * 8192}")
    r.append((f"buffer_load_dwordx4 v{VW2}, {srd(SRD_W2)}, s11 offen lds", ("w2", t)))
    r.append((f"buffer_load_dwordx4 v{VW2B}, {srd(SRD_W2)}, s11 offen offset:1024 lds", ("w2", t)))
    return r
def groups(items):
    out = []; cur = []
    for it in items:
        cur.append(it)
        if isinstance(it, tuple):
            out.append(cur); cur = []
    if cur: out.append(cur)
    return out
def emit(a, items, vm=None, lg=None):
    for it in items:
        if isinstance(it, tuple):
            txt, tag = it
            a(txt)
            if txt.startswith("ds_"): lg.issue(tag)
            else: vm.issue(tag)
        elif callable(it): it()
        else: a(it)

def g_path(a):
    vm = VM(); lg = LG()
    a.c("---- G init")
    a(f"""
    s_mul_i32 s6, s{S_YY}, 37
    s_lshr_b32 s6, s6, 8                    ; yq
    s_mul_i32 s7, s6, 7
    s_sub_u32 s7, s{S_YY}, s7               ; yr
    s_lshr_b32 s4, s6, 1
    s_lshl_b32 s{S_RB}, s{S_XX}, 1
    s_add_u32 s{S_RB}, s{S_RB}, s4
    s_and_b32 s5, s6, 1
    s_mul_i32 s{S_FT}, s5, 7
    s_add_u32 s{S_FT}, s{S_FT}, s7
    s_lshl_b32 s{S_LB}, s{S_XX}, 2
    s_add_u32 s{S_LB}, s{S_LB}, s6
    s_mov_b32 s{S_DB}, s7
    s_lshl_b32 s8, s6, 1
    s_add_u32 s{SJ[0]}, s8, s7
    s_cmp_ge_u32 s{SJ[0]}, 7
    s_cselect_b32 s9, 7, 0
    s_sub_u32 s{SJ[0]}, s{SJ[0]}, s9
    s_lshl_b32 s{S_WO}, s3, 11
    s_lshl_b32 s{S_XO}, s3, 12
    s_add_u32 s{S_XO}, s{S_XO}, {XBASE}
    s_and_b32 s{S_WF}, s3, 1
    s_lshr_b32 s{S_WL}, s3, 1
    s_mov_b32 s{SRD_W1+2}, {hex(W_BYTES)}
    s_mov_b32 s{SRD_W1+3}, 0x00020000
    s_mov_b32 s{SRD_X+2}, {hex(X_BYTES)}
    s_mov_b32 s{SRD_X+3}, 0x00020000
    ; VW1
    v_lshrrev_b32 v1, 4, v0
    v_and_b32 v16, 15, v0
    v_lshlrev_b32 v17, 2, v1
    v_xor_b32 v16, v16, v17
    v_mul_u32_u24 v{VW1}, 3584, v1
    v_lshl_add_u32 v{VW1}, v16, 4, v{VW1}
    s_lshl_b32 s10, s{S_FT}, 8
    s_mul_i32 s11, s3, {8*3584}
    s_add_u32 s10, s10, s11
    v_add_u32 v{VW1}, s10, v{VW1}
    v_add_u32 v{VW1B}, {14336-1024}, v{VW1}
    ; VX
    v_and_b32 v16, 7, v0
    v_xor_b32 v16, v16, v1
    v_lshrrev_b32 v17, 3, v0
    v_mul_u32_u24 v17, 896, v17
    v_lshl_add_u32 v{VX[0]}, v16, 4, v17
    s_lshl_b32 s10, s{S_RB}, 7
    s_lshl_b32 s11, s3, 5
    s_add_u32 s10, s10, s11
    s_mul_i32 s10, s10, 896
    v_add_u32 v{VX[0]}, s10, v{VX[0]}
    v_xor_b32 v{VX[1]}, 64, v{VX[0]}
    v_add_u32 v{VX[2]}, {14336-2048}, v{VX[0]}
    v_add_u32 v{VX[3]}, {21504-3072}, v{VX[1]}
    v_add_u32 v{VX[1]}, {7168-1024}, v{VX[1]}
    """)
    for i in range(1, 7):
        a(f"""
        s_add_u32 s{SJ[i]}, s{SJ[i-1]}, 1
        s_cmp_eq_u32 s{SJ[i]}, 7
        s_cselect_b32 s{SJ[i]}, 0, s{SJ[i]}
        """)
    a(f"""
    ; b1 (f = 128ft + 64wf + lane), b2 (d = 64db + lane) offsets
    s_lshl_b32 s10, s{S_FT}, 8
    s_lshl_b32 s11, s{S_WF}, 7
    s_add_u32 s10, s10, s11
    v_lshl_add_u32 v20, v0, 1, s10
    s_lshl_b32 s10, s{S_DB}, 7
    v_lshl_add_u32 v21, v0, 1, s10
    v_lshrrev_b32 v16, 1, v1                ; hi = g>>1
    v_bfe_u32 v17, v0, 2, 2                 ; r
    v_lshl_add_u32 v18, v16, 3, v17
    v_lshlrev_b32 v18, 8, v18               ; row*256
    v_and_b32 v19, 1, v0
    v_lshl_add_u32 v18, v19, 3, v18
    v_and_b32 v19, 1, v1
    v_lshlrev_b32 v19, 1, v19
    v_bfe_u32 v22, v0, 1, 1
    v_add_u32 v19, v19, v22
    s_lshl_b32 s10, s{S_WF}, 3
    v_add_u32 v19, s10, v19
    v_lshlrev_b32 v17, 2, v17
    v_xor_b32 v22, v19, v17
    v_lshl_add_u32 v{VA[0]}, v22, 4, v18
    v_xor_b32 v{VA[1]}, 64, v{VA[0]}
    v_and_b32 v16, 31, v0
    v_lshrrev_b32 v17, 5, v0
    v_bfe_u32 v18, v0, 1, 3
    v_xor_b32 v17, v17, v18
    v_lshlrev_b32 v16, 7, v16
    v_lshl_add_u32 v16, v17, 4, v16
    s_lshl_b32 s10, s{S_WL}, 13
    s_add_u32 s10, s10, {XBASE}
    v_add_u32 v{VB[0][0]}, s10, v16
    v_xor_b32 v{VB[0][1]}, 32, v{VB[0][0]}
    v_xor_b32 v{VB[1][0]}, 64, v{VB[0][0]}
    v_xor_b32 v{VB[1][1]}, 96, v{VB[0][0]}
    s_waitcnt lgkmcnt(0)
    """)
    ts(a, "g_karg")
    emit(a, dma_w(0) + dma_x(0, 0) + dma_x(0, 1) + dma_w(1), vm)
    a("s_barrier")
    epoch_load(a)
    emit(a, dma_w(2) + dma_x(1, 0) + dma_x(1, 1) + dma_w(3), vm)
    a(f"""
    global_load_ushort v{VB1}, v20, {sp(S_B1)}
    global_load_ushort v{VB2R}, v21, {sp(S_B2)}
    """)
    vm.issue("b1"); vm.issue("b2")
    ts(a, "g_dma")
    mk_srd(a, SRD_WS, S_WS, WS_SRD_SIZE)
    mk_srd(a, SRD_W2, S_W2, W_BYTES)
    mk_srd(a, SRD_OUT, S_OUT, X_BYTES)
    a(f"""
    ; flags
    v_and_b32 v16, 3, v0
    v_lshlrev_b32 v16, 2, v16
    v_add_u32 v{VFL}, {GFLAG}, v16
    v_lshlrev_b32 v16, 2, v0
    v_add_u32 v{VSIG}, {DUMMY}, v16
    s_lshl_b32 s10, s3, 2
    s_add_u32 s10, s10, {GFLAG}
    v_writelane_b32 v{VSIG}, s10, 0
    v_mov_b32 v{VCNT}, 1
    ; SEL
    v_and_b32 v16, 3, v0
    v_and_b32 v17, 1, v1
    v_xor_b32 v16, v16, v17
    v_mov_b32 v17, 0x3f803f80
    v_cmp_eq_u32 vcc, 0, v16
    v_cndmask_b32 v{SEL[0]}, 0, v17, vcc
    v_cmp_eq_u32 vcc, 2, v16
    v_cndmask_b32 v{SEL[1]}, 0, v17, vcc
    """)
    for k in range(1, 4):
        a(f"v_mov_b32 v{SEL[0]+k}, v{SEL[0]}")
        a(f"v_mov_b32 v{SEL[1]+k}, v{SEL[1]}")
    a(f"""
    ; w2 DMA lane offsets
    v_lshrrev_b32 v16, 3, v0
    v_and_b32 v17, 7, v0
    v_bfe_u32 v18, v0, 4, 1
    v_lshlrev_b32 v18, 2, v18
    v_xor_b32 v17, v17, v18
    v_mul_u32_u24 v16, 896, v16
    v_lshl_add_u32 v{VW2}, v17, 4, v16
    s_mul_i32 s10, s3, {448*896}
    s_lshl_b32 s11, s{S_DB}, 7
    s_add_u32 s10, s10, s11
    v_add_u32 v{VW2}, s10, v{VW2}
    v_add_u32 v{VW2B}, {7168-1024}, v{VW2}
    v_lshrrev_b32 v16, 1, v1
    v_bfe_u32 v17, v0, 2, 2
    v_lshl_add_u32 v18, v16, 2, v17
    v_lshlrev_b32 v18, 7, v18
    v_and_b32 v19, 1, v0
    v_lshl_add_u32 v18, v19, 3, v18
    v_add_u32 v18, s{S_WO}, v18
    v_and_b32 v19, 1, v1
    v_lshlrev_b32 v19, 1, v19
    v_bfe_u32 v20, v0, 1, 1
    v_add_u32 v19, v19, v20
    v_bfe_u32 v20, v0, 3, 1
    v_lshlrev_b32 v20, 2, v20
    v_xor_b32 v19, v19, v20
    v_lshl_add_u32 v{VT0}, v19, 4, v18
    s_lshl_b32 s12, s{S_RB}, 2
    s_lshl_b32 s13, s{S_WL}, 1
    s_add_u32 s12, s12, s13
    s_mul_i32 s12, s12, 112
    s_lshl_b32 s13, s{S_FT}, 3
    s_add_u32 s12, s12, s13
    s_lshl_b32 s13, s{S_WF}, 2
    s_add_u32 s12, s12, s13
    s_lshl_b32 s{S_HS}, s12, 10
    s_mul_i32 s12, s{S_LB}, {2*112}
    s_mul_i32 s13, s3, 28
    s_add_u32 s12, s12, s13
    s_lshl_b32 s12, s12, 10
    """)
    for i in range(7):
        a(f"s_lshl_b32 s13, s{SJ[i]}, 12")
        a(f"s_add_u32 s{SH[i]}, s12, s13")
    a("s_waitcnt lgkmcnt(0)")
    tag_calc(a)
    a(f"""
    s_getreg_b32 s{S_XCC}, hwreg(HW_REG_XCC_ID)
    s_lshl_b32 s10, s{S_XX}, 8
    s_add_u32 s10, s10, {FL_XCC}
    s_lshl_b32 s11, s{S_YY}, 3
    s_add_u32 s11, s11, s10
    v_mov_b32 v16, s11
    v_mov_b32 v18, s{S_TAG}
    v_mov_b32 v19, s{S_XCC}
    v_min_u32 v234, 27, v0
    v_lshl_add_u32 v234, v234, 3, s10
    s_mov_b64 exec, 1
    global_store_dwordx2 v16, v[18:19], {sp(S_WS)} sc1
    s_mov_b64 exec, -1
    """)
    vm.issue("xccst")
    if opt("prio", 2): a(f"s_setprio {opt('prio', 2)}")
    ts(a, "g_init")
    vm.wait(a, ("w", 1), ("x", 0))
    a(f"ds_write_b32 v{VSIG}, v{VCNT}")
    spin_lds(a, VFV, VFL, 0, 1)
    ts(a, "g_first")
    def reads(u, ks, fb):
        s = u % NWS
        p = u >> 1; b = u & 1
        r = []
        for fbp in range(2):
            bb = FB[fb] + 4 * fbp
            o = s * WSLOT + ks * 4096
            r.append((f"ds_read_b64_tr_b16 v[{bb}:{bb+1}], v{VA[fbp]} offset:{o}", ("f", u, ks)))
            r.append((f"ds_read_b64_tr_b16 v[{bb+2}:{bb+3}], v{VA[fbp]} offset:{o + 1024}", ("f", u, ks)))
        for lbp in range(2):
            r.append((f"ds_read_b128 {vr(FB[fb] + 8 + 4*lbp)}, v{VB[b][ks]} offset:{(p % NXS)*XSLOT + lbp*4096}", ("f", u, ks)))
        return r
    def mfma(fb, k, first=False):
        fbp, lbp = k >> 1, k & 1
        c = "0" if first else vr(acc(fbp, lbp), 16)
        a(f"v_mfma_f32_32x32x16_bf16 {vr(acc(fbp,lbp),16)}, {vr(FB[fb]+4*fbp)}, {vr(FB[fb]+8+4*lbp)}, {c}")
    def smfma(fb, fbp, first=False):
        c = "0" if first else vr(S16)
        a(f"v_mfma_f32_16x16x32_bf16 {vr(S16)}, {vr(SEL[fbp])}, {vr(FB[fb]+4*fbp)}, {c}")
    emit(a, reads(0, 0, 0) + reads(0, 1, 1), vm, lg)
    STATV = 192
    AL, GA_ = STATV, STATV + 2
    SS = 196
    AE = 200
    BN = 204
    BE = [[208, 212], [216, 220]]
    KC_ = [224, 226]
    DL = [228, 230]
    C1 = 2.0 * math.sqrt(2.0 / math.pi) * LOG2E
    C2 = C1 * 0.044715
    def stat_addr():
        return [f"s_lshl_b32 s10, s{S_RB}, 7",
                f"s_lshl_b32 s12, s{S_WL}, 6",
                f"s_add_u32 s10, s10, s12",
                f"s_lshl_b32 s10, s10, 4",
                f"s_add_u32 s10, s10, {STAT_OFF}",
                f"v_lshl_add_u32 v{VW1}, v0, 4, s10"]
    def stat_load():
        return [(f"global_load_dwordx2 v[232:233], v234, {sp(S_WS)} sc1", "xcc"),
                (f"global_load_dwordx4 {vr(STATV)}, v{VW1}, {sp(S_WS)} sc1", "stat")]
    def stat_check():
        sl = a.newlabel("STP"); bk = a.newlabel("STB")
        vm.wait(a, "stat")
        a(f"""
        v_cmp_ne_u32 vcc, s{S_TAG}, v232
        s_or_b32 s10, vcc_lo, vcc_hi
        v_cmp_ne_u32 vcc, s{S_XCC}, v233
        s_or_b32 s10, s10, vcc_lo
        s_or_b32 s10, s10, vcc_hi
        s_cmp_eq_u32 s10, 0
        s_cselect_b32 s{S_FAST}, {opt("fast", 1)}, 0
        {bk}:
        v_xor_b32 v198, s{S_TAG}, v{STATV+1}
        v_xor_b32 v199, s{S_TAG}, v{STATV+3}
        v_or_b32 v198, v198, v199
        v_cmp_ne_u32 vcc, 0, v198
        s_cbranch_vccnz {sl}
        """)
        TAIL.append(f"""
        {sl}:
        s_sub_u32 s{S_BUD}, s{S_BUD}, 1
        s_cbranch_scc1 L_BAIL
        s_sleep 1
        global_load_dwordx4 {vr(STATV)}, v{VW1}, {sp(S_WS)} sc1
        s_waitcnt vmcnt(0)
        s_branch {bk}
        """)
    def consts_b():
        r = f"""
        v_rcp_f32 v198, v{AL}
        v_mul_f32 v232, v{AL}, v{AL}
        v_mul_f32 v{DL[0]+1}, {hx(C1)}, v{AL}
        v_cvt_pk_bf16_f32 v{BN+1}, v{GA_}, v198
        v_mul_f32 v232, v232, v{AL}
        v_lshlrev_b32 v234, 16, v{BN+1}
        v_and_b32 v233, 0xffff0000, v{BN+1}
        v_mul_f32 v{KC_[0]}, {hx(C2)}, v232
        v_sub_f32 v234, v{GA_}, v234
        v_sub_f32 v233, v198, v233
        v_cvt_pk_bf16_f32 v{BN}, v{GA_}, v234
        v_cvt_pk_bf16_f32 v{BN+2}, v233, 0
        v_mov_b32 v{DL[0]}, v198
        v_mov_b32 v{KC_[1]}, v{KC_[0]}
        v_mov_b32 v{DL[1]+1}, v{DL[0]+1}
        v_mov_b32 v{DL[1]}, v198
        v_permlane32_swap_b32 v{KC_[0]}, v{KC_[1]}
        v_permlane32_swap_b32 v{DL[0]+1}, v{DL[1]+1}
        v_permlane32_swap_b32 v{DL[0]}, v{DL[1]}
        """.strip().split("\n")
        r = [x.strip() for x in r]
        for k in range(3):
            r += [f"v_mov_b32 v{BE[0][0]+k}, v{BN+k}",
                  f"v_mov_b32 v{BE[0][1]+k}, 0",
                  f"v_mov_b32 v{BE[1][0]+k}, 0",
                  f"v_mov_b32 v{BE[1][1]+k}, v{BN+k}",
                  f"v_permlane32_swap_b32 v{BE[0][0]+k}, v{BE[0][1]+k}",
                  f"v_permlane32_swap_b32 v{BE[1][0]+k}, v{BE[1][1]+k}"]
        return r
    def consts_zero():
        return [f"v_mov_b32 v{BE[p][q]+3}, 0" for p in range(2) for q in range(2)] + [f"v_mov_b32 v{AE+3}, 0", f"v_mov_b32 v{AE+2}, v{VB1}"]
    def consts_a():
        r = [f"v_mov_b32 v{SS}, v{S16}"]
        for k in range(1, 4):
            r.append(f"v_mov_b32_dpp v{SS}, v{S16+k} quad_perm:[0,1,2,3] row_mask:{hex(1 << k)} bank_mask:0xf")
        r += [f"v_cvt_pk_bf16_f32 v{AE}, v{SS}, v{SS}",
              f"v_and_b32 v199, 0xffff0000, v{AE}",
              f"v_sub_f32 v199, v{SS}, v199",
              f"v_cvt_pk_bf16_f32 v199, v199, v199",
              f"v_and_b32 v199, 0xffff, v199",
              f"v_lshl_or_b32 v{AE+1}, v{VB1}, 16, v199"]
        return r
    VA2 = [[10, 11], [12, 13]]
    VH0, VH1 = 8, 9
    def g2_addr():
        return [f"v_mov_b32 v{VA2[0][0]}, v{VT0}",
                f"v_xor_b32 v{VA2[0][1]}, 64, v{VT0}",
                f"v_add_u32 v{VA2[1][0]}, 0x10000, v{VA2[0][0]}",
                f"v_add_u32 v{VA2[1][1]}, 0x10000, v{VA2[0][1]}",
                f"v_lshlrev_b32 v{VH0}, 4, v0",
                f"v_add_u32 v{VH1}, {112*1024}, v{VH0}"]
    H_ST = opt("hst", 11)
    w2next = [0]
    SL_FLAG, SL_CHECK, SL_SIG = opt("slf", 0), opt("slc", 2), opt("sls", 8)
    for h in range(14):
        c0, c1 = (2 * h) % 4, (2 * h + 1) % 4
        n0, n1 = (2 * h + 2) % 4, (2 * h + 3) % 4
        last = (h == 13)
        post = [[] for _ in range(12)]
        dm = []
        if h + 4 < 14: dm += dma_w(h + 4)
        if h == 0: dm += dma_x(2, 0) + dma_x(2, 1)
        elif h % 2 == 1 and (h + 5) // 2 < 7: dm += dma_x((h + 5) // 2, 0)
        elif h % 2 == 0 and (h + 4) // 2 < 7: dm += dma_x((h + 4) // 2, 1)
        if h == H_ST: dm = stat_load() + dm
        if h == opt("htouch", 99):
            dm += [f"v_lshrrev_b32 v235, 5, v0",
                   f"v_mul_u32_u24 v235, {112*1024}, v235",
                   f"v_and_b32 v236, 31, v0",
                   f"v_lshl_add_u32 v235, v236, 7, v235",
                   (f"buffer_load_dword v237, v235, {srd(SRD_WS)}, s{S_HS} offen", "htouch"),
                   f"s_lshl_b32 s10, s{S_RB}, 9",
                   f"s_lshl_b32 s11, s3, 7",
                   f"s_add_u32 s10, s10, s11",
                   f"s_add_u32 s10, s10, {FL_G1}",
                   f"v_mov_b32 v236, s10",
                   (f"global_load_dword v238, v236, {sp(S_WS)}", "ftouch")]
        while w2next[0] < 14 and AVAIL[w2next[0]] <= h:
            if not (opt("now2a", 0) and w2next[0] < 10): dm += dma_w2(w2next[0])
            w2next[0] += 1
        if opt("nodma", 0) and h < 8: dm = []
        dg = groups(dm)
        if not last:
            post[SL_FLAG].append((f"ds_read_b32 v{VFV}, v{VFL}", "flag"))
            post[SL_CHECK].append(lambda: lg.wait(a, "flag"))
            if not opt("nosync", 0): post[SL_CHECK].append(lambda h=h: check_flag(a, VFV, VFL, h + 1))
            rn = reads(h + 1, 0, n0) + reads(h + 1, 1, n1)
            if opt("nord", 0): rn = rn[:1] + rn[6:7]
            for i, r in enumerate(rn): post[SL_CHECK + 1 + i // 2].append(r)
            s0 = SL_CHECK
            for i, g in enumerate(dg):
                post[min(s0 + i, 11)] += g
            sig = []
            if h + 2 < 14 and not (opt("nodma", 0) and h < 10) and not opt("novw", 0):
                sig.append(lambda h=h: vm.wait(a, ("w", h + 2), ("x", (h + 2) >> 1)))
            sig.append(f"v_add_u32 v{VCNT}, 1, v{VCNT}")
            sig.append((f"ds_write_b32 v{VSIG}, v{VCNT}", "sig"))
            post[SL_SIG] += sig
            if h == H_ST - 1:
                for i, x in enumerate(stat_addr()): post[9 + i // 3].append(x)
            order = [("m", c0, 0), ("m", c0, 1), ("s", c0, 0), ("m", c0, 2), ("s", c0, 1), ("m", c0, 3),
                     ("m", c1, 0), ("s", c1, 0), ("m", c1, 1), ("s", c1, 1), ("m", c1, 2), ("m", c1, 3)]
            lg.wait(a, ("f", h, 0))
            for s, (kind, fb, k) in enumerate(order):
                if s == 6: lg.wait(a, ("f", h, 1))
                if kind == "m": mfma(fb, k, h == 0 and fb == c0)
                elif not opt("nos", 0): smfma(fb, k, h == 0 and s == 2)
                emit(a, post[s], vm, lg)
        else:
            lg.all(a)
            a(f"v_add_u32 v{VCNT}, 1, v{VCNT}")
            emit(a, [(f"ds_write_b32 v{VSIG}, v{VCNT}", "sig"), (f"ds_read_b32 v{VFV}, v{VFL}", "flag")], vm, lg)
            smfma(c0, 0); smfma(c0, 1); smfma(c1, 0); smfma(c1, 1)
            stat_check()
            cb = consts_zero() + consts_b() + g2_addr()
            ca = consts_a()
            fill = cb[:]
            def take(n):
                for _ in range(n):
                    if fill: a(fill.pop(0))
            mfma(c0, 0); take(6)
            lg.wait(a, "flag")
            check_flag(a, VFV, VFL, 14)
            emit(a, dg[0] + dg[1], vm, lg)
            mfma(c0, 1); take(6)
            emit(a, [(f"ds_read_b32 v{VFV}, v{VFL}", "flag")], vm, lg)
            mfma(c0, 2); take(7)
            mfma(c0, 3); take(7)
            for x in ca[:4]: a(x)
            mfma(c1, 0); take(100)
            for x in ca[4:]: a(x)
            mfma(c1, 1)
            lg.wait(a, "flag")
            check_flag(a, VFV, VFL, 15)
            r = groups(dma_w2(11) + dma_w2(12) + dma_w2(13))
            emit(a, r[0] + r[1], vm, lg)
            a(f"v_mfma_f32_32x32x16_bf16 {vr(acc(0,0),16)}, {vr(AE)}, {vr(BE[0][0])}, {vr(acc(0,0),16)}")
            emit(a, r[2] + r[3], vm, lg)
            mfma(c1, 2)
            emit(a, r[4] + r[5], vm, lg)
            a(f"v_mfma_f32_32x32x16_bf16 {vr(acc(0,1),16)}, {vr(AE)}, {vr(BE[0][1])}, {vr(acc(0,1),16)}")
            mfma(c1, 3)
            a(f"v_mfma_f32_32x32x16_bf16 {vr(acc(1,0),16)}, {vr(AE)}, {vr(BE[1][0])}, {vr(acc(1,0),16)}")
            a(f"v_mfma_f32_32x32x16_bf16 {vr(acc(1,1),16)}, {vr(AE)}, {vr(BE[1][1])}, {vr(acc(1,1),16)}")
        if h in (1, 4, 7, 10, 12) or (TSSEL and h < 13): ts(a, f"g_u{h}")
    ts(a, "g_g1end")
    def trr(t):
        o = POS[t % 14] * 8192
        bs = 1 if o >= 65536 - 2048 else 0
        o -= bs * 65536
        r = []
        for db_ in range(2):
            b = W2R + 8 * (t % 14) + 4 * db_
            r.append((f"ds_read_b64_tr_b16 v[{b}:{b+1}], v{VA2[bs][db_]} offset:{o}", ("r", t)))
            r.append((f"ds_read_b64_tr_b16 v[{b+2}:{b+3}], v{VA2[bs][db_]} offset:{o+1024}", ("r", t)))
        return r
    ex = []
    def exr(t):
        g = groups(trr(t))
        g[0] = [lambda t=t: vm.wait(a, ("w2", t))] + g[0]
        return g
    ex += exr(0) + exr(1)
    for t in range(14):
        if t + 2 < 14: ex += exr(t + 2)
        g = groups(dma_w2(t + 14))
        if opt("now2b", 0): g = [[(f"s_nop 0", ("w2", t + 14))]] if False else [[]]
        g[0] = [lambda t=t: lg.wait(a, ("r", t))] + g[0]
        ex += g
    TT = [232, 236]
    PK = [240, 192]
    skip = opt("exskip", 1)
    pc = [0]
    def put():
        pc[0] += 1
        if ex and pc[0] % skip == 0:
            emit(a, ex.pop(0), vm, lg)
    VG1F = 1
    def flag_addr():
        a(f"""
        s_lshl_b32 s12, s{S_RB}, 1
        s_add_u32 s12, s12, s{S_WL}
        s_lshl_b32 s12, s12, 5
        s_lshl_b32 s13, s{S_FT}, 1
        s_add_u32 s12, s12, s13
        s_add_u32 s12, s12, s{S_WF}
        s_lshl_b32 s12, s12, 3
        s_add_u32 s12, s12, {FL_G1}
        v_mov_b32 v2, s12
        v_mov_b32 v3, s{S_TAG}
        s_lshl_b32 s12, s{S_LB}, 5
        s_mul_i32 s13, s3, 7
        s_add_u32 s12, s12, s13
        s_lshl_b32 s12, s12, 3
        s_add_u32 s12, s12, {FL_G1}
        v_min_u32 v{VG1F}, 13, v0
        v_lshl_add_u32 v{VG1F}, v{VG1F}, 2, s12
        """)
    def flag_store(grp):
        sl = a.newlabel("FS"); bk = a.newlabel("FSB")
        a("s_mov_b64 exec, 1")
        a(f"s_cmp_eq_u32 s{S_FAST}, 0")
        a(f"s_cbranch_scc1 {sl}")
        a(f"global_store_dword v2, v3, {sp(S_WS)} offset:{4*grp}")
        a(f"{bk}:")
        TAIL.append(f"""
        {sl}:
        global_store_dword v2, v3, {sp(S_WS)} offset:{4*grp} sc1
        s_branch {bk}
        """)
        vm.issue(("fl", grp))
        a("s_mov_b64 exec, -1")
    def gelu_quadrant(p, q, pk):
        A = acc(p, q)
        kc, dl = KC_[q], DL[q]
        for pp in range(0, 8, 2):
            X = [A + 2 * pp, A + 2 * pp + 2]
            for i in range(2):
                w = TT[i]; x = X[i]
                a(f"v_pk_mul_f32 v[{w}:{w+1}], v[{x}:{x+1}], v[{x}:{x+1}]")
            for i in range(2):
                w = TT[i]
                a(f"v_pk_fma_f32 v[{w}:{w+1}], v[{w}:{w+1}], v[{kc}:{kc+1}], v[{dl}:{dl+1}] op_sel:[0,0,1] op_sel_hi:[1,0,1]")
            for i in range(2):
                w = TT[i]; x = X[i]
                a(f"v_pk_mul_f32 v[{w}:{w+1}], v[{w}:{w+1}], v[{x}:{x+1}] neg_lo:[1,0] neg_hi:[1,0]")
            for i in range(2):
                w = TT[i]
                a(f"v_exp_f32 v{w}, v{w}"); put()
                a(f"v_exp_f32 v{w+1}, v{w+1}"); put()
            for i in range(2):
                w = TT[i]
                a(f"v_pk_fma_f32 v[{w}:{w+1}], v[{w}:{w+1}], v[{dl}:{dl+1}], v[{dl}:{dl+1}] op_sel:[0,0,0] op_sel_hi:[1,0,0]")
            for i in range(2):
                w = TT[i]
                a(f"v_rcp_f32 v{w}, v{w}"); put()
                a(f"v_rcp_f32 v{w+1}, v{w+1}"); put()
            for i in range(2):
                w = TT[i]; x = X[i]
                a(f"v_pk_mul_f32 v[{w}:{w+1}], v[{x}:{x+1}], v[{w}:{w+1}]")
            for i in range(2):
                w = TT[i]
                a(f"v_cvt_pk_bf16_f32 v{pk+pp+i}, v{w}, v{w+1}")
        a(f"s_add_u32 s10, s{S_HS}, {q*112*1024 + p*2048}")
        sl = a.newlabel("HS"); bk = a.newlabel("HSB")
        a(f"s_cmp_eq_u32 s{S_FAST}, 0")
        a(f"s_cbranch_scc1 {sl}")
        hf = " sc1" if opt("hsc1", 0) else ""
        a(f"buffer_store_dwordx4 {vr(pk)}, v{VH0}, {srd(SRD_WS)}, s10 offen{hf}")
        a(f"buffer_store_dwordx4 {vr(pk+4)}, v{VH0}, {srd(SRD_WS)}, s10 offen offset:1024{hf}")
        a(f"{bk}:")
        TAIL.append(f"""
        {sl}:
        buffer_store_dwordx4 {vr(pk)}, v{VH0}, {srd(SRD_WS)}, s10 offen sc1
        buffer_store_dwordx4 {vr(pk+4)}, v{VH0}, {srd(SRD_WS)}, s10 offen offset:1024 sc1
        s_branch {bk}
        """)
        vm.issue(("h", p)); vm.issue(("h", p))
        if opt("hwait", 0):
            ts(a, f"g_hs{p}{q}")
            vm.all(a)
            ts(a, f"g_ha{p}{q}")
    flag_addr()
    gelu_quadrant(0, 0, PK[0])
    gelu_quadrant(0, 1, PK[1])
    ts(a, "g_q1")
    gelu_quadrant(1, 0, PK[0])
    if opt("fla", 0) == 0:
        ts(a, "g_q2")
        vm.wait(a, ("h", 0)); flag_store(0)
        ts(a, "g_flA")
    gelu_quadrant(1, 1, PK[1])
    while ex: emit(a, ex.pop(0), vm, lg)
    if opt("fla", 0) == 1:
        vm.wait(a, ("h", 0)); flag_store(0)
    ts(a, "g_gelu")
    a.c("---- G2")
    a(f"global_load_dword v232, v{VG1F}, {sp(S_WS)} sc1")
    vm.issue("pollA")
    a(f"""
    v_mov_b32 v200, v{VB2R}
    v_mov_b32 v201, 0
    v_mov_b32 v202, 0
    v_mov_b32 v203, 0
    v_mov_b32 v204, 0x3e80
    v_mov_b32 v205, 0
    v_mov_b32 v206, 0
    v_mov_b32 v207, 0
    v_mov_b32 v208, 0
    v_mov_b32 v209, 0
    v_mov_b32 v210, 0
    v_mov_b32 v211, 0
    v_permlane32_swap_b32 v204, v208
    v_mov_b32 v208, 0
    v_mov_b32 v212, 0x3e80
    v_permlane32_swap_b32 v208, v212
    """)
    for db_ in range(2):
        for lb_ in range(2):
            B = 204 if db_ == 0 else 208
            a(f"v_mfma_f32_32x32x16_bf16 {vr(acc(db_,lb_),16)}, v[200:203], {vr(B)}, 0")
    VO, VS_, VSL, VCV = 4, 5, 6, 7
    a(f"""
    v_and_b32 v233, 15, v0
    v_lshrrev_b32 v234, 4, v0
    s_lshl_b32 s10, s{S_LB}, 6
    s_lshl_b32 s11, s3, 4
    s_add_u32 s10, s10, s11
    v_add_u32 v235, s10, v233
    v_mul_u32_u24 v235, 896, v235
    v_lshl_add_u32 v235, v234, 4, v235
    s_lshl_b32 s11, s{S_DB}, 7
    v_add_u32 v{VO}, s11, v235
    v_lshrrev_b32 v235, 3, v0
    v_and_b32 v236, 7, v0
    s_lshl_b32 s10, s{S_DB}, 6
    s_lshl_b32 s11, s3, 4
    s_add_u32 s10, s10, s11                 ; d0 + 16w
    v_add_u32 v237, s10, v235
    v_lshlrev_b32 v237, 12, v237
    v_lshl_add_u32 v{VS_}, v236, 4, v237
    s_lshl_b32 s11, s{S_LB}, 7
    s_add_u32 s11, s11, {ST_OFF}
    v_add_u32 v{VS_}, s11, v{VS_}
    s_mul_i32 s9, s3, {G2_WREG}
    v_mul_u32_u24 v{VSL}, {G2_SSTR}, v235
    v_lshl_add_u32 v{VSL}, v236, 4, v{VSL}
    v_add_u32 v{VSL}, s9, v{VSL}
    s_lshl_b32 s11, s{S_DB}, 3
    s_add_u32 s11, s11, s{S_XX}
    s_lshl_b32 s11, s11, 7
    s_add_u32 s11, s11, {FL_CVD}
    v_mov_b32 v{VCV}, s11
    """)
    ts(a, "g_prep")
    vm.wait(a, "pollA")
    ts(a, "g_pret")
    flag_store(1)
    pa = a.newlabel("PA"); pab = a.newlabel("PAB")
    a(f"""
    {pab}:
    v_cmp_ne_u32 vcc, s{S_TAG}, v232
    s_and_b32 s10, vcc_lo, 0x1555
    s_cbranch_scc1 {pa}
    """)
    TAIL.append(f"""
    {pa}:
    s_sub_u32 s{S_BUD}, s{S_BUD}, 1
    s_cbranch_scc1 L_BAIL
    global_load_dword v232, v{VG1F}, {sp(S_WS)} sc1
    s_waitcnt vmcnt(0)
    s_branch {pab}
    """)
    ts(a, "g_pollA")
    vm2 = VM(); vm2.issue(("fl", 1))
    NH = 7
    def hload(t):
        g, m = t // 14, t % 14
        i, be = m >> 1, m & 1
        b = HB + 8 * (t % NH)
        o = (2 * g + be) * 1024
        off = f" offset:{o}" if o else ""
        a(f"buffer_load_dwordx4 {vr(b)}, v{VH0}, {srd(SRD_WS)}, s{SH[i]} offen{off} sc1")
        a(f"buffer_load_dwordx4 {vr(b+4)}, v{VH1}, {srd(SRD_WS)}, s{SH[i]} offen{off} sc1")
        vm2.issue(("h", t)); vm2.issue(("h", t))
    for t in range(NH): hload(t)
    ts(a, "g_hiss")
    T_PB, T_CV, T_CVC = opt("tpb", 1), opt("tcv", 18), opt("tcvc", 22)
    S_NR = 12
    for t in range(28):
        vm2.wait(a, ("h", t))
        if t == 0: lg.wait(a, ("r", 13))
        if t >= 14: lg.wait(a, ("r", t))
        for db_ in range(2):
            for lb_ in range(2):
                a(f"v_mfma_f32_32x32x16_bf16 {vr(acc(db_,lb_),16)}, {vr(W2R + 8*(t%14) + 4*db_)}, {vr(HB + 8*(t%NH) + 4*lb_)}, {vr(acc(db_,lb_),16)}")
        if t + NH == 14:
            vm2.wait(a, "pollB")
            pb = a.newlabel("PB"); pbb = a.newlabel("PBB")
            a(f"""
            {pbb}:
            v_cmp_ne_u32 vcc, s{S_TAG}, v2
            s_and_b32 s10, vcc_lo, 0x2aaa
            s_cbranch_scc1 {pb}
            """)
            TAIL.append(f"""
            {pb}:
            s_sub_u32 s{S_BUD}, s{S_BUD}, 1
            s_cbranch_scc1 L_BAIL
            global_load_dword v2, v{VG1F}, {sp(S_WS)} sc1
            s_waitcnt vmcnt(0)
            s_branch {pbb}
            """)
        if t + NH < 28: hload(t + NH)
        if t == T_PB:
            a(f"global_load_dword v2, v{VG1F}, {sp(S_WS)} sc1"); vm2.issue("pollB")
        if t < 14:
            if t == 0: vm.all(a) if False else None
            emit(a, trr(t + 14), vm, lg)
        if t == 14:
            pass
        if t == 15:
            lg.wait(a, ("r", 27))
            a(f"v_mov_b32 v{VCNT}, 100")
            emit(a, [(f"ds_write_b32 v{VSIG}, v{VCNT}", "sig")], vm, lg)
        if t == T_CV:
            a(f"global_load_dword v3, v{VCV}, {sp(S_WS)} sc1"); vm2.issue("pollCV")
        if t == T_CVC:
            vm2.wait(a, "pollCV")
            a(f"""
            v_cmp_ne_u32 vcc, s{S_TAG}, v3
            s_or_b32 s{S_NR}, vcc_lo, vcc_hi
            buffer_load_dwordx4 v[24:27], v{VS_}, {srd(SRD_WS)}, 0 offen sc1
            s_mov_b32 s11, {8*4096}
            buffer_load_dwordx4 v[28:31], v{VS_}, {srd(SRD_WS)}, s11 offen sc1
            buffer_load_dwordx4 v[16:19], v{VO}, {srd(SRD_X)}, 0 offen
            buffer_load_dwordx4 v[20:23], v{VO}, {srd(SRD_X)}, 0 offen offset:64
            """)
            for _ in range(4): vm2.issue("sx")
        if t in (6, 13, 20) or (TSSEL and t < 27): ts(a, f"g_s{t}")
    emit(a, [(f"ds_read_b32 v{VFV}, v{VFL}", "flag")], vm, lg)
    ts(a, "g_g2end")
    a(f"""
    s_mul_i32 s9, s3, {G2_WREG}
    v_and_b32 v1, 31, v0
    v_mul_u32_u24 v1, {G2_PSTR}, v1
    v_lshrrev_b32 v2, 5, v0
    v_lshl_add_u32 v1, v2, 4, v1
    v_add_u32 v1, s9, v1
    s_waitcnt lgkmcnt(0)
    """)
    check_flag(a, VFV, VFL, 100)
    VS = 24
    cvs = a.newlabel("CVS"); cvb = a.newlabel("CVB")
    a(f"""
    s_cmp_lg_u32 s{S_NR}, 0
    s_cbranch_scc1 {cvs}
    {cvb}:
    """)
    TAIL.append(f"""
    {cvs}:
    s_sub_u32 s{S_BUD}, s{S_BUD}, 1
    s_cbranch_scc1 L_BAIL
    global_load_dword v3, v{VCV}, {sp(S_WS)} sc1
    s_waitcnt vmcnt(0)
    v_cmp_ne_u32 vcc, s{S_TAG}, v3
    s_cbranch_vccnz {cvs}
    buffer_load_dwordx4 v[24:27], v{VS_}, {srd(SRD_WS)}, 0 offen sc1
    s_mov_b32 s11, {8*4096}
    buffer_load_dwordx4 v[28:31], v{VS_}, {srd(SRD_WS)}, s11 offen sc1
    s_branch {cvb}
    """)
    for db_ in range(2):
        for lb_ in range(2):
            for q in range(4):
                a(f"ds_write_b128 v1, {vr(acc(db_,lb_)+4*q)} offset:{lb_*32*G2_PSTR + db_*128 + q*32}")
    a(f"""
    s_waitcnt vmcnt(0)
    ds_write_b128 v{VSL}, {vr(VS)} offset:{G2_STILE}
    ds_write_b128 v{VSL}, {vr(VS+4)} offset:{G2_STILE + 8*G2_SSTR}
    v_mov_b32 v{VCNT}, 200
    s_waitcnt lgkmcnt(0)
    ds_write_b32 v{VSIG}, v{VCNT}
    v_and_b32 v1, 15, v0
    v_lshrrev_b32 v7, 4, v0
    s_lshl_b32 s11, s3, 4
    v_add_u32 v6, s11, v1
    v_mul_u32_u24 v6, {G2_PSTR}, v6
    v_lshl_add_u32 v6, v7, 5, v6
    v_lshrrev_b32 v3, 1, v7
    v_mul_u32_u24 v3, {G2_WREG}, v3
    v_and_b32 v2, 1, v7
    v_lshlrev_b32 v2, 3, v2
    v_bfe_u32 v5, v0, 2, 2
    v_add_u32 v2, v2, v5
    v_mul_u32_u24 v2, {G2_SSTR}, v2
    v_add_u32 v3, v3, v2
    v_and_b32 v2, 3, v0
    v_lshl_add_u32 v3, v2, 3, v3
    s_lshl_b32 s11, s3, 5
    v_add_u32 v3, s11, v3
    v_add_u32 v3, {G2_STILE}, v3
    v_add_u32 v2, {2*G2_WREG}, v3
    v_add_u32 v5, {2*G2_WREG}, v6
    """)
    spin_lds(a, VFV, VFL, 0, 200)
    ts(a, "g_red")
    for k in range(2):
        for w in range(4):
            base = 6 if w < 2 else 5
            for hq in range(2):
                a(f"ds_read_b128 {vr(48+32*k+8*w+4*hq)}, v{base} offset:{(w%2)*G2_WREG + k*128 + hq*16}")
        sv = 3 if k == 0 else 2
        a(f"ds_read_b64_tr_b16 v[{112+4*k}:{113+4*k}], v{sv}")
        a(f"ds_read_b64_tr_b16 v[{114+4*k}:{115+4*k}], v{sv} offset:{4*G2_SSTR}")
    a(f"""
    s_mov_b32 s70, {hx(-LOG2E)}
    s_mov_b32 s71, {hx(-LOG2E)}
    s_mov_b32 s72, 1.0
    s_mov_b32 s73, 1.0
    """)
    for k in range(2):
        B = 48 + 32 * k
        a(f"s_waitcnt lgkmcnt({10 if k == 0 else 0})")
        for p in range(4):
            x = B + 2 * p
            t0 = 120 + 8 * (p % 2)
            a(f"""
            v_pk_add_f32 v[{x}:{x+1}], v[{x}:{x+1}], v[{x+8}:{x+9}]
            v_pk_add_f32 v[{x+16}:{x+17}], v[{x+16}:{x+17}], v[{x+24}:{x+25}]
            v_lshlrev_b32 v{t0+2}, 16, v{112+4*k+p}
            v_pk_add_f32 v[{x}:{x+1}], v[{x}:{x+1}], v[{x+16}:{x+17}]
            v_and_b32 v{t0+3}, 0xffff0000, v{112+4*k+p}
            v_pk_mul_f32 v[{t0}:{t0+1}], v[{x}:{x+1}], s[70:71]
            v_exp_f32 v{t0}, v{t0}
            v_exp_f32 v{t0+1}, v{t0+1}
            v_pk_mul_f32 v[{x}:{x+1}], v[{x}:{x+1}], v[{t0+2}:{t0+3}]
            v_pk_add_f32 v[{t0}:{t0+1}], v[{t0}:{t0+1}], s[72:73]
            v_lshlrev_b32 v{t0+4}, 16, v{16+4*k+p}
            v_rcp_f32 v{t0}, v{t0}
            v_rcp_f32 v{t0+1}, v{t0+1}
            v_and_b32 v{t0+5}, 0xffff0000, v{16+4*k+p}
            v_pk_fma_f32 v[{x}:{x+1}], v[{x}:{x+1}], v[{t0}:{t0+1}], v[{t0+4}:{t0+5}]
            v_cvt_pk_bf16_f32 v{136+4*k+p}, v{x}, v{x+1}
            """)
        a(f"buffer_store_dwordx4 {vr(136+4*k)}, v{VO}, {srd(SRD_OUT)}, 0 offen offset:{64*k}")
    a(f"""
    s_or_b32 s10, s2, s3
    s_cmp_lg_u32 s10, 0
    s_cbranch_scc1 G2_NOEP
    s_add_u32 s10, s{S_EPOCH}, 1
    v_mov_b32 v1, {FL_EPOCH}
    v_mov_b32 v2, s10
    s_mov_b64 exec, 1
    global_store_dword v1, v2, {sp(S_WS)}
    s_mov_b64 exec, -1
    G2_NOEP:
    """)
    ts(a, "g_end")

def spare_path(a):
    a.c("---- spare WG: LN")
    XA, XB_ = 16, 32
    a(f"""
    s_lshl_b32 s4, s{S_XX}, 2
    s_add_u32 s4, s4, s{S_YY}
    s_sub_u32 s4, s4, 28                    ; q
    s_lshl_b32 s5, s4, 6
    s_lshl_b32 s6, s3, 3
    s_add_u32 s5, s5, s6
    v_lshrrev_b32 v1, 4, v0                 ; qd
    v_and_b32 v2, 15, v0                    ; c
    v_lshl_add_u32 v3, v1, 1, s5            ; row A
    v_mul_u32_u24 v4, 896, v3
    v_lshl_add_u32 v4, v2, 4, v4
    v_mov_b32 v{XA+12}, 0
    v_mov_b32 v{XA+13}, 0
    v_mov_b32 v{XA+14}, 0
    v_mov_b32 v{XA+15}, 0
    v_mov_b32 v{XB_+12}, 0
    v_mov_b32 v{XB_+13}, 0
    v_mov_b32 v{XB_+14}, 0
    v_mov_b32 v{XB_+15}, 0
    v_mov_b32 v5, {SP_CNT}
    v_mov_b32 v6, 0
    ds_write_b32 v5, v6
    s_waitcnt lgkmcnt(0)
    """)
    ts(a, "p_karg")
    for i in range(3):
        a(f"global_load_dwordx4 {vr(XA+4*i)}, v4, {sp(S_X)} offset:{256*i}")
        a(f"global_load_dwordx4 {vr(XB_+4*i)}, v4, {sp(S_X)} offset:{896+256*i}")
    a(f"""
    s_mov_b32 exec_lo, 0x00ff00ff
    s_mov_b32 exec_hi, 0x00ff00ff
    global_load_dwordx4 {vr(XA+12)}, v4, {sp(S_X)} offset:768
    global_load_dwordx4 {vr(XB_+12)}, v4, {sp(S_X)} offset:{896+768}
    s_mov_b64 exec, -1
    """)
    epoch_load(a)
    if opt("wpf", 2) == 1:
        a(f"""
        s_lshl_b32 s10, s4, 3
        s_add_u32 s10, s10, s3
        s_mul_i32 s10, s10, {49*128}
        v_lshl_add_u32 v7, v0, 7, s10
        s_mov_b32 exec_lo, -1
        s_mov_b32 exec_hi, 0x1ffff
        global_load_dword v250, v7, {sp(S_W2)}
        s_mov_b64 exec, -1
        """)
    npf = 1 if opt("wpf", 2) == 1 else 0
    a(f"""
    s_lshl_b32 s10, s3, 2
    v_and_b32 v8, 7, v2
    v_lshl_add_u32 v8, v8, 2, v1
    v_add_u32 v8, s10, v8
    v_and_b32 v8, 31, v8
    v_lshlrev_b32 v8, 2, v8
    v_lshl_add_u32 v8, v2, 10, v8
    v_add_u32 v9, 16384, v8
    v_add_u32 v10, 32768, v8
    v_add_u32 v11, 49152, v8
    s_mov_b32 s12, 0x3f803f80
    v_mov_b32 v48, 0
    v_mov_b32 v49, 0
    v_mov_b32 v50, 0
    v_mov_b32 v51, 0
    v_mov_b32 v52, 0
    v_mov_b32 v53, 0
    v_mov_b32 v54, 0
    v_mov_b32 v55, 0
    s_waitcnt lgkmcnt(0)
    """)
    tag_calc(a)
    a(f"s_waitcnt vmcnt({npf})")
    ts(a, "p_x")
    for i in range(16):
        k = i & 1
        a(f"v_dot2c_f32_bf16 v{48+k}, s12, v{XA+i}")
        a(f"v_dot2c_f32_bf16 v{52+k}, s12, v{XB_+i}")
        a(f"v_dot2c_f32_bf16 v{50+k}, v{XA+i}, v{XA+i}")
        a(f"v_dot2c_f32_bf16 v{54+k}, v{XB_+i}, v{XB_+i}")
    a("""
    v_add_f32 v48, v48, v49
    v_add_f32 v50, v50, v51
    v_add_f32 v52, v52, v53
    v_add_f32 v54, v54, v55
    """)
    for m in ("quad_perm:[1,0,3,2]", "quad_perm:[2,3,0,1]", "row_half_mirror", "row_mirror"):
        for r in (48, 50, 52, 54):
            a(f"v_add_f32_dpp v{r}, v{r}, v{r} {m} row_mask:0xf bank_mask:0xf")
    rows = [dict(mean=48, var=50, m1=56, sd=57, rs=58, t=59, m2=60, v2=61), dict(mean=52, var=54, m1=62, sd=63, rs=64, t=65, m2=66, v2=67)]
    def both_(f):
        for r in rows:
            for ln in f(r).strip().split("\n"): pass
        ls = [[x.strip() for x in f(r).strip().split("\n")] for r in rows]
        for x, y in zip(*ls): a(x); a(y)
    both_(lambda r: f"""
    v_mul_f32 v{r['mean']}, {hx(1.0/448)}, v{r['mean']}
    v_mul_f32 v{r['var']}, {hx(1.0/448)}, v{r['var']}
    v_fma_f32 v{r['var']}, -v{r['mean']}, v{r['mean']}, v{r['var']}
    v_max_f32 v{r['var']}, 0, v{r['var']}
    v_cvt_pk_bf16_f32 v{r['m1']}, v{r['mean']}, v{r['mean']}
    v_cvt_pk_bf16_f32 v{r['sd']}, v{r['var']}, v{r['var']}
    v_and_b32 v{r['m1']}, 0xffff0000, v{r['m1']}
    v_and_b32 v{r['sd']}, 0xffff0000, v{r['sd']}
    v_add_f32 v{r['sd']}, {hx(1e-5)}, v{r['sd']}
    v_cvt_pk_bf16_f32 v{r['sd']}, v{r['sd']}, v{r['sd']}
    v_and_b32 v{r['sd']}, 0xffff0000, v{r['sd']}
    v_sqrt_f32 v{r['sd']}, v{r['sd']}
    v_cvt_pk_bf16_f32 v{r['sd']}, v{r['sd']}, v{r['sd']}
    v_and_b32 v{r['sd']}, 0xffff0000, v{r['sd']}
    v_rcp_f32 v{r['rs']}, v{r['sd']}
    v_sub_f32 v{r['m2']}, v{r['mean']}, v{r['m1']}
    v_mul_f32 v{r['v2']}, v{r['var']}, v{r['rs']}
    v_mul_f32 v{r['m2']}, v{r['m2']}, v{r['rs']}
    v_mul_f32 v{r['v2']}, v{r['v2']}, v{r['rs']}
    v_cvt_pk_bf16_f32 v{r['m2']}, v{r['m2']}, v{r['m2']}
    v_cvt_pk_bf16_f32 v{r['v2']}, v{r['v2']}, v{r['v2']}
    v_and_b32 v{r['m2']}, 0xffff0000, v{r['m2']}
    v_and_b32 v{r['v2']}, 0xffff0000, v{r['v2']}
    v_add_f32 v{r['v2']}, {hx(1e-5)}, v{r['v2']}
    v_cvt_pk_bf16_f32 v{r['v2']}, v{r['v2']}, v{r['v2']}
    v_and_b32 v{r['v2']}, 0xffff0000, v{r['v2']}
    v_sqrt_f32 v{r['v2']}, v{r['v2']}
    v_cvt_pk_bf16_f32 v{r['v2']}, v{r['v2']}, v{r['v2']}
    v_and_b32 v{r['v2']}, 0xffff0000, v{r['v2']}
    v_rcp_f32 v{r['v2']}, v{r['v2']}
    v_fma_f32 v{r['m2']}, v{r['m2']}, v{r['sd']}, v{r['m1']}
    v_mul_f32 v{r['v2']}, v{r['rs']}, v{r['v2']}
    """)
    A_, B_ = rows
    a(f"""
    v_cmp_eq_u32 vcc, 1, v2
    v_cndmask_b32 v68, v{A_['v2']}, v{B_['v2']}, vcc
    v_cndmask_b32 v70, v{A_['m2']}, v{B_['m2']}, vcc
    v_mov_b32 v69, s{S_TAG}
    v_sub_f32 v70, 0, v70
    v_mov_b32 v71, s{S_TAG}
    v_add_u32 v12, v3, v2
    v_lshlrev_b32 v12, 4, v12
    v_add_u32 v12, {STAT_OFF}, v12
    s_mov_b32 exec_lo, 0x00030003
    s_mov_b32 exec_hi, 0x00030003
    global_store_dwordx4 v12, v[68:71], {sp(S_WS)} sc1
    s_mov_b64 exec, -1
    v_mov_b32 v72, v{A_['rs']}
    v_mov_b32 v73, v{B_['rs']}
    v_mul_f32 v74, v{A_['m1']}, v{A_['rs']}
    v_mul_f32 v75, v{B_['m1']}, v{B_['rs']}
    v_sub_f32 v74, 0, v74
    v_sub_f32 v75, 0, v75
    """)
    ts(a, "p_stat")
    if opt("wpf", 2) == 2:
        a(f"""
        s_lshl_b32 s10, s4, 3
        s_add_u32 s10, s10, s3
        s_mul_i32 s10, s10, {49*128}
        v_lshl_add_u32 v7, v0, 7, s10
        s_mov_b32 exec_lo, -1
        s_mov_b32 exec_hi, 0x1ffff
        global_load_dword v250, v7, {sp(S_W2)}
        s_mov_b64 exec, -1
        """)
    for i in range(4):
        for j in range(4):
            ra, rb = XA + 4 * i + j, XB_ + 4 * i + j
            t = 80 + 8 * (j % 2)
            a(f"""
            v_lshlrev_b32 v{t}, 16, v{ra}
            v_lshlrev_b32 v{t+1}, 16, v{rb}
            v_and_b32 v{t+2}, 0xffff0000, v{ra}
            v_and_b32 v{t+3}, 0xffff0000, v{rb}
            v_pk_fma_f32 v[{t}:{t+1}], v[{t}:{t+1}], v[72:73], v[74:75]
            v_pk_fma_f32 v[{t+2}:{t+3}], v[{t+2}:{t+3}], v[72:73], v[74:75]
            v_cvt_pk_bf16_f32 v{t+4}, v{t}, v{t+1}
            v_cvt_pk_bf16_f32 v{t+5}, v{t+2}, v{t+3}
            ds_write2_b32 v{8+i}, v{t+4}, v{t+5} offset0:{64*j} offset1:{64*j+32}
            """)
    a(f"""
    v_lshrrev_b32 v1, 3, v0
    v_and_b32 v2, 7, v0
    s_mul_i32 s10, s3, 56
    v_add_u32 v3, s10, v1                   ; d (i'=0)
    v_lshlrev_b32 v4, 7, v3                 ; d*128
    s_mul_i32 s11, s3, 7
    v_add_u32 v5, s11, v2                   ; seg + 7w
    v_lshlrev_b32 v6, 12, v3
    v_lshl_add_u32 v6, v2, 4, v6
    s_lshl_b32 s11, s4, 7
    s_add_u32 s11, s11, {XT_OFF}
    v_add_u32 v6, s11, v6
    """)
    for i in range(7):
        a(f"""
        v_add_u32 v{16+i}, {i}, v5
        v_and_b32 v{16+i}, 7, v{16+i}
        v_lshl_add_u32 v{16+i}, v{16+i}, 4, v4
        """)
    a("""
    s_waitcnt lgkmcnt(0)
    s_barrier
    """)
    a(f"""
    s_cmp_ge_u32 s4, 7
    s_cbranch_scc1 SP_NOZ
    s_cmp_lg_u32 s3, 0
    s_cbranch_scc1 SP_NOZ
    s_lshl_b32 s10, s4, 7
    s_add_u32 s10, s10, {FL_CVC}
    v_mov_b32 v8, s10
    v_mov_b32 v9, 0
    s_mov_b64 exec, 1
    global_store_dword v8, v9, {sp(S_WS)} sc1
    s_mov_b64 exec, -1
    SP_NOZ:
    """)
    for i in range(7):
        a(f"ds_read_b128 {vr(32+4*i)}, v{16+i} offset:{1024*i}")
    for i in range(7):
        a(f"s_waitcnt lgkmcnt({6-i})")
        a(f"global_store_dwordx4 v6, {vr(32+4*i)}, {sp(S_WS)} sc1")
        if i < 6: a(f"v_add_u32 v6, {8*4096}, v6")
    ts(a, "p_st")
    a(f"""
    s_mov_b32 s10, {DBG_LN}
    s_mov_b32 s11, {FL_LN}
    """)
    publish_cnt(a, SP_CNT, 8, S_DBG, 10, 32, 11, 32, 8, 9)
    ts(a, "p_end")
    a("s_barrier")
    if opt("sph", 1):
        a(f"""
        s_sub_u32 s10, s{S_YY}, 28
        s_lshl_b32 s10, s10, 3
        s_add_u32 s10, s10, s3              ; 0..31
        s_mul_i32 s10, s10, 28672
        s_mul_i32 s11, s{S_XX}, 917504
        s_add_u32 s10, s10, s11
        v_lshl_add_u32 v7, v0, 7, s10
        global_load_dword v240, v7, {sp(S_WS)}
        v_add_u32 v7, 8192, v7
        global_load_dword v241, v7, {sp(S_WS)}
        v_add_u32 v7, 8192, v7
        global_load_dword v242, v7, {sp(S_WS)}
        v_add_u32 v7, 8192, v7
        s_mov_b64 exec, 0xffffffff
        global_load_dword v243, v7, {sp(S_WS)}
        s_lshl_b32 s10, s{S_XX}, 10
        s_add_u32 s10, s10, {FL_G1}
        v_lshl_add_u32 v7, v0, 7, s10
        s_mov_b64 exec, 0xff
        global_load_dword v244, v7, {sp(S_WS)}
        s_mov_b64 exec, -1
        """)
    if opt("l2pf", 0):
        a(f"""
        s_sub_u32 s10, s{S_YY}, 28
        s_lshl_b32 s10, s10, 3
        s_add_u32 s10, s10, s3
        s_min_u32 s10, s10, 27
        s_mul_i32 s10, s10, 57344
        v_lshl_add_u32 v7, v0, 7, s10
        """)
        for i in range(7):
            if i == 4: a("s_barrier")
            a(f"global_load_dword v{240+i}, v7, {sp(S_W2)}")
            if i < 6: a("v_add_u32 v7, 8192, v7")
    a("s_waitcnt vmcnt(0)")
    ts(a, "p_pf")

PRIME = {}
def mkprime(a, y):
    p0, p1 = PRIME[y]
    a(f"v_mov_b32 v{p0}, v{y+1}")
    a(f"v_mov_b32 v{p1}, v{y+3}")
def cmul_n(a, jobs, t0=8):
    for k, (r, x, y, yp) in enumerate(jobs):
        t = t0 + 2 * k
        a(f"v_pk_mul_f32 v[{t}:{t+1}], v[{x}:{x+1}], v[{y}:{y+1}] op_sel:[0,0] op_sel_hi:[1,0]")
    for k, (r, x, y, yp) in enumerate(jobs):
        t = t0 + 2 * k
        assert yp % 2 == 0
        a(f"v_pk_fma_f32 v[{r}:{r+1}], v[{x}:{x+1}], v[{yp}:{yp+1}], v[{t}:{t+1}] op_sel:[1,0,0] op_sel_hi:[0,0,1] neg_lo:[1,0,0]")
def both(r, x, y): return [(r + 2 * c, x + 2 * c, y + 2 * c, PRIME[y][c]) for c in range(2)]
def cm(a, r, x, y): cmul_n(a, both(r, x, y))

def pair_sync(a, val, VMY, VOT, VT):
    lab = a.newlabel("PS")
    a(f"""
    v_mov_b32 v{VT}, {val}
    s_waitcnt lgkmcnt(0)
    ds_write_b32 v{VMY}, v{VT}
    {lab}:
    s_sub_u32 s{S_BUD}, s{S_BUD}, 1
    s_cbranch_scc1 L_BAIL
    ds_read_b32 v{VT}, v{VOT}
    s_waitcnt lgkmcnt(0)
    v_cmp_gt_u32 vcc, {val}, v{VT}
    s_cbranch_vccnz {lab}
    """)

KC_GA = 204
KC_SC = 228
KC_RAW = 233
def kc_path(a):
    a.c("---- KC path")
    GA, SC, RAW = KC_GA, KC_SC, KC_RAW
    a(f"""
    s_sub_u32 s5, s3, 4                     ; k
    ; zero LDS flags
    v_and_b32 v1, 31, v0
    v_lshlrev_b32 v1, 2, v1
    v_lshrrev_b32 v2, 5, v0
    v_mul_u32_u24 v2, {CH_SZ}, v2
    v_add_u32 v1, v1, v2
    v_mov_b32 v2, 0
    ds_write_b32 v1, v2 offset:{GFLAG - 65536}
    """.replace(f"ds_write_b32 v1, v2 offset:{GFLAG - 65536}", f"v_add_u32 v1, {GFLAG}, v1\n ds_write_b32 v1, v2"))
    a(f"""
    s_mul_i32 s4, s{S_XX}, 28
    s_add_u32 s4, s4, s{S_YY}               ; cp
    s_lshr_b32 s6, s5, 1                    ; ch
    s_and_b32 s7, s5, 1                     ; hh
    s_lshl_b32 s8, s4, 1
    s_add_u32 s8, s8, s6                    ; d
    s_mul_i32 s9, s6, {CH_SZ}
    s_add_u32 s9, s9, {AUX_BASE}
    s_lshl_b32 s10, s8, 9
    s_lshl_b32 s11, s7, 8
    s_add_u32 s10, s10, s11
    v_lshl_add_u32 v1, v0, 2, s10
    s_lshl_b32 s10, s4, 2
    s_waitcnt lgkmcnt(0)
    """)
    ts(a, "k_karg")
    a(f"""
    global_load_dword v{RAW}, v1, {sp(S_LOGA)}
    global_load_dword v{RAW+1}, v1, {sp(S_AIM)}
    global_load_dword v{RAW+2}, v1, {sp(S_CRE)}
    global_load_dword v{RAW+3}, v1, {sp(S_CIM)}
    s_barrier
    s_load_dword s12, {sp(S_LOGDT)}, s10
    s_load_dword s13, {sp(S_DSKIP)}, s10
    """)
    a(f"""
    s_mov_b32 s70, s4                       ; cp
    s_mov_b32 s71, s5                       ; k
    s_mov_b32 s72, s8                       ; d
    s_mov_b32 s73, s9
    s_mov_b32 s75, s7                       ; hh
    s_mov_b32 s77, s6
    s_and_b32 s80, s2, 31
    s_lshl_b32 s80, s80, 7
    s_add_u32 s80, s80, {FL_LN}
    """)
    epoch_load(a)
    a("s_mov_b32 s7, s75")
    mk_srd(a, SRD_WS, S_WS, WS_SRD_SIZE)
    if opt("nokc", 0):
        a("s_waitcnt lgkmcnt(0)")
        tag_calc(a)
        a(f"""
        s_lshr_b32 s10, s70, 5
        s_lshl_b32 s11, s10, 10
        s_add_u32 s11, s11, {FL_CVD}
        s_lshl_b32 s10, s10, 7
        s_add_u32 s10, s10, {FL_CVC}
        v_mov_b32 v1, s80
        KC_NK:
        global_load_dword v237, v1, {sp(S_WS)} sc1
        s_waitcnt vmcnt(0)
        v_cmp_ne_u32 vcc, s{S_TAG}, v237
        s_sleep 8
        s_cbranch_vccnz KC_NK
        """)
        publish_cnt(a, CNT_CV, 4, S_WS, 10, 32, 11, 8, 8, 9)
        for nm in ("k_init","k_par","k_b","k_kgen","k_ln","k_tab","k_cop","k_u","k_conv","k_st","k_end"): ts(a, nm)
        return
    a(f"""
    v_mov_b32 v12, 0
    s_cmp_lg_u32 s7, 0
    s_cbranch_scc1 KC_Z1
    s_mov_b64 exec, 15
    v_lshl_add_u32 v1, v0, 2, s9
    ds_write_b32 v1, v12 offset:{T0_OFF-16}
    s_mov_b64 exec, -1
    KC_Z1:
    """)
    a(f"""
    s_lshl_b32 s10, s7, 10
    s_sub_u32 s10, s10, 4
    v_lshl_add_u32 v16, v0, 3, s10
    s_add_u32 s11, s9, {T1_OFF}
    s_sub_u32 s14, s11, {4*0x4280}
    s_add_u32 s15, s11, 512
    v_cvt_f32_i32 v17, v16
    v_lshl_add_u32 v18, v16, 2, s11
    """)
    for r in range(2):
        for j in range(0, 12, 2):
            o = 512 * r + j
            g0 = GA + 12 * r + j
            a(f"""
            v_add_f32 v20, {hx(float(o))}, v17
            v_add_f32 v21, {hx(float(o+1))}, v17
            v_cvt_pk_bf16_f32 v20, v20, v21
            v_bfe_i32 v21, v20, 0, 16
            v_ashrrev_i32 v20, 16, v20
            v_lshl_add_u32 v21, v21, 2, s14
            v_lshl_add_u32 v20, v20, 2, s14
            v_add_u32 v22, {4*o}, v18
            v_add_u32 v23, {4*(o+1)}, v18
            v_med3_i32 v{g0}, v22, s15, v21
            v_med3_i32 v{g0+1}, v23, s15, v20
            """)
    a(f"""
    s_xor_b32 s10, s7, 1
    s_lshl_b32 s10, s10, 12
    s_add_u32 s11, s11, s10
    v_lshrrev_b32 v4, 4, v0                 ; g
    v_and_b32 v1, 15, v0                    ; c
    v_lshlrev_b32 v20, 4, v1
    v_lshl_add_u32 v20, v4, 2, v20
    v_lshl_add_u32 v{SC}, v20, 2, s11
    v_add_u32 v{SC}, 4, v{SC}
    v_lshlrev_b32 v20, 3, v1
    v_lshl_add_u32 v20, v4, 2, v20
    v_add_u32 v20, 257, v20
    v_lshlrev_b32 v21, 2, v1
    v_lshl_add_u32 v21, v4, 6, v21
    v_add_u32 v21, {385 - 128}, v21
    v_cmp_gt_u32 vcc, 2, v4
    v_cndmask_b32 v20, v21, v20, vcc
    v_lshl_add_u32 v{SC+1}, v20, 2, s11
    v_lshlrev_b32 v20, 1, v1
    v_lshl_add_u32 v20, v4, 6, v20
    v_add_u32 v20, 513, v20
    v_lshl_add_u32 v{SC+2}, v20, 2, s11
    s_mov_b32 s74, s11
    """)
    Z1, Z2, Z4, Z8, Z16, CHN, C2, A2S, A4S, A8S, Z256, Z512, Z1024, ST_ = 32, 36, 40, 44, 48, 52, 56, 60, 64, 68, 72, 76, 80, 84
    DT = [92, 96, 100]
    RB, RA0, RA1 = 108, 140, 172
    VMY, VOT, VT = 6, 7, 5
    VTR = 3
    VTW = [24, 25, 26, 27]
    CV = 16
    a(f"""
    s_mov_b32 s9, s73
    s_lshl_b32 s10, s7, 2
    s_add_u32 s10, s10, s9
    s_add_u32 s10, s10, {AF_OFF}
    v_mov_b32 v{VMY}, s10
    s_xor_b32 s10, s10, 4
    v_mov_b32 v{VOT}, s10
    s_mul_i32 s10, s7, {TILE_SZ}
    s_add_u32 s10, s10, s9
    v_lshl_add_u32 v{VTW[0]}, v0, 3, s10
    v_add_u32 v{VTW[1]}, {4*TROW}, v{VTW[0]}
    v_add_u32 v{VTW[2]}, {8*TROW}, v{VTW[0]}
    v_add_u32 v{VTW[3]}, {12*TROW}, v{VTW[0]}
    v_and_b32 v1, 15, v0
    v_mul_u32_u24 v{VTR}, {TROW}, v1
    v_lshrrev_b32 v4, 4, v0
    v_lshl_add_u32 v{VTR}, v4, 4, v{VTR}
    v_add_u32 v{VTR}, s10, v{VTR}
    s_waitcnt lgkmcnt(0)
    """)
    tag_calc(a)
    a(f"""
    s_lshl_b32 s10, s77, 4
    s_lshr_b32 s12, s12, s10
    s_lshl_b32 s76, s12, 16                 ; log_dt (f32 bits)
    s_lshr_b32 s13, s13, s10
    s_lshl_b32 s77, s13, 16                 ; D_skip (f32 bits)
    v_mov_b32 v1, {hx(LOG2E)}
    v_mul_f32 v4, s76, v1
    v_exp_f32 v4, v4
    """)
    bf16r(a, 4, 4)
    if opt("kprio", 0): a(f"s_setprio {opt('kprio', 0)}")
    ts(a, "k_init")
    a(f"""
    s_waitcnt vmcnt(0)
    """)
    ts(a, "k_par")
    a(f"""
    v_lshlrev_b32 v12, 16, v{RAW}
    v_and_b32 v13, 0xffff0000, v{RAW}
    v_mul_f32 v12, v12, v1
    v_mul_f32 v13, v13, v1
    v_exp_f32 v12, v12
    v_exp_f32 v13, v13
    v_cvt_pk_bf16_f32 v12, v12, v13
    v_lshlrev_b32 v14, 16, v12
    v_and_b32 v15, 0xffff0000, v12
    v_mul_f32 v14, v14, v4
    v_mul_f32 v15, v15, v4
    v_mul_f32 v14, v14, v1
    v_mul_f32 v15, v15, v1
    v_exp_f32 v14, -v14
    v_exp_f32 v15, -v15
    v_lshlrev_b32 v16, 16, v{RAW+1}
    v_and_b32 v17, 0xffff0000, v{RAW+1}
    v_mul_f32 v16, v16, v4
    v_mul_f32 v17, v17, v4
    v_mul_f32 v16, 0.15915494, v16
    v_mul_f32 v17, 0.15915494, v17
    v_rndne_f32 v18, v16
    v_rndne_f32 v19, v17
    v_sub_f32 v16, v16, v18
    v_sub_f32 v17, v17, v19
    v_cos_f32 v18, v16
    v_sin_f32 v19, v16
    v_cos_f32 v20, v17
    v_sin_f32 v21, v17
    v_mul_f32 v{Z1}, v14, v18
    v_mul_f32 v{Z1+1}, v14, v19
    v_mul_f32 v{Z1+2}, v15, v20
    v_mul_f32 v{Z1+3}, v15, v21
    v_add_f32 v4, v4, v4
    v_lshlrev_b32 v16, 16, v{RAW+2}
    v_and_b32 v17, 0xffff0000, v{RAW+2}
    v_lshlrev_b32 v18, 16, v{RAW+3}
    v_and_b32 v19, 0xffff0000, v{RAW+3}
    v_mul_f32 v{C2}, v16, v4
    v_mul_f32 v{C2+1}, v18, v4
    v_mul_f32 v{C2+2}, v17, v4
    v_mul_f32 v{C2+3}, v19, v4
    """)
    PRIME.update({Z1: (88, 90), Z2: (104, 106), Z4: (238, 240), Z8: (242, 244), Z16: (246, 248), Z256: (250, 252), Z512: (28, 30), Z1024: (254, 232)})
    mkprime(a, Z1); cm(a, Z2, Z1, Z1); mkprime(a, Z2); cm(a, Z4, Z2, Z2); mkprime(a, Z4); cm(a, Z8, Z4, Z4); mkprime(a, Z8); cm(a, Z16, Z8, Z8); mkprime(a, Z16)
    state = {"n": 0}
    def cvt(src, conj, slot):
        neg = "-" if conj else ""
        c = CV + 2 * slot
        a(f"v_cvt_pk_bf16_f32 v{c}, v{src}, {neg}v{src+1}")
        a(f"v_cvt_pk_bf16_f32 v{c+1}, v{src+2}, {neg}v{src+3}")
        return c
    def wr2(r0, c0, r1, c1):
        q = r0 // 4
        o0 = (r0 - 4 * q) * TROW // 8; o1 = (r1 - 4 * q) * TROW // 8
        assert 0 <= o0 <= 255 and 0 <= o1 <= 255
        a(f"ds_write2_b64 v{VTW[q]}, v[{c0}:{c0+1}], v[{c1}:{c1+1}] offset0:{o0} offset1:{o1}")
    def wr1(r, c):
        a(f"ds_write_b64 v{VTW[0]}, v[{c}:{c+1}] offset:{r*TROW}")
    def chain(reg, ratio, rows, conj, save=None, last_mul=False):
        pend = None
        for i, r in enumerate(rows):
            slot = (state["n"] % 4); state["n"] += 1
            c = cvt(reg, conj, slot)
            if save and r in save:
                s = save[r]
                a(f"v_mov_b64 v[{s}:{s+1}], v[{reg}:{reg+1}]")
                a(f"v_mov_b64 v[{s+2}:{s+3}], v[{reg+2}:{reg+3}]")
            if i + 1 < len(rows) or last_mul:
                cm(a, reg, reg, ratio)
            if pend is None:
                if i + 1 < len(rows) and rows[i + 1] // 4 == r // 4 and abs(rows[i + 1] - r) * TROW // 8 <= 255:
                    pend = (r, c)
                else:
                    wr1(r, c)
            else:
                wr2(pend[0], pend[1], r, c); pend = None
        assert pend is None
    def rd(dest):
        for kk in range(8):
            a(f"ds_read_b128 {vr(dest+4*kk)}, v{VTR} offset:{64*kk}")
    def mm(dt, A):
        for kk in range(8):
            c = "0" if kk == 0 else vr(DT[dt])
            a(f"v_mfma_f32_16x16x32_bf16 {vr(DT[dt])}, {vr(A+4*kk)}, {vr(RB+4*kk)}, {c}")
    a(f"""
    v_mov_b32 v{CV+6}, 0x3f80
    v_mov_b32 v{CV+7}, 0x3f80
    v_mov_b64 v[{CHN}:{CHN+1}], v[{Z16}:{Z16+1}]
    v_mov_b64 v[{CHN+2}:{CHN+3}], v[{Z16+2}:{Z16+3}]
    """)
    wr1(0, CV + 6)
    state["n"] = 0
    chain(CHN, Z16, [1], True, last_mul=True)
    chain(CHN, Z16, list(range(2, 16)), True, last_mul=True)
    rd(RB)
    a(f"v_mov_b64 v[{Z256}:{Z256+1}], v[{CHN}:{CHN+1}]")
    a(f"v_mov_b64 v[{Z256+2}:{Z256+3}], v[{CHN+2}:{CHN+3}]")
    mkprime(a, Z256)
    ts(a, "k_b")
    cm(a, CHN, C2, Z1)
    chain(CHN, Z1, list(range(16)), False, save={1: A2S, 3: A4S, 7: A8S})
    rd(RA0)
    cm(a, Z512, Z256, Z256)
    mkprime(a, Z512)
    cm(a, CHN, A2S, Z256)
    cm(a, Z1024, Z512, Z512)
    mkprime(a, Z1024)
    cm(a, ST_, A4S, Z512)
    chain(CHN, Z2, list(range(8)), False)
    a("s_waitcnt lgkmcnt(4)")
    mm(0, RA0)
    cm(a, CHN, ST_, Z256)
    chain(ST_, Z4, list(range(8, 12)), False)
    chain(CHN, Z4, list(range(12, 16)), False)
    rd(RA1)
    cm(a, CHN, A8S, Z1024)
    cm(a, ST_, CHN, Z8)
    VLN = 2
    a(f"""
    v_mov_b32 v{VLN}, s80
    global_load_dword v237, v{VLN}, {sp(S_WS)} sc1
    """)
    def a2():
        for tau in range(4):
            c0 = cvt(CHN, False, (2 * tau) % 4)
            c1 = cvt(ST_, False, (2 * tau + 1) % 4)
            if tau < 3:
                cmul_n(a, both(CHN, CHN, Z256) + both(ST_, ST_, Z256))
            wr2(2 * tau, c0, 2 * tau + 1, c1)
        c = cvt(C2, False, 0)
        wr1(8, c)
    a2()
    rd(RA0)
    a("s_waitcnt lgkmcnt(8)")
    mm(1, RA1)
    a("s_waitcnt lgkmcnt(0)")
    mm(2, RA0)
    ts(a, "k_kgen")
    UR = RA1
    uld = f"""
    s_lshl_b32 s10, s72, 12
    s_lshl_b32 s11, s7, 11
    s_add_u32 s10, s10, s11
    s_add_u32 s10, s10, {XT_OFF}
    v_lshlrev_b32 v1, 4, v0
    buffer_load_dwordx4 {vr(UR)}, v1, {srd(SRD_WS)}, s10 offen sc1
    buffer_load_dwordx4 {vr(UR+4)}, v1, {srd(SRD_WS)}, s10 offen offset:1024 sc1
    """
    a(f"""
    s_waitcnt vmcnt(0)
    v_cmp_ne_u32 vcc, s{S_TAG}, v237
    s_or_b32 s79, vcc_lo, vcc_hi
    s_cbranch_scc1 KC_NOU
    {uld}
    KC_NOU:
    """)
    ts(a, "k_ln")
    a(f"""
    ds_write_b128 v{SC}, {vr(DT[0])}
    ds_write_b128 v{SC+1}, {vr(DT[1])}
    s_mov_b32 exec_lo, -1
    s_mov_b32 exec_hi, 0
    ds_write2_b64 v{SC+2}, v[{DT[2]}:{DT[2]+1}], v[{DT[2]+2}:{DT[2]+3}] offset0:0 offset1:16
    s_mov_b32 exec_lo, 0
    s_mov_b32 exec_hi, 1
    v_mov_b32 v1, s74
    ds_write_b32 v1, v{DT[2]}
    s_mov_b64 exec, -1
    v_mov_b32 v12, 0
    v_mov_b32 v13, 0
    v_mov_b32 v14, 0
    v_mov_b32 v15, 0
    s_cmp_eq_u32 s7, 0
    s_cbranch_scc1 KC_Z2
    v_lshl_add_u32 v1, v0, 2, s74
    s_mov_b64 exec, 15
    v_subrev_u32 v1, 16, v1
    ds_write_b32 v1, v12
    s_mov_b64 exec, 0x3fffffff
    v_lshl_add_u32 v1, v0, 4, s9
    ds_write_b128 v1, v[12:15] offset:{U_PAD}
    s_mov_b64 exec, -1
    KC_Z2:
    """)
    pair_sync(a, 1, VMY, VOT, VT)
    ts(a, "k_tab")
    for r in range(2):
        G = 32 + 24 * r
        for j in range(12):
            a(f"ds_read2st64_b32 v[{G+2*j}:{G+2*j+1}], v{GA+12*r+j} offset0:0 offset1:16")
    a(f"""
    s_lshl_b32 s10, s7, 11
    s_add_u32 s10, s10, s9
    s_add_u32 s10, s10, 32
    v_lshl_add_u32 v2, v0, 4, s10
    v_add_u32 v3, {2*CSTR}, v2
    s_waitcnt lgkmcnt(0)
    """)
    for r in range(2):
        G = 32 + 24 * r
        P = 80 + 16 * r
        p = lambda k: {0: P+8, 1: P+4, 2: P+0, 3: P+1, 4: P+2, 5: P+3}[k]
        for j in range(12):
            a(f"v_add_f32 v{G+2*j}, v{G+2*j}, v{G+2*j+1}")
        for k in range(6):
            a(f"v_cvt_pk_bf16_f32 v{p(k)}, v{G+4*k}, v{G+4*k+2}")
        a(f"""
        v_mov_b32 v{P+5}, v{p(2)}
        v_mov_b32 v{P+6}, v{p(3)}
        v_mov_b32 v{P+7}, v{p(4)}
        v_alignbit_b32 v120, v{p(2)}, v{p(1)}, 16
        v_alignbit_b32 v121, v{p(3)}, v{p(2)}, 16
        v_alignbit_b32 v122, v{p(4)}, v{p(3)}, 16
        v_alignbit_b32 v123, v{p(5)}, v{p(4)}, 16
        v_alignbit_b32 v124, v{p(1)}, v{p(0)}, 16
        v_mov_b32 v125, v120
        v_mov_b32 v126, v121
        v_mov_b32 v127, v122
        ds_write_b128 v2, v[{P}:{P+3}] offset:{1024*r}
        ds_write_b128 v2, v[120:123] offset:{1024*r + CSTR}
        ds_write_b128 v3, v[{P+4}:{P+7}] offset:{1024*r}
        ds_write_b128 v3, v[124:127] offset:{1024*r + CSTR}
        """)
    a(f"""
    s_cmp_lg_u32 s7, 0
    s_cbranch_scc1 KC_Z3
    v_lshrrev_b32 v1, 1, v0
    v_mul_u32_u24 v1, {CSTR}, v1
    v_and_b32 v4, 1, v0
    v_lshl_add_u32 v1, v4, 4, v1
    v_add_u32 v1, s9, v1
    v_mov_b32 v12, 0
    v_mov_b32 v13, 0
    v_mov_b32 v14, 0
    v_mov_b32 v15, 0
    s_mov_b64 exec, 0xff
    ds_write_b128 v1, v[12:15]
    s_mov_b64 exec, -1
    KC_Z3:
    """)
    VA_, VB_ = 2, 3
    BR, AR, CACC = 32, 64, 80
    pair_sync(a, 2, VMY, VOT, VT)
    ts(a, "k_cop")
    TAIL.append(f"""
    KC_LNS:
    s_sub_u32 s{S_BUD}, s{S_BUD}, 1
    s_cbranch_scc1 L_BAIL
    v_mov_b32 v1, s80
    global_load_dword v237, v1, {sp(S_WS)} sc1
    s_waitcnt vmcnt(0)
    v_cmp_ne_u32 vcc, s{S_TAG}, v237
    s_cbranch_vccz KC_LNOK
    s_sleep {opt("lnslp", 4)}
    s_branch KC_LNS
    KC_LNOK:
    {uld}
    s_branch KC_HAVEU
    """)
    a(f"""
    s_cmp_lg_u32 s79, 0
    s_cbranch_scc1 KC_LNS
    KC_HAVEU:
    """)
    ts(a, "k_lnok")
    a(f"""
    s_lshl_b32 s10, s7, 11
    s_add_u32 s10, s10, s9
    v_lshl_add_u32 v1, v0, 4, s10
    s_waitcnt vmcnt(0)
    ds_write_b128 v1, {vr(UR)} offset:{U_OFF}
    ds_write_b128 v1, {vr(UR+4)} offset:{U_OFF+1024}
    v_lshrrev_b32 v4, 4, v0
    v_bfe_u32 v8, v0, 2, 2
    v_mul_u32_u24 v8, {CSTR}, v8
    v_and_b32 v9, 3, v0
    v_lshl_add_u32 v8, v9, 3, v8
    v_lshrrev_b32 v9, 1, v4
    v_and_b32 v10, 1, v4
    v_lshlrev_b32 v11, 5, v9
    v_lshlrev_b32 v12, 4, v10
    v_add_u32 v8, v8, v11
    v_sub_u32 v8, v8, v12
    s_lshl_b32 s10, s7, 8
    s_add_u32 s14, s10, s9
    s_add_u32 s14, s14, {32 - 8}
    v_add_u32 v{VA_}, s14, v8
    v_and_b32 v8, 15, v0
    v_lshlrev_b32 v8, 5, v8
    v_sub_u32 v8, v8, v11
    v_add_u32 v8, v8, v12
    s_sub_u32 s14, s9, s10
    s_add_u32 s14, s14, {U_OFF}
    v_add_u32 v{VB_}, s14, v8
    """)
    for i in range(32):
        a(f"v_mov_b32 v{CACC+i}, 0")
    pair_sync(a, 3, VMY, VOT, VT)
    ts(a, "k_u")
    def ldA(P):
        buf = AR + 4 * (P % 4)
        off = 512 * (P % 8) + (64 if P >= 8 else 0)
        a(f"ds_read_b64_tr_b16 v[{buf}:{buf+1}], v{VA_} offset:{off+8}")
        a(f"ds_read_b64_tr_b16 v[{buf+2}:{buf+3}], v{VA_} offset:{off}")
    for s in range(7, -1, -1):
        a(f"ds_read_b128 {vr(BR+4*s)}, v{VB_} offset:{512*s}")
    for P in range(3):
        ldA(P)
    a(f"""
    v_subrev_u32 v{VB_}, 64, v{VB_}
    s_mov_b32 s10, 4
    s_waitcnt lgkmcnt(0)
    CONV_LOOP:
    """)
    for P in range(8):
        a("s_waitcnt lgkmcnt(7)")
        ldA(P + 3)
        first = True
        for s in range(7 - P, -1, -1):
            if P == 0 and s <= 2:
                a(f"s_waitcnt lgkmcnt({3*(s+1)})")
            a(f"v_mfma_f32_16x16x32_bf16 {vr(CACC+4*(P+s))}, {vr(AR+4*(P%4))}, {vr(BR+4*s)}, {vr(CACC+4*(P+s))}")
            if first:
                a(f"ds_read_b128 {vr(BR+4*s)}, v{VB_} offset:{512*s}")
                first = False
    a(f"""
    v_add_u32 v{VA_}, 64, v{VA_}
    v_subrev_u32 v{VB_}, 64, v{VB_}
    s_sub_u32 s10, s10, 1
    s_cmp_lg_u32 s10, 0
    s_cbranch_scc1 CONV_LOOP
    """)
    ts(a, "k_conv")
    pair_sync(a, 4, VMY, VOT, VT)
    a(f"""
    s_lshl_b32 s10, s7, 12
    s_add_u32 s10, s10, s9
    v_lshl_add_u32 v2, v0, 4, s10
    v_xor_b32 v3, 4096, v2
    s_cmp_lg_u32 s7, 0
    s_cbranch_scc1 KC_X1
    """)
    assert AUX_BASE % 8192 == 0 and CH_SZ % 8192 == 0
    for t in range(4):
        a(f"ds_write_b128 v2, {vr(CACC+16+4*t)} offset:{1024*t}")
    a("s_branch KC_X2")
    a.label("KC_X1")
    for t in range(4):
        a(f"ds_write_b128 v2, {vr(CACC+4*t)} offset:{1024*t}")
    for i in range(0, 16, 2):
        a(f"v_mov_b64 v[{CACC+i}:{CACC+i+1}], v[{CACC+16+i}:{CACC+17+i}]")
    a.label("KC_X2")
    a(f"""
    v_and_b32 v8, 15, v0
    v_lshlrev_b32 v8, 5, v8
    v_lshrrev_b32 v4, 4, v0
    v_lshl_add_u32 v8, v4, 3, v8
    s_lshl_b32 s10, s7, 11
    v_add_u32 v8, s10, v8
    s_add_u32 s14, s9, {U_OFF}
    v_add_u32 v9, s14, v8
    """)
    for t in range(4):
        a(f"ds_read_b64 v[{48+2*t}:{49+2*t}], v9 offset:{512*t}")
    pair_sync(a, 5, VMY, VOT, VT)
    for t in range(4):
        a(f"ds_read_b128 {vr(32+4*t)}, v3 offset:{1024*t}")
    a(f"""
    s_lshl_b32 s10, s72, 12
    s_add_u32 s10, s10, {ST_OFF}
    v_mov_b32 v10, s77
    v_mov_b32 v11, s77
    """)
    for t in range(4):
        A = CACC + 4 * t; X = 48 + 2 * t; Pp = 32 + 4 * t
        a(f"""
        v_lshlrev_b32 v12, 16, v{X}
        v_and_b32 v13, 0xffff0000, v{X}
        v_lshlrev_b32 v14, 16, v{X+1}
        v_and_b32 v15, 0xffff0000, v{X+1}
        v_pk_fma_f32 v[{A}:{A+1}], v[12:13], v[10:11], v[{A}:{A+1}]
        v_pk_fma_f32 v[{A+2}:{A+3}], v[14:15], v[10:11], v[{A+2}:{A+3}]
        s_waitcnt lgkmcnt({3-t})
        v_pk_add_f32 v[{A}:{A+1}], v[{A}:{A+1}], v[{Pp}:{Pp+1}]
        v_pk_add_f32 v[{A+2}:{A+3}], v[{A+2}:{A+3}], v[{Pp+2}:{Pp+3}]
        v_cvt_pk_bf16_f32 v{24+2*(t%2)}, v{A}, v{A+1}
        v_cvt_pk_bf16_f32 v{25+2*(t%2)}, v{A+2}, v{A+3}
        buffer_store_dwordx2 v[{24+2*(t%2)}:{25+2*(t%2)}], v8, {srd(SRD_WS)}, s10 offen offset:{512*t} sc1
        """)
    ts(a, "k_st")
    a(f"""
    s_lshr_b32 s10, s70, 5
    s_lshl_b32 s11, s10, 10
    s_add_u32 s11, s11, {FL_CVD}
    s_lshl_b32 s10, s10, 7
    s_add_u32 s10, s10, {FL_CVC}
    """)
    publish_cnt(a, CNT_CV, 4, S_WS, 10, 32, 11, 8, 8, 9)
    ts(a, "k_end")

def build():
    a = Asm()
    a.label("L_START")
    prologue(a)
    g_path(a)
    ts_dump(a)
    a("s_branch L_END")
    a.label("R_KC")
    kc_path(a)
    ts_dump(a)
    a("s_branch L_END")
    a.label("R_SPARE")
    spare_path(a)
    ts_dump(a)
    a("s_branch L_END")
    for t in TAIL: a(t)
    return a

def finish(a, name, vgpr=256):
    lines, npad = pad_hazards(a.lines)
    body = "\n".join(("    " + l if not l.endswith(":") else l) for l in lines)
    body = body.replace("L_END", f"{name}_END").replace("L_BAIL", f"{name}_BAIL")
    hdr = open(f"cdna_kernels/{NAME}.s.ref").read().split("; Override launch")[0].rstrip("\n")
    txt = f"""{hdr}
; @launch grid=(256,1,1) block=(512,1,1) lds=163840
.amdgcn_target "amdgcn-amd-amdhsa--gfx950"
.text
.globl {name}
.p2align 8
.type {name},@function
{name}:
{body}
{name}_BAIL:
    s_mov_b64 exec, 1
    v_mov_b32 v1, 0
    v_mov_b32 v2, s2
    v_lshl_or_b32 v2, v2, 4, s3
    v_or_b32 v2, 0xbad00000, v2
    global_store_dword v1, v2, s[42:43]
    s_waitcnt vmcnt(0)
{name}_END:
    s_endpgm
L_CODE_END:
.section .rodata,"a"
.p2align 6
.amdhsa_kernel {name}
  .amdhsa_next_free_vgpr {vgpr}
  .amdhsa_next_free_sgpr 102
  .amdhsa_accum_offset {vgpr}
  .amdhsa_group_segment_fixed_size 0
  .amdhsa_kernarg_size 120
  .amdhsa_user_sgpr_count 2
  .amdhsa_user_sgpr_kernarg_segment_ptr 1
  .amdhsa_system_sgpr_workgroup_id_x 1
.end_amdhsa_kernel
"""
    print(f"{len(lines)} lines, {npad} nops", file=sys.stderr)
    if TS_ON: print("TSMAP", TSMAP, file=sys.stderr)
    return txt

if __name__ == "__main__":
    out = sys.argv[1]
    if len(sys.argv) > 2 and sys.argv[2] == "ts": TS_ON = True
    a = build()
    open(out, "w").write(finish(a, NAME + "_kernel"))
    if TS_ON:
        import json
        json.dump(TSMAP, open(out + ".tsmap", "w"))
```
